```python
import torch

def _softmax(x, axis=-1):
    return torch.softmax(x, dim=axis)

def _gelu(x):
    return torch.nn.functional.gelu(x, approximate='tanh')

def _silu(x):
    return torch.nn.functional.silu(x)

def _sigmoid(x):
    return torch.sigmoid(x)

def _layernorm(x, axis=-1, eps=1e-05):
    m = x.mean(dim=axis, keepdim=True)
    v = x.var(dim=axis, keepdim=True, unbiased=False)
    return (x - m) / torch.sqrt(v + eps)

def _scatter_add(tgt, idx, src, axis=0):
    return tgt.clone().index_add_(axis, idx, src)

def _segment_sum(src, seg, n):
    out = torch.zeros((n,) + src.shape[1:], dtype=src.dtype)
    return out.index_add_(0, seg, src)

def _pad(x, pw):
    flat = tuple((v for pair in reversed(pw) for v in pair))
    return torch.nn.functional.pad(x, flat)
kernel_name = 'recurrent_scan__memory_aug_recurrent_mem_tr__moe_arch_mod__prompt'

def setup_inputs():

    _w = lambda a: (lambda t: t.to(torch.bfloat16) if t.is_floating_point() else t)(torch.as_tensor(a))

    def _A_setup():
        B, S, Dm = (1, 2048, 640)
        H, Dh = (32, 128)
        M, seg = (8, 32)
        seg = min(seg, S)
        S = S // seg * seg
        return {'x': _w((lambda *s: torch.randn(*s, dtype=torch.bfloat16) * 0.05)(B, S, Dm)), 'mem0': _w((lambda *s: torch.randn(*s, dtype=torch.bfloat16) * 0.2)(B, M, Dm)), 'Wq': _w((lambda *s: torch.randn(*s, dtype=torch.bfloat16) * 1.6)(Dm, H, Dh) * Dm ** (-0.5)), 'Wk': _w((lambda *s: torch.randn(*s, dtype=torch.bfloat16) * 1.6)(Dm, H, Dh) * Dm ** (-0.5)), 'Wv': _w((lambda *s: torch.randn(*s, dtype=torch.bfloat16) * 0.2)(Dm, H, Dh) * Dm ** (-0.5)), 'Wo': _w((lambda *s: torch.randn(*s, dtype=torch.bfloat16) * 0.2)(H, Dh, Dm) * (H * Dh) ** (-0.5)), 'seg_len': seg}
    _A_in = _A_setup()

    def _B_setup():
        B, S, D, F, C = (1, 2048, 640, 1728, 8)
        return {'x': _w((lambda *s: torch.randn(*s, dtype=torch.bfloat16) * 0.05)(B, S, D)), 'w_r': _w((lambda *s: torch.randn(*s, dtype=torch.bfloat16) * 0.2)(D)), 'w_gate': _w((lambda *s: torch.randn(*s, dtype=torch.bfloat16) * 0.1)(D, F)), 'w_up': _w((lambda *s: torch.randn(*s, dtype=torch.bfloat16) * 0.1)(D, F)), 'w_down': _w((lambda *s: torch.randn(*s, dtype=torch.bfloat16) * 0.1)(F, D))}
    _B_in = _B_setup()
    return {'A_x': _A_in['x'], 'A_mem0': _A_in['mem0'], 'A_Wq': _A_in['Wq'], 'A_Wk': _A_in['Wk'], 'A_Wv': _A_in['Wv'], 'A_Wo': _A_in['Wo'], 'A_seg_len': _A_in['seg_len'], 'B_x': _B_in['x'], 'B_w_r': _B_in['w_r'], 'B_w_gate': _B_in['w_gate'], 'B_w_up': _B_in['w_up'], 'B_w_down': _B_in['w_down']}

def reference(A_x, A_mem0, A_Wq, A_Wk, A_Wv, A_Wo, A_seg_len, B_x, B_w_r, B_w_gate, B_w_up, B_w_down):

    def _A_ref(x, mem0, Wq, Wk, Wv, Wo, seg_len):
        B, S, Dm = x.shape
        H, Dh = (Wq.shape[1], Wq.shape[2])
        M = mem0.shape[1]
        scale = Dh ** (-0.5)
        n_seg = S // seg_len
        L = M + seg_len
        idx = torch.arange(L)
        mask = (idx[:, None] < M) | (idx[:, None] >= idx[None, :])
        mem = mem0
        outs = []
        for s in range(n_seg):
            xs = x[:, s * seg_len:(s + 1) * seg_len, :].clone()
            h = torch.concatenate([mem, xs], axis=1)
            q = torch.einsum('btd,dhe->bhte', h, Wq)
            k = torch.einsum('btd,dhe->bhte', h, Wk)
            v = torch.einsum('btd,dhe->bhte', h, Wv)
            scores = torch.einsum('bhqe,bhke->bhqk', q, k) * scale
            scores = torch.where(mask[None, None], scores, -1000000000.0)
            p = _softmax(scores, axis=-1)
            o = torch.einsum('bhqk,bhke->bhqe', p, v)
            o = torch.einsum('bhte,hed->btd', o, Wo)
            mem = o[:, :M, :].clone()
            outs.append(o[:, M:, :])
        return torch.concatenate(outs, axis=1)

    def _B_ref(x, w_r, w_gate, w_up, w_down):
        B, S, D = x.shape
        C = 8
        r = x @ w_r
        idx = torch.argsort(-r, axis=-1)[:, :C]
        idx_e = (lambda x, n, axis: torch.repeat_interleave(x, n, dim=axis))(idx.reshape(B, C, 1), D, axis=2)
        x_sel = (lambda x, i, axis: torch.take_along_dim(x, i, dim=axis))(x, idx_e, axis=1)
        g = _silu(x_sel @ w_gate)
        u = x_sel @ w_up
        y = g * u @ w_down
        r_sel = _sigmoid((lambda x, i, axis: torch.take_along_dim(x, i, dim=axis))(r, idx, axis=1))
        y = y * r_sel.reshape(B, C, 1)
        b_off = (torch.arange(B) * S).reshape(B, 1)
        flat_idx = (idx + b_off).reshape(B * C)
        zero = (x * 0.0).reshape(B * S, D)
        upd = _scatter_add(zero, flat_idx, y.reshape(B * C, D), axis=0)
        return x + upd.reshape(B, S, D)
    x = A_x
    xn = _layernorm(x, axis=-1)
    s = _A_ref(xn, A_mem0, A_Wq, A_Wk, A_Wv, A_Wo, A_seg_len)
    g = _silu(_B_ref(xn, B_w_r, B_w_gate, B_w_up, B_w_down))
    return x + s * g
```

```python
import re

class Prog:
    def __init__(self):
        self.lines = []
        self._uid = 0
    def __call__(self, s):
        for l in s.strip("\n").split("\n"):
            l = l.strip()
            if l: self.lines.append(l)
    def label(self, name): self.lines.append(name + ":")
    def c(self, text): self.lines.append("; " + text)
    def uid(self, base):
        self._uid += 1
        return "%s_%d" % (base, self._uid)
    def nop(self, n):
        while n > 0:
            k = min(n, 16)
            self("s_nop %d" % (k - 1)); n -= k
    def text(self):
        out = []
        for l in self.lines:
            if l.endswith(":") or l.startswith(".") : out.append(l)
            else: out.append("    " + l)
        return "\n".join(out) + "\n"

class Counter:
    def __init__(self, prog, name, maxv):
        self.p, self.name, self.maxv = prog, name, maxv
        self.q = []
    def issue(self, tag): self.q.append(tag)
    def n_for(self, tag):
        idx = max(i for i, t in enumerate(self.q) if t == tag)
        return len(self.q) - 1 - idx
    def wait(self, tag):
        if tag not in self.q: return
        n = self.n_for(tag)
        assert n <= self.maxv, (self.name, tag, n)
        self.p("s_waitcnt %s(%d)" % (self.name, n))
        self.q = self.q[len(self.q) - n:] if n else []
    def wait_all(self):
        self.p("s_waitcnt %s(0)" % self.name); self.q = []
    def clear(self): self.q = []

def vr(base, n=1):
    return "v%d" % base if n == 1 else "v[%d:%d]" % (base, base + n - 1)
def ar(base, n=1):
    return "a%d" % base if n == 1 else "a[%d:%d]" % (base, base + n - 1)
def sr(base, n=1):
    return "s%d" % base if n == 1 else "s[%d:%d]" % (base, base + n - 1)

_REG = re.compile(r"^(-|abs\()?\s*([vas])(\d+)\)?$|^(-|abs\()?\s*([vas])\[(\d+):(\d+)\]\)?$")
def regs_of(op):
    op = op.strip()
    m = _REG.match(op)
    if not m:
        if op in ("vcc", "exec", "m0", "scc"): return {op}
        if op in ("vcc_lo", "vcc_hi"): return {"vcc"}
        if op in ("exec_lo", "exec_hi"): return {"exec"}
        return set()
    if m.group(2): return {m.group(2) + m.group(3)}
    return {m.group(5) + str(i) for i in range(int(m.group(6)), int(m.group(7)) + 1)}

TRANS = ("v_exp_f32", "v_log_f32", "v_rcp_f32", "v_rsq_f32", "v_sqrt_f32", "v_sin_f32", "v_cos_f32", "v_rcp_iflag_f32")
RMW = ("v_fmac_f32", "v_dot2c_f32_bf16", "v_pk_fmac_f16", "v_mac_f32")

class Ins:
    def __init__(self, text):
        self.text = text
        t = text.split(";")[0].strip()
        parts = t.split(None, 1)
        self.op = parts[0]
        rest = parts[1] if len(parts) > 1 else ""
        toks = []; depth = 0; cur = ""
        for ch in rest:
            if ch in "[(": depth += 1
            if ch in "])": depth -= 1
            if ch == "," and depth == 0: toks.append(cur.strip()); cur = ""
            else: cur += ch
        if cur.strip(): toks.append(cur.strip())
        self.mods = ""
        if toks:
            last = toks[-1].split(None, 1)
            if len(last) > 1 and not last[0].startswith("hwreg"):
                toks[-1] = last[0]; self.mods = last[1]
        self.ops = toks
        op = self.op
        self.base = re.sub(r"_(e32|e64|dpp|sdwa)$", "", op)
        self.is_smfmac = op.startswith("v_smfmac")
        self.is_mfma = op.startswith("v_mfma") or self.is_smfmac
        self.is_valu = op.startswith("v_") and not self.is_mfma
        self.is_trans = self.base in TRANS
        self.is_dpp = op.endswith("_dpp") or "row_" in self.mods or "quad_perm" in self.mods
        self.is_perml = op.startswith("v_permlane")
        self.is_rdlane = op.startswith("v_readlane") or op.startswith("v_readfirstlane")
        self.is_vmem = op.startswith("buffer_") or op.startswith("global_")
        self.is_ds = op.startswith("ds_")
        self.is_salu = op.startswith("s_")
        self.lds_dma = self.is_vmem and re.search(r"\blds\b", self.mods) is not None
        R = [regs_of(o) for o in toks]
        d, u = set(), set()
        self.srcA = self.srcB = self.srcC = set()
        if self.is_mfma:
            d = R[0]; self.srcA, self.srcB = R[1], R[2]
            if self.is_smfmac: self.srcC = R[0]; self.idx = R[3]; u = R[0] | R[1] | R[2] | R[3]
            else: self.srcC = R[3]; self.idx = set(); u = R[1] | R[2] | R[3]
        elif self.is_valu:
            if self.is_perml and "swap" in op:
                d = R[0] | R[1]; u = R[0] | R[1]
            elif op.startswith("v_cmp"):
                d = R[0]; u = set().union(*R[1:])
            else:
                d = R[0]; u = set().union(*R[1:]) if len(R) > 1 else set()
                if self.base in RMW: u |= R[0]
                if self.base == "v_cndmask_b32" and len(R) == 3: u |= {"vcc"}
                if self.is_dpp: u |= R[0]
                if self.base in ("v_add_co_u32", "v_addc_co_u32", "v_sub_co_u32"):
                    d = R[0] | R[1]; u = set().union(*R[2:])
        elif self.is_vmem:
            if op in ("buffer_inv", "buffer_wbl2"): pass
            elif "load" in op and not self.lds_dma:
                d = R[0]; u = set().union(*R[1:])
            elif self.lds_dma:
                u = set().union(*R) | {"m0"}
            elif "atomic" in op:
                u = set().union(*R)
                if "sc0" in self.mods: d = R[0]
            else:
                u = set().union(*R)
            self.store_data = R[0] if ("store" in op and op.startswith("buffer_")) else (R[1] if "store" in op else set())
        elif self.is_ds:
            if "read" in op or "bpermute" in op or "swizzle" in op: d = R[0]; u = set().union(*R[1:]) if len(R) > 1 else set()
            else: u = set().union(*R)
        elif self.is_salu:
            if op.startswith(("s_cmp", "s_cbranch", "s_branch", "s_waitcnt", "s_nop", "s_barrier", "s_endpgm", "s_sleep", "s_setprio")):
                u = set().union(*R) if R else set()
                if op.startswith("s_cbranch_vcc"): u |= {"vcc"}
            else:
                d = R[0] if R else set(); u = set().union(*R[1:]) if len(R) > 1 else set()
                if "saveexec" in op: d |= {"exec"}; u |= {"exec"}
        self.d, self.u = d, u
        self.states = 1
        if op == "s_nop": self.states = int(toks[0], 0) + 1
        self.passes = 8 if ("32x32" in op) else 4

def isv(r): return r[0] in "va" and r[1:].isdigit()
def iss(r): return (r[0] == "s" and r[1:].isdigit()) or r == "vcc"

PHYS = True
def check(lines, name="", window=24):
    ins = [Ins(l) for l in lines if l and not l.endswith(":") and not l.startswith(";") and not l.startswith(".")]
    probs = []
    for b in ins:
        m = re.search(r'offset:(\d+)', b.mods)
        if m and b.op.startswith('buffer_') and int(m.group(1)) > 4095: probs.append('%s: offset too large: %s' % (name, b.text))
    T = []; t = 0; pipe = 0
    for x in ins:
        if x.is_mfma and PHYS: t = max(t, pipe)
        T.append(t)
        if x.is_mfma: pipe = t + 4 * x.passes
        t += 4 * x.states
    for j, b in enumerate(ins):
        for i in range(j - 1, max(-1, j - window - 1), -1):
            a = ins[i]
            dist = (T[j] - T[i]) // 4 - a.states + (a.states - 1 if False else 0)
            if a.op == "s_nop": continue
            need = 0; why = ""
            def req(n, w):
                nonlocal need, why
                if n > need: need, why = n, w
            vd = {r for r in a.d if isv(r)}
            sd = {r for r in a.d if iss(r)}
            if a.is_valu:
                if b.is_mfma and vd & b.u: req(2, "VALU->MFMA")
                if b.is_valu and b.is_dpp and vd & b.u: req(2, "VALU->DPP")
                if b.is_perml and vd & b.u: req(2, "VALU->permlane")
                if b.is_rdlane and vd & b.u: req(1, "VALU->readlane")
                if a.is_trans and b.is_valu and not b.is_trans and vd & b.u: req(1, "trans->VALU")
                if a.is_trans and (b.is_mfma or b.is_vmem or b.is_ds) and vd & b.u: req(1, "trans->use")
                if sd:
                    if b.is_valu and sd & b.u: req(2, "VALU sgpr->VALU")
                    if b.is_vmem and sd & b.u: req(5, "VALU sgpr->VMEM")
                    if b.is_rdlane and sd & b.u: req(4, "VALU sgpr->lane select")
            if a.is_mfma:
                p = a.passes
                rawAB = {4: 8, 8: 12}[p]; ovl = {4: 6, 8: 10}[p]; war = {4: 3, 8: 7}[p]
                if b.is_mfma:
                    if vd & (b.srcA | b.srcB | getattr(b, "idx", set())): req(rawAB, "MFMA->MFMA A/B")
                    if vd & b.srcC and (b.srcC != a.d or b.op != a.op): req(ovl, "MFMA->MFMA C overlap")
                    if vd & b.d and not (vd & b.srcC): req(ovl, "MFMA->MFMA WAW")
                else:
                    if vd & (b.u | b.d): req(rawAB, "MFMA->%s" % b.op)
                    if b.is_valu and a.srcC & b.d: req(war, "MFMA C WAR")
            if a.is_vmem and "store" in a.op and ("x4" in a.op or "x3" in a.op):
                sdv = {r for r in a.store_data if isv(r)}
                if sdv & b.d: req(2 if b.is_valu else 1, "store data WAR")
            if a.is_salu and "m0" in a.d and b.lds_dma if hasattr(b, "lds_dma") else False: req(1, "m0->lds dma")
            if need > dist:
                probs.append("%s: need %d have %d (%s): [%s] -> [%s]" % (name, need, dist, why, a.text, b.text))
            if dist >= 24: break
    return probs
```

```python
from asm import *
from layout import *
from gemm import sWS, sH, sW, sHALF
from mkv import spin_flags, sSPIN

sS, sIT = 24, 25
sQ, sKV, sKM, sVM, sOF, sFO = 26, 27, 30, 31, 32, 33
sC = 34
sLO32 = 36
sMK = 38
sT0, sT1, sT2 = 64, 65, 66
vL16, vKMA, vVMA, vFLA = 1, 2, 3, 4
vQ, vK, vV, vKM, vVM = 16, 48, 80, 112, 128
vS = 144
vP = 164
vO = 176
vSUM, vONE = 240, 248
t0, t1, t2, t3 = 8, 9, 10, 11

def emit_att(p, name, it0=0, it1=8):
    p("s_mov_b32 s%d, 0" % sSPIN)
    p("v_lshlrev_b32 v%d, 4, v0" % vL16)
    p("v_lshrrev_b32 v5, 4, v0"); p("v_lshlrev_b32 v%d, 7, v5" % vKMA)
    p("v_and_b32 v5, 7, v0"); p("v_lshl_add_u32 v%d, v5, 4, v%d" % (vKMA, vKMA))
    p("v_bfe_u32 v5, v0, 4, 1"); p("v_lshlrev_b32 v%d, 7, v5" % vVMA)
    p("v_and_b32 v5, 15, v0"); p("v_lshl_add_u32 v%d, v5, 3, v%d" % (vVMA, vVMA))
    p("s_mov_b32 s%d, 0x3e0293ee" % sC); p("s_mov_b32 s%d, 0x3e0293ee" % (sC + 1))
    p("s_mov_b32 s%d, -1" % sLO32); p("s_mov_b32 s%d, 0" % (sLO32 + 1))
    p("v_lshrrev_b32 v5, 4, v0"); p("v_lshlrev_b32 v5, 2, v5"); p("v_and_b32 v6, 15, v0")
    for i in range(4):
        p("v_add_u32 v7, %d, v5" % i); p("v_cmp_le_u32 s[%d:%d], v7, v6" % (sMK + 2 * i, sMK + 2 * i + 1))
    for i in range(4): p("v_mov_b32 v%d, 0x3f803f80" % (vONE + i))
    p("s_lshl_b32 s%d, s%d, 2" % (sS, sHALF)); p("s_add_u32 s%d, s%d, s%d" % (sS, sS, sW))
    if it0: p("s_add_u32 s%d, s%d, %d" % (sS, sS, 8 * it0))
    p("s_mov_b32 s%d, %d" % (sIT, it0))
    loop = name + "_LOOP"
    p.label(loop)
    p("s_lshl_b32 s%d, s%d, 5" % (sT0, sS)); p("s_add_u32 s%d, s%d, s%d" % (sT0, sT0, sH))
    p("s_lshl_b32 s%d, s%d, 13" % (sQ, sT0)); p("s_add_u32 s%d, s%d, 0x%x" % (sQ, sQ, QF))
    p("s_lshl_b32 s%d, s%d, 14" % (sKV, sT0)); p("s_add_u32 s%d, s%d, 0x%x" % (sKV, sKV, KF))
    p("s_lshl_b32 s%d, s%d, 11" % (sT1, sT0))
    p("s_add_u32 s%d, s%d, 0x%x" % (sKM, sT1, KMF)); p("s_add_u32 s%d, s%d, 0x%x" % (sVM, sT1, VMF))
    p("s_lshl_b32 s%d, s%d, 2" % (sFO, sT0)); p("s_add_u32 s%d, s%d, 0x%x" % (sFO, sFO, FLG_O))
    p("s_lshl_b32 s%d, s%d, 18" % (sOF, sS)); p("s_lshl_b32 s%d, s%d, 12" % (sT1, sH))
    p("s_add_u32 s%d, s%d, s%d" % (sOF, sOF, sT1)); p("s_add_u32 s%d, s%d, 0x%x" % (sOF, sOF, OF))
    p("s_lshr_b32 s%d, s%d, 2" % (sT1, sS)); p("s_lshl_b32 s%d, s%d, 9" % (sT1, sT1)); p("s_lshl_b32 s%d, s%d, 4" % (sT2, sH))
    p("s_add_u32 s%d, s%d, s%d" % (sT1, sT1, sT2)); p("s_add_u32 s%d, s%d, 0x%x" % (sT1, sT1, FLG_KVQ))
    p("s_lshr_b32 s%d, s%d, 1" % (sT2, sS)); p("s_lshl_b32 s%d, s%d, 8" % (sT2, sT2)); p("s_lshl_b32 s%d, s%d, 3" % (sT0, sH))
    p("s_add_u32 s%d, s%d, s%d" % (sT2, sT2, sT0)); p("s_add_u32 s%d, s%d, 0x%x" % (sT2, sT2, FLG_KM - 12))
    p("v_lshlrev_b32 v5, 2, v0")
    p("v_mov_b32 v6, s%d" % sT1); p("v_mov_b32 v7, s%d" % sT2)
    p("v_cmp_gt_u32 vcc, 3, v0"); p.nop(2)
    p("v_cndmask_b32 v6, v7, v6, vcc"); p("v_add_u32 v%d, v5, v6" % vFLA)
    p("s_mov_b32 s%d, 0" % sT0)
    p("s_mov_b64 exec, 7")
    spin_flags(p, 5, 3, vFLA, sT0, True, name + "_F")
    p("s_mov_b64 exec, -1")
    vm = Counter(p, "vmcnt", 63)
    for f in range(8):
        if f == 4: p("s_add_u32 s%d, s%d, 4096" % (sQ, sQ))
        p("buffer_load_dwordx4 %s, v%d, s[%d:%d], s%d offen offset:%d" % (vr(vQ + 4 * f, 4), vL16, sWS, sWS + 3, sQ, (f % 4) * 1024)); vm.issue("q")
    for f in range(8):
        if f == 4: p("s_add_u32 s%d, s%d, 4096" % (sKV, sKV))
        p("buffer_load_dwordx4 %s, v%d, s[%d:%d], s%d offen offset:%d" % (vr(vK + 4 * f, 4), vL16, sWS, sWS + 3, sKV, (f % 4) * 1024)); vm.issue("k")
    for f in range(8):
        if f % 4 == 0: p("s_add_u32 s%d, s%d, 4096" % (sKV, sKV))
        p("buffer_load_dwordx4 %s, v%d, s[%d:%d], s%d offen offset:%d" % (vr(vV + 4 * f, 4), vL16, sWS, sWS + 3, sKV, (f % 4) * 1024)); vm.issue("v")
    p("s_mov_b64 exec, 0x18")
    spin_flags(p, 5, 2, vFLA, sT0, True, name + "_G")
    p("s_mov_b64 exec, -1")
    vm.clear()
    for kk in range(4):
        p("buffer_load_dwordx4 %s, v%d, s[%d:%d], s%d offen offset:%d" % (vr(vKM + 4 * kk, 4), vKMA, sWS, sWS + 3, sKM, kk * 512)); vm.issue("km")
    for e in range(8):
        p("buffer_load_dwordx2 %s, v%d, s[%d:%d], s%d offen offset:%d" % (vr(vVM + 2 * e, 2), vVMA, sWS, sWS + 3, sVM, e * 256)); vm.issue("vm")
    def mf(d, a, b, first): p("v_mfma_f32_16x16x32_bf16 %s, %s, %s, %s" % (vr(d, 4), vr(a, 4), vr(b, 4), "0" if first else vr(d, 4)))
    M0, A0, M1, B0, B1 = vS, vS + 4, vS + 8, vS + 12, vS + 16
    for kk in range(4):
        mf(A0, vK + 4 * kk, vQ + 4 * kk, kk == 0)
        mf(B0, vK + 4 * kk, vQ + 16 + 4 * kk, kk == 0)
        mf(B1, vK + 16 + 4 * kk, vQ + 16 + 4 * kk, kk == 0)
    vm.wait("km")
    for kk in range(4):
        mf(M0, vKM + 4 * kk, vQ + 4 * kk, kk == 0)
        mf(M1, vKM + 4 * kk, vQ + 16 + 4 * kk, kk == 0)
    p("v_mov_b32 v%d, 0xff800000" % t3)
    p.nop(8)
    for i in range(4):
        for tile in (A0, B1): p("v_cndmask_b32 v%d, v%d, v%d, s[%d:%d]" % (tile + i, t3, tile + i, sMK + 2 * i, sMK + 2 * i + 1))
        for tile in (M0, M1): p("v_cndmask_b32 v%d, v%d, v%d, s[%d:%d]" % (tile + i, t3, tile + i, sLO32, sLO32 + 1))
    for q, tiles in ((0, (M0, A0)), (1, (M1, B0, B1))):
        regs = [t + i for t in tiles for i in range(4)]
        p("v_max3_f32 v%d, v%d, v%d, v%d" % (t0, regs[0], regs[1], regs[2]))
        k = 3
        while k < len(regs):
            if k + 1 < len(regs): p("v_max3_f32 v%d, v%d, v%d, v%d" % (t0, t0, regs[k], regs[k + 1])); k += 2
            else: p("v_max_f32 v%d, v%d, v%d" % (t0, t0, regs[k])); k += 1
        p("v_mov_b32 v%d, v%d" % (t1, t0)); p.nop(2)
        p("v_permlane16_swap_b32 v%d, v%d" % (t0, t1)); p("v_max_f32 v%d, v%d, v%d" % (t0, t0, t1))
        p("v_mov_b32 v%d, v%d" % (t1, t0)); p.nop(2)
        p("v_permlane32_swap_b32 v%d, v%d" % (t0, t1)); p("v_max_f32 v%d, v%d, v%d" % (t0, t0, t1))
        p("v_mul_f32 v%d, s%d, v%d" % (t0, sC, t0))
        for r in regs: p("v_fma_f32 v%d, v%d, s%d, -v%d" % (r, r, sC, t0))
        for r in regs: p("v_exp_f32 v%d, v%d" % (r, r))
        p.nop(1)
        PX, PM = vP + 6 * q, vP + 6 * q + 4
        X0 = tiles[1]
        p("v_cvt_pk_bf16_f32 v%d, v%d, v%d" % (PX, X0, X0 + 1)); p("v_cvt_pk_bf16_f32 v%d, v%d, v%d" % (PX + 1, X0 + 2, X0 + 3))
        if q == 0: p("v_mov_b32 v%d, 0" % (PX + 2)); p("v_mov_b32 v%d, 0" % (PX + 3))
        else: p("v_cvt_pk_bf16_f32 v%d, v%d, v%d" % (PX + 2, B1, B1 + 1)); p("v_cvt_pk_bf16_f32 v%d, v%d, v%d" % (PX + 3, B1 + 2, B1 + 3))
        p("v_cvt_pk_bf16_f32 v%d, v%d, v%d" % (PM, tiles[0], tiles[0] + 1)); p("v_cvt_pk_bf16_f32 v%d, v%d, v%d" % (PM + 1, tiles[0] + 2, tiles[0] + 3))
    vm.wait_all()
    for q in range(2): mf(vSUM + 4 * q, vONE, vP + 6 * q, True)
    for e in range(8):
        for q in range(2): mf(vO + (2 * e + q) * 4, vV + 4 * e, vP + 6 * q, True)
    for q in range(2):
        p("v_mfma_f32_16x16x16_bf16 %s, %s, %s, %s" % (vr(vSUM + 4 * q, 4), vr(vONE, 2), vr(vP + 6 * q + 4, 2), vr(vSUM + 4 * q, 4)))
    for e in range(8):
        for q in range(2):
            d = vO + (2 * e + q) * 4
            p("v_mfma_f32_16x16x16_bf16 %s, %s, %s, %s" % (vr(d, 4), vr(vVM + 2 * e, 2), vr(vP + 6 * q + 4, 2), vr(d, 4)))
    p("v_rcp_f32 v%d, v%d" % (t0, vSUM)); p("v_rcp_f32 v%d, v%d" % (t1, vSUM + 4))
    p.nop(8)
    n = 0
    for q in range(2):
        for kk in range(4):
            pk = vQ + 4 * (n % 8); n += 1
            for z in range(2):
                d = vO + (2 * (2 * kk + z) + q) * 4
                for i in range(4): p("v_mul_f32 v%d, v%d, v%d" % (d + i, d + i, t0 + q))
                p("v_cvt_pk_bf16_f32 v%d, v%d, v%d" % (pk + 2 * z, d, d + 1)); p("v_cvt_pk_bf16_f32 v%d, v%d, v%d" % (pk + 2 * z + 1, d + 2, d + 3))
            p("s_add_u32 s%d, s%d, 0x%x" % (sT0, sOF, q * 131072))
            p("buffer_store_dwordx4 %s, v%d, s[%d:%d], s%d offen offset:%d sc1" % (vr(pk, 4), vL16, sWS, sWS + 3, sT0, kk * 1024))
    p("s_waitcnt vmcnt(0)")
    p("v_mov_b32 v7, 1"); p("v_mov_b32 v8, 0"); p("s_mov_b64 exec, 1")
    p("buffer_store_dword v7, v8, s[%d:%d], s%d offen sc1" % (sWS, sWS + 3, sFO)); p("s_mov_b64 exec, -1")
    p("s_add_u32 s%d, s%d, 8" % (sS, sS)); p("s_add_u32 s%d, s%d, 1" % (sIT, sIT))
    p("s_cmp_lt_u32 s%d, %d" % (sIT, it1)); p("s_cbranch_scc1 %s" % loop)
```

```python
from asm import *
from layout import *

sWS = 4
sWT = 44
sH, sW, sHALF = 13, 14, 12
sDB = 16
sDSEG = 17
sFLAG = 18
sB = 19
sXB = 20
sRB = 21
sT0, sT1, sT2 = 64, 65, 66
sDCUR, sFCUR = 22, 23
vL16, vX, vR0, vR1, vG = 1, 2, 3, 4, 5
vACC = 16
vWF = 96
aXF = 0
import os
DBGT = int(os.environ.get('DBGT', '0'))
GV = int(os.environ.get('GV', '0'))
NB = 5
vPK = 80

def acc(tt, T): return vACC + (T * 2 + tt) * 4
def wf(ks, tt): return vWF + (ks * 2 + tt) * 4

def load_w128(p, srd, soff_reg, row_stride, vg_tmp=(5, 3, 4, 6)):
    vG_, vR0_, vR1_, t = vg_tmp
    vm = Counter(p, "vmcnt", 63)
    p("s_mul_i32 s%d, s%d, 36864" % (sRB, sW))
    p("v_lshrrev_b32 v%d, 2, v0" % t); p("v_mul_u32_u24 v%d, %d, v%d" % (vG_, row_stride, t))
    p("v_lshrrev_b32 v%d, 5, v0" % t); p("v_lshlrev_b32 v%d, 1, v%d" % (t, t))
    p("v_and_b32 v7, 3, v0"); p("v_xor_b32 v%d, v%d, v7" % (t, t)); p("v_lshl_add_u32 v%d, v%d, 4, v%d" % (vG_, t, vG_))
    p("v_lshrrev_b32 v%d, 5, v0" % t); p("v_lshlrev_b32 v%d, 10, v%d" % (vR0_, t))
    p("v_bfe_u32 v%d, v0, 2, 2" % t); p("v_lshl_add_u32 v%d, v%d, 6, v%d" % (vR0_, t, vR0_))
    p("v_and_b32 v%d, 3, v0" % t); p("v_lshl_add_u32 v%d, v%d, 3, v%d" % (vR0_, t, vR0_))
    p("v_bfe_u32 v%d, v0, 4, 1" % t); p("v_lshl_add_u32 v%d, v%d, 9, v%d" % (vR0_, t, vR0_))
    p("v_add_u32 v%d, s%d, v%d" % (vR0_, sRB, vR0_))
    p("v_lshlrev_b32 v%d, 5, v%d" % (t, t))
    p("v_sub_u32 v%d, 32, v%d" % (vR1_, t)); p("v_add_u32 v%d, v%d, v%d" % (vR1_, vR1_, vR0_))
    p("v_add_u32 v%d, v%d, v%d" % (vR0_, vR0_, t))
    def issue(n):
        for a in range(4):
            p("s_add_u32 m0, s%d, %d" % (sRB, (n % 9) * 4096 + a * 1024))
            p("s_add_u32 s%d, s%d, 0x%x" % (sT0, soff_reg, (64 * n + 16 * a) * row_stride))
            p("buffer_load_dwordx4 v%d, s[%d:%d], s%d offen lds" % (vG_, srd, srd + 3, sT0)); vm.issue(n)
    for n in range(9): issue(n)
    for n in range(10):
        vm.wait(n)
        so = (n % 9) * 4096
        for k2 in range(2):
            for tt in range(2):
                for r in range(2):
                    p("ds_read_b64_tr_b16 %s, v%d offset:%d" % (vr(wf(2 * n + k2, tt) + 2 * r, 2), vR0_ if tt == 0 else vR1_, so + k2 * 2048 + r * 256))
        p("s_waitcnt lgkmcnt(0)")
        if n + 9 < 10: issue(n + 9)

def flag_store(p, soff):
    lf = p.uid("GF")
    p("s_cmp_lg_u32 s%d, 0" % sW); p("s_cbranch_scc1 %s" % lf)
    p("v_mov_b32 v7, 1"); p("v_mov_b32 v8, 0"); p("s_mov_b64 exec, 1")
    p("buffer_store_dword v7, v8, s[%d:%d], s%d offen sc1" % (sWS, sWS + 3, soff)); p("s_mov_b64 exec, -1")
    p.label(lf)

def emit_gemm(p, kind, name, wait_init):
    vm = Counter(p, "vmcnt", 63); lg = Counter(p, "lgkmcnt", 15)
    p("v_lshlrev_b32 v%d, 4, v0" % vL16)
    p("v_lshrrev_b32 v6, 3, v0"); p("v_mul_u32_u24 v%d, 1280, v6" % vX)
    p("v_and_b32 v7, 7, v0"); p("v_xor_b32 v7, v7, v6"); p("v_lshl_add_u32 v%d, v7, 4, v%d" % (vX, vX))
    p("v_bfe_u32 v6, v0, 3, 1"); p("v_lshlrev_b32 v9, 10, v6")
    p("v_and_b32 v6, 7, v0"); p("v_lshl_add_u32 v9, v6, 7, v9")
    p("v_lshrrev_b32 v7, 4, v0"); p("v_xor_b32 v7, v7, v6")
    p("v_lshl_add_u32 v%d, v7, 4, v9" % vR0)
    p("v_xor_b32 v7, 4, v7"); p("v_lshl_add_u32 v%d, v7, 4, v9" % vR1)
    p("v_add_u32 v6, 0x10000, v%d" % vR0); p("v_add_u32 v9, 0x10000, v%d" % vR1)
    wait_init(p)
    p("s_barrier")
    p("s_mul_i32 s%d, s%d, %d" % (sXB, sHALF, 128 * 1280)); p("s_mul_i32 s%d, s%d, %d" % (sT0, sW, 32 * 1280))
    p("s_add_u32 s%d, s%d, s%d" % (sXB, sXB, sT0)); p("s_add_u32 s%d, s%d, 0x%x" % (sXB, sXB, XN))
    p("s_lshl_b32 s%d, s%d, 12" % (sRB, sW))
    def dma_list(i):
        nxt, c = divmod(i, 10); slot = i % NB; out = []
        for q in range(4):
            out.append("s_add_u32 m0, s%d, %d" % (sRB, slot * 16384 + q * 1024))
            out.append("s_add_u32 s%d, s%d, 0x%x" % (sT0, sXB, nxt * 256 * 1280 + q * 8 * 1280 + 128 * c))
            out.append("buffer_load_dwordx4 v%d, s[%d:%d], s%d offen lds" % (vX, sWS, sWS + 3, sT0))
        return out
    def emit(ins, i):
        if GV == 3 and ins.startswith("buffer") and i >= NB - 1: p("s_mov_b32 s%d, 0x%x" % (sT0, OOB))
        p(ins)
        if ins.startswith("buffer"): vm.issue(("c", i))
    def dma(i):
        for ins in dma_list(i): emit(ins, i)
    def xread(set_, slot, k2):
        areg = [vR0, vR1][k2] if slot < 4 else [6, 9][k2]
        return ["ds_read_b128 %s, v%d offset:%d" % (ar(aXF + set_ * 32 + 4 * T, 4), areg, (slot % 4) * 16384 + T * 2048) for T in range(8)]
    for i in range(NB - 1): dma(i)
    p("s_mov_b32 s%d, 0x%x" % (sT0, OOB))
    for i in range(8): p("buffer_store_dword v7, v%d, s[%d:%d], s%d offen" % (vL16, sWS, sWS + 3, sT0)); vm.issue("st")
    vm.wait(("c", 0)); p("s_barrier")
    for ins in xread(0, 0, 0): p(ins)
    p("s_mov_b32 s%d, 0" % sB)
    p("s_mov_b32 s%d, s%d" % (sDCUR, sDB)); p("s_mov_b32 s%d, 0x%x" % (sFCUR, OOB))
    loop = name + "_LOOP"
    if DBGT: p("s_memrealtime s[70:71]"); p("s_memtime s[74:75]")
    p.label(loop)
    lg.clear()
    for T in range(8): lg.issue(("x", 0, T))
    for c in range(10):
        slot = c % NB
        for k2 in range(2):
            ks = 2 * c + k2
            nslot, nk2 = (slot, 1) if k2 == 0 else ((c + 1) % NB, 0)
            rd = xread(1 - k2, nslot, nk2)
            if k2 == 1:
                vm.wait(("c", c + 1)); p("s_barrier")
                if c == 3: flag_store(p, sFCUR)
                pend = dma_list(c + NB - 1)
            else: pend = []
            for T in range(8):
                if T % 4 == 0: lg.wait(("x", k2, T + 3))
                for tt in range(2):
                    a_, x_ = vr(wf(ks, tt), 4), ar(aXF + k2 * 32 + 4 * T, 4)
                    cc = "0" if ks == 0 else vr(acc(tt, T), 4)
                    if kind == "T": p("v_mfma_f32_16x16x32_bf16 %s, %s, %s, %s" % (vr(acc(tt, T), 4), a_, x_, cc))
                    else: p("v_mfma_f32_16x16x32_bf16 %s, %s, %s, %s" % (vr(acc(tt, T), 4), x_, a_, cc))
                p(rd[T]); lg.issue(("x", 1 - k2, T))
                for _ in range(2 if T % 2 else 1):
                    if pend: emit(pend.pop(0), c + NB - 1)
    p.nop(6)
    for sg in range(4):
        p("s_mul_i32 s%d, s%d, %d" % (sT1, sDSEG, sg)); p("s_add_u32 s%d, s%d, s%d" % (sT1, sT1, sDCUR))
        for z in range(2):
            pk = vPK + 4 * ((2 * sg + z) % 4)
            if kind == "T":
                T = 2 * sg + z
                src = [acc(0, T), acc(0, T) + 2, acc(1, T), acc(1, T) + 2]
                p("s_add_u32 s%d, s%d, %d" % (sT0, sT1, z * 4096))
            else:
                src = [acc(z, 2 * sg), acc(z, 2 * sg) + 2, acc(z, 2 * sg + 1), acc(z, 2 * sg + 1) + 2]
                p("s_add_u32 s%d, s%d, %d" % (sT0, sT1, z * 1024))
            for q in range(4): p("v_cvt_pk_bf16_f32 v%d, v%d, v%d" % (pk + q, src[q], src[q] + 1))
            if GV == 1: p("s_mov_b32 s%d, 0x%x" % (sT0, OOB))
            p("buffer_store_dwordx4 %s, v%d, s[%d:%d], s%d offen %s" % (vr(pk, 4), vL16, sWS, sWS + 3, sT0, "" if GV == 2 else "sc1")); vm.issue("st")
    p("s_lshl_b32 s%d, s%d, 1" % (sT0, sB)); p("s_add_u32 s%d, s%d, s%d" % (sT0, sT0, sHALF))
    p("s_lshl_b32 s%d, s%d, 9" % (sT0, sT0)); p("s_add_u32 s%d, s%d, s%d" % (sFCUR, sFLAG, sT0))
    p("s_lshl_b32 s%d, s%d, 3" % (sT0, sDSEG)); p("s_add_u32 s%d, s%d, s%d" % (sDCUR, sDCUR, sT0))
    p("s_add_u32 s%d, s%d, 1" % (sB, sB))
    p("s_add_u32 s%d, s%d, 0x%x" % (sXB, sXB, 256 * 1280))
    assert [t for t in vm.q] == [("c", i) for i in range(11, 14) for _ in range(4)] + ["st"] * 8, vm.q
    p("s_cmp_lt_u32 s%d, 8" % sB); p("s_cbranch_scc1 %s" % loop)
    p("s_waitcnt vmcnt(0) lgkmcnt(0)"); p("s_barrier")
    flag_store(p, sFCUR)
    if DBGT:
        p("s_memrealtime s[72:73]"); p("s_memtime s[76:77]"); p("s_waitcnt lgkmcnt(0)"); p("s_sub_u32 s74, s76, s74")
        p("s_lshl_b32 s%d, s2, 4" % sT0); p("s_add_u32 s%d, s%d, 0x%x" % (sT0, sT0, DBG))
        p("v_mov_b32 v8, 0"); p("s_mov_b64 exec, 1")
        for i, r_ in enumerate((68, 70, 72, 74)):
            p("v_mov_b32 v7, s%d" % r_); p("buffer_store_dword v7, v8, s[%d:%d], s%d offen offset:%d" % (sWS, sWS + 3, sT0, 4 * i))
        p("s_mov_b64 exec, -1")

def setup_role(p, mat):
    if mat < 2:
        p("s_lshl_b32 s%d, s%d, 14" % (sDB, sH)); p("s_mov_b32 s%d, 0x%x" % (sDSEG, KV_S))
        p("s_lshl_b32 s%d, s%d, %d" % (sT0, sW, 10 if mat == 0 else 11))
        p("s_add_u32 s%d, s%d, 0x%x" % (sDB, sDB, KF if mat == 0 else VF))
    else:
        p("s_lshl_b32 s%d, s%d, 13" % (sDB, sH)); p("s_mov_b32 s%d, 0x%x" % (sDSEG, 32 * 8192))
        p("s_lshl_b32 s%d, s%d, 10" % (sT0, sW))
        p("s_add_u32 s%d, s%d, 0x%x" % (sDB, sDB, QF))
    p("s_add_u32 s%d, s%d, s%d" % (sDB, sDB, sT0))
    p("s_mul_i32 s%d, s%d, s%d" % (sT0, sHALF, sDSEG)); p("s_lshl_b32 s%d, s%d, 2" % (sT0, sT0))
    p("s_add_u32 s%d, s%d, s%d" % (sDB, sDB, sT0))
    p("s_lshl_b32 s%d, s%d, 4" % (sFLAG, sH)); p("s_add_u32 s%d, s%d, 0x%x" % (sFLAG, sFLAG, FLG_KVQ + 4 * mat))

def load_weights(p):
    p("s_lshl_b32 s%d, s%d, 8" % (sT1, sH)); p("s_lshl_b32 s%d, s%d, 6" % (sT2, sW)); p("s_add_u32 s%d, s%d, s%d" % (sXB, sT1, sT2))
    load_w128(p, sWT, sXB, 8192)
```

```python
from asm import *
from layout import *
from k0 import wave_sum, round_bf16, measure_cand

sDBG = 60
D_TICK, D_TSTRIDE = 0, 32
D_C1, D_C2, D_C3 = 4, 8, 12
D_CAND = 132
sINITC = 95
NHELP = 192

def dbg_srd(p):
    p("s_load_dwordx2 s[%d:%d], s[0:1], 104" % (sDBG, sDBG + 1))
    p("s_mov_b32 s%d, 256" % (sDBG + 2)); p("s_mov_b32 s%d, 0x00020000" % (sDBG + 3))

def spin_dbg(p, off_sgpr_or_const, cond, name, vtmp=8, n=1, sSP=65):
    l = p.uid(name); ld = p.uid(name + "D")
    p("s_mov_b32 s%d, 0" % sSP)
    p.label(l)
    so = off_sgpr_or_const if isinstance(off_sgpr_or_const, str) else "0"
    off = "" if isinstance(off_sgpr_or_const, str) else " offset:%d" % off_sgpr_or_const
    op = {1: "dword v%d" % vtmp, 2: "dwordx2 v[%d:%d]" % (vtmp, vtmp + 1)}[n]
    p("buffer_load_%s, off, s[%d:%d], %s%s sc1" % (op, sDBG, sDBG + 3, so, off))
    p("s_add_u32 s%d, s%d, 1" % (sSP, sSP))
    p("s_waitcnt vmcnt(0)")
    cond(p, ld)
    p("s_cmp_gt_u32 s%d, %d" % (sSP, 1 << 16)); p("s_cbranch_scc1 %s" % ld)
    p("s_sleep 4"); p("s_branch %s" % l)
    p.label(ld)

def wait_counter(p, count, off="s%d" % sINITC, name="IW"):
    def cond(q, ld):
        q("v_readfirstlane_b32 s64, v8"); q("s_cmp_ge_u32 s64, %d" % count); q("s_cbranch_scc1 %s" % ld)
    spin_dbg(p, off, cond, name)

def counter_add(p, off="s%d" % sINITC):
    p("v_mov_b32 v8, 1"); p("s_mov_b64 exec, 1")
    p("buffer_atomic_add v8, off, s[%d:%d], %s sc1" % (sDBG, sDBG + 3, off)); p("s_mov_b64 exec, -1")

def read_cand(p, s0, s1):
    def cond(q, ld):
        q("v_readfirstlane_b32 s%d, v8" % s0); q("v_readfirstlane_b32 s%d, v9" % s1)
        q("s_min_u32 s64, s%d, s%d" % (s0, s1)); q("s_cmp_lg_u32 s64, 0"); q("s_cbranch_scc1 %s" % ld)
    spin_dbg(p, D_CAND, cond, "CW", n=2)
    for r in (s0, s1): p("s_sub_u32 s%d, s%d, 1" % (r, r)); p("s_and_b32 s%d, s%d, 3" % (r, r))

def emit_measure(p, sW, sXCC):
    l = p.uid("NOMEAS")
    p("s_cmp_lg_u32 s%d, 0" % sW); p("s_cbranch_scc1 %s" % l)
    p("s_and_b32 s64, s2, 0xfffffffd"); p("s_cmp_lg_u32 s64, 1"); p("s_cbranch_scc1 %s" % l)
    p("s_lshr_b32 s70, s2, 1")
    for i in range(4): p("s_mov_b32 s%d, s%d" % (72 + i, sDBG + i))
    measure_cand(p, 4, 70, sXCC)
    p("s_add_u32 s71, s60, 1")
    for i in range(4): p("s_mov_b32 s%d, s%d" % (sDBG + i, 72 + i))
    p("s_lshl_b32 s70, s70, 2"); p("s_add_u32 s70, s70, %d" % D_CAND)
    p("v_mov_b32 v61, s71"); p("s_mov_b64 exec, 1")
    p("buffer_store_dword v61, off, s[%d:%d], s70 sc1" % (sDBG, sDBG + 3)); p("s_mov_b64 exec, -1")
    p.label(l)

def emit_init(p, sHI, sW):
    sXS, sWR, sM0 = 16, 20, 24
    sROW, sT0, sT1, sC0, sC1 = 28, 29, 30, 31, 32
    for dst, off, size in ((sXS, 0, S * D * 2), (sWR, 64, D * 2), (sM0, 8, M * D * 2)):
        p("s_load_dwordx2 s[%d:%d], s[0:1], %d" % (dst, dst + 1, off)); p("s_mov_b32 s%d, %d" % (dst + 2, size)); p("s_mov_b32 s%d, 0x00020000" % (dst + 3))
    p("s_lshl_b32 s%d, s%d, 2" % (sROW, sHI)); p("s_add_u32 s%d, s%d, s%d" % (sROW, sROW, sW)); p("s_mul_i32 s%d, s%d, 3" % (sROW, sROW))
    p("v_lshlrev_b32 v3, 4, v0"); p("v_lshlrev_b32 v4, 2, v0")
    p("s_waitcnt lgkmcnt(0)")
    X = [10, 16, 22]; W = 28
    for r in range(3):
        p("s_add_u32 s%d, s%d, %d" % (sT0, sROW, r)); p("s_mul_i32 s%d, s%d, 1280" % (33 + r, sT0))
        p("buffer_load_dwordx4 v[%d:%d], v3, s[%d:%d], s%d offen" % (X[r], X[r] + 3, sXS, sXS + 3, 33 + r))
        p("buffer_load_dword v%d, v4, s[%d:%d], s%d offen offset:1024" % (X[r] + 4, sXS, sXS + 3, 33 + r))
    p("buffer_load_dwordx4 v[%d:%d], v3, s[%d:%d], 0 offen" % (W, W + 3, sWR, sWR + 3))
    p("buffer_load_dword v%d, v4, s[%d:%d], 0 offen offset:1024" % (W + 4, sWR, sWR + 3))
    lm0 = p.uid("INM0")
    p("s_cmp_ge_u32 s%d, 10" % sHI); p("s_cbranch_scc1 %s" % lm0)
    p("v_and_b32 v5, 7, v0"); p("v_mul_u32_u24 v5, 1280, v5")
    p("v_lshrrev_b32 v6, 4, v0"); p("v_lshl_add_u32 v5, v6, 5, v5")
    p("v_bfe_u32 v6, v0, 3, 1"); p("v_lshl_add_u32 v5, v6, 4, v5")
    p("s_lshl_b32 s%d, s%d, 7" % (sT0, sHI))
    p("buffer_load_dwordx4 v[34:37], v5, s[%d:%d], s%d offen" % (sM0, sM0 + 3, sT0))
    p.label(lm0)
    p("s_waitcnt vmcnt(0)")
    for r in range(3):
        lskip = p.uid("INR")
        p("s_add_u32 s%d, s%d, %d" % (sT0, sROW, r)); p("s_cmp_ge_u32 s%d, %d" % (sT0, S)); p("s_cbranch_scc1 %s" % lskip)
        x = X[r]; lo, hi = 50, 60; acc, t = 70, 71
        for i in range(5):
            p("v_lshlrev_b32 v%d, 16, v%d" % (lo + i, x + i)); p("v_and_b32 v%d, 0xffff0000, v%d" % (hi + i, x + i))
        p("v_add_f32 v%d, v%d, v%d" % (acc, lo, hi))
        for i in range(1, 5): p("v_add_f32 v%d, v%d, v%d" % (acc, acc, lo + i)); p("v_add_f32 v%d, v%d, v%d" % (acc, acc, hi + i))
        wave_sum(p, acc, t)
        p("v_mul_f32 v72, 0x3acccccd, v%d" % acc)
        p("v_mov_b32 v73, 0")
        for i in range(5):
            for b in (lo, hi):
                p("v_sub_f32 v74, v%d, v72" % (b + i)); p("v_fmac_f32 v73, v74, v74")
        wave_sum(p, 73, t)
        p("v_mul_f32 v73, 0x3acccccd, v73")
        round_bf16(p, 72); round_bf16(p, 73)
        p("v_add_f32 v73, 0x3727c5ac, v73"); round_bf16(p, 73)
        p("v_sqrt_f32 v73, v73"); p.nop(1); round_bf16(p, 73)
        p("v_rcp_f32 v75, v73"); p.nop(1)
        p("v_mov_b32 v76, 0")
        for i in range(5):
            for b in (lo, hi):
                p("v_sub_f32 v%d, v%d, v72" % (b + i, b + i)); round_bf16(p, b + i)
                p("v_mul_f32 v74, v%d, v75" % (b + i))
                p("v_fma_f32 v77, -v74, v73, v%d" % (b + i))
                p("v_fma_f32 v%d, v77, v75, v74" % (b + i))
            p("v_cvt_pk_bf16_f32 v%d, v%d, v%d" % (x + i, lo + i, hi + i))
            p("v_lshlrev_b32 v74, 16, v%d" % (x + i)); p("v_lshlrev_b32 v77, 16, v%d" % (W + i)); p("v_fmac_f32 v76, v74, v77")
            p("v_and_b32 v74, 0xffff0000, v%d" % (x + i)); p("v_and_b32 v77, 0xffff0000, v%d" % (W + i)); p("v_fmac_f32 v76, v74, v77")
        p("s_add_u32 s%d, s%d, 0x%x" % (sT1, 33 + r, XN))
        p("buffer_store_dwordx4 v[%d:%d], v3, s[4:7], s%d offen sc1" % (x, x + 3, sT1))
        p("buffer_store_dword v%d, v4, s[4:7], s%d offen offset:1024 sc1" % (x + 4, sT1))
        wave_sum(p, 76, t)
        round_bf16(p, 76)
        p("s_lshl_b32 s%d, s%d, 2" % (sT1, sT0)); p("s_add_u32 s%d, s%d, 0x%x" % (sT1, sT1, RR))
        p("s_mov_b64 exec, 1")
        p("buffer_store_dword v76, off, s[4:7], s%d sc1" % sT1)
        p("s_mov_b64 exec, -1")
        p.label(lskip)
    p("s_lshl_b32 s%d, s%d, 2" % (sT0, sHI)); p("s_add_u32 s%d, s%d, s%d" % (sT0, sT0, sW)); p("s_lshl_b32 s%d, s%d, 6" % (sT0, sT0))
    p("v_add_u32 v5, s%d, v0" % sT0); p("v_lshlrev_b32 v6, 4, v5")
    for i in range(4): p("v_mov_b32 v%d, -1" % (40 + i)); p("v_mov_b32 v%d, 0" % (44 + i))
    def masked(limit, body):
        l = p.uid("INF")
        p("v_cmp_gt_u32 vcc, 0x%x, v5" % limit); p.nop(1)
        p("s_and_saveexec_b64 s[38:39], vcc"); p("s_cbranch_execz %s" % l)
        body()
        p.label(l); p("s_mov_b64 exec, s[38:39]")
    def simple(base, regs):
        p("s_mov_b32 s%d, 0x%x" % (sT1, base)); p("buffer_store_dwordx4 v[%d:%d], v6, s[4:7], s%d offen sc1" % (regs, regs + 3, sT1))
    masked(CTL_SIZE // 16, lambda: simple(CTL, 44))
    masked(2 * P1_X // 16, lambda: simple(P1, 40))
    p("v_lshrrev_b32 v7, 6, v5"); p("v_mul_u32_u24 v7, 52429, v7"); p("v_lshrrev_b32 v7, 18, v7")
    p("v_mul_u32_u24 v8, 320, v7"); p("v_sub_u32 v8, v5, v8"); p("v_lshlrev_b32 v48, 4, v8")
    p("v_lshl_add_u32 v49, v7, 13, v48")
    masked(128 * 320, lambda: (p("s_mov_b32 s%d, 0x%x" % (sT1, ML + ML_S)), p("buffer_store_dwordx4 v[40:43], v49, s[4:7], s%d offen sc1" % sT1)))
    read_cand(p, sC0, sC1)
    p("s_lshl_b32 s%d, s%d, 13" % (sC0, sC0)); p("s_lshl_b32 s%d, s%d, 13" % (sC1, sC1)); p("s_add_u32 s%d, s%d, 0x%x" % (sC1, sC1, MR_X))
    p("v_and_b32 v8, 1, v7"); p("v_cmp_eq_u32 vcc, 1, v8"); p("v_mov_b32 v8, s%d" % sC0); p("v_mov_b32 v9, s%d" % sC1)
    p("v_cndmask_b32 v8, v8, v9, vcc"); p("v_lshrrev_b32 v9, 1, v7"); p("v_lshl_add_u32 v8, v9, 15, v8"); p("v_add_u32 v49, v8, v48")
    p("v_cmp_le_u32 vcc, 640, v5"); p("v_mov_b32 v9, 0x%x" % OOB); p.nop(1); p("v_cndmask_b32 v49, v9, v49, vcc")
    masked(128 * 320, lambda: (p("s_mov_b32 s%d, 0x%x" % (sT1, MR)), p("buffer_store_dwordx4 v[40:43], v49, s[4:7], s%d offen sc1" % sT1)))
    l = p.uid("INM1")
    p("s_cmp_ge_u32 s%d, 10" % sHI); p("s_cbranch_scc1 %s" % l)
    p("s_cmp_ge_u32 s%d, 2" % sW); p("s_cbranch_scc1 %s" % l)
    p("s_cmp_ge_u32 s%d, 5" % sHI); p("s_cselect_b32 s36, 1, 0")
    p("s_mul_i32 s%d, s36, 5" % sT0); p("s_sub_u32 s%d, s%d, s%d" % (sT0, sHI, sT0)); p("s_lshl_b32 s%d, s%d, 10" % (sT0, sT0))
    p("s_lshl_b32 s%d, s36, 13" % sT1); p("s_add_u32 s%d, s%d, 0x%x" % (sT1, sT1, ML))
    p("s_cmp_eq_u32 s36, 0"); p("s_cselect_b32 s37, s%d, s%d" % (sC0, sC1)); p("s_add_u32 s37, s37, 0x%x" % MR)
    p("s_cmp_eq_u32 s%d, 0" % sW); p("s_cselect_b32 s%d, s%d, s37" % (sT1, sT1)); p("s_add_u32 s%d, s%d, s%d" % (sT1, sT1, sT0))
    p("buffer_store_dwordx4 v[34:37], v3, s[4:7], s%d offen sc1" % sT1)
    p.label(l)
    p("s_waitcnt vmcnt(0)"); p("s_barrier")
    l = p.uid("INE")
    p("s_cmp_lg_u32 s%d, 0" % sW); p("s_cbranch_scc1 %s" % l)
    l2 = p.uid("ING")
    p("s_cmp_lg_u32 s%d, %d" % (sHI, (FLG_MEM - CTL) // 4096)); p("s_cbranch_scc1 %s" % l2)
    p("v_mov_b32 v44, 1"); p("v_lshlrev_b32 v6, 7, v0"); p("s_mov_b32 s%d, 0x%x" % (sT1, FLG_MEM)); p("s_mov_b64 exec, 3")
    p("buffer_store_dword v44, v6, s[4:7], s%d offen sc1" % sT1); p("s_mov_b64 exec, -1"); p("s_waitcnt vmcnt(0)")
    p.label(l2)
    counter_add(p)
    p.label(l)
```

```python
from asm import *
from layout import *

def wave_sum(p, v, t):
    for ctrl in ("quad_perm:[1,0,3,2]", "quad_perm:[2,3,0,1]", "row_half_mirror", "row_mirror"):
        p.nop(2)
        p("v_add_f32_dpp v%d, v%d, v%d %s row_mask:0xf bank_mask:0xf" % (v, v, v, ctrl))
    p("v_mov_b32 v%d, v%d" % (t, v)); p.nop(2)
    p("v_permlane16_swap_b32 v%d, v%d" % (v, t)); p("v_add_f32 v%d, v%d, v%d" % (v, v, t))
    p("v_mov_b32 v%d, v%d" % (t, v)); p.nop(2)
    p("v_permlane32_swap_b32 v%d, v%d" % (v, t)); p("v_add_f32 v%d, v%d, v%d" % (v, v, t))

def round_bf16(p, v):
    p("v_cvt_pk_bf16_f32 v%d, v%d, v%d" % (v, v, v)); p("v_lshlrev_b32 v%d, 16, v%d" % (v, v))

NS_CAND = 2
def measure_cand(p, ws, sPAGE, sXCC):
    p("s_lshl_b32 s60, s%d, 21" % sPAGE); p("s_add_u32 s60, s60, 0x%x" % (MR + 6144))
    p("v_mov_b32 v60, 0"); p("v_mov_b32 v61, -1")
    for c in range(4): p("s_mov_b32 s%d, 0x7fffffff" % (66 + c))
    p("s_mov_b64 exec, 1")
    for k_ in range(NS_CAND):
        for c in range(4):
            p("s_add_u32 s61, s60, %d" % (8192 * c))
            p("s_memtime s[62:63]"); p("s_waitcnt lgkmcnt(0)")
            p("buffer_store_dword v61, v60, s[%d:%d], s61 offen offset:%d sc1" % (ws, ws + 3, 128 * k_)); p("s_waitcnt vmcnt(0)")
            p("s_memtime s[64:65]"); p("s_waitcnt lgkmcnt(0)")
            p("s_sub_u32 s62, s64, s62"); p("s_min_u32 s%d, s%d, s62" % (66 + c, 66 + c))
    p("s_mov_b64 exec, -1")
    p("s_mov_b32 s60, 0"); p("s_mov_b32 s61, s66")
    for c in range(1, 4):
        p("s_cmp_lt_u32 s%d, s61" % (66 + c)); p("s_cselect_b32 s60, %d, s60" % c); p("s_min_u32 s61, s61, s%d" % (66 + c))
    p("s_and_b32 s61, s%d, 1" % sXCC); p("s_lshl_b32 s61, s61, 1"); p("s_lshr_b32 s62, s%d, 2" % sXCC); p("s_add_u32 s61, s61, s62")
    p("s_xor_b32 s60, s60, s61")

def emit_k0(p, devflags=False):
    sWS, sX_, sWR, sM0 = 4, 8, 12, 16
    p("s_load_dwordx2 s[4:5], s[0:1], 112"); p("s_mov_b32 s6, 0x%x" % WS_SIZE); p("s_mov_b32 s7, 0x00020000")
    p("s_load_dwordx2 s[8:9], s[0:1], 0"); p("s_mov_b32 s10, %d" % (S * D * 2)); p("s_mov_b32 s11, 0x00020000")
    p("s_load_dwordx2 s[12:13], s[0:1], 64"); p("s_mov_b32 s14, %d" % (D * 2)); p("s_mov_b32 s15, 0x00020000")
    p("s_load_dwordx2 s[16:17], s[0:1], 8"); p("s_mov_b32 s18, %d" % (M * D * 2)); p("s_mov_b32 s19, 0x00020000")
    p("v_lshrrev_b32 v1, 6, v0"); p("v_and_b32 v2, 63, v0")
    p("v_readfirstlane_b32 s20, v1")
    p("s_waitcnt lgkmcnt(0)")
    lm = p.uid("K0C")
    p("s_cmp_ge_u32 s2, 2"); p("s_cbranch_scc1 %s" % lm)
    p("s_cmp_lg_u32 s20, 0"); p("s_cbranch_scc1 %s" % lm)
    p("s_getreg_b32 s31, hwreg(HW_REG_XCC_ID)"); p("s_and_b32 s31, s31, 7")
    measure_cand(p, 4, 2, 31)
    p("s_lshl_b32 s61, s2, 2"); p("s_add_u32 s61, s61, 0x%x" % CANDW)
    p("v_mov_b32 v60, 0"); p("v_mov_b32 v61, s60"); p("s_mov_b64 exec, 1")
    p("buffer_store_dword v61, v60, s[4:7], s61 offen")
    p("s_lshl_b32 s61, s2, 4"); p("s_add_u32 s61, s61, 0x%x" % (CANDW + 64))
    for c in range(4): p("v_mov_b32 v61, s%d" % (66 + c)); p("buffer_store_dword v61, v60, s[4:7], s61 offen offset:%d" % (4 * c))
    p("s_mov_b64 exec, -1")
    p.label(lm)
    p("s_lshl_b32 s21, s2, 3"); p("s_lshl_b32 s22, s20, 1"); p("s_add_u32 s21, s21, s22")
    p("v_lshlrev_b32 v3, 2, v2")
    for r in range(2):
        p("s_add_u32 s22, s21, %d" % r); p("s_mul_i32 s%d, s22, 1280" % (23 + r))
        for i in range(5):
            p("buffer_load_dword v%d, v3, s[8:11], s%d offen offset:%d" % (10 + 5 * r + i, 23 + r, 256 * i))
    for i in range(5): p("buffer_load_dword v%d, v3, s[12:15], 0 offen offset:%d" % (20 + i, 256 * i))
    l = p.uid("K0M")
    p("s_cmp_ge_u32 s2, 10"); p("s_cbranch_scc1 %s" % l)
    p("s_cmp_ge_u32 s20, 3"); p("s_cbranch_scc1 %s" % l)
    p("v_and_b32 v5, 7, v2"); p("v_mul_u32_u24 v5, 1280, v5")
    p("v_lshrrev_b32 v6, 4, v2"); p("v_lshl_add_u32 v5, v6, 5, v5")
    p("v_bfe_u32 v6, v2, 3, 1"); p("v_lshl_add_u32 v5, v6, 4, v5")
    p("s_lshl_b32 s26, s2, 7")
    p("buffer_load_dwordx4 v[32:35], v5, s[16:19], s26 offen")
    p("s_cmp_ge_u32 s2, 5"); p("s_cselect_b32 s27, 1, 0")
    p("s_mul_i32 s26, s27, 5"); p("s_sub_u32 s26, s2, s26"); p("s_lshl_b32 s26, s26, 10")
    p("s_lshl_b32 s28, s27, 13"); p("s_add_u32 s28, s28, 0x%x" % ML)
    p("s_lshl_b32 s29, s27, 21"); p("s_add_u32 s29, s29, 0x%x" % MR)
    p("s_cmp_eq_u32 s20, 2"); p("s_cselect_b32 s30, 16384, 0"); p("s_add_u32 s29, s29, s30")
    p("s_cmp_eq_u32 s20, 0"); p("s_cselect_b32 s28, s28, s29"); p("s_add_u32 s28, s28, s26")
    p("s_cselect_b32 s30, 0, 0"); p("s_cmp_eq_u32 s20, 0"); p("s_cselect_b32 s30, 0, 8192"); p("s_add_u32 s30, s30, s28")
    p("v_lshlrev_b32 v6, 4, v2")
    p("s_waitcnt vmcnt(0)")
    p("buffer_store_dwordx4 v[32:35], v6, s[4:7], s28 offen")
    p("buffer_store_dwordx4 v[32:35], v6, s[4:7], s30 offen")
    p.label(l)
    p("s_waitcnt vmcnt(0)")
    for r in range(2):
        x = 10 + 5 * r; lo, hi = 50, 60; acc, t = 70, 71
        for i in range(5):
            p("v_lshlrev_b32 v%d, 16, v%d" % (lo + i, x + i)); p("v_and_b32 v%d, 0xffff0000, v%d" % (hi + i, x + i))
        p("v_add_f32 v%d, v%d, v%d" % (acc, lo, hi))
        for i in range(1, 5): p("v_add_f32 v%d, v%d, v%d" % (acc, acc, lo + i)); p("v_add_f32 v%d, v%d, v%d" % (acc, acc, hi + i))
        wave_sum(p, acc, t)
        p("v_mul_f32 v72, 0x3acccccd, v%d" % acc)
        p("v_mov_b32 v73, 0")
        for i in range(5):
            for b in (lo, hi):
                p("v_sub_f32 v74, v%d, v72" % (b + i)); p("v_fmac_f32 v73, v74, v74")
        wave_sum(p, 73, t)
        p("v_mul_f32 v73, 0x3acccccd, v73")
        round_bf16(p, 72); round_bf16(p, 73)
        p("v_add_f32 v73, 0x3727c5ac, v73"); round_bf16(p, 73)
        p("v_sqrt_f32 v73, v73"); p.nop(1); round_bf16(p, 73)
        p("v_rcp_f32 v75, v73"); p.nop(1)
        p("v_mov_b32 v76, 0")
        for i in range(5):
            for b in (lo, hi):
                p("v_sub_f32 v%d, v%d, v72" % (b + i, b + i)); round_bf16(p, b + i)
                p("v_mul_f32 v74, v%d, v75" % (b + i))
                p("v_fma_f32 v77, -v74, v73, v%d" % (b + i))
                p("v_fma_f32 v%d, v77, v75, v74" % (b + i))
            p("v_cvt_pk_bf16_f32 v%d, v%d, v%d" % (x + i, lo + i, hi + i))
            p("v_lshlrev_b32 v74, 16, v%d" % (x + i)); p("v_lshlrev_b32 v77, 16, v%d" % (20 + i)); p("v_fmac_f32 v76, v74, v77")
            p("v_and_b32 v74, 0xffff0000, v%d" % (x + i)); p("v_and_b32 v77, 0xffff0000, v%d" % (20 + i)); p("v_fmac_f32 v76, v74, v77")
        p("s_add_u32 s26, s%d, 0x%x" % (23 + r, XN))
        for i in range(5):
            p("buffer_store_dword v%d, v3, s[4:7], s26 offen offset:%d" % (x + i, 256 * i))
        wave_sum(p, 76, t)
        round_bf16(p, 76)
        p("s_add_u32 s22, s21, %d" % r); p("s_lshl_b32 s26, s22, 2"); p("s_add_u32 s26, s26, 0x%x" % RR)
        p("v_mov_b32 v78, 0"); p("s_mov_b64 exec, 1")
        p("buffer_store_dword v76, v78, s[4:7], s26 offen")
        p("s_mov_b64 exec, -1")
    p("s_lshl_b32 s25, s2, 8"); p("v_add_u32 v4, s25, v0"); p("v_lshlrev_b32 v4, 4, v4")
    for i in range(4): p("v_mov_b32 v%d, -1" % (40 + i))
    def fill(base, nbytes, regs):
        n = 0
        while n < nbytes:
            p("s_mov_b32 s26, 0x%x" % (base + n))
            rest = nbytes - n
            if rest < 256 * 256 * 16:
                p("v_cmp_gt_u32 vcc, 0x%x, v4" % rest); p("s_nop 1")
                p("s_and_saveexec_b64 s[28:29], vcc"); l = p.uid("K0F"); p("s_cbranch_execz %s" % l)
                p("buffer_store_dwordx4 v[%d:%d], v4, s[4:7], s26 offen" % (regs, regs + 3))
                p.label(l); p("s_mov_b64 exec, s[28:29]")
            else:
                p("buffer_store_dwordx4 v[%d:%d], v4, s[4:7], s26 offen" % (regs, regs + 3))
            n += 256 * 256 * 16
    fill(P1, 2 * P1_X, 40)
    fill(ML + ML_S, 64 * ML_S, 40)
    for x_ in range(2): fill(MR + x_ * MR_X + MR_S, 63 * MR_S, 40)
    for i in range(4): p("v_mov_b32 v%d, %d" % (44 + i, 0))
    fill(CTL, CTL_SIZE, 44)
    l = p.uid("K0G")
    p("s_cmp_lg_u32 s2, %d" % ((FLG_MEM - CTL) // 4096)); p("s_cbranch_scc1 %s" % l)
    p("s_cmp_lg_u32 s20, 0"); p("s_cbranch_scc1 %s" % l)
    p("s_waitcnt vmcnt(0)"); p("v_mov_b32 v44, 1"); p("v_lshlrev_b32 v6, 7, v0"); p("s_mov_b32 s26, 0x%x" % FLG_MEM)
    p("s_mov_b64 exec, 3")
    p("buffer_store_dword v44, v6, s[4:7], s26 offen")
    p("s_mov_b64 exec, -1")
    p.label(l)
    if devflags:
        l = p.uid("K0D")
        p("s_sub_u32 s26, s2, 1"); p("s_cmp_ge_u32 s26, 2"); p("s_cbranch_scc1 %s" % l)
        p("s_waitcnt vmcnt(0)"); p("s_lshl_b32 s26, s2, 12"); p("s_add_u32 s26, s26, 0x%x" % CTL)
        for i in range(4): p("v_mov_b32 v%d, 1" % (44 + i))
        p("v_lshlrev_b32 v6, 4, v0")
        p("buffer_store_dwordx4 v[44:47], v6, s[4:7], s26 offen")
        p.label(l)
```

```python
S, D, H, DH, M, SEG, NSEG, F = 2048, 640, 32, 128, 8, 32, 64, 1728
NAME = "recurrent_scan__memory_aug_recurrent_mem_tr__moe_arch_mod__prompt"

WS_SIZE = 0x10000000
XN   = 0x0000000
RR   = 0x0280000
CTL  = 0x0290000
CTL_SIZE = 0x10000
TICKET = CTL + 0x0000
CAND   = CTL + 0x0400
INITB  = CTL + 0x0800
FLG_KVQ = CTL + 0x1000
FLG_KM  = CTL + 0x4000
FLG_O   = CTL + 0x6000
FLG_MOE = CTL + 0x8000
FLG_MEM = CTL + 0xA000
P1   = 0x0300000
P1_X = 40 * 4096
ML   = 0x5900000
ML_S = 16384
MR   = 0x6000000
MR_S = 32768
MR_X = 0x200000
CANDW = 0x02F0000
KM   = 0x0640000
VM   = 0x0A40000
KF   = 0x1400000
VF   = KF + 8192
KV_H = 16384
KV_S = 32 * KV_H
QF   = 0x3400000
OF   = 0x4400000
MOE  = 0x5400000
DBG  = 0x5800000
OOB  = 0x40000000
QF   = 0x3400000
KMF  = KM
VMF  = VM

IDX  = MOE
HHF  = MOE + 0x1000
UPD  = MOE + 0x10000
```

```python
from asm import *
from layout import *
import gemm
from gemm import sWS, sH, sW, wf

sI, sSRC, sDST, sFL, sMF, sSPIN, sSRC1 = 24, 25, 26, 27, 28, 29, 30
sT0, sT1, sT2 = 64, 65, 66
SPIN_MAX = 1 << 18
vL16, vSRCV, vDSTV = 1, 2, 3
vF = 16
aACC = 0

def spin_flags(p, vdst, n, vaddr, soff, cond_all_lanes, name):
    l = p.uid(name); ld = p.uid(name + "D")
    p.label(l)
    p("buffer_load_dword v%d, v%d, s[%d:%d], s%d offen sc1" % (vdst, vaddr, sWS, sWS + 3, soff))
    p("s_add_u32 s%d, s%d, 1" % (sSPIN, sSPIN))
    p("s_waitcnt vmcnt(0)")
    p("v_cmp_eq_u32 vcc, 0, v%d" % vdst)
    p("s_cbranch_vccz %s" % ld)
    p("s_cmp_gt_u32 s%d, %d" % (sSPIN, SPIN_MAX)); p("s_cbranch_scc1 %s" % ld)
    p("s_sleep 4")
    p("s_branch %s" % l)
    p.label(ld)

def emit_mkv(p, kind, name, read_cand=None):
    mat = 0 if kind == "T" else 1
    p("s_mov_b32 s%d, 0" % sSPIN)
    p("v_lshlrev_b32 v%d, 4, v0" % vL16)
    if read_cand: read_cand(p, sT2, 67); p("s_mov_b32 s%d, s%d" % (sT0, sT2)); p("s_mov_b32 s%d, s67" % sT1)
    else:
        p("s_mov_b32 s%d, 0x%x" % (sT0, CANDW))
        p("buffer_load_dwordx2 v[4:5], off, s[%d:%d], s%d sc1" % (sWS, sWS + 3, sT0)); p("s_waitcnt vmcnt(0)")
        p("v_readfirstlane_b32 s%d, v4" % sT0); p("v_readfirstlane_b32 s%d, v5" % sT1)
    for r_ in (sT0, sT1): p("s_and_b32 s%d, s%d, 3" % (r_, r_)); p("s_lshl_b32 s%d, s%d, 13" % (r_, r_))
    p("s_add_u32 s%d, s%d, 0x%x" % (sSRC, sT0, MR)); p("s_add_u32 s%d, s%d, 0x%x" % (sSRC1, sT1, MR + MR_X))
    p("v_bfe_u32 v4, v0, 3, 1"); p("v_mul_u32_u24 v%d, 0x%x, v4" % (vSRCV, MR_S))
    p("v_lshrrev_b32 v4, 5, v0"); p("v_lshl_add_u32 v%d, v4, 8, v%d" % (vSRCV, vSRCV))
    p("v_bfe_u32 v4, v0, 4, 1"); p("v_lshl_add_u32 v%d, v4, 7, v%d" % (vSRCV, vSRCV))
    p("v_and_b32 v4, 7, v0"); p("v_lshl_add_u32 v%d, v4, 4, v%d" % (vSRCV, vSRCV))
    if kind == "T":
        p("v_bfe_u32 v4, v0, 3, 1"); p("v_lshlrev_b32 v%d, 16, v4" % vDSTV)
        p("v_lshrrev_b32 v4, 4, v0"); p("v_lshl_add_u32 v%d, v4, 7, v%d" % (vDSTV, vDSTV))
        p("v_and_b32 v4, 7, v0"); p("v_lshl_add_u32 v%d, v4, 4, v%d" % (vDSTV, vDSTV))
        p("s_lshl_b32 s%d, s%d, 11" % (sDST, sH)); p("s_lshl_b32 s%d, s%d, 9" % (sT0, sW))
        p("s_add_u32 s%d, s%d, s%d" % (sDST, sDST, sT0)); p("s_add_u32 s%d, s%d, 0x%x" % (sDST, sDST, KMF))
    else:
        p("v_lshrrev_b32 v4, 5, v0"); p("v_lshlrev_b32 v%d, 16, v4" % vDSTV)
        p("v_bfe_u32 v4, v0, 4, 1"); p("v_lshl_add_u32 v%d, v4, 7, v%d" % (vDSTV, vDSTV))
        p("v_and_b32 v4, 15, v0"); p("v_lshl_add_u32 v%d, v4, 3, v%d" % (vDSTV, vDSTV))
        p("s_lshl_b32 s%d, s%d, 11" % (sDST, sH)); p("s_lshl_b32 s%d, s%d, 9" % (sT0, sW))
        p("s_add_u32 s%d, s%d, s%d" % (sDST, sDST, sT0)); p("s_add_u32 s%d, s%d, 0x%x" % (sDST, sDST, VMF))
    p("s_lshl_b32 s%d, s%d, 3" % (sFL, sH)); p("s_add_u32 s%d, s%d, 0x%x" % (sFL, sFL, FLG_KM + 4 * mat))
    p("s_mov_b32 s%d, 0x%x" % (sMF, FLG_MEM))
    p("s_mov_b32 s%d, 0" % sI)
    p("v_lshlrev_b32 v6, 7, v0")
    loop = name + "_LOOP"
    p.label(loop)
    p("s_mov_b64 exec, 0xf")
    spin_flags(p, 5, 4, 6, sMF, True, name + "_M")
    p("s_mov_b64 exec, -1")
    lr = p.uid("MKR"); lo = p.uid("MKO")
    p.label(lr)
    for ks in range(20):
        x, k1 = divmod(ks, 10)
        p("s_add_u32 s%d, s%d, 0x%x" % (sT0, (sSRC, sSRC1)[x], (k1 // 2) * 1024 + (k1 % 2) * 512))
        p("buffer_load_dwordx4 %s, v%d, s[%d:%d], s%d offen sc1" % (vr(vF + 4 * ks, 4), vSRCV, sWS, sWS + 3, sT0))
    p("s_add_u32 s%d, s%d, 1" % (sSPIN, sSPIN))
    p("s_waitcnt vmcnt(0)")
    p("v_max3_u32 v4, v%d, v%d, v%d" % (vF + 3, vF + 7, vF + 11))
    for k in range(3, 19, 2): p("v_max3_u32 v4, v4, v%d, v%d" % (vF + 4 * k + 3, vF + 4 * k + 7))
    p("v_max_u32 v4, v4, v%d" % (vF + 4 * 19 + 3))
    p("v_cmp_eq_u32 vcc, -1, v4")
    p("s_cbranch_vccz %s" % lo)
    p("s_cmp_gt_u32 s%d, %d" % (sSPIN, SPIN_MAX)); p("s_cbranch_scc0 %s" % lr)
    p.label(lo)
    A0, A1 = 8, 12
    for ks in range(20):
        for tt, acc in ((0, A0), (1, A1)):
            c = "0" if ks == 0 else vr(acc, 4)
            w_, x_ = vr(wf(ks, tt), 4), vr(vF + 4 * ks, 4)
            if kind == "T": p("v_mfma_f32_16x16x32_bf16 %s, %s, %s, %s" % (vr(acc, 4), w_, x_, c))
            else: p("v_mfma_f32_16x16x32_bf16 %s, %s, %s, %s" % (vr(acc, 4), x_, w_, c))
    p.nop(8)
    p("v_cvt_pk_bf16_f32 v16, v%d, v%d" % (A0, A0 + 1)); p("v_cvt_pk_bf16_f32 v17, v%d, v%d" % (A0 + 2, A0 + 3))
    p("v_cvt_pk_bf16_f32 v18, v%d, v%d" % (A1, A1 + 1)); p("v_cvt_pk_bf16_f32 v19, v%d, v%d" % (A1 + 2, A1 + 3))
    if kind == "T":
        p("buffer_store_dwordx4 v[16:19], v%d, s[%d:%d], s%d offen sc1" % (vDSTV, sWS, sWS + 3, sDST))
    else:
        p("buffer_store_dwordx2 v[16:17], v%d, s[%d:%d], s%d offen sc1" % (vDSTV, sWS, sWS + 3, sDST))
        p("buffer_store_dwordx2 v[18:19], v%d, s[%d:%d], s%d offen offset:256 sc1" % (vDSTV, sWS, sWS + 3, sDST))
    p("s_waitcnt vmcnt(0)"); p("s_barrier")
    gemm.flag_store(p, sFL)
    p("s_add_u32 s%d, s%d, 0x%x" % (sSRC, sSRC, 2 * MR_S)); p("s_add_u32 s%d, s%d, 0x%x" % (sSRC1, sSRC1, 2 * MR_S)); p("s_add_u32 s%d, s%d, 0x%x" % (sDST, sDST, 2 * 65536))
    p("s_add_u32 s%d, s%d, 256" % (sFL, sFL)); p("s_add_u32 s%d, s%d, 512" % (sMF, sMF))
    p("s_add_u32 s%d, s%d, 1" % (sI, sI)); p("s_cmp_lt_u32 s%d, 32" % sI); p("s_cbranch_scc1 %s" % loop)
```

```python
from asm import *
from layout import *
from gemm import sWS, sW
from mkv import spin_flags, sSPIN
from k0 import wave_sum

sWG, sWU, sWD = 44, 48, 52
sTASK = 24
sT0, sT1, sT2 = 64, 65, 66

def rnd(p, r): p("v_cvt_pk_bf16_f32 v%d, v%d, v%d" % (r, r, r)); p("v_lshlrev_b32 v%d, 16, v%d" % (r, r))

def wave_max_u32(p, v, t):
    for ctrl in ("quad_perm:[1,0,3,2]", "quad_perm:[2,3,0,1]", "row_half_mirror", "row_mirror"):
        p.nop(2)
        p("v_max_u32_dpp v%d, v%d, v%d %s row_mask:0xf bank_mask:0xf" % (v, v, v, ctrl))
    p("v_mov_b32 v%d, v%d" % (t, v)); p.nop(2)
    p("v_permlane16_swap_b32 v%d, v%d" % (v, t)); p("v_max_u32 v%d, v%d, v%d" % (v, v, t))
    p("v_mov_b32 v%d, v%d" % (t, v)); p.nop(2)
    p("v_permlane32_swap_b32 v%d, v%d" % (v, t)); p("v_max_u32 v%d, v%d, v%d" % (v, v, t))

def counter_add(p, addr):
    p("s_waitcnt vmcnt(0)")
    p("v_mov_b32 v7, 1"); p("v_mov_b32 v8, 0"); p("s_mov_b32 s%d, 0x%x" % (sT0, addr)); p("s_mov_b64 exec, 1")
    p("buffer_atomic_add v7, v8, s[%d:%d], s%d offen sc1" % (sWS, sWS + 3, sT0)); p("s_mov_b64 exec, -1")

def wait_count(p, addr, count, name):
    l = p.uid(name); ld = p.uid(name + "D")
    p("v_mov_b32 v8, 0"); p("s_mov_b32 s%d, 0x%x" % (sT0, addr))
    p.label(l)
    p("buffer_load_dword v7, v8, s[%d:%d], s%d offen sc1" % (sWS, sWS + 3, sT0))
    p("s_add_u32 s%d, s%d, 1" % (sSPIN, sSPIN))
    p("s_waitcnt vmcnt(0)")
    p("v_cmp_gt_u32 vcc, %d, v7" % count) if count <= 64 else (p("v_mov_b32 v9, %d" % count), p("v_cmp_gt_u32 vcc, v9, v7"))
    p("s_cbranch_vccz %s" % ld)
    p("s_cmp_gt_u32 s%d, %d" % (sSPIN, 1 << 18)); p("s_cbranch_scc1 %s" % ld)
    p("s_sleep 8"); p("s_branch %s" % l)
    p.label(ld)

def emit_select(p):
    K = 16
    p("v_lshlrev_b32 v1, 4, v0"); p("s_mov_b32 s%d, 0x%x" % (sT0, RR))
    for k in range(8):
        p("buffer_load_dwordx4 %s, v1, s[%d:%d], s%d offen offset:%d sc1" % (vr(K + 4 * k, 4), sWS, sWS + 3, sT0, (k % 4) * 1024))
        if k == 3: p("s_add_u32 s%d, s%d, 4096" % (sT0, sT0))
    p("s_waitcnt vmcnt(0)")
    p("v_lshlrev_b32 v2, 2, v0")
    for k in range(8):
        for c in range(4):
            r = K + 4 * k + c
            p("v_ashrrev_i32 v3, 31, v%d" % r); p("v_or_b32 v3, 0x80000000, v3"); p("v_xor_b32 v%d, v%d, v3" % (r, r))
            p("v_and_b32 v%d, 0xffff0000, v%d" % (r, r))
            p("v_sub_u32 v3, %d, v2" % (0xffff - 256 * k - c)); p("v_or_b32 v%d, v%d, v3" % (r, r))
    for it in range(8):
        p("v_max3_u32 v4, v%d, v%d, v%d" % (K, K + 1, K + 2))
        for k in range(3, 31, 2): p("v_max3_u32 v4, v4, v%d, v%d" % (K + k, K + k + 1))
        p("v_max_u32 v4, v4, v%d" % (K + 31))
        wave_max_u32(p, 4, 5)
        p("v_mov_b32 v%d, v4" % (56 + it))
        if it < 7:
            for k in range(32):
                p("v_cmp_eq_u32 vcc, v4, v%d" % (K + k)); p.nop(2); p("v_cndmask_b32 v%d, v%d, 0, vcc" % (K + k, K + k))
    p("v_mov_b32 v4, v56")
    for it in range(1, 8):
        p("v_cmp_eq_u32 vcc, %d, v0" % it); p.nop(2); p("v_cndmask_b32 v4, v4, v%d, vcc" % (56 + it))
    p("v_and_b32 v5, 0xffff, v4"); p("v_sub_u32 v5, 0xffff, v5")
    p("v_and_b32 v4, 0xffff0000, v4")
    p("v_ashrrev_i32 v3, 31, v4"); p("v_not_b32 v3, v3"); p("v_or_b32 v3, 0x80000000, v3"); p("v_xor_b32 v4, v4, v3")
    p("v_and_b32 v4, 0xffff0000, v4")
    p("v_mul_f32 v4, 0xbfb8aa3b, v4"); p("v_exp_f32 v4, v4"); p.nop(1); p("v_add_f32 v4, 1.0, v4"); p("v_rcp_f32 v4, v4"); p.nop(1)
    rnd(p, 4)
    p("v_lshlrev_b32 v6, 2, v0"); p("s_mov_b32 s%d, 0x%x" % (sT0, IDX)); p("s_mov_b64 exec, 0xff")
    p("buffer_store_dword v5, v6, s[%d:%d], s%d offen sc1" % (sWS, sWS + 3, sT0))
    p("buffer_store_dword v4, v6, s[%d:%d], s%d offen offset:32 sc1" % (sWS, sWS + 3, sT0))
    p("s_mov_b64 exec, -1")
    counter_add(p, FLG_MOE)

def load_cols16(p, srd, soff, row_stride, nk, lds_base_sgpr, dest, pi, vG, vRD):
    for ks in range(nk):
        p("s_add_u32 m0, s%d, %d" % (lds_base_sgpr, ks * 1024))
        p("s_add_u32 s%d, s%d, 0x%x" % (sT0, soff, ks * 32 * row_stride))
        p("buffer_load_dwordx4 v%d, s[%d:%d], s%d offen lds" % (vG, srd, srd + 3, sT0))
        if ks % 32 == 31: p("s_waitcnt vmcnt(16)")
    p("s_waitcnt vmcnt(0)")
    n = 0
    for ks in range(nk):
        for r in range(2):
            off = ks * 1024 + (r * 512 if pi else r * 128)
            p("ds_read_b64_tr_b16 %s, v%d offset:%d" % (vr(dest + 4 * ks + 2 * r, 2), vRD, off)); n += 1
            if n % 12 == 0: p("s_waitcnt lgkmcnt(4)")
    p("s_waitcnt lgkmcnt(0)")

def col_addrs(p, row_stride, pi, vG, vRD, sBase):
    p("v_lshrrev_b32 v7, 1, v0"); p("v_mul_u32_u24 v%d, %d, v7" % (vG, row_stride))
    p("v_and_b32 v7, 1, v0"); p("v_lshl_add_u32 v%d, v7, 4, v%d" % (vG, vG))
    p("v_lshrrev_b32 v7, 4, v0"); p("v_lshlrev_b32 v%d, %d, v7" % (vRD, 7 if pi else 8))
    p("v_bfe_u32 v7, v0, 2, 2"); p("v_lshl_add_u32 v%d, v7, 5, v%d" % (vRD, vRD))
    p("v_and_b32 v7, 3, v0"); p("v_lshl_add_u32 v%d, v7, 3, v%d" % (vRD, vRD))
    p("v_add_u32 v%d, s%d, v%d" % (vRD, sBase, vRD))

def emit_f1(p):
    sB, sOff = 25, 26
    wait_count(p, FLG_MOE, 1, "F1W")
    p("s_mul_i32 s%d, s%d, 40960" % (sB, sW))
    col_addrs(p, 3456, False, 2, 3, sB)
    p("v_and_b32 v7, 7, v0"); p("v_lshlrev_b32 v7, 2, v7"); p("s_mov_b32 s%d, 0x%x" % (sT0, IDX))
    p("buffer_load_dword v4, v7, s[%d:%d], s%d offen sc1" % (sWS, sWS + 3, sT0)); p("s_waitcnt vmcnt(0)")
    p("v_mul_u32_u24 v4, 1280, v4"); p("v_lshrrev_b32 v7, 4, v0"); p("v_lshl_add_u32 v4, v7, 4, v4")
    X, G, U = 16, 96, 176
    p("s_mov_b32 s%d, 0x%x" % (sT1, XN))
    for ks in range(20): p("buffer_load_dwordx4 %s, v4, s[%d:%d], s%d offen offset:%d sc1" % (vr(X + 4 * ks, 4), sWS, sWS + 3, sT1, ks * 64))
    p("s_lshl_b32 s%d, s%d, 5" % (sOff, sTASK))
    load_cols16(p, sWG, sOff, 3456, 20, sB, G, False, 2, 3)
    p("s_add_u32 s%d, s%d, 20480" % (sB, sB)); p("v_add_u32 v3, 20480, v3")
    load_cols16(p, sWU, sOff, 3456, 20, sB, U, False, 2, 3)
    for ks in range(20):
        p("v_mfma_f32_16x16x32_bf16 v[8:11], %s, %s, %s" % (vr(G + 4 * ks, 4), vr(X + 4 * ks, 4), "0" if ks == 0 else "v[8:11]"))
        p("v_mfma_f32_16x16x32_bf16 v[12:15], %s, %s, %s" % (vr(U + 4 * ks, 4), vr(X + 4 * ks, 4), "0" if ks == 0 else "v[12:15]"))
    p.nop(8)
    for i in range(4):
        g, u, t = 8 + i, 12 + i, 16 + i
        rnd(p, g); rnd(p, u)
        p("v_mul_f32 v%d, 0xbfb8aa3b, v%d" % (t, g)); p("v_exp_f32 v%d, v%d" % (t, t)); p.nop(1)
        p("v_add_f32 v%d, 1.0, v%d" % (t, t)); p("v_rcp_f32 v%d, v%d" % (t, t)); p.nop(1)
        p("v_mul_f32 v%d, v%d, v%d" % (g, g, t)); rnd(p, g)
        p("v_mul_f32 v%d, v%d, v%d" % (g, g, u))
    p("v_cvt_pk_bf16_f32 v16, v8, v9"); p("v_cvt_pk_bf16_f32 v17, v10, v11")
    p("s_lshr_b32 s%d, s%d, 1" % (sT1, sTASK)); p("s_lshl_b32 s%d, s%d, 10" % (sT1, sT1))
    p("s_and_b32 s%d, s%d, 1" % (sT2, sTASK)); p("s_lshl_b32 s%d, s%d, 3" % (sT2, sT2)); p("s_add_u32 s%d, s%d, s%d" % (sT1, sT1, sT2))
    p("s_add_u32 s%d, s%d, 0x%x" % (sT1, sT1, HHF)); p("v_lshlrev_b32 v4, 4, v0")
    p("buffer_store_dwordx2 v[16:17], v4, s[%d:%d], s%d offen sc1" % (sWS, sWS + 3, sT1))
    counter_add(p, FLG_MOE + 128)

def emit_f2(p, st1=lambda q: None, st2=lambda q: None):
    sB, sOff = 25, 26
    wait_count(p, FLG_MOE + 128, 108, "F2W")
    st1(p)
    p("s_mov_b32 s%d, 0" % sB)
    col_addrs(p, 1280, True, 2, 3, sB)
    H_ = 16
    p("v_lshlrev_b32 v4, 4, v0"); p("s_mov_b32 s%d, 0x%x" % (sT1, HHF))
    W_ = 232
    for ks in range(54):
        if ks and ks % 4 == 0: p("s_add_u32 s%d, s%d, 4096" % (sT1, sT1))
        p("buffer_load_dwordx4 %s, v4, s[%d:%d], s%d offen offset:%d sc1" % (vr(H_ + 4 * ks, 4), sWS, sWS + 3, sT1, (ks % 4) * 1024))
        if ks == 40: p("s_waitcnt vmcnt(20)")
    p("s_waitcnt vmcnt(0)")
    p("s_lshl_b32 s%d, s%d, 5" % (sOff, sTASK))
    for ks in range(54):
        p("s_add_u32 m0, s%d, %d" % (sB, ks * 1024)); p("s_add_u32 s%d, s%d, 0x%x" % (sT0, sOff, ks * 32 * 1280))
        p("buffer_load_dwordx4 v2, s[%d:%d], s%d offen lds" % (sWD, sWD + 3, sT0))
        if ks == 40: p("s_waitcnt vmcnt(20)")
    p("s_waitcnt vmcnt(0)")
    st2(p)
    for ks in range(54):
        w = W_ + 4 * (ks % 4)
        for r in range(2): p("ds_read_b64_tr_b16 %s, v3 offset:%d" % (vr(w + 2 * r, 2), ks * 1024 + r * 512))
        p("s_waitcnt lgkmcnt(0)")
        p("v_mfma_f32_16x16x32_bf16 v[8:11], %s, %s, %s" % (vr(w, 4), vr(H_ + 4 * ks, 4), "0" if ks == 0 else "v[8:11]"))
    p("v_and_b32 v7, 7, v0"); p("v_lshlrev_b32 v7, 2, v7"); p("s_mov_b32 s%d, 0x%x" % (sT0, IDX + 32))
    p("buffer_load_dword v12, v7, s[%d:%d], s%d offen sc1" % (sWS, sWS + 3, sT0)); p("s_waitcnt vmcnt(0)")
    p.nop(8)
    for i in range(4):
        rnd(p, 8 + i); p("v_mul_f32 v%d, v%d, v12" % (8 + i, 8 + i)); rnd(p, 8 + i)
    p("v_and_b32 v7, 7, v0"); p("v_mul_u32_u24 v7, 2560, v7"); p("v_lshrrev_b32 v13, 4, v0"); p("v_lshl_add_u32 v7, v13, 4, v7")
    p("s_lshl_b32 s%d, s%d, 6" % (sT0, sTASK)); p("s_add_u32 s%d, s%d, 0x%x" % (sT0, sT0, UPD))
    p("s_mov_b32 s68, 0x00ff00ff"); p("s_mov_b32 s69, 0x00ff00ff"); p("s_mov_b64 exec, s[68:69]")
    p("buffer_store_dwordx4 v[8:11], v7, s[%d:%d], s%d offen sc1" % (sWS, sWS + 3, sT0))
    p("s_mov_b64 exec, -1")
    counter_add(p, FLG_MOE + 256)
```

```python
from asm import *
from layout import *
from gemm import sWS, sW
from mkv import spin_flags, sSPIN

sGRP, sCT = 12, 13
sWO = 44
sXI, sOUT = 48, 52
sS, sOFS, sRB = 24, 25, 21
sIDX = 72
sT0, sT1, sT2, sT3 = 64, 65, 66, 67
vL16, vRD0, vRD1, vG, vXA, vFL = 1, 2, 3, 4, 5, 6
vB = 16
vACC = 144
vX, vXN, vU = 160, 162, 164
DEFER = 40
NRING = 16

def load_wo(p):
    vm = Counter(p, "vmcnt", 63)
    t = 7
    p("s_mul_i32 s%d, s%d, 36864" % (sRB, sW))
    p("v_lshrrev_b32 v%d, 2, v0" % t); p("v_mul_u32_u24 v%d, 1280, v%d" % (vG, t))
    p("v_bfe_u32 v%d, v0, 4, 1" % t); p("v_lshlrev_b32 v%d, 1, v%d" % (t, t))
    p("v_and_b32 v8, 3, v0"); p("v_xor_b32 v%d, v%d, v8" % (t, t)); p("v_lshl_add_u32 v%d, v%d, 4, v%d" % (vG, t, vG))
    p("v_lshrrev_b32 v%d, 4, v0" % t); p("v_lshlrev_b32 v%d, 8, v%d" % (vRD0, t))
    p("v_bfe_u32 v%d, v0, 2, 2" % t); p("v_lshl_add_u32 v%d, v%d, 6, v%d" % (vRD0, t, vRD0))
    p("v_and_b32 v%d, 3, v0" % t); p("v_lshl_add_u32 v%d, v%d, 3, v%d" % (vRD0, t, vRD0))
    p("v_add_u32 v%d, s%d, v%d" % (vRD0, sRB, vRD0))
    p("v_bfe_u32 v%d, v0, 4, 1" % t); p("v_lshlrev_b32 v%d, 5, v%d" % (t, t))
    p("v_sub_u32 v%d, 32, v%d" % (vRD1, t)); p("v_add_u32 v%d, v%d, v%d" % (vRD1, vRD1, vRD0))
    p("v_add_u32 v%d, v%d, v%d" % (vRD0, vRD0, t))
    p("s_mul_i32 s%d, s%d, %d" % (sT1, sW, 1024 * 1280)); p("s_lshl_b32 s%d, s%d, 6" % (sT2, sCT)); p("s_add_u32 s%d, s%d, s%d" % (sT1, sT1, sT2))
    def issue(n):
        for a in range(4):
            p("s_add_u32 m0, s%d, %d" % (sRB, (n % 9) * 4096 + a * 1024))
            p("s_add_u32 s%d, s%d, 0x%x" % (sT0, sT1, (64 * n + 16 * a) * 1280))
            p("buffer_load_dwordx4 v%d, s[%d:%d], s%d offen lds" % (vG, sWO, sWO + 3, sT0)); vm.issue(n)
    for n in range(9): issue(n)
    for n in range(16):
        vm.wait(n)
        so = (n % 9) * 4096
        for k2 in range(2):
            for c2 in range(2):
                for r in range(2):
                    p("ds_read_b64_tr_b16 %s, v%d offset:%d" % (ar(((2 * n + k2) * 2 + c2) * 4 + 2 * r, 2), vRD0 if c2 == 0 else vRD1, so + (2 * k2 + r) * 1024))
        p("s_waitcnt lgkmcnt(0)")
        if n + 9 < 16: issue(n + 9)

sTODO, sAFF, sAV = 80, 82, 84
def emit_out(p, name, wait_sel, wait_moe):
    p("s_mov_b32 s%d, 0" % sSPIN)
    p("v_lshlrev_b32 v%d, 4, v0" % vL16)
    wait_sel(p)
    p("v_lshlrev_b32 v6, 2, v0"); p("s_mov_b32 s%d, 0x%x" % (sT0, IDX))
    p("buffer_load_dword v7, v6, s[%d:%d], s%d offen sc1" % (sWS, sWS + 3, sT0)); p("s_waitcnt vmcnt(0)")
    for i in range(8): p("v_readlane_b32 s%d, v7, %d" % (sIDX + i, i))
    p("s_and_b32 s%d, s%d, 1" % (sT0, sW)); p("s_lshl_b32 s%d, s%d, 4" % (sT0, sT0))
    p("v_and_b32 v6, 15, v0"); p("v_add_u32 v6, s%d, v6" % sT0)
    p("v_mov_b32 v9, v6")
    p("v_mul_u32_u24 v%d, 1280, v6" % vXA)
    p("v_lshrrev_b32 v6, 4, v0"); p("v_lshl_add_u32 v%d, v6, 3, v%d" % (vXA, vXA))
    p("s_lshr_b32 s%d, s%d, 1" % (sT0, sW)); p("s_lshl_b32 s%d, s%d, 5" % (sT0, sT0)); p("s_lshl_b32 s%d, s%d, 6" % (sT1, sCT))
    p("s_add_u32 s%d, s%d, s%d" % (sT0, sT0, sT1)); p("v_add_u32 v%d, s%d, v%d" % (vXA, sT0, vXA))
    p("v_lshlrev_b32 v%d, 2, v0" % vFL)
    p("s_mov_b32 s%d, 0x49249249" % sTODO); p("s_mov_b32 s%d, 0x92492492" % (sTODO + 1))
    p("s_lshl_b64 s[%d:%d], s[%d:%d], s%d" % (sTODO, sTODO + 1, sTODO, sTODO + 1, sGRP))
    p("s_mov_b64 s[%d:%d], 0" % (sAFF, sAFF + 1))
    for i in range(8):
        p("s_lshr_b32 s%d, s%d, 5" % (sT0, sIDX + i)); p("s_bitset1_b64 s[%d:%d], s%d" % (sAFF, sAFF + 1, sT0))
    loop = name + "_LOOP"; lw = name + "_WM"; lgo = name + "_GO"; lend = name + "_END"
    p.label(loop)
    p("s_cmp_eq_u64 s[%d:%d], 0" % (sTODO, sTODO + 1)); p("s_cbranch_scc1 %s" % lend)
    p("s_andn2_b64 s[%d:%d], s[%d:%d], s[%d:%d]" % (sAV, sAV + 1, sTODO, sTODO + 1, sAFF, sAFF + 1))
    p("s_cbranch_scc0 %s" % lw)
    p("s_ff1_i32_b64 s%d, s[%d:%d]" % (sS, sAV, sAV + 1))
    p("s_cmp_lt_u32 s%d, %d" % (sS, DEFER)); p("s_cbranch_scc1 %s" % lgo)
    p("s_cmp_eq_u64 s[%d:%d], 0" % (sAFF, sAFF + 1)); p("s_cbranch_scc1 %s" % lgo)
    p.label(lw)
    wait_moe(p)
    p("s_mov_b64 s[%d:%d], 0" % (sAFF, sAFF + 1)); p("s_branch %s" % loop)
    p.label(lgo)
    p("s_bitset0_b64 s[%d:%d], s%d" % (sTODO, sTODO + 1, sS))
    p("s_mul_i32 s%d, s%d, %d" % (sT3, sS, 32 * 1280))
    p("buffer_load_dwordx2 %s, v%d, s[%d:%d], s%d offen" % (vr(vX, 2), vXA, sXI, sXI + 3, sT3))
    p("s_add_u32 s%d, s%d, 0x%x" % (sT0, sT3, XN))
    p("buffer_load_dwordx2 %s, v%d, s[%d:%d], s%d offen" % (vr(vXN, 2), vXA, sWS, sWS + 3, sT0))
    p("s_lshl_b32 s%d, s%d, 7" % (sT0, sS)); p("s_add_u32 s%d, s%d, 0x%x" % (sT0, sT0, FLG_O))
    p("s_mov_b64 exec, 0xffffffff") if False else p("s_mov_b64 exec, s[36:37]")
    spin_flags(p, 7, 32, vFL, sT0, True, name + "_F")
    p("s_mov_b64 exec, -1")
    vm = Counter(p, "vmcnt", 63)
    p("s_lshl_b32 s%d, s%d, 18" % (sOFS, sS)); p("s_lshl_b32 s%d, s%d, 15" % (sT0, sW))
    p("s_add_u32 s%d, s%d, s%d" % (sOFS, sOFS, sT0)); p("s_add_u32 s%d, s%d, 0x%x" % (sOFS, sOFS, OF))
    def req(ks):
        for q in range(2):
            p("s_add_u32 s%d, s%d, 0x%x" % (sT0, sOFS, q * 131072 + ks * 1024))
            p("buffer_load_dwordx4 %s, v%d, s[%d:%d], s%d offen" % (vr(vB + ((ks % NRING) * 2 + q) * 4, 4), vL16, sWS, sWS + 3, sT0)); vm.issue(ks)
    for ks in range(NRING): req(ks)
    for ks in range(32):
        vm.wait(ks)
        for c2 in range(2):
            for q in range(2):
                d = vACC + (c2 * 2 + q) * 4
                p("v_mfma_f32_16x16x32_bf16 %s, %s, %s, %s" % (vr(d, 4), ar((ks * 2 + c2) * 4, 4), vr(vB + ((ks % NRING) * 2 + q) * 4, 4), "0" if ks == 0 else vr(d, 4)))
        if ks + NRING < 32: req(ks + NRING)
    p("s_lshl_b32 s%d, s%d, 12" % (sT0, sW)); p("v_add_u32 v7, s%d, v%d" % (sT0, vL16))
    p("s_barrier")
    p.nop(4)
    for t in range(4): p("ds_write_b128 v7, %s offset:%d" % (vr(vACC + 4 * t, 4), t * 1024))
    p("s_waitcnt lgkmcnt(0)"); p("s_barrier")
    p("s_lshl_b32 s%d, s%d, 10" % (sT0, sW)); p("v_add_u32 v7, s%d, v%d" % (sT0, vL16))
    for w in range(4): p("ds_read_b128 %s, v7 offset:%d" % (vr(vB + 4 * w, 4), w * 4096))
    p("s_waitcnt lgkmcnt(0)")
    for i in range(4):
        p("v_add_f32 v%d, v%d, v%d" % (vB + i, vB + i, vB + 4 + i)); p("v_add_f32 v%d, v%d, v%d" % (vB + 8 + i, vB + 8 + i, vB + 12 + i))
        p("v_add_f32 v%d, v%d, v%d" % (vB + i, vB + i, vB + 8 + i))
    sv, z, xx = vB, vB + 4, vB + 8
    def rnd(r): p("v_cvt_pk_bf16_f32 v%d, v%d, v%d" % (r, r, r)); p("v_lshlrev_b32 v%d, 16, v%d" % (r, r))
    for i in range(4): rnd(sv + i)
    for h_ in range(2):
        p("v_lshlrev_b32 v%d, 16, v%d" % (z + 2 * h_, vXN + h_)); p("v_and_b32 v%d, 0xffff0000, v%d" % (z + 2 * h_ + 1, vXN + h_))
        p("v_lshlrev_b32 v%d, 16, v%d" % (xx + 2 * h_, vX + h_)); p("v_and_b32 v%d, 0xffff0000, v%d" % (xx + 2 * h_ + 1, vX + h_))
    lskip = p.uid("NOUPD")
    p("s_lshl_b32 s%d, s%d, 5" % (sT0, sS)); p("v_add_u32 v8, s%d, v9" % sT0)
    p("v_mov_b32 v10, -1")
    for i in range(8):
        p("v_cmp_eq_u32 vcc, s%d, v8" % (sIDX + i)); p.nop(2); p("v_cndmask_b32 v10, v10, %d, vcc" % i)
    p("v_cmp_le_i32 vcc, 0, v10")
    p("s_and_saveexec_b64 s[68:69], vcc"); p("s_cbranch_execz %s" % lskip)
    p("v_mul_u32_u24 v10, 2560, v10")
    p("v_lshrrev_b32 v11, 4, v0"); p("v_lshl_add_u32 v10, v11, 4, v10")
    p("s_lshr_b32 s%d, s%d, 1" % (sT0, sW)); p("s_lshl_b32 s%d, s%d, 6" % (sT0, sT0)); p("s_lshl_b32 s%d, s%d, 7" % (sT1, sCT))
    p("s_add_u32 s%d, s%d, s%d" % (sT0, sT0, sT1)); p("s_add_u32 s%d, s%d, 0x%x" % (sT0, sT0, UPD))
    p("buffer_load_dwordx4 %s, v10, s[%d:%d], s%d offen sc1" % (vr(vU, 4), sWS, sWS + 3, sT0)); p("s_waitcnt vmcnt(0)")
    for i in range(4): p("v_add_f32 v%d, v%d, v%d" % (z + i, z + i, vU + i)); rnd(z + i)
    p.label(lskip); p("s_mov_b64 exec, s[68:69]") if False else None
    p("s_mov_b64 exec, -1")
    for i in range(4):
        g = vB + 12 + i
        p("v_mul_f32 v%d, 0xbfb8aa3b, v%d" % (g, z + i)); p("v_exp_f32 v%d, v%d" % (g, g)); p.nop(1)
        p("v_add_f32 v%d, 1.0, v%d" % (g, g)); p("v_rcp_f32 v%d, v%d" % (g, g)); p.nop(1)
        p("v_mul_f32 v%d, v%d, v%d" % (g, g, z + i)); rnd(g)
        p("v_mul_f32 v%d, v%d, v%d" % (g, g, sv + i)); rnd(g)
        p("v_add_f32 v%d, v%d, v%d" % (g, g, xx + i))
    p("v_cvt_pk_bf16_f32 v%d, v%d, v%d" % (vU, vB + 12, vB + 13)); p("v_cvt_pk_bf16_f32 v%d, v%d, v%d" % (vU + 1, vB + 14, vB + 15))
    p("buffer_store_dwordx2 %s, v%d, s[%d:%d], s%d offen" % (vr(vU, 2), vXA, sOUT, sOUT + 3, sT3))
    p("s_branch %s" % loop)
    p.label(lend)
```

```python
from asm import *
from layout import *

sWS = 4
sX, sH, sW, sSTEP, sTAG = 12, 13, 14, 15, 16
sMLC, sMLST, sMLRS, sMRC, sMRST, sMRRS = 17, 18, 19, 20, 21, 22
sP1W = 23
sP1R = 24
sP1W1, sP1W2, sLINE = 25, 26, 27
sKFN, sVFN, sKM, sVM = 28, 29, 30, 31
sM8 = 32
sLO32 = 34
sOWN4 = 36
sC = 10
sBC, sBN, sBP = 39, 40, 41
sISOWN, sISPUB = 42, 43
sWQ, sWK, sWV, sWO = 44, 48, 52, 56
sCML, sCMLU, sCMRR, sCMRU = 60, 61, 62, 63
sT0, sT1, sT2, sT3 = 64, 65, 66, 67
sSPIN = 68
sFLG = 69
sFKM = 70
sLOC, sREM = 71, 72
sMLC4, sMRC4 = 74, 75
sCA, sCB = 8, 9
sM0K, sWARM = 73, 3
s3F80 = 38
sSEL = 44
sTS = 76
SPIN_MAX = 1 << 18
import os
DELAY1 = int(os.environ.get('DELAY1', '0'))
PACE = int(os.environ.get('PACE', '0'))
DELAY2 = int(os.environ.get('DELAY2', '0'))
PF = int(os.environ.get('PF', '1'))
POLLN = int(os.environ.get('POLLN', '3'))
POLLDELAY = int(os.environ.get('POLLDELAY', '0'))
OWN2 = int(os.environ.get('OWN2', '1'))
OSTAG = int(os.environ.get('OSTAG', '12'))
sCNT2 = 53
sPCH = 52
RTOUCH = int(os.environ.get('RTOUCH', '1'))
MRFIRST = int(os.environ.get('MRFIRST', '0'))
STAMPS = os.environ.get('STAMPS', '').split(',')
FIRST_FLAGS = os.environ.get('FIRST', '')
TOUCH = int(os.environ.get('TOUCH', '1'))
REALTIME = int(os.environ.get('REALTIME', '0'))
PUB = int(os.environ.get('PUB', '0'))
COUNT = 1
NSAMP = int(os.environ.get('NSAMP', '2'))
FORCECAND = int(os.environ.get('FORCECAND', '0'))
TRACE = int(os.environ.get('TRACE', '0'))
TRC = 0x5C00000
sTRP = 54
sCNT = 40
TOUCHR = int(os.environ.get('TOUCHR', '1'))
sTR = 41
sMFL = 22
TRA = int(os.environ.get('TRA', '1'))
B2B = int(os.environ.get('B2B', '1'))
KPOS = int(os.environ.get('KPOS', '1'))
WSTR = int(os.environ.get('WSTR', '64'))
ALS = int(os.environ.get('ALS', '0'))
NOCHECK = bool(int(os.environ.get('NOCHECK', '0')))

vL16, vLW, vTW, vTR, vOW, vIDX, vPS = 1, 2, 3, 4, 5, 6, 7
vOR = 0
vX0 = 8
vA = 12
vQ0, vQ1, vK0, vK1, vV0, vV1 = 32, 36, 40, 44, 48, 52
vSB = 56
vVX = 88
vWQ = 96
aWV, aWO, aWK4 = 0, 160, 240

L_KX = 0
L_QT = 8192
G2OFF = 1152
L_KT = L_QT + 2304
L_O = L_KT + 2304
OSTR = 288
L_JUNK = 15360
L_W = 16384
L_WSTRIDE = 36864

def unit_q(j, tt): return vr(vWQ + (j * 2 + tt) * 8, 8)
def unit_k9(tt): return ar(aWK4 + 8 * tt, 8)
def unit_v(j, tt): return ar(aWV + (j * 2 + tt) * 8, 8)
def unit_wo_pair(P, c): return ar(aWO + P * 32 + c * 8, 8)
def unit_wo4(c): return ar(aWO + 64 + c * 4, 4)
ACCQK = [vQ0, vQ1, vK0, vK1]

def smf(p, acc, a, b): p("v_smfmac_f32_16x16x64_bf16 %s, %s, %s, v%d" % (vr(acc, 4), vr(a, 4), b, vIDX))

def add_const(p, dst, src, const):
    p("s_add_u32 s%d, s%d, 0x%x" % (dst, src, const & 0xFFFFFFFF))

def setup_consts(p):
    p("v_and_b32 v0, 63, v0")
    p("v_lshlrev_b32 v%d, 4, v0" % vL16)
    p("s_mul_i32 s%d, s%d, %d" % (sT0, sW, L_WSTRIDE))
    p("s_add_u32 s%d, s%d, %d" % (sT0, sT0, L_W))
    p("v_add_u32 v%d, s%d, v%d" % (vLW, sT0, vL16))
    p("v_bfe_u32 v8, v0, 4, 1")
    p("v_mul_u32_u24 v8, %d, v8" % G2OFF)
    p("v_lshrrev_b32 v9, 5, v0")
    p("v_lshlrev_b32 v9, 4, v9")
    p("v_and_b32 v10, 15, v0")
    p("v_add_u32 v9, v9, v10")
    p("s_lshl_b32 s%d, s%d, 5" % (sT0, sW))
    p("v_add_u32 v9, s%d, v9" % sT0)
    p("v_lshl_add_u32 v8, v9, 3, v8")
    p("v_add_u32 v%d, %d, v8" % (vTW, L_QT))
    p("v_and_b32 v8, 1, v0")
    p("v_mul_u32_u24 v8, %d, v8" % G2OFF)
    p("v_lshrrev_b32 v9, 4, v0")
    p("v_lshlrev_b32 v9, 2, v9")
    p("v_bfe_u32 v10, v0, 2, 2")
    p("v_add_u32 v9, v9, v10")
    p("v_lshl_add_u32 v8, v9, 3, v8")
    p("v_add_u32 v%d, %d, v8" % (vTR, L_QT))
    p("v_and_b32 v8, 7, v0"); p("v_mul_u32_u24 v8, %d, v8" % OSTR)
    p("v_bfe_u32 v9, v0, 3, 1"); p("v_lshl_add_u32 v8, v9, 5, v8")
    p("v_lshrrev_b32 v9, 4, v0"); p("v_lshl_add_u32 v8, v9, 3, v8")
    p("s_lshl_b32 s%d, s%d, 6" % (sT0, sW)); p("s_add_u32 s%d, s%d, %d" % (sT0, sT0, L_O))
    p("v_add_u32 v%d, s%d, v8" % (vOW, sT0))
    p("s_mov_b32 s%d, 0x00ff00ff" % sM8); p("s_mov_b32 s%d, 0x00ff00ff" % (sM8 + 1))
    p("s_mov_b32 s%d, -1" % sLO32); p("s_mov_b32 s%d, 0" % (sLO32 + 1))
    p("s_mov_b32 s%d, 0x00010001" % sOWN4); p("s_mov_b32 s%d, 0x00010001" % (sOWN4 + 1))
    p("v_mov_b32 v8, 0xeeee")
    p("v_mov_b32 v9, 0x4444")
    p("v_cndmask_b32 v%d, v8, v9, s[%d:%d]" % (vIDX, sM8, sM8 + 1))
    p("v_lshrrev_b32 v8, 5, v0"); p("v_lshlrev_b32 v8, 13, v8")
    p("v_bfe_u32 v9, v0, 3, 1"); p("v_lshl_add_u32 v8, v9, 12, v8")
    p("v_and_b32 v9, 7, v0"); p("v_lshl_add_u32 v8, v9, 4, v8")
    p("v_bfe_u32 v9, v0, 4, 1"); p("v_lshl_add_u32 v%d, v9, 3, v8" % vPS)
    p("s_mov_b32 s%d, 0x3e0293ee" % sC); p("s_mov_b32 s%d, 0x3e0293ee" % (sC + 1))
    p("s_cmp_eq_u32 s%d, 0" % sW); p("s_cselect_b32 s%d, 1, 0" % sISOWN)
    p("s_cmp_ge_u32 s%d, 24" % sH); p("s_cselect_b32 s%d, 1, 0" % sT1)
    p("s_cmp_eq_u32 s%d, 1" % sW); p("s_cselect_b32 s%d, s%d, 0" % (sT1, sT1))
    p("s_or_b32 s%d, s%d, s%d" % (sISOWN, sISOWN, sT1))
    p("s_lshl_b32 s%d, s%d, 3" % (sT1, sT1)); p("s_add_u32 s%d, s%d, s%d" % (sT0, sH, sT1))
    p("s_cmp_eq_u32 s%d, 39" % sT0); p("s_cselect_b32 s%d, s%d, 0" % (sMFL, sISOWN))
    p("s_mul_i32 s%d, s%d, %d" % (sP1R, sX, P1_X))
    p("s_add_u32 s%d, s%d, 0x%x" % (sP1R, sP1R, P1))
    p("s_mul_i32 s%d, s%d, %d" % (sP1W, sW, 5 * 8192)); p("s_add_u32 s%d, s%d, s%d" % (sP1W, sP1W, sP1R))
    p("s_lshl_b32 s%d, s%d, 7" % (sT3, sH)); p("s_add_u32 s%d, s%d, s%d" % (sP1W, sP1W, sT3))
    add_const(p, sP1W1, sP1W, 16384); add_const(p, sP1W2, sP1W, 32768)
    p("s_lshl_b32 s%d, s%d, 12" % (sT3, sT0)); p("s_add_u32 s%d, s%d, s%d" % (sP1R, sP1R, sT3))
    p("s_lshl_b32 s%d, s%d, 7" % (sT0, sT0))
    p("s_lshl_b32 s%d, s%d, 13" % (sT1, sX))
    add_const(p, sMLC, sT1, ML)
    p("s_add_u32 s%d, s%d, s%d" % (sMLST, sMLC, sT0))
    p("s_lshl_b32 s%d, s%d, 21" % (sT1, sX))
    add_const(p, sT2, sT1, MR)
    p("s_add_u32 s%d, s%d, s%d" % (sMRST, sT2, sT0))
    p("s_xor_b32 s%d, s%d, 0x%x" % (sT1, sT1, MR_X))
    add_const(p, sMRC, sT1, (MR - MR_S) & 0xFFFFFFFF)
    p("s_and_b32 s%d, s%d, 1" % (sT0, sH))
    p("s_cmp_eq_u32 s%d, s%d" % (sT0, sX))
    p("s_cselect_b32 s%d, 1, 0" % sISPUB)
    if not PUB: p("s_mov_b32 s%d, 0" % sISPUB)
    p("s_lshl_b32 s%d, s%d, 4" % (sT0, sH))
    add_const(p, sFLG, sT0, FLG_KVQ)
    p("s_lshl_b32 s%d, s%d, 2" % (sT0, sH))
    add_const(p, sFKM, sT0, FLG_KM)
    p("s_lshl_b32 s%d, s%d, 14" % (sT0, sH))
    p("s_lshl_b32 s%d, s%d, 11" % (sM0K, sW))
    p("s_lshl_b32 s%d, s%d, 12" % (sT1, sW))
    p("s_add_u32 s%d, s%d, s%d" % (sT1, sT1, sT0))
    add_const(p, sWARM, sT1, KF + 2 * KV_S)
    p("s_add_u32 s%d, s%d, s%d" % (sT0, sT0, sM0K))
    add_const(p, sKFN, sT0, KF)
    add_const(p, sVFN, sT0, VF)
    p("s_lshl_b32 s%d, s%d, 11" % (sT0, sH))
    add_const(p, sKM, sT0, KM)
    p("s_lshl_b32 s%d, s%d, 12" % (sT0, sH))
    p("s_lshl_b32 s%d, s%d, 10" % (sT1, sW))
    p("s_add_u32 s%d, s%d, s%d" % (sT0, sT0, sT1))
    add_const(p, sVM, sT0, VM)

def setup_vor(p):
    if TRACE:
        p("s_lshl_b32 s%d, s%d, 5" % (sTRP, sX)); p("s_add_u32 s%d, s%d, s%d" % (sTRP, sTRP, sH)); p("s_lshl_b32 s%d, s%d, 2" % (sTRP, sTRP))
        p("s_add_u32 s%d, s%d, s%d" % (sTRP, sTRP, sW)); p("s_lshl_b32 s%d, s%d, 12" % (sTRP, sTRP)); add_const(p, sTRP, sTRP, TRC)
    p("s_mov_b32 s%d, 0x3f80" % s3F80); p("s_mov_b32 s%d, 0" % sCNT2)
    p("s_cmp_eq_u32 s%d, 2" % sW); p("s_cselect_b32 s%d, 1024, 0" % sPCH)
    for r_ in range(4):
        m_ = 0x03030303 << (2 * r_)
        p("s_mov_b32 s%d, 0x%x" % (sSEL + 2 * r_, m_)); p("s_mov_b32 s%d, 0x%x" % (sSEL + 2 * r_ + 1, m_))
    p("v_and_b32 v8, 7, v0"); p("v_mul_u32_u24 v8, %d, v8" % OSTR)
    p("v_lshrrev_b32 v9, 4, v0"); p("v_lshl_add_u32 v8, v9, 4, v8")
    p("v_add_u32 v%d, %d, v8" % (vOR, L_O))

def finish_consts(p):
    p("s_add_u32 s%d, s%d, s%d" % (sMRST, sMRST, sT0))
    p("s_add_u32 s%d, s%d, s%d" % (sMRC, sMRC, sT2))
    p("s_cmp_eq_u32 s%d, 0" % sISOWN)
    p("s_cselect_b32 s%d, 0x%x, s%d" % (sMLST, OOB, sMLST))
    p("s_cselect_b32 s%d, 0x%x, s%d" % (sMRST, OOB, sMRST))
    p("s_lshl_b32 s%d, s%d, 7" % (sT1, sX)); add_const(p, sT1, sT1, FLG_MEM)
    p("s_cmp_eq_u32 s%d, 0" % sMFL); p("s_cselect_b32 s%d, 0x%x, s%d" % (sMFL, OOB, sT1))
    p("s_lshl_b32 s%d, s%d, 2" % (sT0, sH)); p("s_add_u32 s%d, s%d, s%d" % (sT0, sT0, sW))
    for _ in range(3):
        p("s_cmp_ge_u32 s%d, 40" % sT0); p("s_cselect_b32 s%d, 40, 0" % sT1); p("s_sub_u32 s%d, s%d, s%d" % (sT0, sT0, sT1))
    p("s_lshl_b32 s%d, s%d, 7" % (sLINE, sT0)); add_const(p, sMLRS, sLINE, ML_S)

def load_weights(p, st=None):
    vm = Counter(p, "vmcnt", 63)
    vG, vGP, vGO, vSR0, vSR1, vSRP, vSRO = 88, 89, 90, 91, 92, 93, 94
    t = 95
    sRB = sBN
    p("s_mul_i32 s%d, s%d, %d" % (sRB, sW, L_WSTRIDE)); p("s_add_u32 s%d, s%d, %d" % (sRB, sRB, L_W))
    p("v_bfe_u32 v%d, v0, 2, 2" % t); p("v_lshlrev_b32 v%d, 15, v%d" % (vG, t))
    p("v_lshrrev_b32 v%d, 5, v0" % t); p("v_lshl_add_u32 v%d, v%d, 14, v%d" % (vG, t, vG))
    p("v_bfe_u32 v%d, v0, 4, 1" % t); p("v_lshl_add_u32 v%d, v%d, 13, v%d" % (vG, t, vG))
    p("v_lshlrev_b32 v%d, 1, v%d" % (t, t)); p("v_and_b32 v8, 3, v0"); p("v_xor_b32 v%d, v%d, v8" % (t, t))
    p("v_lshl_add_u32 v%d, v%d, 4, v%d" % (vG, t, vG))
    p("v_bfe_u32 v%d, v0, 2, 1" % t); p("v_mov_b32 v8, v%d" % t)
    p("v_bfe_u32 v%d, v0, 3, 1" % t); p("v_lshl_add_u32 v8, v%d, 2, v8" % t)
    p("v_bfe_u32 v%d, v0, 4, 1" % t); p("v_lshl_add_u32 v8, v%d, 1, v8" % t)
    p("v_bfe_u32 v%d, v0, 5, 1" % t); p("v_lshl_add_u32 v8, v%d, 3, v8" % t)
    p("v_mul_u32_u24 v8, 1280, v8"); p("v_and_b32 v%d, 3, v0" % t); p("v_lshl_add_u32 v%d, v%d, 4, v8" % (vGP, t))
    p("v_lshrrev_b32 v%d, 1, v0" % t); p("v_mul_u32_u24 v8, 1280, v%d" % t)
    p("v_and_b32 v%d, 1, v0" % t); p("v_lshl_add_u32 v%d, v%d, 4, v8" % (vGO, t))
    p("v_lshrrev_b32 v%d, 5, v0" % t); p("v_lshlrev_b32 v%d, 10, v%d" % (vSR0, t))
    p("v_bfe_u32 v%d, v0, 2, 1" % t); p("v_lshl_add_u32 v%d, v%d, 8, v%d" % (vSR0, t, vSR0))
    p("v_bfe_u32 v%d, v0, 4, 1" % t); p("v_lshl_add_u32 v%d, v%d, 6, v%d" % (vSR0, t, vSR0))
    p("v_bfe_u32 v%d, v0, 3, 1" % t); p("v_lshl_add_u32 v%d, v%d, 7, v%d" % (vSR0, t, vSR0))
    p("v_and_b32 v%d, 1, v0" % t); p("v_lshl_add_u32 v%d, v%d, 3, v%d" % (vSR0, t, vSR0))
    p("v_bfe_u32 v%d, v0, 1, 1" % t); p("v_lshl_add_u32 v%d, v%d, 4, v%d" % (vSR0, t, vSR0))
    p("v_add_u32 v%d, s%d, v%d" % (vSR0, sRB, vSR0))
    p("v_bfe_u32 v%d, v0, 2, 1" % t); p("v_lshlrev_b32 v%d, 5, v%d" % (t, t))
    p("v_sub_u32 v%d, 32, v%d" % (vSR1, t)); p("v_add_u32 v%d, v%d, v%d" % (vSR1, vSR1, vSR0))
    p("v_add_u32 v%d, v%d, v%d" % (vSR0, vSR0, t))
    p("v_lshrrev_b32 v%d, 5, v0" % t); p("v_lshlrev_b32 v%d, 9, v%d" % (vSRP, t))
    p("v_bfe_u32 v%d, v0, 4, 1" % t); p("v_lshl_add_u32 v%d, v%d, 7, v%d" % (vSRP, t, vSRP))
    p("v_bfe_u32 v%d, v0, 2, 1" % t); p("v_lshl_add_u32 v%d, v%d, 6, v%d" % (vSRP, t, vSRP))
    p("v_bfe_u32 v%d, v0, 3, 1" % t); p("v_lshl_add_u32 v%d, v%d, 5, v%d" % (vSRP, t, vSRP))
    p("v_and_b32 v%d, 3, v0" % t); p("v_lshl_add_u32 v%d, v%d, 3, v%d" % (vSRP, t, vSRP))
    p("v_add_u32 v%d, s%d, v%d" % (vSRP, sRB, vSRP))
    p("v_lshrrev_b32 v%d, 4, v0" % t); p("v_lshlrev_b32 v%d, 8, v%d" % (vSRO, t))
    p("v_bfe_u32 v%d, v0, 2, 2" % t); p("v_lshl_add_u32 v%d, v%d, 5, v%d" % (vSRO, t, vSRO))
    p("v_and_b32 v%d, 3, v0" % t); p("v_lshl_add_u32 v%d, v%d, 3, v%d" % (vSRO, t, vSRO))
    p("v_add_u32 v%d, s%d, v%d" % (vSRO, sRB, vSRO))
    p("s_lshl_b32 s%d, s%d, 8" % (sT0, sH)); p("s_lshl_b32 s%d, s%d, 6" % (sT1, sW))
    p("s_add_u32 s%d, s%d, s%d" % (sT0, sT0, sT1))
    p("s_mul_i32 s%d, s%d, %d" % (sT1, sX, 5 * 524288))
    p("s_add_u32 s%d, s%d, s%d" % (sLOC, sT0, sT1))
    p("s_sub_u32 s%d, %d, s%d" % (sT1, 5 * 524288, sT1))
    p("s_add_u32 s%d, s%d, s%d" % (sREM, sT0, sT1))
    sWOB = sBC
    p("s_mul_i32 s%d, s%d, %d" % (sWOB, sH, 128 * 1280))
    p("s_mul_i32 s%d, s%d, 640" % (sT0, sX)); p("s_add_u32 s%d, s%d, s%d" % (sWOB, sWOB, sT0))
    p("s_mul_i32 s%d, s%d, 160" % (sT0, sW)); p("s_add_u32 s%d, s%d, s%d" % (sWOB, sWOB, sT0))

    R = []
    for j in range(10): R.append(dict(mat="q", j=j, acc=False, base=vWQ + j * 16, lds=False))
    R.append(dict(mat="k", j=9, acc=True, base=aWK4, lds=False))
    for j in range(10): R.append(dict(mat="v", j=j, acc=True, base=aWV + j * 16, lds=False))
    for P in range(2):
        for g2 in range(2): R.append(dict(mat="op", j=(P, g2), acc=True, base=aWO + P * 32 + g2 * 16, lds=False))
    R.append(dict(mat="o", j=4, acc=True, base=aWO + 64, lds=False))
    order = list(R)
    for n, g in enumerate(order): g["slot"] = n % 9
    for i in range(9):
        slot = (len(R) + i) % 9
        order.append(dict(mat="k", j=slot, acc=False, base=12, lds=True, slot=slot))
    def rg(g, off, n): return (ar if g["acc"] else vr)(g["base"] + off, n)
    def issue(n):
        g = order[n]
        for a in range(4):
            p("s_add_u32 m0, s%d, %d" % (sRB, g["slot"] * 4096 + a * 1024))
            if g["mat"] == "o":
                add_const(p, sT0, sWOB, g["j"] * 32 + a * 32 * 1280); v, srd = vGO, sWO
            elif g["mat"] == "op":
                P, g2 = g["j"]; add_const(p, sT0, sWOB, P * 64 + (64 * g2 + 16 * a) * 1280); v, srd = vGP, sWO
            else:
                j = g["j"]; add_const(p, sT0, sLOC if j < 5 else sREM, (j % 5) * 524288 + a * 131072)
                v, srd = vG, {"q": sWQ, "k": sWK, "v": sWV}[g["mat"]]
            p("buffer_load_dwordx4 v%d, s[%d:%d], s%d offen lds" % (v, srd, srd + 3, sT0)); vm.issue(n)
    INFL = int(os.environ.get('INFL', '9'))
    for n in range(INFL): issue(n)
    for n, g in enumerate(order):
        vm.wait(n)
        if st is not None and n in (0, 9, 18, 26): st.stamp("G%d" % n)
        so = g["slot"] * 4096
        for u in range(2):
            for pp in range(4):
                d = rg(g, u * 8 + 2 * pp, 2)
                if g["mat"] == "o": p("ds_read_b64_tr_b16 %s, v%d offset:%d" % (d, vSRO, so + (2 * u + pp // 2) * 1024 + (pp % 2) * 128))
                elif g["mat"] == "op": p("ds_read_b64_tr_b16 %s, v%d offset:%d" % (d, vSRP, so + (2 * u + pp // 2) * 1024 + (pp % 2) * 256))
                else: p("ds_read_b64_tr_b16 %s, v%d offset:%d" % (d, vSR0 if u == 0 else vSR1, so + (pp // 2) * 2048 + (pp % 2) * 512))
        p("s_waitcnt lgkmcnt(0)")
        if g["lds"]:
            for q in range(4):
                p("ds_write_b128 v%d, %s offset:%d" % (vLW, rg(g, 4 * q, 4), so + q * 1024))
            p("s_waitcnt lgkmcnt(0)")
        if n + INFL < len(order): issue(n + INFL)

class Step:
    def __init__(self, p, dbg=False, slow=False):
        self.p = p; self.dbg = dbg
        self.slow = slow; self.loc = "sc1" if slow else ""; self.sfx = "_S" if slow else ""
        self.vm = Counter(p, "vmcnt", 63); self.lg = Counter(p, "lgkmcnt", 15)
        self.retries = []; self.tail = []
        self.stamps = []; self.prev = {}
    def stamp(self, name):
        if name not in STAMPS: return
        k = sTS + 2 * STAMPS.index(name); assert k + 1 < 94
        self.stamps = list(STAMPS)
        self.p("%s s[%d:%d]" % ("s_memrealtime" if REALTIME else "s_memtime", k, k + 1))
    def sb(self, b): return vSB + 8 * b
    def lds_unit(self, i):
        p = self.p; b = self.sb(i % 4)
        p("ds_read_b128 %s, v%d offset:%d" % (vr(b, 4), vLW, i * 2048)); self.lg.issue(("L", i))
        p("ds_read_b128 %s, v%d offset:%d" % (vr(b + 4, 4), vLW, i * 2048 + 1024)); self.lg.issue(("L", i))
    def img_ins(self, j, soff, flags=FIRST_FLAGS):
        so, off = (soff, j * 1024) if j < 4 else ({sMLC: sMLC4, sMRC: sMRC4}[soff], 0)
        self.p("buffer_load_dwordx4 %s, v%d, s[%d:%d], s%d offen offset:%d %s" % (vr(vA + 4 * j, 4), vL16, sWS, sWS + 3, so, off, flags))
    def img_load(self, j, soff, tag):
        self.img_ins(j, soff); self.vm.issue(tag)
    def check_chunk(self, j, soff, kind):
        if NOCHECK: return
        p = self.p; lr = p.uid("RETRY"); lb = p.uid("BACK")
        p("v_cmp_eq_u32 vcc, -1, v%d" % (vA + 4 * j + 3))
        p("s_cbranch_vccnz %s" % lr); p.label(lb)
        self.retries.append((lr, lb, j, soff))
    def emit_retries(self):
        p = self.p
        for kind, lretry, lpoll, ldone, loads in self.tail:
            p.label(lretry)
            p("s_add_u32 s%d, s%d, 1" % (sSPIN, sSPIN))
            if COUNT: p("s_add_u32 s%d, s%d, 1" % (sCNT, sCNT))
            p("s_cmp_gt_u32 s%d, %d" % (sSPIN, SPIN_MAX)); p("s_cbranch_scc1 %s" % ldone)
            loads(); p("s_branch %s" % lpoll)
        for lr, lb, j, soff, later in self.retries:
            p.label(lr)
            l2 = p.uid("SPIN")
            p.label(l2)
            self.img_ins(j, soff, "sc1")
            for k in later: self.img_ins(k, soff, "sc1")
            p("s_add_u32 s%d, s%d, 1" % (sSPIN, sSPIN))
            if COUNT: p("s_add_u32 s%d, s%d, %d" % (sCNT, sCNT, (1 << 10) if soff == sMLC else (1 << 20)))
            p("s_cmp_gt_u32 s%d, %d" % (sSPIN, SPIN_MAX))
            p("s_waitcnt vmcnt(0)")
            p("s_cbranch_scc1 %s" % lb)
            p("v_cmp_eq_u32 vcc, -1, v%d" % (vA + 4 * j + 3))
            p("s_cbranch_vccnz %s" % l2)
            p("s_branch %s" % lb)

    def top_state(self):
        self.vm.clear(); self.lg.clear()
        for i in range(2): self.lg.issue(("L", i)); self.lg.issue(("L", i))

    def masked_store(self, data, n, voff, soff, mask, flags="", off=0, tag="st"):
        p = self.p
        p("s_mov_b64 exec, s[%d:%d]" % (mask, mask + 1))
        op = {1: "dword", 2: "dwordx2", 4: "dwordx4"}[n]
        p("buffer_store_%s %s, v%d, s[%d:%d], s%d offen offset:%d %s" % (op, vr(data, n), voff, sWS, sWS + 3, soff, off, flags))
        p("s_mov_b64 exec, -1")
        self.vm.issue(tag)

    def housekeeping(self):
        p = self.p
        def clears(a, b):
            for i in range(a, b): p("v_mov_b64 %s, 0" % vr(vQ0 + 2 * i, 2))
        def prefetch(a, b):
            for i in range(a, b): self.lds_unit(i)
        def salu():
            add_const(p, sWARM, sWARM, KV_S); add_const(p, sVFN, sVFN, KV_S)
            add_const(p, sMLST, sMLST, ML_S); add_const(p, sMRST, sMRST, MR_S)
            p("s_add_u32 s%d, s%d, 1" % (sSTEP, sSTEP))
        return clears, prefetch, salu

    def poller(self):
        p, lg = self.p, self.lg
        clears, prefetch, salu = self.housekeeping()
        p.label("REC_POLL" + self.sfx)
        lskip = p.uid("NOFLG")
        p("s_cmp_lg_u32 s%d, 3" % sW); p("s_cbranch_scc1 %s" % lskip)
        p("s_add_u32 s%d, s%d, 3" % (sT0, sSTEP))
        p("s_and_b32 s%d, s%d, 0x43" % (sT1, sT0)); p("s_cmp_lg_u32 s%d, 0" % sT1); p("s_cbranch_scc1 %s" % lskip)
        p("s_lshl_b32 s%d, s%d, 7" % (sT0, sT0))
        p("s_add_u32 s%d, s%d, s%d" % (sT0, sT0, sFLG))
        self.flag_spin(sT0)
        p.label(lskip)
        p("s_add_u32 s%d, s%d, s%d" % (sT2, sMLC, sPCH))
        sets = [vA + 8, vA + 12, vA + 16, vA + 4][:POLLN]
        vAD = vX0 + 2
        def pload(k): p("buffer_load_dwordx4 %s, v%d, s[%d:%d], s%d offen sc1" % (vr(sets[k], 4), vL16, sWS, sWS + 3, sT2))
        lg.clear()
        p("v_add_u32 v%d, s%d, v%d" % (vAD, sPCH, vL16))
        salu()
        p("s_xor_b32 s%d, s%d, 1" % (sTAG, sTAG))
        p("s_barrier")
        p("s_cmp_lt_u32 s%d, %d" % (sSTEP, NSEG - 1)); p("s_cbranch_scc0 REC_END")
        fill = [lambda: clears(0, 6), lambda: clears(6, 12), lambda: prefetch(0, 1), lambda: prefetch(1, 2)]
        if POLLN == 4: parts = [[fill[0]], [fill[1]], [fill[2]], [fill[3]]]
        elif POLLN == 3: parts = [[fill[0], fill[2]], [fill[1], fill[3]], []]
        else: parts = [fill, []][:POLLN] if POLLN == 2 else [fill]
        if POLLDELAY: p.nop(POLLDELAY)
        self.stamp("PS0")
        for k in range(POLLN):
            pload(k)
            for f in parts[k]: f()
        lp = p.uid("IPOLL"); ok = p.uid("IOK")
        p.label(lp)
        for k in range(POLLN):
            p("s_waitcnt vmcnt(%d)" % (POLLN - 1))
            p("ds_write_b128 v%d, %s offset:%d" % (vAD, vr(sets[k], 4), L_O))
            p("v_max3_u32 v%d, v%d, v%d, v%d" % (vX0 + 3, sets[k], sets[k] + 1, sets[k] + 2))
            p("v_max_u32 v%d, v%d, v%d" % (vX0 + 3, vX0 + 3, sets[k] + 3))
            p("v_cmp_eq_u32 vcc, -1, v%d" % (vX0 + 3))
            if k == POLLN - 1:
                p("s_add_u32 s%d, s%d, 1" % (sSPIN, sSPIN))
                if COUNT: p("s_add_u32 s%d, s%d, 1" % (sCNT2, sCNT2))
                p("s_cmp_gt_u32 s%d, %d" % (sSPIN, SPIN_MAX)); p("s_cbranch_scc1 %s" % ok)
            p("s_cbranch_vccz %s" % ok)
            pload(k)
        p("s_branch %s" % lp)
        p.label(ok)
        self.stamp("PW")
        p("s_waitcnt lgkmcnt(0)")

    def body(self):
        p, vm, lg = self.p, self.vm, self.lg
        clears, prefetch, salu = self.housekeeping()
        self.poller()
        self.top_state()
        p.label("REC_LOOP" + self.sfx)
        self.stamp("preB3")
        p("s_barrier")
        self.stamp("B3")
        if TRACE:
            p("s_waitcnt lgkmcnt(0)")
            for i in range(TRACE): p("v_writelane_b32 v%d, s%d, %d" % (vX0 + 2, sTS + 2 * i, i))
            p("v_lshrrev_b32 v%d, 2, v%d" % (vX0 + 3, vL16))
            p("s_mov_b64 exec, 0xffff")
            p("buffer_store_dword v%d, v%d, s[%d:%d], s%d offen" % (vX0 + 2, vX0 + 3, sWS, sWS + 3, sTRP))
            p("s_mov_b64 exec, -1")
            p("s_add_u32 s%d, s%d, 64" % (sTRP, sTRP))
        self.stamp("TOP")
        for c in range(2):
            p("ds_read_b128 %s, v%d offset:%d" % (vr(vA + 4 * c, 4), vL16, L_O + 1024 * c)); lg.issue(("IM", c))
        self.img_load(2, sMLC, ("AL", 2))
        prefetch(2, 4)
        add_const(p, sMLC4, sMLC, 4096)
        add_const(p, sMRC, sMRC, MR_S); add_const(p, sMRC4, sMRC, 4096)
        p("s_mov_b32 m0, %d" % L_JUNK)
        p("s_add_u32 s%d, s%d, s%d" % (sT1, sMRC, sLINE))
        li = 0
        def k_pair(j, mid=None):
            nonlocal li
            lg.wait(("L", li + 1))
            for u in range(2):
                smf(p, ACCQK[2 + u], vA + 4 * (j % 5), vr(self.sb(li % 4), 8))
                if u == 0 and mid: mid()
                if li + 4 < 18: self.lds_unit(li + 4)
                else: self.kx_reads(li % 4)
                li += 1
        lg.wait(("IM", 0))
        self.stamp("AL0")
        for j in range(5):
            smf(p, vQ0, vA + 4 * j, unit_q(j, 0))
            if j == 0: self.img_load(3, sMLC, ("AL", 3))
            smf(p, vQ1, vA + 4 * j, unit_q(j, 1))
            k_pair(j, (lambda: self.img_load(4, sMLC, ("AL", 4))) if j == 0 else None)
            if j == 0: lg.wait(("IM", 1))
            else: vm.wait(("AL", j + 1) if j < 4 else ("AR", 0)); self.cmp_chunk((j + 1) % 5)
            smf(p, vV0, vA + 4 * j, unit_v(j, 0)); smf(p, vV1, vA + 4 * j, unit_v(j, 1))
            if j > 0: self.branch_chunk((j + 1) % 5, sMLC if j < 4 else sMRC)
            self.img_load(j, sMRC, ("AR", j))
            if j == 0 and RTOUCH:
                p("buffer_load_dword off, s[%d:%d], s%d lds" % (sWS, sWS + 3, sT1)); vm.issue("rt")
            self.stamp("L%d" % j)
        for j in range(5):
            smf(p, vQ0, vA + 4 * j, unit_q(5 + j, 0))
            if j < 4: vm.wait(("AR", j + 1)); self.cmp_chunk(j + 1)
            smf(p, vQ1, vA + 4 * j, unit_q(5 + j, 1))
            if j < 4:
                k_pair(5 + j)
                if j in (0, 2):
                    q = j // 2
                    p("buffer_load_dwordx4 %s, v%d, s[%d:%d], s%d offen offset:%d" % (vr(vVX + 4 * q, 4), vL16, sWS, sWS + 3, sVFN, 1024 * q)); vm.issue("vx")
                self.branch_chunk(j + 1, sMRC)
            else: smf(p, vK0, vA + 16, unit_k9(0)); smf(p, vK1, vA + 16, unit_k9(1))
            self.stamp("R%d" % j)
        wv = vX0
        p("v_lshlrev_b32 v%d, %d, v%d" % (wv, 3 if WSTR == 128 else 2, vL16))
        p("s_add_u32 s%d, s%d, s%d" % (sT1, sMLC, sMLRS))
        p("buffer_load_dword v%d, s[%d:%d], s%d offen lds" % (wv, sWS, sWS + 3, sWARM)); vm.issue("warm")
        p("buffer_load_dword off, s[%d:%d], s%d sc1 lds" % (sWS, sWS + 3, sT1)); vm.issue("warm")
        p("buffer_store_dword v%d, off, s[%d:%d], s%d sc1" % (vIDX, sWS, sWS + 3, sMFL)); vm.issue("flag")
        p("s_add_u32 s%d, s%d, 256" % (sMFL, sMFL))
        def fold(a, b, off, tag):
            for i in range(4): p("v_permlane32_swap_b32 v%d, v%d" % (a + i, b + i))
            for i in (0, 2): p("v_pk_add_f32 %s, %s, %s" % (vr(a + i, 2), vr(a + i, 2), vr(b + i, 2)))
            p("v_cvt_pk_bf16_f32 v%d, v%d, v%d" % (b, a, a + 1))
            p("v_cvt_pk_bf16_f32 v%d, v%d, v%d" % (b + 1, a + 2, a + 3))
            p("ds_write_b64 v%d, %s offset:%d" % (vTW, vr(b, 2), off)); lg.issue(tag)
        fold(vQ0, vQ1, 0, "qw")
        fold(vK0, vK1, L_KT - L_QT, "kw")
        self.stamp("FOLD")
        for j in range(2):
            smf(p, vV0, vA + 4 * j, unit_v(5 + j, 0)); smf(p, vV1, vA + 4 * j, unit_v(5 + j, 1))
        lg.wait_all()
        self.stamp("preB1")
        p("s_barrier")
        self.stamp("B1")
        def kx(t, kk): return vSB + 4 * self.kx_reg(t, kk)
        def q_read(kk):
            for r in range(2):
                p("ds_read_b64_tr_b16 %s, v%d offset:%d" % (vr(vQ0 + 4 * kk + 2 * r, 2), vTR, 256 * kk + 128 * r)); lg.issue(("q", kk))
        kmreg = [vA, vA + 4, kx(0, 2), kx(0, 3)]
        def km_read(kk):
            for r in range(2):
                p("ds_read_b64_tr_b16 %s, v%d offset:%d" % (vr(kmreg[kk] + 2 * r, 2), vTR, L_KT - L_QT + 256 * kk + 128 * r)); lg.issue(("km", kk))
        q_read(0); q_read(1)
        smf(p, vV0, vA + 8, unit_v(7, 0)); smf(p, vV1, vA + 8, unit_v(7, 1))
        q_read(2); q_read(3)
        smf(p, vV0, vA + 12, unit_v(8, 0)); smf(p, vV1, vA + 12, unit_v(8, 1))
        self.stamp("Sstart")
        vX1, vM = kx(0, 0), kx(0, 1)
        def mf(d, a_, b_, first): p("v_mfma_f32_16x16x32_bf16 %s, %s, %s, %s" % (vr(d, 4), vr(a_, 4), vr(b_, 4), "0" if first else vr(d, 4)))
        lg.wait(("q", 1))
        mf(vX0, kx(0, 0), vQ0, True); km_read(0)
        mf(vX0, kx(0, 1), vQ0 + 4, False); km_read(1)
        lg.wait(("q", 3))
        mf(vX0, kx(0, 2), vQ0 + 8, False); km_read(2)
        mf(vX0, kx(0, 3), vQ0 + 12, False); km_read(3)
        for kk in range(4): mf(vX1, kx(1, kk), vQ0 + 4 * kk, kk == 0)
        lg.wait(("km", 1))
        mf(vM, kmreg[0], vQ0, True); mf(vM, kmreg[1], vQ0 + 4, False)
        lg.wait(("km", 3))
        mf(vM, kmreg[2], vQ0 + 8, False); mf(vM, kmreg[3], vQ0 + 12, False)
        smf(p, vV0, vA + 16, unit_v(9, 0)); smf(p, vV1, vA + 16, unit_v(9, 1))
        self.stamp("Send")
        X0, X1, Mm = vX0, vX1, vM
        t0, t1, t2, t3 = vA + 8, vA + 9, vA + 10, vA + 11
        ones, onesm = vA + 12, vA
        for i in range(4): p("v_mov_b32 v%d, 0x3f803f80" % (ones + i))
        p("v_max3_f32 v%d, v%d, v%d, v%d" % (t0, X0, X0 + 1, X0 + 2))
        p("v_max3_f32 v%d, v%d, v%d, v%d" % (t1, X0 + 3, X1, X1 + 1))
        p("v_max3_f32 v%d, v%d, v%d, v%d" % (t0, t0, t1, X1 + 2))
        p("v_max3_f32 v%d, v%d, v%d, v%d" % (t1, Mm, Mm + 1, Mm + 2))
        p("v_max3_f32 v%d, v%d, v%d, v%d" % (t0, t0, X1 + 3, Mm + 3))
        p("v_max_f32 v%d, v%d, v%d" % (t0, t0, t1))
        p("v_mov_b32 v%d, v%d" % (t1, t0))
        p("v_cvt_pk_bf16_f32 v%d, v%d, v%d" % (vV0, vV0, vV0 + 1))
        p("v_cvt_pk_bf16_f32 v%d, v%d, v%d" % (vV0 + 1, vV0 + 2, vV0 + 3))
        p("v_permlane16_swap_b32 v%d, v%d" % (t0, t1))
        p("v_max_f32 v%d, v%d, v%d" % (t0, t0, t1))
        p("v_mov_b32 v%d, v%d" % (t1, t0))
        p("v_cvt_pk_bf16_f32 v%d, v%d, v%d" % (vV0 + 2, vV1, vV1 + 1))
        p("v_cvt_pk_bf16_f32 v%d, v%d, v%d" % (vV0 + 3, vV1 + 2, vV1 + 3))
        p("v_permlane32_swap_b32 v%d, v%d" % (t0, t1))
        p("v_max_f32 v%d, v%d, v%d" % (t0, t0, t1))
        self.stamp("MAX")
        p("v_mul_f32 v%d, s%d, v%d" % (t2, sC, t0))
        if KPOS == 0: p("buffer_load_dwordx4 v%d, s[%d:%d], s%d offen lds" % (vL16, sWS, sWS + 3, sKFN)); vm.issue("kx")
        p("v_mul_f32 v%d, s%d, v%d" % (t3, sC, t0))
        for base in (X0, X1, Mm):
            for i in (0, 2):
                p("v_pk_fma_f32 %s, %s, s[%d:%d], %s neg_lo:[0,0,1] neg_hi:[0,0,1]" % (vr(base + i, 2), vr(base + i, 2), sC, sC + 1, vr(t2, 2)))
        PX, PM = vQ0, vQ0 + 4
        for i in range(4): p("v_exp_f32 v%d, v%d" % (X0 + i, X0 + i))
        if KPOS == 0: p("buffer_load_dwordx4 v%d, s[%d:%d], s%d offen offset:1024 lds" % (vL16, sWS, sWS + 3, sKFN)); vm.issue("kx")
        for i in range(4): p("v_exp_f32 v%d, v%d" % (X1 + i, X1 + i))
        p("v_cvt_pk_bf16_f32 v%d, v%d, v%d" % (PX, X0, X0 + 1))
        p("v_cvt_pk_bf16_f32 v%d, v%d, v%d" % (PX + 1, X0 + 2, X0 + 3))
        for i in range(4): p("v_exp_f32 v%d, v%d" % (Mm + i, Mm + i))
        p("v_cvt_pk_bf16_f32 v%d, v%d, v%d" % (PX + 2, X1, X1 + 1))
        p("v_cvt_pk_bf16_f32 v%d, v%d, v%d" % (PX + 3, X1 + 2, X1 + 3))
        O0, O1, SUM = vK0, vK1, vX0
        p("v_cndmask_b32 v%d, 0, v%d, s[%d:%d]" % (onesm, ones, sLO32, sLO32 + 1))
        p("v_cndmask_b32 v%d, 0, v%d, s[%d:%d]" % (onesm + 1, ones, sLO32, sLO32 + 1))
        self.stamp("P")
        vm.wait("vx")
        self.stamp("VXW")
        GA = vSB + 16
        p("v_mfma_f32_16x16x32_bf16 %s, %s, %s, 0" % (vr(SUM, 4), vr(ones, 4), vr(PX, 4)))
        p("v_cvt_pk_bf16_f32 v%d, v%d, v%d" % (PM, Mm, Mm + 1))
        p("v_mfma_f32_16x16x32_bf16 %s, %s, %s, 0" % (vr(O0, 4), vr(vVX, 4), vr(PX, 4)))
        p("v_cvt_pk_bf16_f32 v%d, v%d, v%d" % (PM + 1, Mm + 2, Mm + 3))
        p("v_mfma_f32_16x16x32_bf16 %s, %s, %s, 0" % (vr(O1, 4), vr(vVX + 4, 4), vr(PX, 4)))
        p("v_mfma_f32_16x16x16_bf16 %s, %s, %s, %s" % (vr(SUM, 4), vr(onesm, 2), vr(PM, 2), vr(SUM, 4)))
        p("v_mov_b64 %s, 0" % vr(GA, 2))
        p("v_mfma_f32_16x16x16_bf16 %s, %s, %s, %s" % (vr(O0, 4), vr(vV0, 2), vr(PM, 2), vr(O0, 4)))
        p("v_mov_b64 %s, 0" % vr(GA + 2, 2))
        p("v_mfma_f32_16x16x16_bf16 %s, %s, %s, %s" % (vr(O1, 4), vr(vV0 + 2, 2), vr(PM, 2), vr(O1, 4)))
        for i in range(2, 6): p("v_mov_b64 %s, 0" % vr(GA + 2 * i, 2))
        self.stamp("PV")
        p("v_rcp_f32 v%d, v%d" % (t2, SUM))
        p.nop(3)
        for i in range(4): p("v_cndmask_b32 v%d, v%d, v%d, s[%d:%d]" % (O0 + i, O1 + i, O0 + i, sM8, sM8 + 1))
        p("v_mov_b32 v%d, v%d" % (t3, t2))
        for i in (0, 2): p("v_pk_mul_f32 %s, %s, %s" % (vr(O0 + i, 2), vr(O0 + i, 2), vr(t2, 2)))
        p("v_cvt_pk_bf16_f32 v%d, v%d, v%d" % (O1, O0, O0 + 1))
        p("v_cvt_pk_bf16_f32 v%d, v%d, v%d" % (O1 + 1, O0 + 2, O0 + 3))
        p("ds_write_b64 v%d, %s" % (vOW, vr(O1, 2))); lg.issue("ow")
        if KPOS == 1:
            p("s_mov_b32 m0, s%d" % sM0K)
            add_const(p, sKFN, sKFN, KV_S)
            p("buffer_load_dwordx4 v%d, s[%d:%d], s%d offen lds" % (vL16, sWS, sWS + 3, sKFN)); vm.issue("kx")
            p("buffer_load_dwordx4 v%d, s[%d:%d], s%d offen offset:1024 lds" % (vL16, sWS, sWS + 3, sKFN)); vm.issue("kx")
        self.stamp("OW")
        lg.wait_all()
        self.stamp("preB2")
        p("s_barrier")
        self.stamp("B2")
        oD = vA
        def od_read(c):
            p("ds_read_b128 %s, v%d offset:%d" % (vr(oD + 4 * c, 4), vOR, c * 64)); lg.issue(("od", c))
        for c in range(4): od_read(c)
        T4 = GA + 8
        def pack(acc):
            return ["v_cvt_pk_bf16_f32 v%d, v%d, v%d" % (acc, acc, acc + 1), "v_cvt_pk_bf16_f32 v%d, v%d, v%d" % (acc + 1, acc + 2, acc + 3),
                    "v_and_or_b32 v%d, v%d, -2, s%d" % (acc, acc, sTAG)]
        def pstore(acc, soff):
            p("buffer_store_dwordx2 %s, v%d, s[%d:%d], s%d offen %s" % (vr(acc, 2), vPS, sWS, sWS + 3, soff, self.loc)); vm.issue("p1")
        for c in range(4):
            lg.wait(("od", c)); smf(p, GA, oD + 4 * c, unit_wo_pair(0, c))
        self.stamp("T4")
        smf(p, GA + 4, oD, unit_wo_pair(1, 0))
        smf(p, GA + 4, oD + 4, unit_wo_pair(1, 1))
        pk = pack(GA); p(pk[0])
        smf(p, GA + 4, oD + 8, unit_wo_pair(1, 2)); p(pk[1])
        smf(p, GA + 4, oD + 12, unit_wo_pair(1, 3)); p(pk[2])
        def mf4(c): p("v_mfma_f32_16x16x32_bf16 %s, %s, %s, %s" % (vr(T4, 4), vr(oD + 4 * c, 4), unit_wo4(c), "0" if c == 0 else vr(T4, 4)))
        mf4(0); pstore(GA, sP1W)
        mf4(1)
        pk = pack(GA + 4)
        mf4(2); p(pk[0]); p(pk[1])
        mf4(3); p(pk[2])
        self.stamp("G2")
        pstore(GA + 4, sP1W1)
        vOS, vDAT, tt = vX0 + 1, vX0, vA + 17
        Bsel = vQ0
        p("v_and_b32 v%d, 0x70, v%d" % (vOS, vL16))
        p("v_bfe_u32 v%d, v%d, 8, 1" % (tt, vL16)); p("v_lshl_add_u32 v%d, v%d, 3, v%d" % (vOS, tt, vOS))
        p("v_bfe_u32 v%d, v%d, 9, 1" % (tt, vL16)); p("v_lshl_add_u32 v%d, v%d, 2, v%d" % (vOS, tt, vOS))
        p("v_mov_b32 v%d, 0x%x" % (tt, OOB))
        pk = pack(T4)
        for ins in pk: p(ins)
        p("s_mov_b64 exec, s[%d:%d]" % (sLO32, sLO32 + 1))
        pstore(T4, sP1W2)
        p("s_mov_b64 exec, -1")
        self.stamp("P1")
        lidle = p.uid("IDLE"); lown = p.uid("OWN")
        add_const(p, sMLC, sMLC, ML_S)
        p("s_cmp_lg_u32 s%d, 0" % sISOWN); p("s_cbranch_scc1 %s" % lown)
        p("s_cmp_lt_u32 s%d, 2" % sW); p("s_cbranch_scc1 %s" % lidle)
        p("s_branch REC_POLL" + self.sfx)
        def leave():
            p("s_cmp_lt_u32 s%d, %d" % (sSTEP, NSEG - 1))
            p("s_cbranch_scc1 REC_LOOP" + self.sfx)
            p("s_branch REC_END")
        p.label(lown)
        Bsel, D = vVX, vVX + 4
        tg = [vX0 + 2, vX0 + 3, vA + 18, vA + 19]
        sets = [vA, vSB + 16]
        ldone = p.uid("ODONE"); lpoll = p.uid("OPOLL")
        def owner_loads(k):
            for i in range(4):
                p("buffer_load_dwordx4 %s, v%d, s[%d:%d], s%d offen offset:%d sc1" % (vr(sets[k] + 4 * i, 4), vL16, sWS, sWS + 3, sP1R, 1024 * i))
        p("v_cndmask_b32 v%d, v%d, v%d, s[%d:%d]" % (vOS, tt, vOS, sM8, sM8 + 1))
        p("v_and_b32 v%d, 16, v%d" % (tt, vL16)); p("v_lshlrev_b32 v%d, v%d, s%d" % (tt, tt, s3F80))
        for r_ in range(4): p("v_cndmask_b32 v%d, 0, v%d, s[%d:%d]" % (Bsel + r_, tt, sSEL + 2 * r_, sSEL + 2 * r_ + 1))
        lg.clear()
        self.stamp("OL")
        p.nop(DELAY1)
        owner_loads(0)
        p("s_barrier")
        prefetch(0, 2)
        clears(0, OSTAG)
        if OWN2: owner_loads(1)
        clears(OSTAG, 12)
        salu()
        def omf(k, i): p("v_mfma_f32_16x16x32_bf16 %s, %s, %s, %s" % (vr(D, 4), vr(sets[k] + 4 * i, 4), vr(Bsel, 4), "0" if i == 0 else vr(D, 4)))
        def otag(k, i): p("v_bitop3_b32 v%d, v%d, v%d, s%d bitop3:0x7e" % (tg[i], sets[k] + 4 * i, sets[k] + 4 * i + 2, sTAG))
        p.label(lpoll)
        nset = 2 if OWN2 else 1
        for k in range(nset):
            for i in range(4):
                p("s_waitcnt vmcnt(%d)" % ((4 if OWN2 else 0) + 3 - i)); omf(k, i); otag(k, i)
            p("v_or3_b32 v%d, v%d, v%d, v%d" % (tg[0], tg[0], tg[1], tg[2]))
            p("v_bitop3_b32 v%d, v%d, v%d, 1 bitop3:0xa8" % (tg[0], tg[0], tg[3]))
            p("v_cmp_ne_u32 vcc, 0, v%d" % tg[0])
            if k == nset - 1:
                p("s_add_u32 s%d, s%d, 1" % (sSPIN, sSPIN))
                p("s_cmp_gt_u32 s%d, %d" % (sSPIN, SPIN_MAX)); p("s_cbranch_scc1 %s" % ldone)
                p.nop(1)
            else: p.nop(4)
            p("s_cbranch_vccz %s" % ldone) if not NOCHECK else p("s_branch %s" % ldone)
            if COUNT: p("s_add_u32 s%d, s%d, 1" % (sCNT, sCNT))
            owner_loads(k)
        p("s_branch %s" % lpoll)
        p.label(ldone)
        self.stamp("OLret")
        p("v_permlane32_swap_b32 v%d, v%d" % (D, D + 2))
        p("v_permlane32_swap_b32 v%d, v%d" % (D + 1, D + 3))
        p("v_add_f32 v%d, v%d, v%d" % (D, D, D + 2))
        p("v_add_f32 v%d, v%d, v%d" % (D + 1, D + 1, D + 3))
        p("v_cvt_pk_bf16_f32 v%d, v%d, v%d" % (vDAT, D, D + 1))
        st_l = "buffer_store_dword v%d, v%d, s[%d:%d], s%d offen %s" % (vDAT, vOS, sWS, sWS + 3, sMLST, self.loc)
        st_r = "buffer_store_dword v%d, v%d, s[%d:%d], s%d offen sc1" % (vDAT, vOS, sWS, sWS + 3, sMRST)
        for ins in ([st_r, st_l] if MRFIRST else [st_l, st_r]): p(ins)
        self.stamp("MLst")
        if "ACK1" in STAMPS: p("s_waitcnt vmcnt(1)"); self.stamp("ACK1"); p("s_waitcnt vmcnt(0)"); self.stamp("ACK2")
        p("s_xor_b32 s%d, s%d, 1" % (sTAG, sTAG))
        p("s_waitcnt vmcnt(2) lgkmcnt(0)")
        leave()
        p.label(lidle)
        lg.clear()
        p("s_barrier")
        clears(0, 12); salu(); prefetch(0, 2)
        p("s_xor_b32 s%d, s%d, 1" % (sTAG, sTAG))
        p("s_waitcnt vmcnt(0)")
        leave()
        p.label("REC_TAIL" + self.sfx)
        self.emit_retries()

    def kx_reads(self, b):
        for q in range(2):
            f = b * 2 + q
            self.p("ds_read_b128 %s, v%d offset:%d" % (vr(vSB + 4 * f, 4), vL16, L_KX + self.kx_slot(f) * 1024)); self.lg.issue(("KX", f))

    def emit_slow(self):
        p = self.p
        p.label("REC_SLOW")
        if COUNT: p("s_add_u32 s%d, s%d, 1024" % (sCNT, sCNT))
        p("s_waitcnt vmcnt(0) lgkmcnt(0)")
        for i in range(12): p("v_mov_b64 %s, 0" % vr(vQ0 + 2 * i, 2))
        for ph, soff in ((0, sMLC), (1, sMRC)):
            l = p.uid("SLOWP"); ld = p.uid("SLOWD")
            p.label(l)
            for j in range(5): self.img_ins(j, soff, "sc1")
            p("s_add_u32 s%d, s%d, 1" % (sSPIN, sSPIN))
            p("s_waitcnt vmcnt(0)")
            p("v_max3_u32 v%d, v%d, v%d, v%d" % (vX0, vA + 3, vA + 7, vA + 11))
            p("v_max3_u32 v%d, v%d, v%d, v%d" % (vX0, vX0, vA + 15, vA + 19))
            p("v_cmp_eq_u32 vcc, -1, v%d" % vX0)
            p("s_cbranch_vccz %s" % ld)
            p("s_cmp_gt_u32 s%d, %d" % (sSPIN, SPIN_MAX)); p("s_cbranch_scc0 %s" % l)
            p.label(ld)
            for j in range(5):
                jj = 5 * ph + j
                smf(p, vQ0, vA + 4 * j, unit_q(jj, 0)); smf(p, vQ1, vA + 4 * j, unit_q(jj, 1))
                if jj < 9:
                    for u in range(2):
                        i = 2 * jj + u
                        p("ds_read_b128 %s, v%d offset:%d" % (vr(vSB + 8 * u, 4), vLW, i * 2048))
                        p("ds_read_b128 %s, v%d offset:%d" % (vr(vSB + 8 * u + 4, 4), vLW, i * 2048 + 1024))
                    p("s_waitcnt lgkmcnt(0)")
                    smf(p, vK0, vA + 4 * j, vr(vSB, 8)); smf(p, vK1, vA + 4 * j, vr(vSB + 8, 8))
                else:
                    smf(p, vK0, vA + 16, unit_k9(0)); smf(p, vK1, vA + 16, unit_k9(1))
                if ph == 0: smf(p, vV0, vA + 4 * j, unit_v(j, 0)); smf(p, vV1, vA + 4 * j, unit_v(j, 1))
        for b in range(4):
            for q in range(2):
                f = b * 2 + q
                p("ds_read_b128 %s, v%d offset:%d" % (vr(vSB + 4 * f, 4), vL16, L_KX + self.kx_slot(f) * 1024))
        p("s_waitcnt lgkmcnt(0)")
        p("s_mov_b64 vcc, 0")
        p.nop(8)
        p("s_branch REC_FOLD")

    def cmp_chunk(self, j):
        if not NOCHECK: self.p("v_cmp_eq_u32 vcc, -1, v%d" % (vA + 4 * j + 3))
    def branch_chunk(self, j, soff):
        if NOCHECK: return
        p = self.p; lr = p.uid("RETRY"); lb = p.uid("BACK")
        p("s_cbranch_vccnz %s" % lr); p.label(lb)
        tag = "AL" if soff == sMLC else "AR"
        later = [t[1] for t in self.vm.q if isinstance(t, tuple) and t[0] == tag and t[1] > j]
        self.retries.append((lr, lb, j, soff, later))

    def pub_v(self):
        p = self.p; lp = p.uid("NOPUBV")
        p("s_cmp_eq_u32 s%d, 0" % sISPUB); p("s_cbranch_scc1 %s" % lp)
        p("buffer_store_dwordx4 %s, v%d, s[%d:%d], s%d offen sc1" % (vr(vV0, 4), vL16, sWS, sWS + 3, sVM))
        p.label(lp); p.nop(2)
    def pub_k(self):
        p = self.p; lp = p.uid("NOPUBK"); a = vA + 16; d = vA
        p("s_cmp_eq_u32 s%d, 0" % sISPUB); p("s_cbranch_scc1 %s" % lp)
        p("v_lshrrev_b32 v%d, 1, v%d" % (a, vL16))
        for r in range(2):
            p("ds_read_b64 %s, v%d offset:%d" % (vr(d + 4 * r, 2), a, L_KT + r * 512))
            p("ds_read_b64 %s, v%d offset:%d" % (vr(d + 4 * r + 2, 2), a, L_KT + G2OFF + r * 512))
        p("s_waitcnt lgkmcnt(0)")
        for r in range(2):
            p("buffer_store_dwordx4 %s, v%d, s[%d:%d], s%d offen offset:%d sc1" % (vr(d + 4 * r, 4), vL16, sWS, sWS + 3, sKM, r * 1024))
        p.label(lp); p.nop(2)
    def flag_store(self):
        p = self.p
        p("s_lshl_b32 s%d, s%d, 7" % (sT0, sSTEP)); p("s_add_u32 s%d, s%d, s%d" % (sT0, sT0, sFKM))
        p("v_mov_b32 v%d, 0" % (vA + 17)); p("v_mov_b32 v%d, 1" % (vA + 16))
        p("s_mov_b64 exec, 1")
        p("buffer_store_dword v%d, v%d, s[%d:%d], s%d offen sc1" % (vA + 16, vA + 17, sWS, sWS + 3, sT0))
        p("s_mov_b64 exec, -1")

    def flag_spin(self, soff):
        p = self.p; l = p.uid("FSPIN"); ld = p.uid("FDONE")
        p("v_mov_b32 v%d, 0" % (vA + 17))
        p.label(l)
        p("buffer_load_dwordx2 %s, v%d, s[%d:%d], s%d offen sc1" % (vr(vA, 2), vA + 17, sWS, sWS + 3, soff))
        p("s_add_u32 s%d, s%d, 1" % (sSPIN, sSPIN))
        p("s_waitcnt vmcnt(0)")
        p("v_and_b32 v%d, v%d, v%d" % (vA, vA, vA + 1))
        p("v_cmp_eq_u32 vcc, 0, v%d" % vA)
        p("s_cbranch_vccz %s" % ld)
        p("s_cmp_gt_u32 s%d, %d" % (sSPIN, SPIN_MAX))
        p("s_cbranch_scc0 %s" % l)
        p.label(ld)

    def kx_slot(self, f):
        order = self.kx_order()
        return order[f]
    def kx_order(self):
        rel = [2, 3, 0, 1]
        chunks = [0, 4, 1, 5, 2, 6, 3, 7]
        o = [None] * 8
        for n, b in enumerate(rel):
            o[2 * b] = chunks[2 * n]; o[2 * b + 1] = chunks[2 * n + 1]
        return o
    def kx_reg(self, tile, kk):
        return self.kx_order().index(tile * 4 + kk)

def emit_rec(p, dbg=False, check_mode=None, slow_sgpr=None, tl=None, read_cand=None):
    st = Step(p, dbg)
    st.stamp("E0")
    setup_consts(p)
    st.stamp("E1")
    load_weights(p, st)
    st.stamp("E3")
    if dbg and tl: tl(p, 11)
    if check_mode: check_mode(p)
    if dbg and tl: tl(p, 12)
    setup_vor(p)
    p("s_mov_b32 s%d, 0" % sSPIN); p("s_mov_b32 s%d, 0" % sCNT)
    if read_cand: read_cand(p, sT2, sT3); p("s_mov_b32 s%d, s%d" % (sT0, sT2)); p("s_mov_b32 s%d, s%d" % (sT1, sT3))
    else:
        p("s_mov_b32 s%d, 0x%x" % (sT1, CANDW))
        p("buffer_load_dwordx2 v[8:9], off, s[%d:%d], s%d sc1" % (sWS, sWS + 3, sT1)); p("s_waitcnt vmcnt(0)")
        p("v_readfirstlane_b32 s%d, v8" % sT0); p("v_readfirstlane_b32 s%d, v9" % sT1)
        if FORCECAND: p("s_mov_b32 s%d, %d" % (sT0, (FORCECAND - 1) & 3)); p("s_mov_b32 s%d, %d" % (sT1, (FORCECAND - 1) >> 2))
        p("s_mov_b32 s60, s%d" % sT0); p("s_mov_b32 s61, s%d" % sT1)
    p("s_cmp_eq_u32 s%d, 0" % sX); p("s_cselect_b32 s%d, s%d, s%d" % (sT2, sT1, sT0)); p("s_cselect_b32 s%d, s%d, s%d" % (sT0, sT0, sT1))
    for r_ in (sT0, sT2): p("s_and_b32 s%d, s%d, 3" % (r_, r_)); p("s_lshl_b32 s%d, s%d, 13" % (r_, r_))
    finish_consts(p)
    st.stamp("E4")
    st.flag_spin(sFLG)
    if dbg and tl: tl(p, 13)
    p("s_barrier")
    p("s_mov_b32 m0, s%d" % sM0K); p.nop(1)
    p("buffer_load_dwordx4 v%d, s[%d:%d], s%d offen lds" % (vL16, sWS, sWS + 3, sKFN))
    p("buffer_load_dwordx4 v%d, s[%d:%d], s%d offen offset:1024 lds" % (vL16, sWS, sWS + 3, sKFN))
    p("s_mov_b32 m0, %d" % L_JUNK); p("v_lshlrev_b32 v12, 2, v%d" % vL16)
    add_const(p, sT1, sWARM, (-KV_S) & 0xFFFFFFFF)
    p("buffer_load_dword v12, s[%d:%d], s%d offen lds" % (sWS, sWS + 3, sT1))
    p("s_mov_b32 s%d, 0" % sSTEP); p("s_mov_b32 s%d, 0" % sTAG)
    p("s_add_u32 s%d, s%d, s%d" % (sT2, sMLC, sPCH))
    p("buffer_load_dwordx4 %s, v%d, s[%d:%d], s%d offen sc1" % (vr(vA, 4), vL16, sWS, sWS + 3, sT2))
    p("v_add_u32 v%d, s%d, v%d" % (vA + 17, sPCH, vL16))
    p("s_waitcnt vmcnt(0)")
    p("ds_write_b128 v%d, %s offset:%d" % (vA + 17, vr(vA, 4), L_O))
    p("s_waitcnt lgkmcnt(0)")
    for i in range(12): p("v_mov_b64 %s, 0" % vr(vQ0 + 2 * i, 2))
    for i in range(2): st.lds_unit(i)
    st.stamp("E5")
    if dbg and tl: tl(p, 2)
    if dbg: p("s_memtime s[100:101]"); p("s_memrealtime s[98:99]"); p("s_waitcnt lgkmcnt(0)")
    if slow_sgpr is not None:
        p("s_cmp_eq_u32 s%d, 0" % slow_sgpr); p("s_cbranch_scc1 REC_LOOP")
        p("s_branch REC_LOOP_S")
        st2 = Step(p, False, slow=True); st2.body()
    else: p("s_branch REC_LOOP")
    st.body()
    p.label("REC_END")
    p("buffer_store_dword v%d, off, s[%d:%d], s%d sc1" % (vIDX, sWS, sWS + 3, sMFL))
    if dbg:
        p("s_memtime s[8:9]"); p("s_memrealtime s[96:97]"); p("s_waitcnt lgkmcnt(0)"); p("s_sub_u32 s98, s96, s98")
    return st
```

```python
import sys
from asm import *
from layout import *
import rec, k0, gemm, mkv, att, outp, moe, init

HEADER = open("/code/%s.s.ref" % NAME).read()
HEADER = HEADER[:HEADER.index("; Override launch geometry")]

def kernel_begin(p, label):
    p(".text"); p(".globl %s" % label); p(".p2align 8"); p(".type %s,@function" % label); p.label(label)
def descriptor(label, vgpr, sgpr, accum):
    return """.section .rodata,"a"
.p2align 6
.amdhsa_kernel %s
  .amdhsa_next_free_vgpr %d
  .amdhsa_next_free_sgpr %d
  .amdhsa_accum_offset %d
  .amdhsa_group_segment_fixed_size 0
  .amdhsa_kernarg_size 120
  .amdhsa_user_sgpr_count 2
  .amdhsa_user_sgpr_kernarg_segment_ptr 1
  .amdhsa_system_sgpr_workgroup_id_x 1
.end_amdhsa_kernel
""" % (label, vgpr, sgpr, accum)

def srd(p, dst, karg_off, size, tmp=None):
    p("s_load_dwordx2 s[%d:%d], s[0:1], %d" % (dst, dst + 1, karg_off))
    p("s_mov_b32 s%d, 0x%x" % (dst + 2, size)); p("s_mov_b32 s%d, 0x00020000" % (dst + 3))

import os
XPAIR = int(os.environ.get("XPAIR", "2"))
def xcc_to_x(p, dst, src, lelse):
    l = p.uid("XOK")
    p("s_cmp_eq_u32 s%d, 0" % src); p("s_cbranch_scc1 %s" % l)
    p("s_cmp_eq_u32 s%d, %d" % (src, XPAIR)); p("s_cbranch_scc0 %s" % lelse)
    p("s_mov_b32 s%d, 1" % dst)
    p.label(l)

def rec_standalone(dbg):
    p = Prog(); label = "rec_kernel"
    kernel_begin(p, label)
    p("s_cmp_ge_u32 s2, 256"); p("s_cbranch_scc1 REC_EXIT")
    if dbg and not rec.STAMPS[0]: p("s_memrealtime s[94:95]")
    srd(p, rec.sWS, 112, WS_SIZE)
    WB = 640 * 4096 * 2
    srd(p, rec.sWQ, 16, WB); srd(p, rec.sWK, 24, WB); srd(p, rec.sWV, 32, WB); srd(p, rec.sWO, 40, WB)
    p("s_getreg_b32 s%d, hwreg(HW_REG_XCC_ID)" % rec.sX); p("s_and_b32 s%d, s%d, 15" % (rec.sX, rec.sX))
    p("v_lshrrev_b32 v1, 6, v0"); p.nop(1); p("v_readfirstlane_b32 s%d, v1" % rec.sW)
    p("s_waitcnt lgkmcnt(0)")
    xcc_to_x(p, rec.sX, rec.sX, "REC_EXIT")
    p("s_cmp_lg_u32 s%d, 0" % rec.sW); p("s_cbranch_scc1 TICK_WAIT")
    p("s_lshl_b32 s%d, s%d, 7" % (rec.sT0, rec.sX)); rec.add_const(p, rec.sT0, rec.sT0, TICKET)
    p("v_mov_b32 v1, 0"); p("v_mov_b32 v2, 1")
    p("s_mov_b64 exec, 1")
    p("buffer_atomic_add v2, v1, s[%d:%d], s%d offen sc0" % (rec.sWS, rec.sWS + 3, rec.sT0))
    p("s_waitcnt vmcnt(0)")
    p("ds_write_b32 v1, v2"); p("s_waitcnt lgkmcnt(0)")
    p("s_mov_b64 exec, -1")
    p.label("TICK_WAIT")
    p("s_barrier")
    p("v_mov_b32 v1, 0"); p("ds_read_b32 v2, v1"); p("s_waitcnt lgkmcnt(0)")
    p("v_readfirstlane_b32 s%d, v2" % rec.sH)
    p("s_barrier")
    p("s_cmp_ge_u32 s%d, 32" % rec.sH); p("s_cbranch_scc1 REC_EXIT")
    st = rec.emit_rec(p, dbg)
    if dbg:
        p("s_lshl_b32 s%d, s%d, 5" % (rec.sT0, rec.sX)); p("s_add_u32 s%d, s%d, s%d" % (rec.sT0, rec.sT0, rec.sH))
        p("s_lshl_b32 s%d, s%d, 2" % (rec.sT0, rec.sT0)); p("s_add_u32 s%d, s%d, s%d" % (rec.sT0, rec.sT0, rec.sW))
        p("s_lshl_b32 s%d, s%d, 7" % (rec.sT0, rec.sT0)); rec.add_const(p, rec.sT0, rec.sT0, DBG)
        vals = [100, 8, 98 if not rec.STAMPS[0] else rec.sSPIN, rec.sISOWN, rec.sCNT] + [rec.sTS + 2 * i for i in range(len(st.stamps))] + [rec.sCNT2, 60, 61]
        open('stamps.txt', 'w').write(','.join(st.stamps))
        if not rec.STAMPS[0]: p("s_sub_u32 s94, s96, s94"); vals.append(94)
        p("v_mov_b32 v1, 0"); p("s_mov_b64 exec, 1")
        for i, sreg in enumerate(vals):
            p("v_mov_b32 v2, s%d" % sreg)
            p("buffer_store_dword v2, v1, s[%d:%d], s%d offen offset:%d" % (rec.sWS, rec.sWS + 3, rec.sT0, 4 * i))
        p("s_waitcnt vmcnt(0)")
    p.label("REC_EXIT"); p("s_endpgm")
    return p, label

def k0_kernel(devflags, dbg=0):
    p = Prog(); label = "init_kernel"
    kernel_begin(p, label)
    p("s_cmp_ge_u32 s2, 256"); p("s_cbranch_scc1 K0_EXIT")
    if dbg: p("s_memrealtime s[36:37]")
    k0.emit_k0(p, devflags)
    if dbg:
        p("s_mov_b32 s38, s36"); p("s_lshl_b32 s39, s2, 2"); p("s_add_u32 s39, s39, 0x%x" % (DBG + 0x8000))
        p("v_mov_b32 v14, s38"); p("v_mov_b32 v15, 0"); p("s_mov_b64 exec, 1")
        p("buffer_store_dword v14, v15, s[4:7], s39 offen"); p("s_mov_b64 exec, -1")
    p.label("K0_EXIT"); p("s_endpgm")
    return p, label

def gemm_kernel():
    p = Prog(); label = "gemm_kernel"
    kernel_begin(p, label)
    p("s_cmp_ge_u32 s2, 192"); p("s_cbranch_scc1 G_EXIT")
    if gemm.DBGT: p("s_memrealtime s[68:69]")
    srd(p, gemm.sWS, 112, WS_SIZE)
    p("s_load_dwordx4 s[48:51], s[0:1], 16"); p("s_load_dwordx2 s[52:53], s[0:1], 32")
    p("v_lshrrev_b32 v1, 6, v0"); p("v_and_b32 v0, 63, v0"); p.nop(1); p("v_readfirstlane_b32 s%d, v1" % gemm.sW)
    p("s_and_b32 s%d, s2, 1" % gemm.sHALF); p("s_lshr_b32 s3, s2, 1"); p("s_and_b32 s%d, s3, 31" % gemm.sH); p("s_lshr_b32 s3, s3, 5")
    p("s_waitcnt lgkmcnt(0)")
    p("s_mov_b32 s46, %d" % (640 * 4096 * 2)); p("s_mov_b32 s47, 0x00020000")
    roles = [(0, 50, "T", "GK"), (1, 52, "N", "GV"), (2, 48, "T", "GQ")]
    for mat, sp, kind, nm in roles:
        p("s_cmp_eq_u32 s3, %d" % mat); p("s_cbranch_scc1 %s_ENTRY" % nm)
    p("s_branch G_EXIT")
    for mat, sp, kind, nm in roles:
        p.label(nm + "_ENTRY")
        p("s_mov_b32 s44, s%d" % sp); p("s_mov_b32 s45, s%d" % (sp + 1))
        gemm.setup_role(p, mat)
        p("s_branch %s" % ("G_T" if kind == "T" else "G_N"))
    for kind, nm in (("T", "G_T"), ("N", "G_N")):
        p.label(nm)
        gemm.load_weights(p)
        gemm.emit_gemm(p, kind, nm, lambda q: None)
        p("s_branch G_EXIT")
    p.label("G_EXIT"); p("s_endpgm")
    return p, label

def wave_id(p, sreg):
    p("v_lshrrev_b32 v1, 6, v0"); p("v_and_b32 v0, 63, v0"); p.nop(1); p("v_readfirstlane_b32 s%d, v1" % sreg)

def mkv_kernel():
    p = Prog(); label = "mkv_kernel"
    kernel_begin(p, label)
    p("s_cmp_ge_u32 s2, 64"); p("s_cbranch_scc1 MK_EXIT")
    srd(p, gemm.sWS, 112, WS_SIZE)
    p("s_load_dwordx4 s[48:51], s[0:1], 24")
    wave_id(p, gemm.sW)
    p("s_and_b32 s%d, s2, 31" % gemm.sH); p("s_lshr_b32 s3, s2, 5")
    p("s_waitcnt lgkmcnt(0)")
    p("s_mov_b32 s46, %d" % (640 * 4096 * 2)); p("s_mov_b32 s47, 0x00020000")
    p("s_cmp_eq_u32 s3, 0"); p("s_cselect_b32 s44, s48, s50"); p("s_cselect_b32 s45, s49, s51")
    gemm.load_weights(p)
    p("s_cmp_eq_u32 s3, 0"); p("s_cbranch_scc0 MK_V")
    mkv.emit_mkv(p, "T", "MKK"); p("s_branch MK_EXIT")
    p.label("MK_V"); mkv.emit_mkv(p, "N", "MKV")
    p.label("MK_EXIT"); p("s_endpgm")
    return p, label

def att_kernel():
    p = Prog(); label = "att_kernel"
    kernel_begin(p, label)
    p("s_cmp_ge_u32 s2, 64"); p("s_cbranch_scc1 AT_EXIT")
    srd(p, gemm.sWS, 112, WS_SIZE)
    wave_id(p, gemm.sW)
    p("s_and_b32 s%d, s2, 1" % gemm.sHALF); p("s_lshr_b32 s%d, s2, 1" % gemm.sH)
    p("s_waitcnt lgkmcnt(0)")
    att.emit_att(p, "AT")
    p.label("AT_EXIT"); p("s_endpgm")
    return p, label

def moe_kernels():
    out = []
    for nm, grid in (("sel", 1), ("f1", 27), ("f2", 40)):
        p = Prog(); label = nm + "_kernel"
        kernel_begin(p, label)
        p("s_cmp_ge_u32 s2, %d" % grid); p("s_cbranch_scc1 %s_EXIT" % nm)
        srd(p, gemm.sWS, 112, WS_SIZE)
        srd(p, moe.sWG, 72, 640 * 1728 * 2); srd(p, moe.sWU, 80, 640 * 1728 * 2); srd(p, moe.sWD, 88, 640 * 1728 * 2)
        wave_id(p, gemm.sW)
        p("s_mov_b32 s%d, 0" % mkv.sSPIN)
        p("s_waitcnt lgkmcnt(0)")
        if nm == "f1":
            p("s_lshl_b32 s%d, s2, 2" % moe.sTASK); p("s_add_u32 s%d, s%d, s%d" % (moe.sTASK, moe.sTASK, gemm.sW))
            moe.emit_f1(p)
        else:
            p("s_cmp_lg_u32 s%d, 0" % gemm.sW); p("s_cbranch_scc1 %s_EXIT" % nm)
            p("s_mov_b32 s%d, s2" % moe.sTASK)
            (moe.emit_select if nm == "sel" else moe.emit_f2)(p)
        p.label(nm + "_EXIT"); p("s_endpgm")
        out.append((p, label, grid))
    return out

def out_kernel():
    p = Prog(); label = "out_kernel"
    kernel_begin(p, label)
    p("s_cmp_ge_u32 s2, 60"); p("s_cbranch_scc1 OU_EXIT")
    srd(p, gemm.sWS, 112, WS_SIZE)
    srd(p, outp.sWO, 40, 4096 * 640 * 2); srd(p, outp.sXI, 0, S * D * 2); srd(p, outp.sOUT, 96, S * D * 2)
    wave_id(p, gemm.sW)
    p("s_mul_hi_u32 s%d, s2, 0x%x" % (outp.sGRP, (2**32 + 19) // 20)); p("s_mul_i32 s3, s%d, 20" % outp.sGRP); p("s_sub_u32 s%d, s2, s3" % outp.sCT)
    p("s_mov_b32 s36, -1"); p("s_mov_b32 s37, 0")
    p("s_waitcnt lgkmcnt(0)")
    outp.load_wo(p)
    p("s_barrier")
    outp.emit_out(p, "OU", lambda q: None, lambda q: moe.wait_count(q, FLG_MOE + 256, 40, "OUW"))
    p.label("OU_EXIT"); p("s_endpgm")
    return p, label

sSLOWF, sXCC, sTICK, sHI = 97, 98, 99, 96

def tl_stamp(p, slot, dbg, tmp=90, have=False):
    if not dbg: return
    l = p.uid("TL")
    if not have: p("s_memrealtime s[%d:%d]" % (tmp, tmp + 1))
    p("s_waitcnt vmcnt(0) lgkmcnt(0)")
    p("s_lshl_b32 s%d, s2, 2" % (tmp + 1)); p("s_add_u32 s%d, s%d, 0x%x" % (tmp + 1, tmp + 1, DBG + 0x8000 + slot * 1024))
    p("v_mov_b32 v14, s%d" % tmp); p("v_mov_b32 v15, 0"); p("s_mov_b64 exec, 1")
    p("buffer_store_dword v14, v15, s[4:7], s%d offen" % (tmp + 1)); p("s_waitcnt vmcnt(0)"); p("s_mov_b64 exec, -1")

def lane_id(p):
    p("v_mbcnt_lo_u32_b32 v0, -1, 0"); p("v_mbcnt_hi_u32_b32 v0, -1, v0")

def fused_kernel(dbg=0, force_slow=False):
    tick_srd, tick_base, tick_stride = init.sDBG, init.D_TICK, init.D_TSTRIDE
    p = Prog(); label = "main_kernel"
    kernel_begin(p, label)
    p("s_cmp_ge_u32 s2, 256"); p("s_cbranch_scc1 M_EXIT")
    if dbg: p("s_memrealtime s[90:91]")
    srd(p, 4, 112, WS_SIZE)
    init.dbg_srd(p)
    wave_id(p, 14)
    p("s_getreg_b32 s%d, hwreg(HW_REG_XCC_ID)" % sXCC); p("s_and_b32 s%d, s%d, 7" % (sXCC, sXCC))
    p("s_mov_b32 s%d, 0" % sSLOWF); p("s_mov_b32 s%d, %d" % (init.sINITC, init.D_C1))
    p("s_waitcnt lgkmcnt(0)")
    tl_stamp(p, 0, dbg, have=True)
    init.emit_measure(p, 14, sXCC)
    p("s_cmp_lg_u32 s14, 0"); p("s_cbranch_scc1 M_TICKW")
    p("s_mul_i32 s64, s%d, %d" % (sXCC, tick_stride)); p("s_add_u32 s64, s64, 0x%x" % tick_base)
    p("v_mov_b32 v1, 0"); p("v_mov_b32 v2, 1"); p("s_mov_b64 exec, 1")
    p("buffer_atomic_add v2, v1, s[%d:%d], s64 offen sc0" % (tick_srd, tick_srd + 3))
    p("s_waitcnt vmcnt(0)")
    p("ds_write_b32 v1, v2"); p("s_waitcnt lgkmcnt(0)"); p("s_mov_b64 exec, -1")
    p.label("M_TICKW")
    p("s_barrier")
    p("v_mov_b32 v1, 0"); p("ds_read_b32 v2, v1"); p("s_waitcnt lgkmcnt(0)")
    p("v_readfirstlane_b32 s%d, v2" % sTICK)
    p("s_barrier")
    tl_stamp(p, 1, dbg)
    def wait_tickets(q):
        l = q.uid("TK"); ld = q.uid("TKD")
        lane_id(q)
        q("v_mul_u32_u24 v8, %d, v0" % tick_stride); q("s_mov_b32 s64, 0x%x" % tick_base); q("s_mov_b32 s65, 0")
        q("s_mov_b64 exec, 0xff")
        q.label(l)
        q("buffer_load_dword v9, v8, s[%d:%d], s64 offen sc1" % (tick_srd, tick_srd + 3)); q("s_add_u32 s65, s65, 1"); q("s_waitcnt vmcnt(0)")
        q("s_mov_b32 s66, 0")
        for i in range(8): q("v_readlane_b32 s67, v9, %d" % i); q("s_add_u32 s66, s66, s67")
        q("s_cmp_ge_u32 s66, 256"); q("s_cbranch_scc1 %s" % ld)
        q("s_cmp_gt_u32 s65, %d" % (1 << 18)); q("s_cbranch_scc0 %s" % l)
        q.label(ld)
        q("v_cmp_ne_u32 vcc, 32, v9")
        q("s_mov_b64 exec, -1")
    def check_mode(q):
        l = q.uid("CM")
        q("s_cmp_lg_u32 s%d, 0" % sSLOWF); q("s_cbranch_scc1 %s" % l)
        wait_tickets(q)
        q("s_cbranch_vccnz M_SLOW")
        q.label(l)
    if force_slow: p("s_branch M_SLOW0")
    p("s_cmp_ge_u32 s%d, 32" % sTICK); p("s_cbranch_scc1 M_SLOW0")
    p("s_mov_b32 s12, s%d" % sXCC)
    xcc_to_x(p, 12, 12, "M_FH")
    p("s_mov_b32 s13, s%d" % sTICK); p("s_branch M_REC")
    p.label("M_FH")
    p("s_sub_u32 s%d, s%d, 1" % (sHI, sXCC)); p("s_cmp_gt_u32 s%d, %d" % (sXCC, XPAIR)); p("s_cselect_b32 s64, 1, 0"); p("s_sub_u32 s%d, s%d, s64" % (sHI, sHI))
    p("s_lshl_b32 s%d, s%d, 5" % (sHI, sHI)); p("s_add_u32 s%d, s%d, s%d" % (sHI, sHI, sTICK))
    p("s_branch M_HELP")
    p.label("M_SLOW0")
    wait_tickets(p)
    p.label("M_SLOW")
    p("s_waitcnt vmcnt(0) lgkmcnt(0)"); p("s_barrier")
    p("s_cmp_lg_u32 s14, 0"); p("s_cbranch_scc1 M_SLOWB")
    init.counter_add(p, str(init.D_C3))
    p.label("M_SLOWB")
    init.wait_counter(p, 256, str(init.D_C3) if False else "s%d" % init.sINITC, "SB") if False else None
    p("s_mov_b32 s%d, %d" % (init.sINITC, init.D_C3))
    init.wait_counter(p, 256, name="SB")
    p("s_mov_b32 s%d, %d" % (init.sINITC, init.D_C2))
    p("s_mov_b32 s%d, 1" % sSLOWF)
    p("s_cmp_lt_u32 s2, 64"); p("s_cbranch_scc0 M_SH")
    p("s_lshr_b32 s12, s2, 5"); p("s_and_b32 s13, s2, 31"); p("s_branch M_REC")
    p.label("M_SH")
    p("s_sub_u32 s%d, s2, 64" % sHI)
    p("s_branch M_HELP")
    p.label("M_REC")
    lane_id(p)
    WB = 640 * 4096 * 2
    srd(p, rec.sWQ, 16, WB); srd(p, rec.sWK, 24, WB); srd(p, rec.sWV, 32, WB); srd(p, rec.sWO, 40, WB)
    p("s_waitcnt lgkmcnt(0)")
    def rec_ready(q):
        check_mode(q)
        init.wait_counter(q, init.NHELP, name="RI")
    st = rec.emit_rec(p, dbg, rec_ready, sSLOWF, lambda q, slot: tl_stamp(q, slot, dbg, 74), init.read_cand)
    if dbg: rec_dbg_dump(p, st)
    tl_stamp(p, 3, dbg)
    p("s_branch M_EXIT")
    p.label("M_HELP")
    lane_id(p)
    init.emit_init(p, sHI, 14)
    tl_stamp(p, 10, dbg)
    lane_id(p)
    p("s_and_b32 s%d, s%d, 1" % (gemm.sHALF, sHI)); p("s_lshr_b32 s3, s%d, 1" % sHI); p("s_and_b32 s%d, s3, 31" % gemm.sH); p("s_lshr_b32 s3, s3, 5")
    p("s_load_dwordx4 s[48:51], s[0:1], 16"); p("s_load_dwordx2 s[52:53], s[0:1], 32")
    p("s_waitcnt lgkmcnt(0)")
    p("s_mov_b32 s46, %d" % WB); p("s_mov_b32 s47, 0x00020000")
    roles = [(0, 50, "G_T"), (1, 52, "G_N"), (2, 48, "G_T")]
    for mat, sp, tgt in roles: p("s_cmp_eq_u32 s3, %d" % mat); p("s_cbranch_scc1 H_E%d" % mat)
    p("s_branch M_EXIT")
    for mat, sp, tgt in roles:
        p.label("H_E%d" % mat)
        p("s_mov_b32 s44, s%d" % sp); p("s_mov_b32 s45, s%d" % (sp + 1))
        gemm.setup_role(p, mat)
        p("s_branch %s" % tgt)
    for kind, nm in (("T", "G_T"), ("N", "G_N")):
        p.label(nm)
        gemm.load_weights(p)
        check_mode(p)
        init.wait_counter(p, init.NHELP, name="GI")
        lane_id(p)
        if kind == "T":
            l_ = p.uid("NOSEL")
            p("s_cmp_lg_u32 s3, 2"); p("s_cbranch_scc1 %s" % l_)
            p("s_or_b32 s64, s%d, s%d" % (gemm.sH, gemm.sHALF)); p("s_or_b32 s64, s64, s14"); p("s_cmp_lg_u32 s64, 0"); p("s_cbranch_scc1 %s" % l_)
            p("s_mov_b32 s%d, 0" % mkv.sSPIN)
            moe.emit_select(p)
            lane_id(p)
            p.label(l_)
        gemm.emit_gemm(p, kind, nm, lambda q: None)
        tl_stamp(p, 4, dbg)
        if kind == "T":
            p("s_cmp_eq_u32 s3, 2"); p("s_cbranch_scc1 H_Q")
        p("s_cmp_eq_u32 s%d, 1" % gemm.sHALF); p("s_cbranch_scc1 H_OUT")
        mkv.emit_mkv(p, kind, "MK" + kind, init.read_cand)
        tl_stamp(p, 5, dbg)
        p("s_branch M_EXIT")
    p.label("H_OUT")
    p("s_lshl_b32 s64, s3, 5"); p("s_add_u32 s64, s64, s%d" % gemm.sH)
    p("s_cmp_ge_u32 s64, 60"); p("s_cbranch_scc1 M_EXIT")
    p("s_mul_hi_u32 s%d, s64, 0x%x" % (outp.sGRP, (2**32 + 19) // 20)); p("s_mul_i32 s65, s%d, 20" % outp.sGRP); p("s_sub_u32 s%d, s64, s65" % outp.sCT)
    srd(p, outp.sWO, 40, 4096 * 640 * 2); srd(p, outp.sXI, 0, S * D * 2); srd(p, outp.sOUT, 96, S * D * 2)
    p("s_mov_b32 s36, -1"); p("s_mov_b32 s37, 0")
    p("s_waitcnt lgkmcnt(0)")
    outp.load_wo(p)
    p("s_barrier")
    outp.emit_out(p, "OU", lambda q: (moe.wait_count(q, FLG_MOE, 1, "OUS"), tl_stamp(q, 8, dbg)), lambda q: moe.wait_count(q, FLG_MOE + 256, 40, "OUW"))
    tl_stamp(p, 7, dbg)
    p("s_branch M_EXIT")
    p.label("H_Q")
    tl_stamp(p, 9, dbg)
    def moe_srds():
        p("s_lshl_b32 s70, s%d, 1" % gemm.sH); p("s_add_u32 s70, s70, s%d" % gemm.sHALF)
        srd(p, moe.sWG, 72, 640 * 1728 * 2); srd(p, moe.sWU, 80, 640 * 1728 * 2); srd(p, moe.sWD, 88, 640 * 1728 * 2)
        p("s_mov_b32 s%d, 0" % mkv.sSPIN)
        p("s_waitcnt lgkmcnt(0)")
        lane_id(p)
    att.emit_att(p, "AT0", 0, 1)
    moe_srds()
    p("s_lshl_b32 s%d, s70, 2" % moe.sTASK); p("s_add_u32 s%d, s%d, s14" % (moe.sTASK, moe.sTASK))
    p("s_cmp_ge_u32 s%d, 108" % moe.sTASK); p("s_cbranch_scc1 H_A1")
    moe.emit_f1(p)
    p.label("H_A1")
    lane_id(p)
    att.emit_att(p, "AT1", 1, 2)
    moe_srds()
    p("s_cmp_lg_u32 s14, 0"); p("s_cbranch_scc1 H_ATT")
    p("s_cmp_ge_u32 s70, 40"); p("s_cbranch_scc1 H_ATT")
    p("s_mov_b32 s%d, s70" % moe.sTASK)
    moe.emit_f2(p)
    tl_stamp(p, 14, dbg)
    p.label("H_ATT")
    lane_id(p)
    att.emit_att(p, "AT2", 2, 8)
    tl_stamp(p, 6, dbg)
    p.label("M_EXIT"); p("s_endpgm")
    return p, label

def rec_dbg_dump(p, st):
    p("s_lshl_b32 s%d, s%d, 5" % (rec.sT0, rec.sX)); p("s_add_u32 s%d, s%d, s%d" % (rec.sT0, rec.sT0, rec.sH))
    p("s_lshl_b32 s%d, s%d, 2" % (rec.sT0, rec.sT0)); p("s_add_u32 s%d, s%d, s%d" % (rec.sT0, rec.sT0, rec.sW))
    p("s_lshl_b32 s%d, s%d, 7" % (rec.sT0, rec.sT0)); rec.add_const(p, rec.sT0, rec.sT0, DBG)
    vals = [100, 8, 98 if not rec.STAMPS[0] else rec.sSPIN, rec.sISOWN, rec.sCNT] + [rec.sTS + 2 * i for i in range(len(st.stamps))] + [rec.sCNT2, 60, 61]
    open('stamps.txt', 'w').write(','.join(st.stamps))
    p("v_mov_b32 v1, 0"); p("s_mov_b64 exec, 1")
    for i, sreg in enumerate(vals):
        p("v_mov_b32 v2, s%d" % sreg)
        p("buffer_store_dword v2, v1, s[%d:%d], s%d offen offset:%d" % (rec.sWS, rec.sWS + 3, rec.sT0, 4 * i))
    p("s_waitcnt vmcnt(0)"); p("s_mov_b64 exec, -1")

def write(path, launches, progs):
    txt = HEADER
    for k, g, b, lds in launches: txt += "; @launch kernel=%s grid=(%d,1,1) block=(%d,1,1) lds=%d\n" % (k, g, b, lds)
    txt += '.amdgcn_target "amdgcn-amd-amdhsa--gfx950"\n'
    for p, label, v, s, a in progs: txt += p.text()
    for p, label, v, s, a in progs: txt += descriptor(label, v, s, a)
    open(path, "w").write(txt)

if __name__ == "__main__":
    mode = sys.argv[1]
    if mode == "rec":
        dbg = int(sys.argv[3]) if len(sys.argv) > 3 else 0
        p, label = rec_standalone(dbg)
        probs = check(p.lines, "rec")
        i0 = p.lines.index("REC_LOOP:"); i1 = p.lines.index("REC_TAIL:")
        probs += check(p.lines[i0:i1] + p.lines[i0:i1], "loop-wrap")
        for x in dict.fromkeys(probs): print("HAZARD", x)
        p0, l0 = k0_kernel(True)
        for x in dict.fromkeys(check(p0.lines, "k0")): print("HAZARD", x)
        write(sys.argv[2], [(l0, 256, 256, 64), (label, 256, 256, 163840)], [(p0, l0, 80, 72, 80), (p, label, 512, 102, 256)])
        print("instructions:", sum(1 for l in p.lines if not l.endswith(":") and not l.startswith((";", "."))),
              "loop:", sum(1 for l in p.lines[i0:i1] if not l.endswith(":") and not l.startswith((";", "."))))

    if mode == "gemm":
        p0, l0 = k0_kernel(False)
        p, label = gemm_kernel()
        probs = check(p.lines, "gemm")
        for nm in ("G_T", "G_N"):
            i0 = p.lines.index(nm + "_LOOP:"); i1 = i0 + next(i for i, l in enumerate(p.lines[i0:]) if l.startswith("s_cbranch_scc1 " + nm + "_LOOP"))
            probs += check(p.lines[i0:i1] + p.lines[i0:i1], "wrap")
        for x in dict.fromkeys(probs): print("HAZARD", x)
        write(sys.argv[2], [(l0, 256, 256, 64), (label, 192, 256, 163840)], [(p0, l0, 80, 72, 80), (p, label, 512, 102, 256)])
        print("instructions:", sum(1 for l in p.lines if not l.endswith(":") and not l.startswith((";", "."))))

    if mode == "multi":
        devd = int(sys.argv[3]) if len(sys.argv) > 3 else 0
        p0, l0 = k0_kernel(False)
        pg, lgm = gemm_kernel()
        pr, lr = rec_standalone(devd)
        pm, lm = mkv_kernel(); pa, la = att_kernel(); po, lo = out_kernel()
        mk = moe_kernels()
        progs = [(p0, l0, 80, 72, 80), (pg, lgm, 512, 102, 256), (pr, lr, 512, 102, 256), (pm, lm, 512, 102, 256), (pa, la, 256, 102, 256)]
        progs += [(p, l, 256, 102, 256) for p, l, g in mk] + [(po, lo, 512, 102, 256)]
        launches = [(l0, 256, 256, 64), (lgm, 192, 256, 163840), (lr, 256, 256, 163840), (lm, 64, 256, 163840), (la, 64, 256, 0)]
        launches += [(l, g, 256, 163840) for p, l, g in mk] + [(lo, 60, 256, 163840)]
        for p, l, *_ in progs:
            for x in dict.fromkeys(check(p.lines, l)): print("HAZARD", x)
        write(sys.argv[2], launches, progs)
        print("written")

    if mode == "fused":
        devd = int(sys.argv[3]) if len(sys.argv) > 3 else 0
        import os
        pm, lm = fused_kernel(devd, bool(os.environ.get("FORCE_SLOW")))
        for x in dict.fromkeys(check(pm.lines, lm)): print("HAZARD", x)
        write(sys.argv[2], [(lm, 256, 256, 163840)], [(pm, lm, 512, 102, 256)])
        print("instructions:", sum(1 for l in pm.lines if not l.endswith(":") and not l.startswith((";", "."))))
```

```python
from asm import *
from layout import *
import gemm
from gemm import sWS, sH, sW, wf

sI, sSRC, sDST, sFL, sMF, sSPIN, sSRC1 = 24, 25, 26, 27, 28, 29, 30
sT0, sT1, sT2 = 64, 65, 66
SPIN_MAX = 1 << 18
import os
SLEEP = int(os.environ.get('SLEEP', '1'))
vL16, vSRCV, vDSTV = 1, 2, 3
vF = 16
aACC = 0

def spin_flags(p, vdst, n, vaddr, soff, cond_all_lanes, name):
    l = p.uid(name); ld = p.uid(name + "D")
    p.label(l)
    p("buffer_load_dword v%d, v%d, s[%d:%d], s%d offen sc1" % (vdst, vaddr, sWS, sWS + 3, soff))
    p("s_add_u32 s%d, s%d, 1" % (sSPIN, sSPIN))
    p("s_waitcnt vmcnt(0)")
    p("v_cmp_eq_u32 vcc, 0, v%d" % vdst)
    p("s_cbranch_vccz %s" % ld)
    p("s_cmp_gt_u32 s%d, %d" % (sSPIN, SPIN_MAX)); p("s_cbranch_scc1 %s" % ld)
    p("s_sleep %d" % SLEEP)
    p("s_branch %s" % l)
    p.label(ld)

def emit_mkv(p, kind, name, read_cand=None, hook=None, hook_it=10):
    mat = 0 if kind == "T" else 1
    p("s_mov_b32 s%d, 0" % sSPIN)
    p("v_lshlrev_b32 v%d, 4, v0" % vL16)
    if read_cand: read_cand(p, sT2, 67); p("s_mov_b32 s%d, s%d" % (sT0, sT2)); p("s_mov_b32 s%d, s67" % sT1)
    else:
        p("s_mov_b32 s%d, 0x%x" % (sT0, CANDW))
        p("buffer_load_dwordx2 v[4:5], off, s[%d:%d], s%d sc1" % (sWS, sWS + 3, sT0)); p("s_waitcnt vmcnt(0)")
        p("v_readfirstlane_b32 s%d, v4" % sT0); p("v_readfirstlane_b32 s%d, v5" % sT1)
    for r_ in (sT0, sT1): p("s_and_b32 s%d, s%d, 3" % (r_, r_)); p("s_lshl_b32 s%d, s%d, 13" % (r_, r_))
    p("s_add_u32 s%d, s%d, 0x%x" % (sSRC, sT0, MR)); p("s_add_u32 s%d, s%d, 0x%x" % (sSRC1, sT1, MR + MR_X))
    p("v_bfe_u32 v4, v0, 3, 1"); p("v_mul_u32_u24 v%d, 0x%x, v4" % (vSRCV, MR_S))
    p("v_lshrrev_b32 v4, 5, v0"); p("v_lshl_add_u32 v%d, v4, 8, v%d" % (vSRCV, vSRCV))
    p("v_bfe_u32 v4, v0, 4, 1"); p("v_lshl_add_u32 v%d, v4, 7, v%d" % (vSRCV, vSRCV))
    p("v_and_b32 v4, 7, v0"); p("v_lshl_add_u32 v%d, v4, 4, v%d" % (vSRCV, vSRCV))
    if kind == "T":
        p("v_bfe_u32 v4, v0, 3, 1"); p("v_lshlrev_b32 v%d, 16, v4" % vDSTV)
        p("v_lshrrev_b32 v4, 4, v0"); p("v_lshl_add_u32 v%d, v4, 7, v%d" % (vDSTV, vDSTV))
        p("v_and_b32 v4, 7, v0"); p("v_lshl_add_u32 v%d, v4, 4, v%d" % (vDSTV, vDSTV))
        p("s_lshl_b32 s%d, s%d, 11" % (sDST, sH)); p("s_lshl_b32 s%d, s%d, 9" % (sT0, sW))
        p("s_add_u32 s%d, s%d, s%d" % (sDST, sDST, sT0)); p("s_add_u32 s%d, s%d, 0x%x" % (sDST, sDST, KMF))
    else:
        p("v_lshrrev_b32 v4, 5, v0"); p("v_lshlrev_b32 v%d, 16, v4" % vDSTV)
        p("v_bfe_u32 v4, v0, 4, 1"); p("v_lshl_add_u32 v%d, v4, 7, v%d" % (vDSTV, vDSTV))
        p("v_and_b32 v4, 15, v0"); p("v_lshl_add_u32 v%d, v4, 3, v%d" % (vDSTV, vDSTV))
        p("s_lshl_b32 s%d, s%d, 11" % (sDST, sH)); p("s_lshl_b32 s%d, s%d, 9" % (sT0, sW))
        p("s_add_u32 s%d, s%d, s%d" % (sDST, sDST, sT0)); p("s_add_u32 s%d, s%d, 0x%x" % (sDST, sDST, VMF))
    p("s_lshl_b32 s%d, s%d, 3" % (sFL, sH)); p("s_add_u32 s%d, s%d, 0x%x" % (sFL, sFL, FLG_KM + 4 * mat))
    p("s_mov_b32 s%d, 0x%x" % (sMF, FLG_MEM))
    p("s_mov_b32 s%d, 0" % sI)
    p("v_lshlrev_b32 v6, 7, v0")
    loop = name + "_LOOP"
    p.label(loop)
    if hook:
        lh = p.uid("MKH")
        p("s_cmp_lg_u32 s%d, %d" % (sI, hook_it)); p("s_cbranch_scc1 %s" % lh)
        p("v_mov_b32 v10, v%d" % vSRCV); p("v_mov_b32 v11, v%d" % vDSTV)
        hook(p)
        p("v_mov_b32 v%d, v10" % vSRCV); p("v_mov_b32 v%d, v11" % vDSTV)
        p.label(lh)
    p("s_mov_b64 exec, 0xf")
    spin_flags(p, 5, 4, 6, sMF, True, name + "_M")
    p("s_mov_b64 exec, -1")
    lr = p.uid("MKR"); lo = p.uid("MKO")
    p.label(lr)
    for ks in range(20):
        x, k1 = divmod(ks, 10)
        p("s_add_u32 s%d, s%d, 0x%x" % (sT0, (sSRC, sSRC1)[x], (k1 // 2) * 1024 + (k1 % 2) * 512))
        p("buffer_load_dwordx4 %s, v%d, s[%d:%d], s%d offen sc1" % (vr(vF + 4 * ks, 4), vSRCV, sWS, sWS + 3, sT0))
    p("s_add_u32 s%d, s%d, 1" % (sSPIN, sSPIN))
    p("s_waitcnt vmcnt(0)")
    p("v_max3_u32 v4, v%d, v%d, v%d" % (vF + 3, vF + 7, vF + 11))
    for k in range(3, 19, 2): p("v_max3_u32 v4, v4, v%d, v%d" % (vF + 4 * k + 3, vF + 4 * k + 7))
    p("v_max_u32 v4, v4, v%d" % (vF + 4 * 19 + 3))
    p("v_cmp_eq_u32 vcc, -1, v4")
    p("s_cbranch_vccz %s" % lo)
    p("s_cmp_gt_u32 s%d, %d" % (sSPIN, SPIN_MAX)); p("s_cbranch_scc0 %s" % lr)
    p.label(lo)
    A0, A1 = 8, 12
    for ks in range(20):
        for tt, acc in ((0, A0), (1, A1)):
            c = "0" if ks == 0 else vr(acc, 4)
            w_, x_ = vr(wf(ks, tt), 4), vr(vF + 4 * ks, 4)
            if kind == "T": p("v_mfma_f32_16x16x32_bf16 %s, %s, %s, %s" % (vr(acc, 4), w_, x_, c))
            else: p("v_mfma_f32_16x16x32_bf16 %s, %s, %s, %s" % (vr(acc, 4), x_, w_, c))
    p.nop(8)
    p("v_cvt_pk_bf16_f32 v16, v%d, v%d" % (A0, A0 + 1)); p("v_cvt_pk_bf16_f32 v17, v%d, v%d" % (A0 + 2, A0 + 3))
    p("v_cvt_pk_bf16_f32 v18, v%d, v%d" % (A1, A1 + 1)); p("v_cvt_pk_bf16_f32 v19, v%d, v%d" % (A1 + 2, A1 + 3))
    if kind == "T":
        p("buffer_store_dwordx4 v[16:19], v%d, s[%d:%d], s%d offen sc1" % (vDSTV, sWS, sWS + 3, sDST))
    else:
        p("buffer_store_dwordx2 v[16:17], v%d, s[%d:%d], s%d offen sc1" % (vDSTV, sWS, sWS + 3, sDST))
        p("buffer_store_dwordx2 v[18:19], v%d, s[%d:%d], s%d offen offset:256 sc1" % (vDSTV, sWS, sWS + 3, sDST))
    p("s_waitcnt vmcnt(0)"); p("s_barrier")
    gemm.flag_store(p, sFL)
    p("s_add_u32 s%d, s%d, 0x%x" % (sSRC, sSRC, 2 * MR_S)); p("s_add_u32 s%d, s%d, 0x%x" % (sSRC1, sSRC1, 2 * MR_S)); p("s_add_u32 s%d, s%d, 0x%x" % (sDST, sDST, 2 * 65536))
    p("s_add_u32 s%d, s%d, 256" % (sFL, sFL)); p("s_add_u32 s%d, s%d, 512" % (sMF, sMF))
    p("s_add_u32 s%d, s%d, 1" % (sI, sI)); p("s_cmp_lt_u32 s%d, 32" % sI); p("s_cbranch_scc1 %s" % loop)
```

```python
import os
from asm import *
from layout import *
from gemm import sWS, sW
from mkv import spin_flags, sSPIN

sGRP, sCT = 12, 13
sWO = 44
sXI, sOUT = 48, 52
sS, sOFS, sRB = 24, 25, 21
sIDX = 72
sT0, sT1, sT2, sT3 = 64, 65, 66, 67
vL16, vRD0, vRD1, vG, vXA, vFL = 1, 2, 3, 4, 5, 6
vB = 16
vACC = 144
vX, vXN, vU = 160, 162, 164
DEFER = 40
NRING = 16

def load_wo(p):
    vm = Counter(p, "vmcnt", 63)
    t = 7
    p("s_mul_i32 s%d, s%d, 36864" % (sRB, sW))
    p("v_lshrrev_b32 v%d, 2, v0" % t); p("v_mul_u32_u24 v%d, 1280, v%d" % (vG, t))
    p("v_bfe_u32 v%d, v0, 4, 1" % t); p("v_lshlrev_b32 v%d, 1, v%d" % (t, t))
    p("v_and_b32 v8, 3, v0"); p("v_xor_b32 v%d, v%d, v8" % (t, t)); p("v_lshl_add_u32 v%d, v%d, 4, v%d" % (vG, t, vG))
    p("v_lshrrev_b32 v%d, 4, v0" % t); p("v_lshlrev_b32 v%d, 8, v%d" % (vRD0, t))
    p("v_bfe_u32 v%d, v0, 2, 2" % t); p("v_lshl_add_u32 v%d, v%d, 6, v%d" % (vRD0, t, vRD0))
    p("v_and_b32 v%d, 3, v0" % t); p("v_lshl_add_u32 v%d, v%d, 3, v%d" % (vRD0, t, vRD0))
    p("v_add_u32 v%d, s%d, v%d" % (vRD0, sRB, vRD0))
    p("v_bfe_u32 v%d, v0, 4, 1" % t); p("v_lshlrev_b32 v%d, 5, v%d" % (t, t))
    p("v_sub_u32 v%d, 32, v%d" % (vRD1, t)); p("v_add_u32 v%d, v%d, v%d" % (vRD1, vRD1, vRD0))
    p("v_add_u32 v%d, v%d, v%d" % (vRD0, vRD0, t))
    p("s_mul_i32 s%d, s%d, %d" % (sT1, sW, 1024 * 1280)); p("s_lshl_b32 s%d, s%d, 6" % (sT2, sCT)); p("s_add_u32 s%d, s%d, s%d" % (sT1, sT1, sT2))
    def issue(n):
        for a in range(4):
            p("s_add_u32 m0, s%d, %d" % (sRB, (n % 9) * 4096 + a * 1024))
            p("s_add_u32 s%d, s%d, 0x%x" % (sT0, sT1, (64 * n + 16 * a) * 1280))
            p("buffer_load_dwordx4 v%d, s[%d:%d], s%d offen lds" % (vG, sWO, sWO + 3, sT0)); vm.issue(n)
    for n in range(9): issue(n)
    for n in range(16):
        vm.wait(n)
        so = (n % 9) * 4096
        for k2 in range(2):
            for c2 in range(2):
                for r in range(2):
                    p("ds_read_b64_tr_b16 %s, v%d offset:%d" % (ar(((2 * n + k2) * 2 + c2) * 4 + 2 * r, 2), vRD0 if c2 == 0 else vRD1, so + (2 * k2 + r) * 1024))
        p("s_waitcnt lgkmcnt(0)")
        if n + 9 < 16: issue(n + 9)

sTODO, sAFF, sAV = 80, 82, 84
sC2, sQT = 86, 87
def emit_out(p, name, wait_sel, wait_moe):
    p("s_mov_b32 s%d, 0" % sSPIN)
    p("v_lshlrev_b32 v%d, 4, v0" % vL16)
    wait_sel(p)
    p("v_lshlrev_b32 v6, 2, v0"); p("s_mov_b32 s%d, 0x%x" % (sT0, IDX))
    p("buffer_load_dword v7, v6, s[%d:%d], s%d offen sc1" % (sWS, sWS + 3, sT0)); p("s_waitcnt vmcnt(0)")
    for i in range(8): p("v_readlane_b32 s%d, v7, %d" % (sIDX + i, i))
    epi_addr(p, False)
    p("v_lshlrev_b32 v%d, 2, v0" % vFL)
    p("s_mov_b32 s%d, 0x49249249" % sTODO); p("s_mov_b32 s%d, 0x92492492" % (sTODO + 1))
    p("s_lshl_b64 s[%d:%d], s[%d:%d], s%d" % (sTODO, sTODO + 1, sTODO, sTODO + 1, sGRP))
    p("s_bitset0_b64 s[%d:%d], %d" % (sTODO, sTODO + 1, NSEG - 1)); p("s_bitset0_b64 s[%d:%d], %d" % (sTODO, sTODO + 1, NSEG - 2))
    p("s_mov_b64 s[%d:%d], 0" % (sAFF, sAFF + 1))
    for i in range(8):
        p("s_lshr_b32 s%d, s%d, 5" % (sT0, sIDX + i)); p("s_bitset1_b64 s[%d:%d], s%d" % (sAFF, sAFF + 1, sT0))
    loop = name + "_LOOP"; lw = name + "_WM"; lgo = name + "_GO"; lend = name + "_END"
    p.label(loop)
    p("s_cmp_eq_u64 s[%d:%d], 0" % (sTODO, sTODO + 1)); p("s_cbranch_scc1 %s" % lend)
    p("s_andn2_b64 s[%d:%d], s[%d:%d], s[%d:%d]" % (sAV, sAV + 1, sTODO, sTODO + 1, sAFF, sAFF + 1))
    p("s_cbranch_scc0 %s" % lw)
    p("s_ff1_i32_b64 s%d, s[%d:%d]" % (sS, sAV, sAV + 1))
    p("s_branch %s" % lgo)
    p.label(lw)
    wait_moe(p)
    p("s_mov_b64 s[%d:%d], 0" % (sAFF, sAFF + 1)); p("s_branch %s" % loop)
    p.label(lgo)
    p("s_bitset0_b64 s[%d:%d], s%d" % (sTODO, sTODO + 1, sS))
    p("s_lshr_b32 s%d, s%d, 1" % (sC2, sW))
    task(p, name, False)
    p("s_branch %s" % loop)
    p.label(lend)
    lx = name + "_X"
    p("s_cmp_lg_u32 s%d, 2" % sGRP); p("s_cbranch_scc1 %s" % lx)
    wait_moe(p)
    p("s_mov_b32 s%d, %d" % (sS, NSEG - 2)); p("s_mov_b32 s%d, 0" % sQT)
    half_task(p, name + "H")
    p.label(lx)

def half_task(p, name):
    p("s_and_b32 s%d, s%d, 1" % (sC2, sW))
    epi_addr(p, True)
    p("v_lshlrev_b32 v%d, 2, v0" % vFL)
    task(p, name, True)

def emit_extra(p, name, wait_all):
    p("s_mov_b32 s%d, 0" % sSPIN)
    p("v_lshlrev_b32 v%d, 4, v0" % vL16); p("v_lshlrev_b32 v%d, 2, v0" % vFL)
    wait_all(p)
    p("v_lshlrev_b32 v6, 2, v0"); p("s_mov_b32 s%d, 0x%x" % (sT0, IDX))
    p("buffer_load_dword v7, v6, s[%d:%d], s%d offen sc1" % (sWS, sWS + 3, sT0)); p("s_waitcnt vmcnt(0)")
    for i in range(8): p("v_readlane_b32 s%d, v7, %d" % (sIDX + i, i))
    p("s_cmp_eq_u32 s%d, 3" % sGRP); p("s_cselect_b32 s%d, %d, %d" % (sS, NSEG - 2, NSEG - 1))
    p("s_cmp_eq_u32 s%d, 4" % sGRP); p("s_cselect_b32 s%d, 0, 1" % sQT)
    half_task(p, name)

def epi_addr(p, half):
    if half: p("s_lshl_b32 s%d, s%d, 4" % (sT0, sQT))
    else: p("s_and_b32 s%d, s%d, 1" % (sT0, sW)); p("s_lshl_b32 s%d, s%d, 4" % (sT0, sT0))
    p("v_and_b32 v6, 15, v0"); p("v_add_u32 v6, s%d, v6" % sT0)
    p("v_mov_b32 v9, v6")
    p("v_mul_u32_u24 v%d, 1280, v6" % vXA)
    p("v_lshrrev_b32 v6, 4, v0"); p("v_lshl_add_u32 v%d, v6, 3, v%d" % (vXA, vXA))
    if half: p("s_and_b32 s%d, s%d, 1" % (sT0, sW))
    else: p("s_lshr_b32 s%d, s%d, 1" % (sT0, sW))
    p("s_lshl_b32 s%d, s%d, 5" % (sT0, sT0)); p("s_lshl_b32 s%d, s%d, 6" % (sT1, sCT))
    p("s_add_u32 s%d, s%d, s%d" % (sT0, sT0, sT1)); p("v_add_u32 v%d, s%d, v%d" % (vXA, sT0, vXA))

STAMP = [None]
def task(p, name, half):
    st = STAMP[0] or (lambda q, slot: None)
    st(p, 20 if half else 23)
    nq = 1 if half else 2
    p("s_mul_i32 s%d, s%d, %d" % (sT3, sS, 32 * 1280))
    p("buffer_load_dwordx2 %s, v%d, s[%d:%d], s%d offen" % (vr(vX, 2), vXA, sXI, sXI + 3, sT3))
    p("s_add_u32 s%d, s%d, 0x%x" % (sT0, sT3, XN))
    p("buffer_load_dwordx2 %s, v%d, s[%d:%d], s%d offen" % (vr(vXN, 2), vXA, sWS, sWS + 3, sT0))
    if not half:
        p("s_mov_b32 s%d, 0x%x" % (sT0, FLG_MOE + 256))
        p("buffer_load_dword v12, off, s[%d:%d], s%d sc1" % (sWS, sWS + 3, sT0))
    p("s_lshl_b32 s%d, s%d, 7" % (sT0, sS)); p("s_add_u32 s%d, s%d, 0x%x" % (sT0, sT0, FLG_O))
    p("s_mov_b64 exec, s[36:37]")
    spin_flags(p, 7, 32, vFL, sT0, True, name + "_F")
    p("s_mov_b64 exec, -1")
    st(p, 21 if half else 24)
    vm = Counter(p, "vmcnt", 63)
    p("s_lshl_b32 s%d, s%d, 18" % (sOFS, sS)); p("s_lshl_b32 s%d, s%d, 15" % (sT0, sW))
    p("s_add_u32 s%d, s%d, s%d" % (sOFS, sOFS, sT0)); p("s_add_u32 s%d, s%d, 0x%x" % (sOFS, sOFS, OF))
    if half: p("s_lshl_b32 s%d, s%d, 17" % (sT0, sQT)); p("s_add_u32 s%d, s%d, s%d" % (sOFS, sOFS, sT0))
    nring = 32 if half else NRING
    def slot(ks, q): return vB + ((ks % nring) * nq + q) * 4
    def req(ks):
        for q in range(nq):
            p("s_add_u32 s%d, s%d, 0x%x" % (sT0, sOFS, q * 131072 + ks * 1024))
            p("buffer_load_dwordx4 %s, v%d, s[%d:%d], s%d offen" % (vr(slot(ks, q), 4), vL16, sWS, sWS + 3, sT0)); vm.issue(ks)
    for ks in range(nring): req(ks)
    for ks in range(32):
        vm.wait(ks)
        for c2 in range(2):
            for q in range(nq):
                d = vACC + (c2 * nq + q) * 4
                p("v_mfma_f32_16x16x32_bf16 %s, %s, %s, %s" % (vr(d, 4), ar((ks * 2 + c2) * 4, 4), vr(slot(ks, q), 4), "0" if ks == 0 else vr(d, 4)))
        if ks + nring < 32: req(ks + nring)
    st(p, 22 if half else 25)
    p("s_lshl_b32 s%d, s%d, 12" % (sT0, sW)); p("v_add_u32 v7, s%d, v%d" % (sT0, vL16))
    p("s_barrier")
    p.nop(4)
    for t in range(2 * nq): p("ds_write_b128 v7, %s offset:%d" % (vr(vACC + 4 * t, 4), t * 1024))
    if not half:
        l0 = p.uid("OW0")
        p("v_mov_b32 v13, 16384"); p("s_cmp_lg_u32 s%d, 0" % sW); p("s_cbranch_scc1 %s" % l0)
        p("ds_write_b32 v13, v12")
        p.label(l0)
    p("s_waitcnt lgkmcnt(0)"); p("s_barrier")
    if not half:
        p("ds_read_b32 v12, v13"); p("s_waitcnt lgkmcnt(0)")
        p("v_readfirstlane_b32 s%d, v12" % sT0); p("s_cmp_lt_u32 s%d, 40" % sT0)
        p("s_cselect_b64 s[%d:%d], s[%d:%d], 0" % (sAFF, sAFF + 1, sAFF, sAFF + 1))
    ldone = p.uid("OTD")
    if half: p("s_cmp_ge_u32 s%d, 2" % sW); p("s_cbranch_scc1 %s" % ldone)
    p("s_lshl_b32 s%d, s%d, 10" % (sT0, sW)); p("v_add_u32 v7, s%d, v%d" % (sT0, vL16))
    for w in range(4): p("ds_read_b128 %s, v7 offset:%d" % (vr(vB + 4 * w, 4), w * 4096))
    p("s_waitcnt lgkmcnt(0)")
    for i in range(4):
        p("v_add_f32 v%d, v%d, v%d" % (vB + i, vB + i, vB + 4 + i)); p("v_add_f32 v%d, v%d, v%d" % (vB + 8 + i, vB + 8 + i, vB + 12 + i))
        p("v_add_f32 v%d, v%d, v%d" % (vB + i, vB + i, vB + 8 + i))
    sv, z, xx = vB, vB + 4, vB + 8
    def rnd(r): p("v_cvt_pk_bf16_f32 v%d, v%d, v%d" % (r, r, r)); p("v_lshlrev_b32 v%d, 16, v%d" % (r, r))
    for i in range(4): rnd(sv + i)
    for h_ in range(2):
        p("v_lshlrev_b32 v%d, 16, v%d" % (z + 2 * h_, vXN + h_)); p("v_and_b32 v%d, 0xffff0000, v%d" % (z + 2 * h_ + 1, vXN + h_))
        p("v_lshlrev_b32 v%d, 16, v%d" % (xx + 2 * h_, vX + h_)); p("v_and_b32 v%d, 0xffff0000, v%d" % (xx + 2 * h_ + 1, vX + h_))
    lskip = p.uid("NOUPD")
    p("s_lshl_b32 s%d, s%d, 5" % (sT0, sS)); p("v_add_u32 v8, s%d, v9" % sT0)
    p("v_mov_b32 v10, -1")
    for i in range(8):
        p("v_cmp_eq_u32 vcc, s%d, v8" % (sIDX + i)); p.nop(2); p("v_cndmask_b32 v10, v10, %d, vcc" % i)
    p("v_cmp_le_i32 vcc, 0, v10")
    p("s_and_saveexec_b64 s[68:69], vcc"); p("s_cbranch_execz %s" % lskip)
    p("v_mul_u32_u24 v10, 2560, v10")
    p("v_lshrrev_b32 v11, 4, v0"); p("v_lshl_add_u32 v10, v11, 4, v10")
    p("s_lshl_b32 s%d, s%d, 6" % (sT0, sC2)); p("s_lshl_b32 s%d, s%d, 7" % (sT1, sCT))
    p("s_add_u32 s%d, s%d, s%d" % (sT0, sT0, sT1)); p("s_add_u32 s%d, s%d, 0x%x" % (sT0, sT0, UPD))
    p("buffer_load_dwordx4 %s, v10, s[%d:%d], s%d offen sc1" % (vr(vU, 4), sWS, sWS + 3, sT0)); p("s_waitcnt vmcnt(0)")
    for i in range(4): p("v_add_f32 v%d, v%d, v%d" % (z + i, z + i, vU + i)); rnd(z + i)
    p.label(lskip); p("s_mov_b64 exec, s[68:69]") if False else None
    p("s_mov_b64 exec, -1")
    for i in range(4):
        g = vB + 12 + i
        p("v_mul_f32 v%d, 0xbfb8aa3b, v%d" % (g, z + i)); p("v_exp_f32 v%d, v%d" % (g, g)); p.nop(1)
        p("v_add_f32 v%d, 1.0, v%d" % (g, g)); p("v_rcp_f32 v%d, v%d" % (g, g)); p.nop(1)
        p("v_mul_f32 v%d, v%d, v%d" % (g, g, z + i)); rnd(g)
        p("v_mul_f32 v%d, v%d, v%d" % (g, g, sv + i)); rnd(g)
        p("v_add_f32 v%d, v%d, v%d" % (g, g, xx + i))
    p("v_cvt_pk_bf16_f32 v%d, v%d, v%d" % (vU, vB + 12, vB + 13)); p("v_cvt_pk_bf16_f32 v%d, v%d, v%d" % (vU + 1, vB + 14, vB + 15))
    p("buffer_store_dwordx2 %s, v%d, s[%d:%d], s%d offen %s" % (vr(vU, 2), vXA, sOUT, sOUT + 3, sT3, os.environ.get("OUTFL", "")))
    p.label(ldone)
```

```python
from asm import *
from layout import *

sWS = 4
sX, sH, sW, sSTEP, sTAG = 12, 13, 14, 15, 16
sMLC, sMLST, sMLRS, sMRC, sMRST, sMRRS = 17, 18, 19, 20, 21, 22
sP1W = 23
sP1R = 24
sP1W1, sP1W2, sLINE = 25, 26, 27
sKFN, sVFN, sKM, sVM = 28, 29, 30, 31
sM8 = 32
sLO32 = 34
sOWN4 = 36
sC = 10
sBC, sBN, sBP = 39, 40, 41
sISOWN, sISPUB = 42, 43
sWQ, sWK, sWV, sWO = 44, 48, 52, 56
sCML, sCMLU, sCMRR, sCMRU = 60, 61, 62, 63
sT0, sT1, sT2, sT3 = 64, 65, 66, 67
sSPIN = 68
sFLG = 69
sFKM = 70
sLOC, sREM = 71, 72
sMLC4, sMRC4 = 74, 75
sCA, sCB = 8, 9
sM0K, sWARM = 73, 3
s3F80 = 38
sSEL = 44
sTS = 76
SPIN_MAX = 1 << 18
import os
DELAY1 = int(os.environ.get('DELAY1', '30'))
PACE = int(os.environ.get('PACE', '0'))
DELAY2 = int(os.environ.get('DELAY2', '0'))
PF = int(os.environ.get('PF', '1'))
T4NOP = int(os.environ.get('T4NOP', '1'))
B2BF = int(os.environ.get('B2BF', '0'))
DELAY1B = int(os.environ.get('DELAY1B', '0'))
MRLATE = int(os.environ.get('MRLATE', '3'))
ARLATE = int(os.environ.get('ARLATE', '0'))
TIMED = int(os.environ.get('TIMED', '1'))
TD0 = int(os.environ.get('TD0', '15'))
TD = int(os.environ.get('TD', '8'))
TFILL = int(os.environ.get('TFILL', '0'))
TFIRST = int(os.environ.get('TFIRST', '1'))
MRD = int(os.environ.get('MRD', '45'))
NLDS = int(os.environ.get('NLDS', '2'))
RTPOS = int(os.environ.get('RTPOS', '0'))
TD2 = int(os.environ.get('TD2', '12'))
FOLDX = int(os.environ.get('FOLDX', '0'))
EARLYF = int(os.environ.get('EARLYF', '3'))
POLLN = int(os.environ.get('POLLN', '3'))
POLLDELAY = int(os.environ.get('POLLDELAY', '0'))
OWN2 = int(os.environ.get('OWN2', '1'))
OSTAG = int(os.environ.get('OSTAG', '8'))
sCNT2 = 53
sPCH = 52
RTOUCH = int(os.environ.get('RTOUCH', '1'))
MRFIRST = int(os.environ.get('MRFIRST', '0'))
STAMPS = os.environ.get('STAMPS', '').split(',')
FIRST_FLAGS = os.environ.get('FIRST', '')
TOUCH = int(os.environ.get('TOUCH', '1'))
REALTIME = int(os.environ.get('REALTIME', '0'))
PUB = int(os.environ.get('PUB', '0'))
COUNT = 1
NSAMP = int(os.environ.get('NSAMP', '2'))
FORCECAND = int(os.environ.get('FORCECAND', '0'))
TRACE = int(os.environ.get('TRACE', '0'))
TRC = 0x5C00000
sTRP = 54
sCNT = 40
TOUCHR = int(os.environ.get('TOUCHR', '1'))
sTR = 41
sMFL = 22
TRA = int(os.environ.get('TRA', '1'))
B2B = int(os.environ.get('B2B', '1'))
KPOS = int(os.environ.get('KPOS', '1'))
WSTR = int(os.environ.get('WSTR', '64'))
ALS = int(os.environ.get('ALS', '0'))
NOCHECK = bool(int(os.environ.get('NOCHECK', '0')))

vL16, vLW, vTW, vTR, vOW, vIDX, vPS = 1, 2, 3, 4, 5, 6, 7
vOR = 0
vX0 = 8
vA = 12
vQ0, vQ1, vK0, vK1, vV0, vV1 = 32, 36, 40, 44, 48, 52
vSB = 56
vVX = 88
vWQ = 96
aWV, aWO, aWK4 = 0, 160, 240

L_KX = 0
L_QT = 8192
G2OFF = 1152
L_KT = L_QT + 2304
L_O = L_KT + 2304
OSTR = 288
L_JUNK = 16128
L_IM2 = 15104
L_W = 16384
L_WSTRIDE = 36864

def unit_q(j, tt): return vr(vWQ + (j * 2 + tt) * 8, 8)
def unit_k9(tt): return ar(aWK4 + 8 * tt, 8)
def unit_v(j, tt): return ar(aWV + (j * 2 + tt) * 8, 8)
def unit_wo_pair(P, c): return ar(aWO + P * 32 + c * 8, 8)
def unit_wo4(c): return ar(aWO + 64 + c * 4, 4)
ACCQK = [vQ0, vQ1, vK0, vK1]

def smf(p, acc, a, b): p("v_smfmac_f32_16x16x64_bf16 %s, %s, %s, v%d" % (vr(acc, 4), vr(a, 4), b, vIDX))

def add_const(p, dst, src, const):
    p("s_add_u32 s%d, s%d, 0x%x" % (dst, src, const & 0xFFFFFFFF))

def setup_consts(p):
    p("v_and_b32 v0, 63, v0")
    p("v_lshlrev_b32 v%d, 4, v0" % vL16)
    p("s_mul_i32 s%d, s%d, %d" % (sT0, sW, L_WSTRIDE))
    p("s_add_u32 s%d, s%d, %d" % (sT0, sT0, L_W))
    p("v_add_u32 v%d, s%d, v%d" % (vLW, sT0, vL16))
    p("v_bfe_u32 v8, v0, 4, 1")
    p("v_mul_u32_u24 v8, %d, v8" % G2OFF)
    p("v_lshrrev_b32 v9, 5, v0")
    p("v_lshlrev_b32 v9, 4, v9")
    p("v_and_b32 v10, 15, v0")
    p("v_add_u32 v9, v9, v10")
    p("s_lshl_b32 s%d, s%d, 5" % (sT0, sW))
    p("v_add_u32 v9, s%d, v9" % sT0)
    p("v_lshl_add_u32 v8, v9, 3, v8")
    p("v_add_u32 v%d, %d, v8" % (vTW, L_QT))
    p("v_and_b32 v8, 1, v0")
    p("v_mul_u32_u24 v8, %d, v8" % G2OFF)
    p("v_lshrrev_b32 v9, 4, v0")
    p("v_lshlrev_b32 v9, 2, v9")
    p("v_bfe_u32 v10, v0, 2, 2")
    p("v_add_u32 v9, v9, v10")
    p("v_lshl_add_u32 v8, v9, 3, v8")
    p("v_add_u32 v%d, %d, v8" % (vTR, L_QT))
    p("v_and_b32 v8, 7, v0"); p("v_mul_u32_u24 v8, %d, v8" % OSTR)
    p("v_bfe_u32 v9, v0, 3, 1"); p("v_lshl_add_u32 v8, v9, 5, v8")
    p("v_lshrrev_b32 v9, 4, v0"); p("v_lshl_add_u32 v8, v9, 3, v8")
    p("s_lshl_b32 s%d, s%d, 6" % (sT0, sW)); p("s_add_u32 s%d, s%d, %d" % (sT0, sT0, L_O))
    p("v_add_u32 v%d, s%d, v8" % (vOW, sT0))
    p("s_mov_b32 s%d, 0x00ff00ff" % sM8); p("s_mov_b32 s%d, 0x00ff00ff" % (sM8 + 1))
    p("s_mov_b32 s%d, -1" % sLO32); p("s_mov_b32 s%d, 0" % (sLO32 + 1))
    p("s_mov_b32 s%d, 0x00010001" % sOWN4); p("s_mov_b32 s%d, 0x00010001" % (sOWN4 + 1))
    p("v_mov_b32 v8, 0xeeee")
    p("v_mov_b32 v9, 0x4444")
    p("v_cndmask_b32 v%d, v8, v9, s[%d:%d]" % (vIDX, sM8, sM8 + 1))
    p("v_lshrrev_b32 v8, 5, v0"); p("v_lshlrev_b32 v8, 13, v8")
    p("v_bfe_u32 v9, v0, 3, 1"); p("v_lshl_add_u32 v8, v9, 12, v8")
    p("v_and_b32 v9, 7, v0"); p("v_lshl_add_u32 v8, v9, 4, v8")
    p("v_bfe_u32 v9, v0, 4, 1"); p("v_lshl_add_u32 v%d, v9, 3, v8" % vPS)
    p("s_mov_b32 s%d, 0x3e0293ee" % sC); p("s_mov_b32 s%d, 0x3e0293ee" % (sC + 1))
    p("s_cmp_eq_u32 s%d, 0" % sW); p("s_cselect_b32 s%d, 1, 0" % sISOWN)
    p("s_cmp_ge_u32 s%d, 24" % sH); p("s_cselect_b32 s%d, 1, 0" % sT1)
    p("s_cmp_eq_u32 s%d, 1" % sW); p("s_cselect_b32 s%d, s%d, 0" % (sT1, sT1))
    p("s_or_b32 s%d, s%d, s%d" % (sISOWN, sISOWN, sT1))
    p("s_lshl_b32 s%d, s%d, 3" % (sT1, sT1)); p("s_add_u32 s%d, s%d, s%d" % (sT0, sH, sT1))
    p("s_cmp_eq_u32 s%d, 39" % sT0); p("s_cselect_b32 s%d, s%d, 0" % (sMFL, sISOWN))
    p("s_mul_i32 s%d, s%d, %d" % (sP1R, sX, P1_X))
    p("s_add_u32 s%d, s%d, 0x%x" % (sP1R, sP1R, P1))
    p("s_lshl_b32 s%d, s%d, 7" % (sT3, sH)); p("s_add_u32 s%d, s%d, s%d" % (sP1W2, sP1R, sT3))
    p("s_lshl_b32 s%d, s%d, 14" % (sT3, sW)); p("s_add_u32 s%d, s%d, s%d" % (sP1W, sP1W2, sT3))
    add_const(p, sP1W1, sP1W, 8 * 8192)
    p("s_lshl_b32 s%d, s%d, 13" % (sT3, sW)); p("s_add_u32 s%d, s%d, s%d" % (sP1W2, sP1W2, sT3)); add_const(p, sP1W2, sP1W2, 16 * 8192)
    p("s_lshl_b32 s%d, s%d, 12" % (sT3, sT0)); p("s_add_u32 s%d, s%d, s%d" % (sP1R, sP1R, sT3))
    p("s_lshl_b32 s%d, s%d, 7" % (sT0, sT0))
    p("s_lshl_b32 s%d, s%d, 13" % (sT1, sX))
    add_const(p, sMLC, sT1, ML)
    p("s_add_u32 s%d, s%d, s%d" % (sMLST, sMLC, sT0))
    p("s_lshl_b32 s%d, s%d, 21" % (sT1, sX))
    add_const(p, sT2, sT1, MR)
    p("s_add_u32 s%d, s%d, s%d" % (sMRST, sT2, sT0))
    p("s_xor_b32 s%d, s%d, 0x%x" % (sT1, sT1, MR_X))
    add_const(p, sMRC, sT1, (MR - MR_S) & 0xFFFFFFFF)
    p("s_and_b32 s%d, s%d, 1" % (sT0, sH))
    p("s_cmp_eq_u32 s%d, s%d" % (sT0, sX))
    p("s_cselect_b32 s%d, 1, 0" % sISPUB)
    if not PUB: p("s_mov_b32 s%d, 0" % sISPUB)
    p("s_lshl_b32 s%d, s%d, 4" % (sT0, sH))
    add_const(p, sFLG, sT0, FLG_KVQ)
    p("s_lshl_b32 s%d, s%d, 2" % (sT0, sH))
    add_const(p, sFKM, sT0, FLG_KM)
    p("s_lshl_b32 s%d, s%d, 14" % (sT0, sH))
    p("s_lshl_b32 s%d, s%d, 11" % (sM0K, sW))
    p("s_lshl_b32 s%d, s%d, 12" % (sT1, sW))
    p("s_add_u32 s%d, s%d, s%d" % (sT1, sT1, sT0))
    add_const(p, sWARM, sT1, KF + 2 * KV_S)
    p("s_add_u32 s%d, s%d, s%d" % (sT0, sT0, sM0K))
    add_const(p, sKFN, sT0, KF)
    add_const(p, sVFN, sT0, VF)
    p("s_lshl_b32 s%d, s%d, 11" % (sT0, sH))
    add_const(p, sKM, sT0, KM)
    p("s_lshl_b32 s%d, s%d, 12" % (sT0, sH))
    p("s_lshl_b32 s%d, s%d, 10" % (sT1, sW))
    p("s_add_u32 s%d, s%d, s%d" % (sT0, sT0, sT1))
    add_const(p, sVM, sT0, VM)

def setup_vor(p):
    if TRACE:
        p("s_lshl_b32 s%d, s%d, 5" % (sTRP, sX)); p("s_add_u32 s%d, s%d, s%d" % (sTRP, sTRP, sH)); p("s_lshl_b32 s%d, s%d, 2" % (sTRP, sTRP))
        p("s_add_u32 s%d, s%d, s%d" % (sTRP, sTRP, sW)); p("s_lshl_b32 s%d, s%d, 12" % (sTRP, sTRP)); add_const(p, sTRP, sTRP, TRC)
    p("s_mov_b32 s%d, 0x3f80" % s3F80); p("s_mov_b32 s%d, 0" % sCNT2)
    p("s_cmp_eq_u32 s%d, 2" % sW); p("s_cselect_b32 s%d, 1024, 0" % sPCH)
    for r_ in range(4):
        m_ = 0x03030303 << (2 * r_)
        p("s_mov_b32 s%d, 0x%x" % (sSEL + 2 * r_, m_)); p("s_mov_b32 s%d, 0x%x" % (sSEL + 2 * r_ + 1, m_))
    p("v_and_b32 v8, 7, v0"); p("v_mul_u32_u24 v8, %d, v8" % OSTR)
    p("v_lshrrev_b32 v9, 4, v0"); p("v_lshl_add_u32 v8, v9, 4, v8")
    p("v_add_u32 v%d, %d, v8" % (vOR, L_O))

def finish_consts(p):
    p("s_add_u32 s%d, s%d, s%d" % (sMRST, sMRST, sT0))
    p("s_add_u32 s%d, s%d, s%d" % (sMRC, sMRC, sT2))
    p("s_cmp_eq_u32 s%d, 0" % sISOWN)
    p("s_cselect_b32 s%d, 0x%x, s%d" % (sMLST, OOB, sMLST))
    p("s_cselect_b32 s%d, 0x%x, s%d" % (sMRST, OOB, sMRST))
    p("s_lshl_b32 s%d, s%d, 7" % (sT1, sX)); add_const(p, sT1, sT1, FLG_MEM)
    p("s_cmp_eq_u32 s%d, 0" % sMFL); p("s_cselect_b32 s%d, 0x%x, s%d" % (sMFL, OOB, sT1))
    p("s_lshl_b32 s%d, s%d, 2" % (sT0, sH)); p("s_add_u32 s%d, s%d, s%d" % (sT0, sT0, sW))
    for _ in range(3):
        p("s_cmp_ge_u32 s%d, 40" % sT0); p("s_cselect_b32 s%d, 40, 0" % sT1); p("s_sub_u32 s%d, s%d, s%d" % (sT0, sT0, sT1))
    p("s_lshl_b32 s%d, s%d, 7" % (sLINE, sT0)); add_const(p, sMLRS, sLINE, ML_S)

def load_weights(p, st=None):
    vm = Counter(p, "vmcnt", 63)
    vG, vGP, vGO, vSR0, vSR1, vSRP, vSRO = 88, 89, 90, 91, 92, 93, 94
    t = 95
    sRB = sBN
    p("s_mul_i32 s%d, s%d, %d" % (sRB, sW, L_WSTRIDE)); p("s_add_u32 s%d, s%d, %d" % (sRB, sRB, L_W))
    p("v_bfe_u32 v%d, v0, 2, 2" % t); p("v_lshlrev_b32 v%d, 15, v%d" % (vG, t))
    p("v_lshrrev_b32 v%d, 5, v0" % t); p("v_lshl_add_u32 v%d, v%d, 14, v%d" % (vG, t, vG))
    p("v_bfe_u32 v%d, v0, 4, 1" % t); p("v_lshl_add_u32 v%d, v%d, 13, v%d" % (vG, t, vG))
    p("v_lshlrev_b32 v%d, 1, v%d" % (t, t)); p("v_and_b32 v8, 3, v0"); p("v_xor_b32 v%d, v%d, v8" % (t, t))
    p("v_lshl_add_u32 v%d, v%d, 4, v%d" % (vG, t, vG))
    p("v_bfe_u32 v%d, v0, 2, 1" % t); p("v_mov_b32 v8, v%d" % t)
    p("v_bfe_u32 v%d, v0, 3, 1" % t); p("v_lshl_add_u32 v8, v%d, 2, v8" % t)
    p("v_bfe_u32 v%d, v0, 4, 1" % t); p("v_lshl_add_u32 v8, v%d, 1, v8" % t)
    p("v_bfe_u32 v%d, v0, 5, 1" % t); p("v_lshl_add_u32 v8, v%d, 3, v8" % t)
    p("v_mul_u32_u24 v8, 1280, v8"); p("v_and_b32 v%d, 3, v0" % t); p("v_lshl_add_u32 v%d, v%d, 4, v8" % (vGP, t))
    p("v_lshrrev_b32 v%d, 1, v0" % t); p("v_mul_u32_u24 v8, 1280, v%d" % t)
    p("v_and_b32 v%d, 1, v0" % t); p("v_lshl_add_u32 v%d, v%d, 4, v8" % (vGO, t))
    p("v_lshrrev_b32 v%d, 5, v0" % t); p("v_lshlrev_b32 v%d, 10, v%d" % (vSR0, t))
    p("v_bfe_u32 v%d, v0, 2, 1" % t); p("v_lshl_add_u32 v%d, v%d, 8, v%d" % (vSR0, t, vSR0))
    p("v_bfe_u32 v%d, v0, 4, 1" % t); p("v_lshl_add_u32 v%d, v%d, 6, v%d" % (vSR0, t, vSR0))
    p("v_bfe_u32 v%d, v0, 3, 1" % t); p("v_lshl_add_u32 v%d, v%d, 7, v%d" % (vSR0, t, vSR0))
    p("v_and_b32 v%d, 1, v0" % t); p("v_lshl_add_u32 v%d, v%d, 3, v%d" % (vSR0, t, vSR0))
    p("v_bfe_u32 v%d, v0, 1, 1" % t); p("v_lshl_add_u32 v%d, v%d, 4, v%d" % (vSR0, t, vSR0))
    p("v_add_u32 v%d, s%d, v%d" % (vSR0, sRB, vSR0))
    p("v_bfe_u32 v%d, v0, 2, 1" % t); p("v_lshlrev_b32 v%d, 5, v%d" % (t, t))
    p("v_sub_u32 v%d, 32, v%d" % (vSR1, t)); p("v_add_u32 v%d, v%d, v%d" % (vSR1, vSR1, vSR0))
    p("v_add_u32 v%d, v%d, v%d" % (vSR0, vSR0, t))
    p("v_lshrrev_b32 v%d, 5, v0" % t); p("v_lshlrev_b32 v%d, 9, v%d" % (vSRP, t))
    p("v_bfe_u32 v%d, v0, 4, 1" % t); p("v_lshl_add_u32 v%d, v%d, 7, v%d" % (vSRP, t, vSRP))
    p("v_bfe_u32 v%d, v0, 2, 1" % t); p("v_lshl_add_u32 v%d, v%d, 6, v%d" % (vSRP, t, vSRP))
    p("v_bfe_u32 v%d, v0, 3, 1" % t); p("v_lshl_add_u32 v%d, v%d, 5, v%d" % (vSRP, t, vSRP))
    p("v_and_b32 v%d, 3, v0" % t); p("v_lshl_add_u32 v%d, v%d, 3, v%d" % (vSRP, t, vSRP))
    p("v_add_u32 v%d, s%d, v%d" % (vSRP, sRB, vSRP))
    p("v_lshrrev_b32 v%d, 4, v0" % t); p("v_lshlrev_b32 v%d, 8, v%d" % (vSRO, t))
    p("v_bfe_u32 v%d, v0, 2, 2" % t); p("v_lshl_add_u32 v%d, v%d, 5, v%d" % (vSRO, t, vSRO))
    p("v_and_b32 v%d, 3, v0" % t); p("v_lshl_add_u32 v%d, v%d, 3, v%d" % (vSRO, t, vSRO))
    p("v_add_u32 v%d, s%d, v%d" % (vSRO, sRB, vSRO))
    p("s_lshl_b32 s%d, s%d, 8" % (sT0, sH)); p("s_lshl_b32 s%d, s%d, 6" % (sT1, sW))
    p("s_add_u32 s%d, s%d, s%d" % (sT0, sT0, sT1))
    p("s_mul_i32 s%d, s%d, %d" % (sT1, sX, 5 * 524288))
    p("s_add_u32 s%d, s%d, s%d" % (sLOC, sT0, sT1))
    p("s_sub_u32 s%d, %d, s%d" % (sT1, 5 * 524288, sT1))
    p("s_add_u32 s%d, s%d, s%d" % (sREM, sT0, sT1))
    sWOB, sWOB4 = sBC, sBP
    p("s_mul_i32 s%d, s%d, %d" % (sWOB, sH, 128 * 1280))
    p("s_mul_i32 s%d, s%d, 640" % (sT0, sX)); p("s_add_u32 s%d, s%d, s%d" % (sWOB, sWOB, sT0))
    p("s_lshl_b32 s%d, s%d, 5" % (sT0, sW)); p("s_add_u32 s%d, s%d, s%d" % (sWOB4, sWOB, sT0)); add_const(p, sWOB4, sWOB4, 512)
    p("s_lshl_b32 s%d, s%d, 6" % (sT0, sW)); p("s_add_u32 s%d, s%d, s%d" % (sWOB, sWOB, sT0))

    R = []
    for j in range(10): R.append(dict(mat="q", j=j, acc=False, base=vWQ + j * 16, lds=False))
    R.append(dict(mat="k", j=9, acc=True, base=aWK4, lds=False))
    for j in range(10): R.append(dict(mat="v", j=j, acc=True, base=aWV + j * 16, lds=False))
    for P in range(2):
        for g2 in range(2): R.append(dict(mat="op", j=(P, g2), acc=True, base=aWO + P * 32 + g2 * 16, lds=False))
    R.append(dict(mat="o", j=4, acc=True, base=aWO + 64, lds=False))
    order = list(R)
    for n, g in enumerate(order): g["slot"] = n % 9
    for i in range(9):
        slot = (len(R) + i) % 9
        order.append(dict(mat="k", j=slot, acc=False, base=12, lds=True, slot=slot))
    def rg(g, off, n): return (ar if g["acc"] else vr)(g["base"] + off, n)
    def issue(n):
        g = order[n]
        for a in range(4):
            p("s_add_u32 m0, s%d, %d" % (sRB, g["slot"] * 4096 + a * 1024))
            if g["mat"] == "o":
                add_const(p, sT0, sWOB4, a * 32 * 1280); v, srd = vGO, sWO
            elif g["mat"] == "op":
                P, g2 = g["j"]; add_const(p, sT0, sWOB, P * 256 + (64 * g2 + 16 * a) * 1280); v, srd = vGP, sWO
            else:
                j = g["j"]; add_const(p, sT0, sLOC if j < 5 else sREM, (j % 5) * 524288 + a * 131072)
                v, srd = vG, {"q": sWQ, "k": sWK, "v": sWV}[g["mat"]]
            p("buffer_load_dwordx4 v%d, s[%d:%d], s%d offen lds" % (v, srd, srd + 3, sT0)); vm.issue(n)
    INFL = int(os.environ.get('INFL', '9'))
    for n in range(INFL): issue(n)
    for n, g in enumerate(order):
        vm.wait(n)
        if st is not None and n in (0, 9, 18, 26): st.stamp("G%d" % n)
        so = g["slot"] * 4096
        for u in range(2):
            for pp in range(4):
                d = rg(g, u * 8 + 2 * pp, 2)
                if g["mat"] == "o": p("ds_read_b64_tr_b16 %s, v%d offset:%d" % (d, vSRO, so + (2 * u + pp // 2) * 1024 + (pp % 2) * 128))
                elif g["mat"] == "op": p("ds_read_b64_tr_b16 %s, v%d offset:%d" % (d, vSRP, so + (2 * u + pp // 2) * 1024 + (pp % 2) * 256))
                else: p("ds_read_b64_tr_b16 %s, v%d offset:%d" % (d, vSR0 if u == 0 else vSR1, so + (pp // 2) * 2048 + (pp % 2) * 512))
        p("s_waitcnt lgkmcnt(0)")
        if g["lds"]:
            for q in range(4):
                p("ds_write_b128 v%d, %s offset:%d" % (vLW, rg(g, 4 * q, 4), so + q * 1024))
            p("s_waitcnt lgkmcnt(0)")
        if n + INFL < len(order): issue(n + INFL)

class Step:
    def __init__(self, p, dbg=False, slow=False):
        self.p = p; self.dbg = dbg
        self.slow = slow; self.loc = "sc1" if slow else ""; self.sfx = "_S" if slow else ""
        self.vm = Counter(p, "vmcnt", 63); self.lg = Counter(p, "lgkmcnt", 15)
        self.retries = []; self.tail = []
        self.stamps = []; self.prev = {}
    def stamp(self, name):
        if name not in STAMPS: return
        k = sTS + 2 * STAMPS.index(name); assert k + 1 < 94
        self.stamps = list(STAMPS)
        self.p("%s s[%d:%d]" % ("s_memrealtime" if (REALTIME or name == "RT") else "s_memtime", k, k + 1))
    def sb(self, b): return vSB + 8 * b
    def lds_unit(self, i):
        p = self.p; b = self.sb(i % 4)
        p("ds_read_b128 %s, v%d offset:%d" % (vr(b, 4), vLW, i * 2048)); self.lg.issue(("L", i))
        p("ds_read_b128 %s, v%d offset:%d" % (vr(b + 4, 4), vLW, i * 2048 + 1024)); self.lg.issue(("L", i))
    def img_ins(self, j, soff, flags=FIRST_FLAGS):
        so, off = (soff, j * 1024) if j < 4 else ({sMLC: sMLC4, sMRC: sMRC4}[soff], 0)
        self.p("buffer_load_dwordx4 %s, v%d, s[%d:%d], s%d offen offset:%d %s" % (vr(vA + 4 * j, 4), vL16, sWS, sWS + 3, so, off, flags))
    def img_load(self, j, soff, tag):
        self.img_ins(j, soff); self.vm.issue(tag)
    def check_chunk(self, j, soff, kind):
        if NOCHECK: return
        p = self.p; lr = p.uid("RETRY"); lb = p.uid("BACK")
        p("v_cmp_eq_u32 vcc, -1, v%d" % (vA + 4 * j + 3))
        p("s_cbranch_vccnz %s" % lr); p.label(lb)
        self.retries.append((lr, lb, j, soff))
    def emit_retries(self):
        p = self.p
        for kind, lretry, lpoll, ldone, loads in self.tail:
            p.label(lretry)
            p("s_add_u32 s%d, s%d, 1" % (sSPIN, sSPIN))
            if COUNT: p("s_add_u32 s%d, s%d, 1" % (sCNT, sCNT))
            p("s_cmp_gt_u32 s%d, %d" % (sSPIN, SPIN_MAX)); p("s_cbranch_scc1 %s" % ldone)
            loads(); p("s_branch %s" % lpoll)
        for lr, lb, j, soff, later in self.retries:
            p.label(lr)
            l2 = p.uid("SPIN")
            p.label(l2)
            self.img_ins(j, soff, "sc1")
            for k in later: self.img_ins(k, soff, "sc1")
            p("s_add_u32 s%d, s%d, 1" % (sSPIN, sSPIN))
            if COUNT: p("s_add_u32 s%d, s%d, %d" % (sCNT, sCNT, (1 << 10) if soff == sMLC else (1 << 20)))
            p("s_cmp_gt_u32 s%d, %d" % (sSPIN, SPIN_MAX))
            p("s_waitcnt vmcnt(0)")
            p("s_cbranch_scc1 %s" % lb)
            p("v_cmp_eq_u32 vcc, -1, v%d" % (vA + 4 * j + 3))
            p("s_cbranch_vccnz %s" % l2)
            p("s_branch %s" % lb)

    def top_state(self):
        self.vm.clear(); self.lg.clear()
        for i in range(2): self.lg.issue(("L", i)); self.lg.issue(("L", i))

    def masked_store(self, data, n, voff, soff, mask, flags="", off=0, tag="st"):
        p = self.p
        p("s_mov_b64 exec, s[%d:%d]" % (mask, mask + 1))
        op = {1: "dword", 2: "dwordx2", 4: "dwordx4"}[n]
        p("buffer_store_%s %s, v%d, s[%d:%d], s%d offen offset:%d %s" % (op, vr(data, n), voff, sWS, sWS + 3, soff, off, flags))
        p("s_mov_b64 exec, -1")
        self.vm.issue(tag)

    def housekeeping(self):
        p = self.p
        def clears(a, b):
            for i in range(a, b): p("v_mov_b64 %s, 0" % vr(vQ0 + 2 * i, 2))
        def prefetch(a, b):
            for i in range(a, b): self.lds_unit(i)
        def salu():
            add_const(p, sWARM, sWARM, KV_S); add_const(p, sVFN, sVFN, KV_S)
            add_const(p, sMLST, sMLST, ML_S); add_const(p, sMRST, sMRST, MR_S)
            p("s_add_u32 s%d, s%d, 1" % (sSTEP, sSTEP))
        return clears, prefetch, salu

    def poller(self):
        p, lg = self.p, self.lg
        clears, prefetch, salu = self.housekeeping()
        p.label("REC_POLL" + self.sfx)
        lskip = p.uid("NOFLG")
        p("s_cmp_lg_u32 s%d, 3" % sW); p("s_cbranch_scc1 %s" % lskip)
        p("s_add_u32 s%d, s%d, 2" % (sT0, sSTEP))
        p("s_and_b32 s%d, s%d, 0x43" % (sT1, sT0)); p("s_cmp_lg_u32 s%d, 0" % sT1); p("s_cbranch_scc1 %s" % lskip)
        p("s_lshl_b32 s%d, s%d, 7" % (sT0, sT0))
        p("s_add_u32 s%d, s%d, s%d" % (sT0, sT0, sFLG))
        self.flag_spin(sT0)
        p.label(lskip)
        p("s_add_u32 s%d, s%d, s%d" % (sT2, sMLC, sPCH))
        vAD = vX0 + 2
        lg.clear()
        p("v_add_u32 v%d, s%d, v%d" % (vAD, sPCH, vL16))
        p("s_xor_b32 s%d, s%d, 1" % (sTAG, sTAG))
        fill = [lambda: clears(0, 6), lambda: clears(6, 12), lambda: prefetch(0, 1), lambda: prefetch(1, 2)]
        ok = p.uid("IOK")
        def variant(nch, sets, polln, last):
            def pload(k):
                for c in range(nch):
                    p("buffer_load_dwordx4 %s, v%d, s[%d:%d], s%d offen offset:%d sc1" % (vr(sets[k] + 4 * c, 4), vL16, sWS, sWS + 3, sT2, 1024 * c))
            self.stamp("PS0")
            p.nop(TD0)
            for k in range(polln):
                pload(k)
                if k < polln - 1: p.nop(TD if nch == 1 else TD2)
            lp = p.uid("IPOLL")
            p.label(lp)
            for k in range(polln):
                p("s_waitcnt vmcnt(%d)" % (nch * (polln - 1)))
                for c in range(nch):
                    p("ds_write_b128 v%d, %s offset:%d" % (vAD, vr(sets[k] + 4 * c, 4), L_O if c == 0 else L_IM2 - 1024))
                t_ = vX0 + 3
                p("v_max3_u32 v%d, v%d, v%d, v%d" % (t_, sets[k], sets[k] + 1, sets[k] + 2))
                if nch == 1: p("v_max_u32 v%d, v%d, v%d" % (t_, t_, sets[k] + 3))
                else:
                    p("v_max3_u32 v%d, v%d, v%d, v%d" % (t_, t_, sets[k] + 3, sets[k] + 4))
                    p("v_max3_u32 v%d, v%d, v%d, v%d" % (t_, t_, sets[k] + 5, sets[k] + 6))
                    p("v_max_u32 v%d, v%d, v%d" % (t_, t_, sets[k] + 7))
                p("v_cmp_eq_u32 vcc, -1, v%d" % t_)
                if k == polln - 1:
                    p("s_add_u32 s%d, s%d, 1" % (sSPIN, sSPIN))
                    if COUNT: p("s_add_u32 s%d, s%d, 1" % (sCNT2, sCNT2))
                    p("s_cmp_gt_u32 s%d, %d" % (sSPIN, SPIN_MAX)); p("s_cbranch_scc1 %s" % ok)
                p("s_cbranch_vccz %s" % ok)
                self.stamp("PI")
                pload(k)
            p("s_branch %s" % lp)
        for f in fill: f()
        p("s_barrier")
        p("s_cmp_lt_u32 s%d, %d" % (sSTEP, NSEG - 1)); p("s_cbranch_scc0 REC_END")
        if NLDS == 3:
            l2 = p.uid("POLL2")
            p("s_cmp_eq_u32 s%d, 2" % sW); p("s_cbranch_scc1 %s" % l2)
            variant(1, [vA + 12, vA + 16, vVX, vVX + 4][:POLLN], POLLN, False)
            p.label(l2)
            variant(2, [vA + 12, vVX], 2, True)
        else:
            variant(1, [vA + 8, vA + 12, vA + 16, vVX, vVX + 4][:POLLN], POLLN, True)
        p.label(ok)
        self.stamp("PW")
        p("s_waitcnt lgkmcnt(0)")

    def body(self):
        p, vm, lg = self.p, self.vm, self.lg
        clears, prefetch, salu = self.housekeeping()
        self.poller()
        self.top_state()
        p.label("REC_LOOP" + self.sfx)
        self.stamp("preB3")
        p("s_barrier")
        self.stamp("B3"); self.stamp("RT")
        if TRACE:
            p("s_waitcnt lgkmcnt(0)")
            for i in range(TRACE): p("v_writelane_b32 v%d, s%d, %d" % (vX0 + 2, sTS + 2 * i, i))
            p("v_lshrrev_b32 v%d, 2, v%d" % (vX0 + 3, vL16))
            p("s_mov_b64 exec, 0xffff")
            p("buffer_store_dword v%d, v%d, s[%d:%d], s%d offen" % (vX0 + 2, vX0 + 3, sWS, sWS + 3, sTRP))
            p("s_mov_b64 exec, -1")
            p("s_add_u32 s%d, s%d, 64" % (sTRP, sTRP))
        self.stamp("TOP")
        for c in range(NLDS):
            p("ds_read_b128 %s, v%d offset:%d" % (vr(vA + 4 * c, 4), vL16, L_O + 1024 * c if c < 2 else L_IM2)); lg.issue(("IM", c))
        self.img_load(NLDS, sMLC, ("AL", NLDS))
        prefetch(2, 4)
        add_const(p, sMLC4, sMLC, 4096)
        if NLDS == 3: self.img_load(4, sMLC, ("AL", 4))
        add_const(p, sMRC, sMRC, MR_S); add_const(p, sMRC4, sMRC, 4096)
        p("s_mov_b32 m0, %d" % L_JUNK)
        p("s_add_u32 s%d, s%d, s%d" % (sT1, sMRC, sLINE))
        def rtouch():
            p("buffer_load_dword off, s[%d:%d], s%d lds" % (sWS, sWS + 3, sT1)); vm.issue("rt")
        if RTOUCH and RTPOS == 1: rtouch()
        li = 0
        def k_pair(j, mid=None):
            nonlocal li
            lg.wait(("L", li + 1))
            for u in range(2):
                smf(p, ACCQK[2 + u], vA + 4 * (j % 5), vr(self.sb(li % 4), 8))
                if u == 0 and mid: mid()
                if li + 4 < 18: self.lds_unit(li + 4)
                else: self.kx_reads(li % 4)
                li += 1
        lg.wait(("IM", 0))
        self.stamp("AL0")
        def mr_store():
            p("buffer_store_dword v%d, v%d, s[%d:%d], s%d offen sc1" % (vX0, vX0 + 1, sWS, sWS + 3, sMRST)); vm.issue("mr")
        for j in range(5):
            smf(p, vQ0, vA + 4 * j, unit_q(j, 0))
            if j == 0 and NLDS == 2: self.img_load(3, sMLC, ("AL", 3))
            smf(p, vQ1, vA + 4 * j, unit_q(j, 1))
            if j == 0 and RTOUCH and RTPOS == 2: rtouch()
            k_pair(j, (lambda: self.img_load(4, sMLC, ("AL", 4))) if (j == 0 and NLDS == 2) else None)
            if j == 0 and RTOUCH and RTPOS == 3: rtouch()
            if j + 1 < NLDS: lg.wait(("IM", j + 1))
            else: vm.wait(("AL", j + 1) if j < 4 else ("AR", 0)); self.cmp_chunk((j + 1) % 5)
            smf(p, vV0, vA + 4 * j, unit_v(j, 0)); smf(p, vV1, vA + 4 * j, unit_v(j, 1))
            if j + 1 >= NLDS: self.branch_chunk((j + 1) % 5, sMLC if j < 4 else sMRC)
            if j == ARLATE:
                for jj in range(j + 1): self.img_load(jj, sMRC, ("AR", jj))
            elif j > ARLATE: self.img_load(j, sMRC, ("AR", j))
            if j == ARLATE and RTOUCH and RTPOS == 0: rtouch()
            self.stamp("L%d" % j)
        def fold_parts(a, b, off, tag):
            sw = ["v_permlane32_swap_b32 v%d, v%d" % (a + i, b + i) for i in range(4)]
            ad = ["v_pk_add_f32 %s, %s, %s" % (vr(a + i, 2), vr(a + i, 2), vr(b + i, 2)) for i in (0, 2)]
            cv = ["v_cvt_pk_bf16_f32 v%d, v%d, v%d" % (b, a, a + 1), "v_cvt_pk_bf16_f32 v%d, v%d, v%d" % (b + 1, a + 2, a + 3)]
            def wr(): p("ds_write_b64 v%d, %s offset:%d" % (vTW, vr(b, 2), off)); lg.issue(tag)
            return sw, ad, cv, wr
        def vx_load(q):
            p("buffer_load_dwordx4 %s, v%d, s[%d:%d], s%d offen offset:%d" % (vr(vVX + 4 * q, 4), vL16, sWS, sWS + 3, sVFN, 1024 * q)); vm.issue("vx")
        wv = vX0
        def warm(part):
            if part == 0:
                p("v_lshlrev_b32 v%d, %d, v%d" % (wv, 3 if WSTR == 128 else 2, vL16))
                p("s_add_u32 s%d, s%d, s%d" % (sT1, sMLC, sMLRS))
                p("buffer_load_dword v%d, s[%d:%d], s%d offen lds" % (wv, sWS, sWS + 3, sWARM)); vm.issue("warm")
            else:
                p("buffer_load_dword off, s[%d:%d], s%d sc1 lds" % (sWS, sWS + 3, sT1)); vm.issue("warm")
                p("buffer_store_dword v%d, off, s[%d:%d], s%d sc1" % (vIDX, sWS, sWS + 3, sMFL)); vm.issue("flag")
                p("s_add_u32 s%d, s%d, 256" % (sMFL, sMFL))
        for j in range(5 if not FOLDX else 3):
            smf(p, vQ0, vA + 4 * j, unit_q(5 + j, 0))
            if j < 4: vm.wait(("AR", j + 1)); self.cmp_chunk(j + 1)
            smf(p, vQ1, vA + 4 * j, unit_q(5 + j, 1))
            if j < 4:
                k_pair(5 + j)
                if j in (0, 2): vx_load(j // 2)
                self.branch_chunk(j + 1, sMRC)
            else: smf(p, vK0, vA + 16, unit_k9(0)); smf(p, vK1, vA + 16, unit_k9(1))
            self.stamp("R%d" % j)
        if FOLDX:
            smf(p, vQ0, vA + 12, unit_q(8, 0))
            vm.wait(("AR", 4)); self.cmp_chunk(4)
            smf(p, vQ1, vA + 12, unit_q(8, 1))
            self.branch_chunk(4, sMRC)
            smf(p, vQ0, vA + 16, unit_q(9, 0)); smf(p, vQ1, vA + 16, unit_q(9, 1))
            self.stamp("R3")
            k_pair(8)
            sw, ad, cv, wr = fold_parts(vQ0, vQ1, 0, "qw")
            p(sw[0]); p(sw[1])
            smf(p, vK0, vA + 16, unit_k9(0))
            p(sw[2]); p(sw[3])
            smf(p, vK1, vA + 16, unit_k9(1))
            self.stamp("R4")
            for ins in ad + cv: p(ins)
            wr()
            warm(0)
            sw, ad, cv, wr = fold_parts(vK0, vK1, L_KT - L_QT, "kw")
            for ins in sw + ad + cv: p(ins)
            wr()
            warm(1)
        else:
            warm(0); warm(1)
            for a_, b_, off_, tag_ in ((vQ0, vQ1, 0, "qw"), (vK0, vK1, L_KT - L_QT, "kw")):
                sw, ad, cv, wr = fold_parts(a_, b_, off_, tag_)
                for ins in sw + ad + cv: p(ins)
                wr()
        self.stamp("FOLD")
        for j in range(2):
            smf(p, vV0, vA + 4 * j, unit_v(5 + j, 0)); smf(p, vV1, vA + 4 * j, unit_v(5 + j, 1))
        lg.wait_all()
        self.stamp("preB1")
        p("s_barrier")
        self.stamp("B1")
        def kx(t, kk): return vSB + 4 * self.kx_reg(t, kk)
        def q_read(kk):
            for r in range(2):
                p("ds_read_b64_tr_b16 %s, v%d offset:%d" % (vr(vQ0 + 4 * kk + 2 * r, 2), vTR, 256 * kk + 128 * r)); lg.issue(("q", kk))
        kmreg = [vA, vA + 4, kx(0, 2), kx(0, 3)]
        def km_read(kk):
            for r in range(2):
                p("ds_read_b64_tr_b16 %s, v%d offset:%d" % (vr(kmreg[kk] + 2 * r, 2), vTR, L_KT - L_QT + 256 * kk + 128 * r)); lg.issue(("km", kk))
        q_read(0); q_read(1)
        smf(p, vV0, vA + 8, unit_v(7, 0)); smf(p, vV1, vA + 8, unit_v(7, 1))
        q_read(2); q_read(3)
        smf(p, vV0, vA + 12, unit_v(8, 0)); smf(p, vV1, vA + 12, unit_v(8, 1))
        self.stamp("Sstart")
        vX1, vM = kx(0, 0), kx(0, 1)
        def mf(d, a_, b_, first): p("v_mfma_f32_16x16x32_bf16 %s, %s, %s, %s" % (vr(d, 4), vr(a_, 4), vr(b_, 4), "0" if first else vr(d, 4)))
        lg.wait(("q", 1))
        mf(vX0, kx(0, 0), vQ0, True); km_read(0)
        mf(vX0, kx(0, 1), vQ0 + 4, False); km_read(1)
        lg.wait(("q", 3))
        mf(vX0, kx(0, 2), vQ0 + 8, False); km_read(2)
        mf(vX0, kx(0, 3), vQ0 + 12, False); km_read(3)
        for kk in range(4): mf(vX1, kx(1, kk), vQ0 + 4 * kk, kk == 0)
        lg.wait(("km", 1))
        mf(vM, kmreg[0], vQ0, True); mf(vM, kmreg[1], vQ0 + 4, False)
        lg.wait(("km", 3))
        mf(vM, kmreg[2], vQ0 + 8, False); mf(vM, kmreg[3], vQ0 + 12, False)
        smf(p, vV0, vA + 16, unit_v(9, 0)); smf(p, vV1, vA + 16, unit_v(9, 1))
        self.stamp("Send")
        X0, X1, Mm = vX0, vX1, vM
        t0, t1, t2, t3 = vA + 8, vA + 9, vA + 10, vA + 11
        ones, onesm = vA + 12, vA
        for i in range(4): p("v_mov_b32 v%d, 0x3f803f80" % (ones + i))
        p("v_max3_f32 v%d, v%d, v%d, v%d" % (t0, X0, X0 + 1, X0 + 2))
        p("v_max3_f32 v%d, v%d, v%d, v%d" % (t1, X0 + 3, X1, X1 + 1))
        p("v_max3_f32 v%d, v%d, v%d, v%d" % (t0, t0, t1, X1 + 2))
        p("v_max3_f32 v%d, v%d, v%d, v%d" % (t1, Mm, Mm + 1, Mm + 2))
        p("v_max3_f32 v%d, v%d, v%d, v%d" % (t0, t0, X1 + 3, Mm + 3))
        p("v_max_f32 v%d, v%d, v%d" % (t0, t0, t1))
        p("v_mov_b32 v%d, v%d" % (t1, t0))
        p("v_cvt_pk_bf16_f32 v%d, v%d, v%d" % (vV0, vV0, vV0 + 1))
        p("v_cvt_pk_bf16_f32 v%d, v%d, v%d" % (vV0 + 1, vV0 + 2, vV0 + 3))
        p("v_permlane16_swap_b32 v%d, v%d" % (t0, t1))
        p("v_max_f32 v%d, v%d, v%d" % (t0, t0, t1))
        p("v_mov_b32 v%d, v%d" % (t1, t0))
        p("v_cvt_pk_bf16_f32 v%d, v%d, v%d" % (vV0 + 2, vV1, vV1 + 1))
        p("v_cvt_pk_bf16_f32 v%d, v%d, v%d" % (vV0 + 3, vV1 + 2, vV1 + 3))
        p("v_permlane32_swap_b32 v%d, v%d" % (t0, t1))
        p("v_max_f32 v%d, v%d, v%d" % (t0, t0, t1))
        self.stamp("MAX")
        p("v_mul_f32 v%d, s%d, v%d" % (t2, sC, t0))
        for base in (X0, X1, Mm):
            for i in (0, 2):
                p("v_pk_fma_f32 %s, %s, s[%d:%d], %s op_sel_hi:[1,1,0] neg_lo:[0,0,1] neg_hi:[0,0,1]" % (vr(base + i, 2), vr(base + i, 2), sC, sC + 1, vr(t2, 2)))
        PX, PM = vQ0, vQ0 + 4
        for i in range(4): p("v_exp_f32 v%d, v%d" % (X0 + i, X0 + i))
        if KPOS == 0: p("buffer_load_dwordx4 v%d, s[%d:%d], s%d offen offset:1024 lds" % (vL16, sWS, sWS + 3, sKFN)); vm.issue("kx")
        for i in range(4): p("v_exp_f32 v%d, v%d" % (X1 + i, X1 + i))
        p("v_cvt_pk_bf16_f32 v%d, v%d, v%d" % (PX, X0, X0 + 1))
        p("v_cvt_pk_bf16_f32 v%d, v%d, v%d" % (PX + 1, X0 + 2, X0 + 3))
        for i in range(4): p("v_exp_f32 v%d, v%d" % (Mm + i, Mm + i))
        p("v_cvt_pk_bf16_f32 v%d, v%d, v%d" % (PX + 2, X1, X1 + 1))
        p("v_cvt_pk_bf16_f32 v%d, v%d, v%d" % (PX + 3, X1 + 2, X1 + 3))
        O0, O1, SUM = vK0, vK1, vX0
        p("v_cndmask_b32 v%d, 0, v%d, s[%d:%d]" % (onesm, ones, sLO32, sLO32 + 1))
        p("v_cndmask_b32 v%d, 0, v%d, s[%d:%d]" % (onesm + 1, ones, sLO32, sLO32 + 1))
        self.stamp("P")
        vm.wait("vx")
        self.stamp("VXW")
        GA = vSB + 16
        p("v_mfma_f32_16x16x32_bf16 %s, %s, %s, 0" % (vr(SUM, 4), vr(ones, 4), vr(PX, 4)))
        p("v_cvt_pk_bf16_f32 v%d, v%d, v%d" % (PM, Mm, Mm + 1))
        p("v_mfma_f32_16x16x32_bf16 %s, %s, %s, 0" % (vr(O0, 4), vr(vVX, 4), vr(PX, 4)))
        p("v_cvt_pk_bf16_f32 v%d, v%d, v%d" % (PM + 1, Mm + 2, Mm + 3))
        p("v_mfma_f32_16x16x32_bf16 %s, %s, %s, 0" % (vr(O1, 4), vr(vVX + 4, 4), vr(PX, 4)))
        p("v_mfma_f32_16x16x16_bf16 %s, %s, %s, %s" % (vr(SUM, 4), vr(onesm, 2), vr(PM, 2), vr(SUM, 4)))
        p("v_mov_b64 %s, 0" % vr(GA, 2))
        p("v_mfma_f32_16x16x16_bf16 %s, %s, %s, %s" % (vr(O0, 4), vr(vV0, 2), vr(PM, 2), vr(O0, 4)))
        p("v_mov_b64 %s, 0" % vr(GA + 2, 2))
        p("v_mfma_f32_16x16x16_bf16 %s, %s, %s, %s" % (vr(O1, 4), vr(vV0 + 2, 2), vr(PM, 2), vr(O1, 4)))
        for i in range(2, 6): p("v_mov_b64 %s, 0" % vr(GA + 2 * i, 2))
        self.stamp("PV")
        p("v_rcp_f32 v%d, v%d" % (t2, SUM))
        p.nop(3)
        for i in range(4): p("v_cndmask_b32 v%d, v%d, v%d, s[%d:%d]" % (O0 + i, O1 + i, O0 + i, sM8, sM8 + 1))
        for i in (0, 2): p("v_pk_mul_f32 %s, %s, %s op_sel_hi:[1,0]" % (vr(O0 + i, 2), vr(O0 + i, 2), vr(t2, 2)))
        p("v_cvt_pk_bf16_f32 v%d, v%d, v%d" % (O1, O0, O0 + 1))
        p("v_cvt_pk_bf16_f32 v%d, v%d, v%d" % (O1 + 1, O0 + 2, O0 + 3))
        p("ds_write_b64 v%d, %s" % (vOW, vr(O1, 2))); lg.issue("ow")
        if KPOS == 1:
            p("s_mov_b32 m0, s%d" % sM0K)
            add_const(p, sKFN, sKFN, KV_S)
            p("buffer_load_dwordx4 v%d, s[%d:%d], s%d offen lds" % (vL16, sWS, sWS + 3, sKFN)); vm.issue("kx")
            p("buffer_load_dwordx4 v%d, s[%d:%d], s%d offen offset:1024 lds" % (vL16, sWS, sWS + 3, sKFN)); vm.issue("kx")
        self.stamp("OW")
        vOS, vDAT, tt = vX0 + 1, vX0, vA + 17
        Bsel = vVX
        p("v_and_b32 v%d, 0x70, v%d" % (vOS, vL16))
        p("v_bfe_u32 v%d, v%d, 8, 1" % (tt, vL16)); p("v_lshl_add_u32 v%d, v%d, 3, v%d" % (vOS, tt, vOS))
        p("v_bfe_u32 v%d, v%d, 9, 1" % (tt, vL16)); p("v_lshl_add_u32 v%d, v%d, 2, v%d" % (vOS, tt, vOS))
        p("v_mov_b32 v%d, 0x%x" % (tt, OOB))
        lg.wait_all()
        self.stamp("preB2")
        p("s_barrier")
        self.stamp("B2")
        oD = vA
        def od_read(c):
            p("ds_read_b128 %s, v%d offset:%d" % (vr(oD + 4 * c, 4), vOR, c * 64)); lg.issue(("od", c))
        for c in range(4): od_read(c)
        p("v_cndmask_b32 v%d, v%d, v%d, s[%d:%d]" % (vOS, tt, vOS, sM8, sM8 + 1))
        p("v_and_b32 v%d, 16, v%d" % (tt, vL16)); p("v_lshlrev_b32 v%d, v%d, s%d" % (tt, tt, s3F80))
        for r_ in range(4): p("v_cndmask_b32 v%d, 0, v%d, s[%d:%d]" % (Bsel + r_, tt, sSEL + 2 * r_, sSEL + 2 * r_ + 1))
        T4 = GA + 8
        def pack(acc):
            return ["v_cvt_pk_bf16_f32 v%d, v%d, v%d" % (acc, acc, acc + 1), "v_cvt_pk_bf16_f32 v%d, v%d, v%d" % (acc + 1, acc + 2, acc + 3),
                    "v_and_or_b32 v%d, v%d, -2, s%d" % (acc, acc, sTAG)]
        def pstore(acc, soff):
            p("buffer_store_dwordx2 %s, v%d, s[%d:%d], s%d offen %s" % (vr(acc, 2), vPS, sWS, sWS + 3, soff, self.loc)); vm.issue("p1")
        for c in range(4):
            lg.wait(("od", c)); smf(p, GA, oD + 4 * c, unit_wo_pair(0, c))
        self.stamp("T4")
        smf(p, GA + 4, oD, unit_wo_pair(1, 0))
        smf(p, GA + 4, oD + 4, unit_wo_pair(1, 1))
        pk = pack(GA); p(pk[0])
        smf(p, GA + 4, oD + 8, unit_wo_pair(1, 2)); p(pk[1])
        smf(p, GA + 4, oD + 12, unit_wo_pair(1, 3)); p(pk[2])
        def mf4(c): p("v_mfma_f32_16x16x32_bf16 %s, %s, %s, %s" % (vr(T4, 4), vr(oD + 4 * c, 4), unit_wo4(c), "0" if c == 0 else vr(T4, 4)))
        mf4(0); pstore(GA, sP1W)
        mf4(1)
        pk = pack(GA + 4)
        mf4(2); p(pk[0]); p(pk[1])
        mf4(3); p(pk[2])
        self.stamp("G2")
        pstore(GA + 4, sP1W1)
        add_const(p, sMLC, sMLC, ML_S)
        salu()
        p.nop(T4NOP)
        pk = pack(T4)
        for ins in pk: p(ins)
        p("s_mov_b64 exec, s[%d:%d]" % (sLO32, sLO32 + 1))
        pstore(T4, sP1W2)
        p("s_mov_b64 exec, -1")
        self.stamp("P1")
        lidle = p.uid("IDLE"); lown = p.uid("OWN")
        p("s_cmp_lg_u32 s%d, 0" % sISOWN); p("s_cbranch_scc1 %s" % lown)
        p("s_cmp_lt_u32 s%d, 2" % sW); p("s_cbranch_scc1 %s" % lidle)
        p("s_branch REC_POLL" + self.sfx)
        def leave():
            p("s_cmp_lt_u32 s%d, %d" % (sSTEP, NSEG - 1))
            p("s_cbranch_scc1 REC_LOOP" + self.sfx)
            p("s_branch REC_END")
        p.label(lown)
        D = vVX + 4
        tg = [vX0 + 2, vX0 + 3, vA + 18, vA + 19]
        sets = [vA, vSB + 16]
        ldone = p.uid("ODONE"); lpoll = p.uid("OPOLL")
        def owner_loads(k):
            for i in range(4):
                p("buffer_load_dwordx4 %s, v%d, s[%d:%d], s%d offen offset:%d sc1" % (vr(sets[k] + 4 * i, 4), vL16, sWS, sWS + 3, sP1R, 1024 * i))
        lg.clear()
        self.stamp("OL")
        p.nop(DELAY1)
        if TIMED: owner_loads(0)
        else:
            if not B2BF: owner_loads(0)
            p("s_barrier")
            if B2BF: p.nop(DELAY1B); owner_loads(0)
        prefetch(0, 2)
        clears(0, OSTAG)
        if OWN2: owner_loads(1)
        clears(OSTAG, 12)
        def omf(k, i): p("v_mfma_f32_16x16x32_bf16 %s, %s, %s, %s" % (vr(D, 4), vr(sets[k] + 4 * i, 4), vr(Bsel, 4), "0" if i == 0 else vr(D, 4)))
        def otag(k, i): p("v_bitop3_b32 v%d, v%d, v%d, s%d bitop3:0x7e" % (tg[i], sets[k] + 4 * i, sets[k] + 4 * i + 2, sTAG))
        p.label(lpoll)
        nset = 2 if OWN2 else 1
        for k in range(nset):
            for i in range(4):
                p("s_waitcnt vmcnt(%d)" % ((4 if OWN2 else 0) + 3 - i)); omf(k, i); otag(k, i)
            p("v_or3_b32 v%d, v%d, v%d, v%d" % (tg[0], tg[0], tg[1], tg[2]))
            p("v_bitop3_b32 v%d, v%d, v%d, 1 bitop3:0xa8" % (tg[0], tg[0], tg[3]))
            p("v_cmp_ne_u32 vcc, 0, v%d" % tg[0])
            if k == nset - 1:
                p("s_add_u32 s%d, s%d, 1" % (sSPIN, sSPIN))
                p("s_cmp_gt_u32 s%d, %d" % (sSPIN, SPIN_MAX)); p("s_cbranch_scc1 %s" % ldone)
                p.nop(1)
            else: p.nop(4)
            p("s_cbranch_vccz %s" % ldone) if not NOCHECK else p("s_branch %s" % ldone)
            if COUNT: p("s_add_u32 s%d, s%d, 1" % (sCNT, sCNT))
            owner_loads(k)
        p("s_branch %s" % lpoll)
        p.label(ldone)
        self.stamp("OLret")
        p("v_permlane32_swap_b32 v%d, v%d" % (D, D + 2))
        p("v_permlane32_swap_b32 v%d, v%d" % (D + 1, D + 3))
        p("v_add_f32 v%d, v%d, v%d" % (D, D, D + 2))
        p("v_add_f32 v%d, v%d, v%d" % (D + 1, D + 1, D + 3))
        p("v_cvt_pk_bf16_f32 v%d, v%d, v%d" % (vDAT, D, D + 1))
        st_l = "buffer_store_dword v%d, v%d, s[%d:%d], s%d offen %s" % (vDAT, vOS, sWS, sWS + 3, sMLST, self.loc)
        st_r = "buffer_store_dword v%d, v%d, s[%d:%d], s%d offen sc1" % (vDAT, vOS, sWS, sWS + 3, sMRST)
        for ins in ([st_l] if MRLATE else [st_r, st_l] if MRFIRST else [st_l, st_r]): p(ins)
        self.stamp("MLst")
        if TIMED:
            p("s_barrier")
            if MRLATE == 3:
                p.nop(MRD); p(st_r)
                lf = p.uid("EFLG")
                p("s_cmp_lt_u32 s%d, %d" % (sSTEP, NSEG - EARLYF)); p("s_cbranch_scc1 %s" % lf)
                p("buffer_store_dword v%d, off, s[%d:%d], s%d sc1" % (vIDX, sWS, sWS + 3, sMFL))
                p.label(lf)
        if "ACK1" in STAMPS: p("s_waitcnt vmcnt(1)"); self.stamp("ACK1"); p("s_waitcnt vmcnt(0)"); self.stamp("ACK2")
        p("s_xor_b32 s%d, s%d, 1" % (sTAG, sTAG))
        p("s_waitcnt vmcnt(%d) lgkmcnt(0)" % (1 if MRLATE in (1, 2) else 2))
        leave()
        p.label(lidle)
        lg.clear()
        p("s_barrier")
        clears(0, 12); prefetch(0, 2)
        p("s_xor_b32 s%d, s%d, 1" % (sTAG, sTAG))
        p("s_waitcnt vmcnt(0)")
        leave()
        p.label("REC_TAIL" + self.sfx)
        self.emit_retries()

    def kx_reads(self, b):
        for q in range(2):
            f = b * 2 + q
            self.p("ds_read_b128 %s, v%d offset:%d" % (vr(vSB + 4 * f, 4), vL16, L_KX + self.kx_slot(f) * 1024)); self.lg.issue(("KX", f))

    def emit_slow(self):
        p = self.p
        p.label("REC_SLOW")
        if COUNT: p("s_add_u32 s%d, s%d, 1024" % (sCNT, sCNT))
        p("s_waitcnt vmcnt(0) lgkmcnt(0)")
        for i in range(12): p("v_mov_b64 %s, 0" % vr(vQ0 + 2 * i, 2))
        for ph, soff in ((0, sMLC), (1, sMRC)):
            l = p.uid("SLOWP"); ld = p.uid("SLOWD")
            p.label(l)
            for j in range(5): self.img_ins(j, soff, "sc1")
            p("s_add_u32 s%d, s%d, 1" % (sSPIN, sSPIN))
            p("s_waitcnt vmcnt(0)")
            p("v_max3_u32 v%d, v%d, v%d, v%d" % (vX0, vA + 3, vA + 7, vA + 11))
            p("v_max3_u32 v%d, v%d, v%d, v%d" % (vX0, vX0, vA + 15, vA + 19))
            p("v_cmp_eq_u32 vcc, -1, v%d" % vX0)
            p("s_cbranch_vccz %s" % ld)
            p("s_cmp_gt_u32 s%d, %d" % (sSPIN, SPIN_MAX)); p("s_cbranch_scc0 %s" % l)
            p.label(ld)
            for j in range(5):
                jj = 5 * ph + j
                smf(p, vQ0, vA + 4 * j, unit_q(jj, 0)); smf(p, vQ1, vA + 4 * j, unit_q(jj, 1))
                if jj < 9:
                    for u in range(2):
                        i = 2 * jj + u
                        p("ds_read_b128 %s, v%d offset:%d" % (vr(vSB + 8 * u, 4), vLW, i * 2048))
                        p("ds_read_b128 %s, v%d offset:%d" % (vr(vSB + 8 * u + 4, 4), vLW, i * 2048 + 1024))
                    p("s_waitcnt lgkmcnt(0)")
                    smf(p, vK0, vA + 4 * j, vr(vSB, 8)); smf(p, vK1, vA + 4 * j, vr(vSB + 8, 8))
                else:
                    smf(p, vK0, vA + 16, unit_k9(0)); smf(p, vK1, vA + 16, unit_k9(1))
                if ph == 0: smf(p, vV0, vA + 4 * j, unit_v(j, 0)); smf(p, vV1, vA + 4 * j, unit_v(j, 1))
        for b in range(4):
            for q in range(2):
                f = b * 2 + q
                p("ds_read_b128 %s, v%d offset:%d" % (vr(vSB + 4 * f, 4), vL16, L_KX + self.kx_slot(f) * 1024))
        p("s_waitcnt lgkmcnt(0)")
        p("s_mov_b64 vcc, 0")
        p.nop(8)
        p("s_branch REC_FOLD")

    def cmp_chunk(self, j):
        if not NOCHECK: self.p("v_cmp_eq_u32 vcc, -1, v%d" % (vA + 4 * j + 3))
    def branch_chunk(self, j, soff):
        if NOCHECK: return
        p = self.p; lr = p.uid("RETRY"); lb = p.uid("BACK")
        p("s_cbranch_vccnz %s" % lr); p.label(lb)
        tag = "AL" if soff == sMLC else "AR"
        later = [t[1] for t in self.vm.q if isinstance(t, tuple) and t[0] == tag and t[1] > j]
        self.retries.append((lr, lb, j, soff, later))

    def pub_v(self):
        p = self.p; lp = p.uid("NOPUBV")
        p("s_cmp_eq_u32 s%d, 0" % sISPUB); p("s_cbranch_scc1 %s" % lp)
        p("buffer_store_dwordx4 %s, v%d, s[%d:%d], s%d offen sc1" % (vr(vV0, 4), vL16, sWS, sWS + 3, sVM))
        p.label(lp); p.nop(2)
    def pub_k(self):
        p = self.p; lp = p.uid("NOPUBK"); a = vA + 16; d = vA
        p("s_cmp_eq_u32 s%d, 0" % sISPUB); p("s_cbranch_scc1 %s" % lp)
        p("v_lshrrev_b32 v%d, 1, v%d" % (a, vL16))
        for r in range(2):
            p("ds_read_b64 %s, v%d offset:%d" % (vr(d + 4 * r, 2), a, L_KT + r * 512))
            p("ds_read_b64 %s, v%d offset:%d" % (vr(d + 4 * r + 2, 2), a, L_KT + G2OFF + r * 512))
        p("s_waitcnt lgkmcnt(0)")
        for r in range(2):
            p("buffer_store_dwordx4 %s, v%d, s[%d:%d], s%d offen offset:%d sc1" % (vr(d + 4 * r, 4), vL16, sWS, sWS + 3, sKM, r * 1024))
        p.label(lp); p.nop(2)
    def flag_store(self):
        p = self.p
        p("s_lshl_b32 s%d, s%d, 7" % (sT0, sSTEP)); p("s_add_u32 s%d, s%d, s%d" % (sT0, sT0, sFKM))
        p("v_mov_b32 v%d, 0" % (vA + 17)); p("v_mov_b32 v%d, 1" % (vA + 16))
        p("s_mov_b64 exec, 1")
        p("buffer_store_dword v%d, v%d, s[%d:%d], s%d offen sc1" % (vA + 16, vA + 17, sWS, sWS + 3, sT0))
        p("s_mov_b64 exec, -1")

    def flag_spin(self, soff):
        p = self.p; l = p.uid("FSPIN"); ld = p.uid("FDONE")
        p("v_mov_b32 v%d, 0" % (vA + 17))
        p.label(l)
        p("buffer_load_dwordx2 %s, v%d, s[%d:%d], s%d offen sc1" % (vr(vA, 2), vA + 17, sWS, sWS + 3, soff))
        p("s_add_u32 s%d, s%d, 1" % (sSPIN, sSPIN))
        p("s_waitcnt vmcnt(0)")
        p("v_and_b32 v%d, v%d, v%d" % (vA, vA, vA + 1))
        p("v_cmp_eq_u32 vcc, 0, v%d" % vA)
        p("s_cbranch_vccz %s" % ld)
        p("s_cmp_gt_u32 s%d, %d" % (sSPIN, SPIN_MAX))
        p("s_cbranch_scc0 %s" % l)
        p.label(ld)

    def kx_slot(self, f):
        order = self.kx_order()
        return order[f]
    def kx_order(self):
        rel = [2, 3, 0, 1]
        chunks = [0, 4, 1, 5, 2, 6, 3, 7]
        o = [None] * 8
        for n, b in enumerate(rel):
            o[2 * b] = chunks[2 * n]; o[2 * b + 1] = chunks[2 * n + 1]
        return o
    def kx_reg(self, tile, kk):
        return self.kx_order().index(tile * 4 + kk)

def emit_rec(p, dbg=False, check_mode=None, slow_sgpr=None, tl=None, read_cand=None):
    st = Step(p, dbg)
    st.stamp("E0")
    setup_consts(p)
    st.stamp("E1")
    load_weights(p, st)
    st.stamp("E3")
    if dbg and tl: tl(p, 11)
    if check_mode: check_mode(p)
    if dbg and tl: tl(p, 12)
    setup_vor(p)
    p("s_mov_b32 s%d, 0" % sSPIN); p("s_mov_b32 s%d, 0" % sCNT)
    if read_cand: read_cand(p, sT2, sT3); p("s_mov_b32 s%d, s%d" % (sT0, sT2)); p("s_mov_b32 s%d, s%d" % (sT1, sT3))
    else:
        p("s_mov_b32 s%d, 0x%x" % (sT1, CANDW))
        p("buffer_load_dwordx2 v[8:9], off, s[%d:%d], s%d sc1" % (sWS, sWS + 3, sT1)); p("s_waitcnt vmcnt(0)")
        p("v_readfirstlane_b32 s%d, v8" % sT0); p("v_readfirstlane_b32 s%d, v9" % sT1)
        if FORCECAND: p("s_mov_b32 s%d, %d" % (sT0, (FORCECAND - 1) & 3)); p("s_mov_b32 s%d, %d" % (sT1, (FORCECAND - 1) >> 2))
        p("s_mov_b32 s60, s%d" % sT0); p("s_mov_b32 s61, s%d" % sT1)
    p("s_cmp_eq_u32 s%d, 0" % sX); p("s_cselect_b32 s%d, s%d, s%d" % (sT2, sT1, sT0)); p("s_cselect_b32 s%d, s%d, s%d" % (sT0, sT0, sT1))
    for r_ in (sT0, sT2): p("s_and_b32 s%d, s%d, 3" % (r_, r_)); p("s_lshl_b32 s%d, s%d, 13" % (r_, r_))
    finish_consts(p)
    st.stamp("E4")
    st.flag_spin(sFLG)
    if dbg and tl: tl(p, 13)
    p("s_barrier")
    p("s_mov_b32 m0, s%d" % sM0K); p.nop(1)
    p("buffer_load_dwordx4 v%d, s[%d:%d], s%d offen lds" % (vL16, sWS, sWS + 3, sKFN))
    p("buffer_load_dwordx4 v%d, s[%d:%d], s%d offen offset:1024 lds" % (vL16, sWS, sWS + 3, sKFN))
    p("s_mov_b32 m0, %d" % L_JUNK); p("v_lshlrev_b32 v12, 2, v%d" % vL16)
    add_const(p, sT1, sWARM, (-KV_S) & 0xFFFFFFFF)
    p("buffer_load_dword v12, s[%d:%d], s%d offen lds" % (sWS, sWS + 3, sT1))
    p("s_mov_b32 s%d, 0" % sSTEP); p("s_mov_b32 s%d, 0" % sTAG)
    p("s_add_u32 s%d, s%d, s%d" % (sT2, sMLC, sPCH))
    p("buffer_load_dwordx4 %s, v%d, s[%d:%d], s%d offen sc1" % (vr(vA, 4), vL16, sWS, sWS + 3, sT2))
    p("buffer_load_dwordx4 %s, v%d, s[%d:%d], s%d offen offset:2048 sc1" % (vr(vA + 4, 4), vL16, sWS, sWS + 3, sMLC))
    p("v_add_u32 v%d, s%d, v%d" % (vA + 17, sPCH, vL16))
    p("s_waitcnt vmcnt(0)")
    p("ds_write_b128 v%d, %s offset:%d" % (vA + 17, vr(vA, 4), L_O))
    p("ds_write_b128 v%d, %s offset:%d" % (vL16, vr(vA + 4, 4), L_IM2))
    p("s_waitcnt lgkmcnt(0)")
    for i in range(12): p("v_mov_b64 %s, 0" % vr(vQ0 + 2 * i, 2))
    p("v_mov_b32 v%d, 0x%x" % (vX0 + 1, OOB))
    for i in range(2): st.lds_unit(i)
    st.stamp("E5")
    if dbg and tl: tl(p, 2)
    if dbg: p("s_memtime s[100:101]"); p("s_memrealtime s[98:99]"); p("s_waitcnt lgkmcnt(0)")
    if slow_sgpr is not None:
        p("s_cmp_eq_u32 s%d, 0" % slow_sgpr); p("s_cbranch_scc1 REC_LOOP")
        p("s_branch REC_LOOP_S")
        st2 = Step(p, False, slow=True); st2.body()
    else: p("s_branch REC_LOOP")
    st.body()
    p.label("REC_END")
    if MRLATE in (1, 2): p("buffer_store_dword v%d, v%d, s[%d:%d], s%d offen sc1" % (vX0, vX0 + 1, sWS, sWS + 3, sMRST))
    if dbg:
        p("s_memtime s[8:9]"); p("s_memrealtime s[96:97]"); p("s_waitcnt lgkmcnt(0)"); p("s_sub_u32 s98, s96, s98")
    return st
```

```python
import sys
from asm import *
from layout import *
import rec, k0, gemm, mkv, att, outp, moe, init

HEADER = open("/code/%s.s.ref" % NAME).read()
HEADER = HEADER[:HEADER.index("; Override launch geometry")]

def kernel_begin(p, label):
    p(".text"); p(".globl %s" % label); p(".p2align 8"); p(".type %s,@function" % label); p.label(label)
def descriptor(label, vgpr, sgpr, accum):
    return """.section .rodata,"a"
.p2align 6
.amdhsa_kernel %s
  .amdhsa_next_free_vgpr %d
  .amdhsa_next_free_sgpr %d
  .amdhsa_accum_offset %d
  .amdhsa_group_segment_fixed_size 0
  .amdhsa_kernarg_size 120
  .amdhsa_user_sgpr_count 2
  .amdhsa_user_sgpr_kernarg_segment_ptr 1
  .amdhsa_system_sgpr_workgroup_id_x 1
.end_amdhsa_kernel
""" % (label, vgpr, sgpr, accum)

def srd(p, dst, karg_off, size, tmp=None):
    p("s_load_dwordx2 s[%d:%d], s[0:1], %d" % (dst, dst + 1, karg_off))
    p("s_mov_b32 s%d, 0x%x" % (dst + 2, size)); p("s_mov_b32 s%d, 0x00020000" % (dst + 3))

import os
XPAIR = int(os.environ.get("XPAIR", "2"))
def xcc_to_x(p, dst, src, lelse):
    l = p.uid("XOK")
    p("s_cmp_eq_u32 s%d, 0" % src); p("s_cbranch_scc1 %s" % l)
    p("s_cmp_eq_u32 s%d, %d" % (src, XPAIR)); p("s_cbranch_scc0 %s" % lelse)
    p("s_mov_b32 s%d, 1" % dst)
    p.label(l)

def rec_standalone(dbg):
    p = Prog(); label = "rec_kernel"
    kernel_begin(p, label)
    p("s_cmp_ge_u32 s2, 256"); p("s_cbranch_scc1 REC_EXIT")
    if dbg and not rec.STAMPS[0]: p("s_memrealtime s[94:95]")
    srd(p, rec.sWS, 112, WS_SIZE)
    WB = 640 * 4096 * 2
    srd(p, rec.sWQ, 16, WB); srd(p, rec.sWK, 24, WB); srd(p, rec.sWV, 32, WB); srd(p, rec.sWO, 40, WB)
    p("s_getreg_b32 s%d, hwreg(HW_REG_XCC_ID)" % rec.sX); p("s_and_b32 s%d, s%d, 15" % (rec.sX, rec.sX))
    p("v_lshrrev_b32 v1, 6, v0"); p.nop(1); p("v_readfirstlane_b32 s%d, v1" % rec.sW)
    p("s_waitcnt lgkmcnt(0)")
    xcc_to_x(p, rec.sX, rec.sX, "REC_EXIT")
    p("s_cmp_lg_u32 s%d, 0" % rec.sW); p("s_cbranch_scc1 TICK_WAIT")
    p("s_lshl_b32 s%d, s%d, 7" % (rec.sT0, rec.sX)); rec.add_const(p, rec.sT0, rec.sT0, TICKET)
    p("v_mov_b32 v1, 0"); p("v_mov_b32 v2, 1")
    p("s_mov_b64 exec, 1")
    p("buffer_atomic_add v2, v1, s[%d:%d], s%d offen sc0" % (rec.sWS, rec.sWS + 3, rec.sT0))
    p("s_waitcnt vmcnt(0)")
    p("ds_write_b32 v1, v2"); p("s_waitcnt lgkmcnt(0)")
    p("s_mov_b64 exec, -1")
    p.label("TICK_WAIT")
    p("s_barrier")
    p("v_mov_b32 v1, 0"); p("ds_read_b32 v2, v1"); p("s_waitcnt lgkmcnt(0)")
    p("v_readfirstlane_b32 s%d, v2" % rec.sH)
    p("s_barrier")
    p("s_cmp_ge_u32 s%d, 32" % rec.sH); p("s_cbranch_scc1 REC_EXIT")
    st = rec.emit_rec(p, dbg)
    if dbg:
        p("s_lshl_b32 s%d, s%d, 5" % (rec.sT0, rec.sX)); p("s_add_u32 s%d, s%d, s%d" % (rec.sT0, rec.sT0, rec.sH))
        p("s_lshl_b32 s%d, s%d, 2" % (rec.sT0, rec.sT0)); p("s_add_u32 s%d, s%d, s%d" % (rec.sT0, rec.sT0, rec.sW))
        p("s_lshl_b32 s%d, s%d, 7" % (rec.sT0, rec.sT0)); rec.add_const(p, rec.sT0, rec.sT0, DBG)
        vals = [100, 8, 98 if not rec.STAMPS[0] else rec.sSPIN, rec.sISOWN, rec.sCNT] + [rec.sTS + 2 * i for i in range(len(st.stamps))] + [rec.sCNT2, 60, 61]
        open('stamps.txt', 'w').write(','.join(st.stamps))
        if not rec.STAMPS[0]: p("s_sub_u32 s94, s96, s94"); vals.append(94)
        p("v_mov_b32 v1, 0"); p("s_mov_b64 exec, 1")
        for i, sreg in enumerate(vals):
            p("v_mov_b32 v2, s%d" % sreg)
            p("buffer_store_dword v2, v1, s[%d:%d], s%d offen offset:%d" % (rec.sWS, rec.sWS + 3, rec.sT0, 4 * i))
        p("s_waitcnt vmcnt(0)")
    p.label("REC_EXIT"); p("s_endpgm")
    return p, label

def k0_kernel(devflags, dbg=0):
    p = Prog(); label = "init_kernel"
    kernel_begin(p, label)
    p("s_cmp_ge_u32 s2, 256"); p("s_cbranch_scc1 K0_EXIT")
    if dbg: p("s_memrealtime s[36:37]")
    k0.emit_k0(p, devflags)
    if dbg:
        p("s_mov_b32 s38, s36"); p("s_lshl_b32 s39, s2, 2"); p("s_add_u32 s39, s39, 0x%x" % (DBG + 0x8000))
        p("v_mov_b32 v14, s38"); p("v_mov_b32 v15, 0"); p("s_mov_b64 exec, 1")
        p("buffer_store_dword v14, v15, s[4:7], s39 offen"); p("s_mov_b64 exec, -1")
    p.label("K0_EXIT"); p("s_endpgm")
    return p, label

def gemm_kernel():
    p = Prog(); label = "gemm_kernel"
    kernel_begin(p, label)
    p("s_cmp_ge_u32 s2, 192"); p("s_cbranch_scc1 G_EXIT")
    if gemm.DBGT: p("s_memrealtime s[68:69]")
    srd(p, gemm.sWS, 112, WS_SIZE)
    p("s_load_dwordx4 s[48:51], s[0:1], 16"); p("s_load_dwordx2 s[52:53], s[0:1], 32")
    p("v_lshrrev_b32 v1, 6, v0"); p("v_and_b32 v0, 63, v0"); p.nop(1); p("v_readfirstlane_b32 s%d, v1" % gemm.sW)
    p("s_and_b32 s%d, s2, 1" % gemm.sHALF); p("s_lshr_b32 s3, s2, 1"); p("s_and_b32 s%d, s3, 31" % gemm.sH); p("s_lshr_b32 s3, s3, 5")
    p("s_waitcnt lgkmcnt(0)")
    p("s_mov_b32 s46, %d" % (640 * 4096 * 2)); p("s_mov_b32 s47, 0x00020000")
    roles = [(0, 50, "T", "GK"), (1, 52, "N", "GV"), (2, 48, "T", "GQ")]
    for mat, sp, kind, nm in roles:
        p("s_cmp_eq_u32 s3, %d" % mat); p("s_cbranch_scc1 %s_ENTRY" % nm)
    p("s_branch G_EXIT")
    for mat, sp, kind, nm in roles:
        p.label(nm + "_ENTRY")
        p("s_mov_b32 s44, s%d" % sp); p("s_mov_b32 s45, s%d" % (sp + 1))
        gemm.setup_role(p, mat)
        p("s_branch %s" % ("G_T" if kind == "T" else "G_N"))
    for kind, nm in (("T", "G_T"), ("N", "G_N")):
        p.label(nm)
        gemm.load_weights(p)
        gemm.emit_gemm(p, kind, nm, lambda q: None)
        p("s_branch G_EXIT")
    p.label("G_EXIT"); p("s_endpgm")
    return p, label

def wave_id(p, sreg):
    p("v_lshrrev_b32 v1, 6, v0"); p("v_and_b32 v0, 63, v0"); p.nop(1); p("v_readfirstlane_b32 s%d, v1" % sreg)

def mkv_kernel():
    p = Prog(); label = "mkv_kernel"
    kernel_begin(p, label)
    p("s_cmp_ge_u32 s2, 64"); p("s_cbranch_scc1 MK_EXIT")
    srd(p, gemm.sWS, 112, WS_SIZE)
    p("s_load_dwordx4 s[48:51], s[0:1], 24")
    wave_id(p, gemm.sW)
    p("s_and_b32 s%d, s2, 31" % gemm.sH); p("s_lshr_b32 s3, s2, 5")
    p("s_waitcnt lgkmcnt(0)")
    p("s_mov_b32 s46, %d" % (640 * 4096 * 2)); p("s_mov_b32 s47, 0x00020000")
    p("s_cmp_eq_u32 s3, 0"); p("s_cselect_b32 s44, s48, s50"); p("s_cselect_b32 s45, s49, s51")
    gemm.load_weights(p)
    p("s_cmp_eq_u32 s3, 0"); p("s_cbranch_scc0 MK_V")
    mkv.emit_mkv(p, "T", "MKK"); p("s_branch MK_EXIT")
    p.label("MK_V"); mkv.emit_mkv(p, "N", "MKV")
    p.label("MK_EXIT"); p("s_endpgm")
    return p, label

def att_kernel():
    p = Prog(); label = "att_kernel"
    kernel_begin(p, label)
    p("s_cmp_ge_u32 s2, 64"); p("s_cbranch_scc1 AT_EXIT")
    srd(p, gemm.sWS, 112, WS_SIZE)
    wave_id(p, gemm.sW)
    p("s_and_b32 s%d, s2, 1" % gemm.sHALF); p("s_lshr_b32 s%d, s2, 1" % gemm.sH)
    p("s_waitcnt lgkmcnt(0)")
    att.emit_att(p, "AT")
    p.label("AT_EXIT"); p("s_endpgm")
    return p, label

def moe_kernels():
    out = []
    for nm, grid in (("sel", 1), ("f1", 27), ("f2", 40)):
        p = Prog(); label = nm + "_kernel"
        kernel_begin(p, label)
        p("s_cmp_ge_u32 s2, %d" % grid); p("s_cbranch_scc1 %s_EXIT" % nm)
        srd(p, gemm.sWS, 112, WS_SIZE)
        srd(p, moe.sWG, 72, 640 * 1728 * 2); srd(p, moe.sWU, 80, 640 * 1728 * 2); srd(p, moe.sWD, 88, 640 * 1728 * 2)
        wave_id(p, gemm.sW)
        p("s_mov_b32 s%d, 0" % mkv.sSPIN)
        p("s_waitcnt lgkmcnt(0)")
        if nm == "f1":
            p("s_lshl_b32 s%d, s2, 2" % moe.sTASK); p("s_add_u32 s%d, s%d, s%d" % (moe.sTASK, moe.sTASK, gemm.sW))
            moe.emit_f1(p)
        else:
            p("s_cmp_lg_u32 s%d, 0" % gemm.sW); p("s_cbranch_scc1 %s_EXIT" % nm)
            p("s_mov_b32 s%d, s2" % moe.sTASK)
            (moe.emit_select if nm == "sel" else moe.emit_f2)(p)
        p.label(nm + "_EXIT"); p("s_endpgm")
        out.append((p, label, grid))
    return out

def out_kernel():
    p = Prog(); label = "out_kernel"
    kernel_begin(p, label)
    p("s_cmp_ge_u32 s2, 60"); p("s_cbranch_scc1 OU_EXIT")
    srd(p, gemm.sWS, 112, WS_SIZE)
    srd(p, outp.sWO, 40, 4096 * 640 * 2); srd(p, outp.sXI, 0, S * D * 2); srd(p, outp.sOUT, 96, S * D * 2)
    wave_id(p, gemm.sW)
    p("s_mul_hi_u32 s%d, s2, 0x%x" % (outp.sGRP, (2**32 + 19) // 20)); p("s_mul_i32 s3, s%d, 20" % outp.sGRP); p("s_sub_u32 s%d, s2, s3" % outp.sCT)
    p("s_mov_b32 s36, -1"); p("s_mov_b32 s37, 0")
    p("s_waitcnt lgkmcnt(0)")
    outp.load_wo(p)
    p("s_barrier")
    outp.emit_out(p, "OU", lambda q: None, lambda q: moe.wait_count(q, FLG_MOE + 256, 40, "OUW"))
    p.label("OU_EXIT"); p("s_endpgm")
    return p, label

sSLOWF, sXCC, sTICK, sHI = 97, 98, 99, 96

def tl_stamp(p, slot, dbg, tmp=90, have=False):
    if not dbg: return
    l = p.uid("TL")
    if not have: p("s_memrealtime s[%d:%d]" % (tmp, tmp + 1))
    p("s_waitcnt vmcnt(0) lgkmcnt(0)")
    p("s_lshl_b32 s%d, s2, 2" % (tmp + 1)); p("s_add_u32 s%d, s%d, 0x%x" % (tmp + 1, tmp + 1, DBG + 0x8000 + slot * 1024))
    p("v_mov_b32 v14, s%d" % tmp); p("v_mov_b32 v15, 0"); p("s_mov_b64 exec, 1")
    p("buffer_store_dword v14, v15, s[4:7], s%d offen" % (tmp + 1)); p("s_waitcnt vmcnt(0)"); p("s_mov_b64 exec, -1")

def lane_id(p):
    p("v_mbcnt_lo_u32_b32 v0, -1, 0"); p("v_mbcnt_hi_u32_b32 v0, -1, v0")

def fused_kernel(dbg=0, force_slow=False):
    tick_srd, tick_base, tick_stride = init.sDBG, init.D_TICK, init.D_TSTRIDE
    p = Prog(); label = "main_kernel"
    kernel_begin(p, label)
    p("s_cmp_ge_u32 s2, 256"); p("s_cbranch_scc1 M_EXIT")
    if dbg: p("s_memrealtime s[90:91]")
    srd(p, 4, 112, WS_SIZE)
    init.dbg_srd(p)
    wave_id(p, 14)
    p("s_getreg_b32 s%d, hwreg(HW_REG_XCC_ID)" % sXCC); p("s_and_b32 s%d, s%d, 7" % (sXCC, sXCC))
    p("s_mov_b32 s%d, 0" % sSLOWF); p("s_mov_b32 s%d, %d" % (init.sINITC, init.D_C1))
    p("s_waitcnt lgkmcnt(0)")
    tl_stamp(p, 0, dbg, have=True)
    init.emit_measure(p, 14, sXCC)
    p("s_cmp_lg_u32 s14, 0"); p("s_cbranch_scc1 M_TICKW")
    p("s_mul_i32 s64, s%d, %d" % (sXCC, tick_stride)); p("s_add_u32 s64, s64, 0x%x" % tick_base)
    p("v_mov_b32 v1, 0"); p("v_mov_b32 v2, 1"); p("s_mov_b64 exec, 1")
    p("buffer_atomic_add v2, v1, s[%d:%d], s64 offen sc0" % (tick_srd, tick_srd + 3))
    p("s_waitcnt vmcnt(0)")
    p("ds_write_b32 v1, v2"); p("s_waitcnt lgkmcnt(0)"); p("s_mov_b64 exec, -1")
    p.label("M_TICKW")
    p("s_barrier")
    p("v_mov_b32 v1, 0"); p("ds_read_b32 v2, v1"); p("s_waitcnt lgkmcnt(0)")
    p("v_readfirstlane_b32 s%d, v2" % sTICK)
    p("s_barrier")
    tl_stamp(p, 1, dbg)
    def wait_tickets(q):
        l = q.uid("TK"); ld = q.uid("TKD")
        lane_id(q)
        q("v_mul_u32_u24 v8, %d, v0" % tick_stride); q("s_mov_b32 s64, 0x%x" % tick_base); q("s_mov_b32 s65, 0")
        q("s_mov_b64 exec, 0xff")
        q.label(l)
        q("buffer_load_dword v9, v8, s[%d:%d], s64 offen sc1" % (tick_srd, tick_srd + 3)); q("s_add_u32 s65, s65, 1"); q("s_waitcnt vmcnt(0)")
        q("s_mov_b32 s66, 0")
        for i in range(8): q("v_readlane_b32 s67, v9, %d" % i); q("s_add_u32 s66, s66, s67")
        q("s_cmp_ge_u32 s66, 256"); q("s_cbranch_scc1 %s" % ld)
        q("s_cmp_gt_u32 s65, %d" % (1 << 18)); q("s_cbranch_scc0 %s" % l)
        q.label(ld)
        q("v_cmp_ne_u32 vcc, 32, v9")
        q("s_mov_b64 exec, -1")
    def check_mode(q):
        l = q.uid("CM")
        q("s_cmp_lg_u32 s%d, 0" % sSLOWF); q("s_cbranch_scc1 %s" % l)
        wait_tickets(q)
        q("s_cbranch_vccnz M_SLOW")
        q.label(l)
    if force_slow: p("s_branch M_SLOW0")
    p("s_cmp_ge_u32 s%d, 32" % sTICK); p("s_cbranch_scc1 M_SLOW0")
    p("s_mov_b32 s12, s%d" % sXCC)
    xcc_to_x(p, 12, 12, "M_FH")
    p("s_mov_b32 s13, s%d" % sTICK); p("s_branch M_REC")
    p.label("M_FH")
    p("s_sub_u32 s%d, s%d, 1" % (sHI, sXCC)); p("s_cmp_gt_u32 s%d, %d" % (sXCC, XPAIR)); p("s_cselect_b32 s64, 1, 0"); p("s_sub_u32 s%d, s%d, s64" % (sHI, sHI))
    p("s_lshl_b32 s%d, s%d, 5" % (sHI, sHI)); p("s_add_u32 s%d, s%d, s%d" % (sHI, sHI, sTICK))
    p("s_branch M_HELP")
    p.label("M_SLOW0")
    wait_tickets(p)
    p.label("M_SLOW")
    p("s_waitcnt vmcnt(0) lgkmcnt(0)"); p("s_barrier")
    p("s_cmp_lg_u32 s14, 0"); p("s_cbranch_scc1 M_SLOWB")
    init.counter_add(p, str(init.D_C3))
    p.label("M_SLOWB")
    init.wait_counter(p, 256, str(init.D_C3) if False else "s%d" % init.sINITC, "SB") if False else None
    p("s_mov_b32 s%d, %d" % (init.sINITC, init.D_C3))
    init.wait_counter(p, 256, name="SB")
    p("s_mov_b32 s%d, %d" % (init.sINITC, init.D_C2))
    p("s_mov_b32 s%d, 1" % sSLOWF)
    p("s_cmp_lt_u32 s2, 64"); p("s_cbranch_scc0 M_SH")
    p("s_lshr_b32 s12, s2, 5"); p("s_and_b32 s13, s2, 31"); p("s_branch M_REC")
    p.label("M_SH")
    p("s_sub_u32 s%d, s2, 64" % sHI)
    p("s_branch M_HELP")
    p.label("M_REC")
    lane_id(p)
    WB = 640 * 4096 * 2
    srd(p, rec.sWQ, 16, WB); srd(p, rec.sWK, 24, WB); srd(p, rec.sWV, 32, WB); srd(p, rec.sWO, 40, WB)
    p("s_waitcnt lgkmcnt(0)")
    def rec_ready(q):
        check_mode(q)
        init.wait_counter(q, init.NHELP, name="RI")
    st = rec.emit_rec(p, dbg, rec_ready, sSLOWF, lambda q, slot: tl_stamp(q, slot, dbg, 74), init.read_cand)
    if dbg: rec_dbg_dump(p, st)
    tl_stamp(p, 3, dbg)
    p("s_branch M_EXIT")
    p.label("M_HELP")
    lane_id(p)
    init.emit_init(p, sHI, 14)
    tl_stamp(p, 10, dbg)
    lane_id(p)
    p("s_and_b32 s%d, s%d, 1" % (gemm.sHALF, sHI)); p("s_lshr_b32 s3, s%d, 1" % sHI); p("s_and_b32 s%d, s3, 31" % gemm.sH); p("s_lshr_b32 s3, s3, 5")
    p("s_load_dwordx4 s[48:51], s[0:1], 16"); p("s_load_dwordx2 s[52:53], s[0:1], 32")
    p("s_waitcnt lgkmcnt(0)")
    p("s_mov_b32 s46, %d" % WB); p("s_mov_b32 s47, 0x00020000")
    roles = [(0, 50, "G_T"), (1, 52, "G_N"), (2, 48, "G_T")]
    for mat, sp, tgt in roles: p("s_cmp_eq_u32 s3, %d" % mat); p("s_cbranch_scc1 H_E%d" % mat)
    p("s_branch M_EXIT")
    for mat, sp, tgt in roles:
        p.label("H_E%d" % mat)
        p("s_mov_b32 s44, s%d" % sp); p("s_mov_b32 s45, s%d" % (sp + 1))
        gemm.setup_role(p, mat)
        p("s_branch %s" % tgt)
    for kind, nm in (("T", "G_T"), ("N", "G_N")):
        p.label(nm)
        gemm.load_weights(p)
        check_mode(p)
        init.wait_counter(p, init.NHELP, name="GI")
        lane_id(p)
        if kind == "T":
            l_ = p.uid("NOSEL")
            p("s_cmp_lg_u32 s3, 2"); p("s_cbranch_scc1 %s" % l_)
            p("s_or_b32 s64, s%d, s%d" % (gemm.sH, gemm.sHALF)); p("s_or_b32 s64, s64, s14"); p("s_cmp_lg_u32 s64, 0"); p("s_cbranch_scc1 %s" % l_)
            p("s_mov_b32 s%d, 0" % mkv.sSPIN)
            moe.emit_select(p)
            lane_id(p)
            p.label(l_)
        gemm.emit_gemm(p, kind, nm, lambda q: None)
        tl_stamp(p, 4, dbg)
        if kind == "T":
            p("s_cmp_eq_u32 s3, 2"); p("s_cbranch_scc1 H_Q")
        p("s_cmp_eq_u32 s%d, 1" % gemm.sHALF); p("s_cbranch_scc1 H_OUT")
        p("s_lshl_b32 s88, s3, 5"); p("s_add_u32 s88, s88, s%d" % gemm.sH)
        def wo_hook(p):
            lno = p.uid("NOWO")
            p("s_cmp_ge_u32 s88, 60"); p("s_cbranch_scc1 %s" % lno)
            p("s_mov_b32 s89, s%d" % gemm.sH)
            p("s_mul_hi_u32 s65, s88, 0x%x" % ((2**32 + 19) // 20)); p("s_mul_i32 s65, s65, 20"); p("s_sub_u32 s%d, s88, s65" % outp.sCT)
            srd(p, outp.sWO, 40, 4096 * 640 * 2)
            p("s_waitcnt lgkmcnt(0)")
            outp.load_wo(p)
            p("s_mov_b32 s%d, s89" % gemm.sH)
            p.label(lno)
        mkv.emit_mkv(p, kind, "MK" + kind, init.read_cand, wo_hook)
        tl_stamp(p, 5, dbg)
        p("s_cmp_ge_u32 s88, 60"); p("s_cbranch_scc1 M_EXIT")
        p("s_branch H_EXTRA")
    p.label("H_OUT")
    p("s_lshl_b32 s64, s3, 5"); p("s_add_u32 s64, s64, s%d" % gemm.sH)
    p("s_cmp_ge_u32 s64, 60"); p("s_cbranch_scc1 M_EXIT")
    p("s_mul_hi_u32 s%d, s64, 0x%x" % (outp.sGRP, (2**32 + 19) // 20)); p("s_mul_i32 s65, s%d, 20" % outp.sGRP); p("s_sub_u32 s%d, s64, s65" % outp.sCT)
    srd(p, outp.sWO, 40, 4096 * 640 * 2); srd(p, outp.sXI, 0, S * D * 2); srd(p, outp.sOUT, 96, S * D * 2)
    p("s_mov_b32 s36, -1"); p("s_mov_b32 s37, 0")
    p("s_waitcnt lgkmcnt(0)")
    outp.load_wo(p)
    p("s_barrier")
    if dbg >= 2: outp.STAMP[0] = lambda q, slot: tl_stamp(q, slot, dbg)
    outp.emit_out(p, "OU", lambda q: (moe.wait_count(q, FLG_MOE, 1, "OUS"), tl_stamp(q, 8, dbg)), lambda q: moe.wait_count(q, FLG_MOE + 256, 40, "OUW"))
    tl_stamp(p, 7, dbg)
    p("s_branch M_EXIT")
    p.label("H_EXTRA")
    p("s_mul_hi_u32 s%d, s88, 0x%x" % (outp.sGRP, (2**32 + 19) // 20)); p("s_mul_i32 s65, s%d, 20" % outp.sGRP); p("s_sub_u32 s%d, s88, s65" % outp.sCT)
    p("s_add_u32 s%d, s%d, 3" % (outp.sGRP, outp.sGRP))
    srd(p, outp.sXI, 0, S * D * 2); srd(p, outp.sOUT, 96, S * D * 2)
    p("s_mov_b32 s36, -1"); p("s_mov_b32 s37, 0")
    p("s_waitcnt lgkmcnt(0)")
    lane_id(p)
    outp.emit_extra(p, "OX", lambda q: moe.wait_count(q, FLG_MOE + 256, 40, "OXW"))
    tl_stamp(p, 7, dbg)
    p("s_branch M_EXIT")
    p.label("H_Q")
    tl_stamp(p, 9, dbg)
    def moe_srds():
        p("s_lshl_b32 s70, s%d, 1" % gemm.sH); p("s_add_u32 s70, s70, s%d" % gemm.sHALF)
        srd(p, moe.sWG, 72, 640 * 1728 * 2); srd(p, moe.sWU, 80, 640 * 1728 * 2); srd(p, moe.sWD, 88, 640 * 1728 * 2)
        p("s_mov_b32 s%d, 0" % mkv.sSPIN)
        p("s_waitcnt lgkmcnt(0)")
        lane_id(p)
    att.emit_att(p, "AT0", 0, 1)
    moe_srds()
    p("s_lshl_b32 s%d, s70, 2" % moe.sTASK); p("s_add_u32 s%d, s%d, s14" % (moe.sTASK, moe.sTASK))
    p("s_cmp_ge_u32 s%d, 108" % moe.sTASK); p("s_cbranch_scc1 H_A1")
    tl_stamp(p, 15, dbg)
    moe.emit_f1(p)
    tl_stamp(p, 16, dbg)
    p.label("H_A1")
    lane_id(p)
    att.emit_att(p, "AT1", 1, 2)
    moe_srds()
    p("s_cmp_lg_u32 s14, 0"); p("s_cbranch_scc1 H_ATT")
    p("s_cmp_ge_u32 s70, 40"); p("s_cbranch_scc1 H_ATT")
    p("s_mov_b32 s%d, s70" % moe.sTASK)
    tl_stamp(p, 17, dbg)
    moe.emit_f2(p, lambda q: tl_stamp(q, 18, dbg), lambda q: tl_stamp(q, 19, dbg))
    tl_stamp(p, 14, dbg)
    p.label("H_ATT")
    lane_id(p)
    att.emit_att(p, "AT2", 2, 8)
    tl_stamp(p, 6, dbg)
    p.label("M_EXIT"); p("s_endpgm")
    return p, label

def rec_dbg_dump(p, st):
    p("s_lshl_b32 s%d, s%d, 5" % (rec.sT0, rec.sX)); p("s_add_u32 s%d, s%d, s%d" % (rec.sT0, rec.sT0, rec.sH))
    p("s_lshl_b32 s%d, s%d, 2" % (rec.sT0, rec.sT0)); p("s_add_u32 s%d, s%d, s%d" % (rec.sT0, rec.sT0, rec.sW))
    p("s_lshl_b32 s%d, s%d, 7" % (rec.sT0, rec.sT0)); rec.add_const(p, rec.sT0, rec.sT0, DBG)
    vals = [100, 8, 98 if not rec.STAMPS[0] else rec.sSPIN, rec.sISOWN, rec.sCNT] + [rec.sTS + 2 * i for i in range(len(st.stamps))] + [rec.sCNT2, 60, 61]
    open('stamps.txt', 'w').write(','.join(st.stamps))
    p("v_mov_b32 v1, 0"); p("s_mov_b64 exec, 1")
    for i, sreg in enumerate(vals):
        p("v_mov_b32 v2, s%d" % sreg)
        p("buffer_store_dword v2, v1, s[%d:%d], s%d offen offset:%d" % (rec.sWS, rec.sWS + 3, rec.sT0, 4 * i))
    p("s_waitcnt vmcnt(0)"); p("s_mov_b64 exec, -1")

def write(path, launches, progs):
    txt = HEADER
    for k, g, b, lds in launches: txt += "; @launch kernel=%s grid=(%d,1,1) block=(%d,1,1) lds=%d\n" % (k, g, b, lds)
    txt += '.amdgcn_target "amdgcn-amd-amdhsa--gfx950"\n'
    for p, label, v, s, a in progs: txt += p.text()
    for p, label, v, s, a in progs: txt += descriptor(label, v, s, a)
    open(path, "w").write(txt)

if __name__ == "__main__":
    mode = sys.argv[1]
    if mode == "rec":
        dbg = int(sys.argv[3]) if len(sys.argv) > 3 else 0
        p, label = rec_standalone(dbg)
        probs = check(p.lines, "rec")
        i0 = p.lines.index("REC_LOOP:"); i1 = p.lines.index("REC_TAIL:")
        probs += check(p.lines[i0:i1] + p.lines[i0:i1], "loop-wrap")
        for x in dict.fromkeys(probs): print("HAZARD", x)
        p0, l0 = k0_kernel(True)
        for x in dict.fromkeys(check(p0.lines, "k0")): print("HAZARD", x)
        write(sys.argv[2], [(l0, 256, 256, 64), (label, 256, 256, 163840)], [(p0, l0, 80, 72, 80), (p, label, 512, 102, 256)])
        print("instructions:", sum(1 for l in p.lines if not l.endswith(":") and not l.startswith((";", "."))),
              "loop:", sum(1 for l in p.lines[i0:i1] if not l.endswith(":") and not l.startswith((";", "."))))

    if mode == "gemm":
        p0, l0 = k0_kernel(False)
        p, label = gemm_kernel()
        probs = check(p.lines, "gemm")
        for nm in ("G_T", "G_N"):
            i0 = p.lines.index(nm + "_LOOP:"); i1 = i0 + next(i for i, l in enumerate(p.lines[i0:]) if l.startswith("s_cbranch_scc1 " + nm + "_LOOP"))
            probs += check(p.lines[i0:i1] + p.lines[i0:i1], "wrap")
        for x in dict.fromkeys(probs): print("HAZARD", x)
        write(sys.argv[2], [(l0, 256, 256, 64), (label, 192, 256, 163840)], [(p0, l0, 80, 72, 80), (p, label, 512, 102, 256)])
        print("instructions:", sum(1 for l in p.lines if not l.endswith(":") and not l.startswith((";", "."))))

    if mode == "multi":
        devd = int(sys.argv[3]) if len(sys.argv) > 3 else 0
        p0, l0 = k0_kernel(False)
        pg, lgm = gemm_kernel()
        pr, lr = rec_standalone(devd)
        pm, lm = mkv_kernel(); pa, la = att_kernel(); po, lo = out_kernel()
        mk = moe_kernels()
        progs = [(p0, l0, 80, 72, 80), (pg, lgm, 512, 102, 256), (pr, lr, 512, 102, 256), (pm, lm, 512, 102, 256), (pa, la, 256, 102, 256)]
        progs += [(p, l, 256, 102, 256) for p, l, g in mk] + [(po, lo, 512, 102, 256)]
        launches = [(l0, 256, 256, 64), (lgm, 192, 256, 163840), (lr, 256, 256, 163840), (lm, 64, 256, 163840), (la, 64, 256, 0)]
        launches += [(l, g, 256, 163840) for p, l, g in mk] + [(lo, 60, 256, 163840)]
        for p, l, *_ in progs:
            for x in dict.fromkeys(check(p.lines, l)): print("HAZARD", x)
        write(sys.argv[2], launches, progs)
        print("written")

    if mode == "fused":
        devd = int(sys.argv[3]) if len(sys.argv) > 3 else 0
        import os
        pm, lm = fused_kernel(devd, bool(os.environ.get("FORCE_SLOW")))
        for x in dict.fromkeys(check(pm.lines, lm)): print("HAZARD", x)
        write(sys.argv[2], [(lm, 256, 256, 163840)], [(pm, lm, 512, 102, 256)])
        print("instructions:", sum(1 for l in pm.lines if not l.endswith(":") and not l.startswith((";", "."))))
```

```python
from asm import *
from layout import *
from gemm import sWS, sH, sW, sHALF
from mkv import spin_flags, sSPIN

import os
RECLAST = int(os.environ.get('RECLAST', '1'))
sS, sIT = 24, 25
sQ, sKV, sKM, sVM, sOF, sFO = 26, 27, 30, 31, 32, 33
sC = 34
sLO32 = 36
sMK = 38
sT0, sT1, sT2 = 64, 65, 66
vL16, vKMA, vVMA, vFLA = 1, 2, 3, 4
vQ, vK, vV, vKM, vVM = 16, 48, 80, 112, 128
vS = 144
vP = 164
vO = 176
vSUM, vONE = 240, 248
t0, t1, t2, t3 = 8, 9, 10, 11

RDEF = dict(vQ=vQ, vK=vK, vV=vV, vKM=vKM, vVM=vVM, vS=vS, vP=vP, vO=vO, vSUM=vSUM, vONE=vONE)

def consts(p, vONE_):
    p("s_mov_b32 s%d, 0x3e0293ee" % sC); p("s_mov_b32 s%d, 0x3e0293ee" % (sC + 1))
    p("s_mov_b32 s%d, -1" % sLO32); p("s_mov_b32 s%d, 0" % (sLO32 + 1))
    p("v_lshrrev_b32 v5, 4, v0"); p("v_lshlrev_b32 v5, 2, v5"); p("v_and_b32 v6, 15, v0")
    for i in range(4):
        p("v_add_u32 v7, %d, v5" % i); p("v_cmp_le_u32 s[%d:%d], v7, v6" % (sMK + 2 * i, sMK + 2 * i + 1))
    for i in range(4): p("v_mov_b32 v%d, 0x3f803f80" % (vONE_ + i))

def result_addrs(p):
    p("s_lshl_b32 s%d, s%d, 5" % (sT0, sS)); p("s_add_u32 s%d, s%d, s%d" % (sT0, sT0, sH))
    p("s_lshl_b32 s%d, s%d, 2" % (sFO, sT0)); p("s_add_u32 s%d, s%d, 0x%x" % (sFO, sFO, FLG_O))
    p("s_lshl_b32 s%d, s%d, 18" % (sOF, sS)); p("s_lshl_b32 s%d, s%d, 12" % (sT1, sH))
    p("s_add_u32 s%d, s%d, s%d" % (sOF, sOF, sT1)); p("s_add_u32 s%d, s%d, 0x%x" % (sOF, sOF, OF))

def core(p, R, wait_km, wait_all):
    vQ, vK, vV, vKM, vVM, vS, vP, vO, vSUM, vONE = (R[k] for k in ("vQ", "vK", "vV", "vKM", "vVM", "vS", "vP", "vO", "vSUM", "vONE"))
    def mf(d, a, b, first): p("v_mfma_f32_16x16x32_bf16 %s, %s, %s, %s" % (vr(d, 4), vr(a, 4), vr(b, 4), "0" if first else vr(d, 4)))
    M0, A0, M1, B0, B1 = vS, vS + 4, vS + 8, vS + 12, vS + 16
    for kk in range(4):
        mf(A0, vK + 4 * kk, vQ + 4 * kk, kk == 0)
        mf(B0, vK + 4 * kk, vQ + 16 + 4 * kk, kk == 0)
        mf(B1, vK + 16 + 4 * kk, vQ + 16 + 4 * kk, kk == 0)
    wait_km()
    for kk in range(4):
        mf(M0, vKM + 4 * kk, vQ + 4 * kk, kk == 0)
        mf(M1, vKM + 4 * kk, vQ + 16 + 4 * kk, kk == 0)
    p("v_mov_b32 v%d, 0xff800000" % t3)
    p.nop(8)
    for i in range(4):
        for tile in (A0, B1): p("v_cndmask_b32 v%d, v%d, v%d, s[%d:%d]" % (tile + i, t3, tile + i, sMK + 2 * i, sMK + 2 * i + 1))
        for tile in (M0, M1): p("v_cndmask_b32 v%d, v%d, v%d, s[%d:%d]" % (tile + i, t3, tile + i, sLO32, sLO32 + 1))
    for q, tiles in ((0, (M0, A0)), (1, (M1, B0, B1))):
        regs = [t + i for t in tiles for i in range(4)]
        p("v_max3_f32 v%d, v%d, v%d, v%d" % (t0, regs[0], regs[1], regs[2]))
        k = 3
        while k < len(regs):
            if k + 1 < len(regs): p("v_max3_f32 v%d, v%d, v%d, v%d" % (t0, t0, regs[k], regs[k + 1])); k += 2
            else: p("v_max_f32 v%d, v%d, v%d" % (t0, t0, regs[k])); k += 1
        p("v_mov_b32 v%d, v%d" % (t1, t0)); p.nop(2)
        p("v_permlane16_swap_b32 v%d, v%d" % (t0, t1)); p("v_max_f32 v%d, v%d, v%d" % (t0, t0, t1))
        p("v_mov_b32 v%d, v%d" % (t1, t0)); p.nop(2)
        p("v_permlane32_swap_b32 v%d, v%d" % (t0, t1)); p("v_max_f32 v%d, v%d, v%d" % (t0, t0, t1))
        p("v_mul_f32 v%d, s%d, v%d" % (t0, sC, t0))
        for r in regs: p("v_fma_f32 v%d, v%d, s%d, -v%d" % (r, r, sC, t0))
        for r in regs: p("v_exp_f32 v%d, v%d" % (r, r))
        p.nop(1)
        PX, PM = vP + 6 * q, vP + 6 * q + 4
        X0 = tiles[1]
        p("v_cvt_pk_bf16_f32 v%d, v%d, v%d" % (PX, X0, X0 + 1)); p("v_cvt_pk_bf16_f32 v%d, v%d, v%d" % (PX + 1, X0 + 2, X0 + 3))
        if q == 0: p("v_mov_b32 v%d, 0" % (PX + 2)); p("v_mov_b32 v%d, 0" % (PX + 3))
        else: p("v_cvt_pk_bf16_f32 v%d, v%d, v%d" % (PX + 2, B1, B1 + 1)); p("v_cvt_pk_bf16_f32 v%d, v%d, v%d" % (PX + 3, B1 + 2, B1 + 3))
        p("v_cvt_pk_bf16_f32 v%d, v%d, v%d" % (PM, tiles[0], tiles[0] + 1)); p("v_cvt_pk_bf16_f32 v%d, v%d, v%d" % (PM + 1, tiles[0] + 2, tiles[0] + 3))
    wait_all()
    for q in range(2): mf(vSUM + 4 * q, vONE, vP + 6 * q, True)
    for e in range(8):
        for q in range(2): mf(vO + (2 * e + q) * 4, vV + 4 * e, vP + 6 * q, True)
    for q in range(2):
        p("v_mfma_f32_16x16x16_bf16 %s, %s, %s, %s" % (vr(vSUM + 4 * q, 4), vr(vONE, 2), vr(vP + 6 * q + 4, 2), vr(vSUM + 4 * q, 4)))
    for e in range(8):
        for q in range(2):
            d = vO + (2 * e + q) * 4
            p("v_mfma_f32_16x16x16_bf16 %s, %s, %s, %s" % (vr(d, 4), vr(vVM + 2 * e, 2), vr(vP + 6 * q + 4, 2), vr(d, 4)))
    p("v_rcp_f32 v%d, v%d" % (t0, vSUM)); p("v_rcp_f32 v%d, v%d" % (t1, vSUM + 4))
    p.nop(8)
    n = 0
    for q in range(2):
        for kk in range(4):
            pk = vQ + 4 * (n % 8); n += 1
            for z in range(2):
                d = vO + (2 * (2 * kk + z) + q) * 4
                for i in range(4): p("v_mul_f32 v%d, v%d, v%d" % (d + i, d + i, t0 + q))
                p("v_cvt_pk_bf16_f32 v%d, v%d, v%d" % (pk + 2 * z, d, d + 1)); p("v_cvt_pk_bf16_f32 v%d, v%d, v%d" % (pk + 2 * z + 1, d + 2, d + 3))
            p("s_add_u32 s%d, s%d, 0x%x" % (sT0, sOF, q * 131072))
            p("buffer_store_dwordx4 %s, v%d, s[%d:%d], s%d offen offset:%d sc1" % (vr(pk, 4), vL16, sWS, sWS + 3, sT0, kk * 1024))
    p("s_waitcnt vmcnt(0)")
    p("v_mov_b32 v7, 1"); p("v_mov_b32 v8, 0"); p("s_mov_b64 exec, 1")
    p("buffer_store_dword v7, v8, s[%d:%d], s%d offen sc1" % (sWS, sWS + 3, sFO)); p("s_mov_b64 exec, -1")

def emit_att(p, name, it0=0, it1=8):
    p("s_mov_b32 s%d, 0" % sSPIN)
    p("v_lshlrev_b32 v%d, 4, v0" % vL16)
    p("v_lshrrev_b32 v5, 4, v0"); p("v_lshlrev_b32 v%d, 7, v5" % vKMA)
    p("v_and_b32 v5, 7, v0"); p("v_lshl_add_u32 v%d, v5, 4, v%d" % (vKMA, vKMA))
    p("v_bfe_u32 v5, v0, 4, 1"); p("v_lshlrev_b32 v%d, 7, v5" % vVMA)
    p("v_and_b32 v5, 15, v0"); p("v_lshl_add_u32 v%d, v5, 3, v%d" % (vVMA, vVMA))
    consts(p, vONE)
    p("s_lshl_b32 s%d, s%d, 2" % (sS, sHALF)); p("s_add_u32 s%d, s%d, s%d" % (sS, sS, sW))
    if it0: p("s_add_u32 s%d, s%d, %d" % (sS, sS, 8 * it0))
    p("s_mov_b32 s%d, %d" % (sIT, it0))
    loop = name + "_LOOP"; lend = name + "_END"
    p.label(loop)
    if RECLAST: p("s_cmp_eq_u32 s%d, %d" % (sS, NSEG - 1)); p("s_cbranch_scc1 %s" % lend)
    p("s_lshl_b32 s%d, s%d, 5" % (sT0, sS)); p("s_add_u32 s%d, s%d, s%d" % (sT0, sT0, sH))
    p("s_lshl_b32 s%d, s%d, 13" % (sQ, sT0)); p("s_add_u32 s%d, s%d, 0x%x" % (sQ, sQ, QF))
    p("s_lshl_b32 s%d, s%d, 14" % (sKV, sT0)); p("s_add_u32 s%d, s%d, 0x%x" % (sKV, sKV, KF))
    p("s_lshl_b32 s%d, s%d, 11" % (sT1, sT0))
    p("s_add_u32 s%d, s%d, 0x%x" % (sKM, sT1, KMF)); p("s_add_u32 s%d, s%d, 0x%x" % (sVM, sT1, VMF))
    p("s_lshl_b32 s%d, s%d, 2" % (sFO, sT0)); p("s_add_u32 s%d, s%d, 0x%x" % (sFO, sFO, FLG_O))
    p("s_lshl_b32 s%d, s%d, 18" % (sOF, sS)); p("s_lshl_b32 s%d, s%d, 12" % (sT1, sH))
    p("s_add_u32 s%d, s%d, s%d" % (sOF, sOF, sT1)); p("s_add_u32 s%d, s%d, 0x%x" % (sOF, sOF, OF))
    p("s_lshr_b32 s%d, s%d, 2" % (sT1, sS)); p("s_lshl_b32 s%d, s%d, 9" % (sT1, sT1)); p("s_lshl_b32 s%d, s%d, 4" % (sT2, sH))
    p("s_add_u32 s%d, s%d, s%d" % (sT1, sT1, sT2)); p("s_add_u32 s%d, s%d, 0x%x" % (sT1, sT1, FLG_KVQ))
    p("s_lshr_b32 s%d, s%d, 1" % (sT2, sS)); p("s_lshl_b32 s%d, s%d, 8" % (sT2, sT2)); p("s_lshl_b32 s%d, s%d, 3" % (sT0, sH))
    p("s_add_u32 s%d, s%d, s%d" % (sT2, sT2, sT0)); p("s_add_u32 s%d, s%d, 0x%x" % (sT2, sT2, FLG_KM - 12))
    p("v_lshlrev_b32 v5, 2, v0")
    p("v_mov_b32 v6, s%d" % sT1); p("v_mov_b32 v7, s%d" % sT2)
    p("v_cmp_gt_u32 vcc, 3, v0"); p.nop(2)
    p("v_cndmask_b32 v6, v7, v6, vcc"); p("v_add_u32 v%d, v5, v6" % vFLA)
    p("s_mov_b32 s%d, 0" % sT0)
    p("s_mov_b64 exec, 7")
    spin_flags(p, 5, 3, vFLA, sT0, True, name + "_F")
    p("s_mov_b64 exec, -1")
    vm = Counter(p, "vmcnt", 63)
    for f in range(8):
        if f == 4: p("s_add_u32 s%d, s%d, 4096" % (sQ, sQ))
        p("buffer_load_dwordx4 %s, v%d, s[%d:%d], s%d offen offset:%d" % (vr(vQ + 4 * f, 4), vL16, sWS, sWS + 3, sQ, (f % 4) * 1024)); vm.issue("q")
    for f in range(8):
        if f == 4: p("s_add_u32 s%d, s%d, 4096" % (sKV, sKV))
        p("buffer_load_dwordx4 %s, v%d, s[%d:%d], s%d offen offset:%d" % (vr(vK + 4 * f, 4), vL16, sWS, sWS + 3, sKV, (f % 4) * 1024)); vm.issue("k")
    for f in range(8):
        if f % 4 == 0: p("s_add_u32 s%d, s%d, 4096" % (sKV, sKV))
        p("buffer_load_dwordx4 %s, v%d, s[%d:%d], s%d offen offset:%d" % (vr(vV + 4 * f, 4), vL16, sWS, sWS + 3, sKV, (f % 4) * 1024)); vm.issue("v")
    p("s_mov_b64 exec, 0x18")
    spin_flags(p, 5, 2, vFLA, sT0, True, name + "_G")
    p("s_mov_b64 exec, -1")
    vm.clear()
    for kk in range(4):
        p("buffer_load_dwordx4 %s, v%d, s[%d:%d], s%d offen offset:%d" % (vr(vKM + 4 * kk, 4), vKMA, sWS, sWS + 3, sKM, kk * 512)); vm.issue("km")
    for e in range(8):
        p("buffer_load_dwordx2 %s, v%d, s[%d:%d], s%d offen offset:%d" % (vr(vVM + 2 * e, 2), vVMA, sWS, sWS + 3, sVM, e * 256)); vm.issue("vm")
    core(p, RDEF, lambda: vm.wait("km"), vm.wait_all)
    p("s_add_u32 s%d, s%d, 8" % (sS, sS)); p("s_add_u32 s%d, s%d, 1" % (sIT, sIT))
    p("s_cmp_lt_u32 s%d, %d" % (sIT, it1)); p("s_cbranch_scc1 %s" % loop)
    p.label(lend)
```

```python
from asm import *
from layout import *

sWS = 4
sWT = 44
sH, sW, sHALF = 13, 14, 12
sDB = 16
sDSEG = 17
sFLAG = 18
sB = 19
sXB = 20
sRB = 21
sT0, sT1, sT2 = 64, 65, 66
sDCUR, sFCUR = 22, 23
vL16, vX, vR0, vR1, vG = 1, 2, 3, 4, 5
vACC = 16
vWF = 96
aXF = 0
import os
DBGT = int(os.environ.get('DBGT', '0'))
GV = int(os.environ.get('GV', '0'))
EARLY0 = int(os.environ.get('EARLY0', '1'))
NB = 5
vPK = 80

def acc(tt, T): return vACC + (T * 2 + tt) * 4
def wf(ks, tt): return vWF + (ks * 2 + tt) * 4

def w128_first(p, srd, sOff, sBase, sTmp, vG_, t, t2):
    p("s_lshl_b32 s%d, s%d, 8" % (sOff, sH)); p("s_lshl_b32 s%d, s%d, 6" % (sTmp, sW)); p("s_add_u32 s%d, s%d, s%d" % (sOff, sOff, sTmp))
    p("s_mul_i32 s%d, s%d, 36864" % (sBase, sW))
    p("v_lshrrev_b32 v%d, 2, v0" % t); p("v_mul_u32_u24 v%d, 8192, v%d" % (vG_, t))
    p("v_lshrrev_b32 v%d, 5, v0" % t); p("v_lshlrev_b32 v%d, 1, v%d" % (t, t))
    p("v_and_b32 v%d, 3, v0" % t2); p("v_xor_b32 v%d, v%d, v%d" % (t, t, t2)); p("v_lshl_add_u32 v%d, v%d, 4, v%d" % (vG_, t, vG_))
    for n in range(9):
        for a in range(4):
            p("s_add_u32 m0, s%d, %d" % (sBase, n * 4096 + a * 1024))
            p("s_add_u32 s%d, s%d, 0x%x" % (sTmp, sOff, (64 * n + 16 * a) * 8192))
            p("buffer_load_dwordx4 v%d, s[%d:%d], s%d offen lds" % (vG_, srd, srd + 3, sTmp))

def load_w128(p, srd, soff_reg, row_stride, vg_tmp=(5, 3, 4, 6), started=False):
    vG_, vR0_, vR1_, t = vg_tmp
    vm = Counter(p, "vmcnt", 63)
    p("s_mul_i32 s%d, s%d, 36864" % (sRB, sW))
    p("v_lshrrev_b32 v%d, 2, v0" % t); p("v_mul_u32_u24 v%d, %d, v%d" % (vG_, row_stride, t))
    p("v_lshrrev_b32 v%d, 5, v0" % t); p("v_lshlrev_b32 v%d, 1, v%d" % (t, t))
    p("v_and_b32 v7, 3, v0"); p("v_xor_b32 v%d, v%d, v7" % (t, t)); p("v_lshl_add_u32 v%d, v%d, 4, v%d" % (vG_, t, vG_))
    p("v_lshrrev_b32 v%d, 5, v0" % t); p("v_lshlrev_b32 v%d, 10, v%d" % (vR0_, t))
    p("v_bfe_u32 v%d, v0, 2, 2" % t); p("v_lshl_add_u32 v%d, v%d, 6, v%d" % (vR0_, t, vR0_))
    p("v_and_b32 v%d, 3, v0" % t); p("v_lshl_add_u32 v%d, v%d, 3, v%d" % (vR0_, t, vR0_))
    p("v_bfe_u32 v%d, v0, 4, 1" % t); p("v_lshl_add_u32 v%d, v%d, 9, v%d" % (vR0_, t, vR0_))
    p("v_add_u32 v%d, s%d, v%d" % (vR0_, sRB, vR0_))
    p("v_lshlrev_b32 v%d, 5, v%d" % (t, t))
    p("v_sub_u32 v%d, 32, v%d" % (vR1_, t)); p("v_add_u32 v%d, v%d, v%d" % (vR1_, vR1_, vR0_))
    p("v_add_u32 v%d, v%d, v%d" % (vR0_, vR0_, t))
    def issue(n):
        for a in range(4):
            p("s_add_u32 m0, s%d, %d" % (sRB, (n % 9) * 4096 + a * 1024))
            p("s_add_u32 s%d, s%d, 0x%x" % (sT0, soff_reg, (64 * n + 16 * a) * row_stride))
            p("buffer_load_dwordx4 v%d, s[%d:%d], s%d offen lds" % (vG_, srd, srd + 3, sT0)); vm.issue(n)
    if started: p("s_waitcnt vmcnt(0)")
    else:
        for n in range(9): issue(n)
    for n in range(10):
        vm.wait(n)
        so = (n % 9) * 4096
        for k2 in range(2):
            for tt in range(2):
                for r in range(2):
                    p("ds_read_b64_tr_b16 %s, v%d offset:%d" % (vr(wf(2 * n + k2, tt) + 2 * r, 2), vR0_ if tt == 0 else vR1_, so + k2 * 2048 + r * 256))
        p("s_waitcnt lgkmcnt(0)")
        if n + 9 < 10: issue(n + 9)

def flag_store(p, soff):
    lf = p.uid("GF")
    p("s_cmp_lg_u32 s%d, 0" % sW); p("s_cbranch_scc1 %s" % lf)
    p("v_mov_b32 v7, 1"); p("v_mov_b32 v8, 0"); p("s_mov_b64 exec, 1")
    p("buffer_store_dword v7, v8, s[%d:%d], s%d offen sc1" % (sWS, sWS + 3, soff)); p("s_mov_b64 exec, -1")
    p.label(lf)

def emit_gemm(p, kind, name, wait_init):
    vm = Counter(p, "vmcnt", 63); lg = Counter(p, "lgkmcnt", 15)
    p("v_lshlrev_b32 v%d, 4, v0" % vL16)
    p("v_lshrrev_b32 v6, 3, v0"); p("v_mul_u32_u24 v%d, 1280, v6" % vX)
    p("v_and_b32 v7, 7, v0"); p("v_xor_b32 v7, v7, v6"); p("v_lshl_add_u32 v%d, v7, 4, v%d" % (vX, vX))
    p("v_bfe_u32 v6, v0, 3, 1"); p("v_lshlrev_b32 v9, 10, v6")
    p("v_and_b32 v6, 7, v0"); p("v_lshl_add_u32 v9, v6, 7, v9")
    p("v_lshrrev_b32 v7, 4, v0"); p("v_xor_b32 v7, v7, v6")
    p("v_lshl_add_u32 v%d, v7, 4, v9" % vR0)
    p("v_xor_b32 v7, 4, v7"); p("v_lshl_add_u32 v%d, v7, 4, v9" % vR1)
    p("v_add_u32 v6, 0x10000, v%d" % vR0); p("v_add_u32 v9, 0x10000, v%d" % vR1)
    wait_init(p)
    p("s_barrier")
    p("s_mul_i32 s%d, s%d, %d" % (sXB, sHALF, 128 * 1280)); p("s_mul_i32 s%d, s%d, %d" % (sT0, sW, 32 * 1280))
    p("s_add_u32 s%d, s%d, s%d" % (sXB, sXB, sT0)); p("s_add_u32 s%d, s%d, 0x%x" % (sXB, sXB, XN))
    p("s_lshl_b32 s%d, s%d, 12" % (sRB, sW))
    def dma_list(i):
        nxt, c = divmod(i, 10); slot = i % NB; out = []
        for q in range(4):
            out.append("s_add_u32 m0, s%d, %d" % (sRB, slot * 16384 + q * 1024))
            out.append("s_add_u32 s%d, s%d, 0x%x" % (sT0, sXB, nxt * 256 * 1280 + q * 8 * 1280 + 128 * c))
            out.append("buffer_load_dwordx4 v%d, s[%d:%d], s%d offen lds" % (vX, sWS, sWS + 3, sT0))
        return out
    def emit(ins, i):
        if GV == 3 and ins.startswith("buffer") and i >= NB - 1: p("s_mov_b32 s%d, 0x%x" % (sT0, OOB))
        p(ins)
        if ins.startswith("buffer"): vm.issue(("c", i))
    def dma(i):
        for ins in dma_list(i): emit(ins, i)
    def xread(set_, slot, k2):
        areg = [vR0, vR1][k2] if slot < 4 else [6, 9][k2]
        return ["ds_read_b128 %s, v%d offset:%d" % (ar(aXF + set_ * 32 + 4 * T, 4), areg, (slot % 4) * 16384 + T * 2048) for T in range(8)]
    for i in range(NB - 1): dma(i)
    p("s_mov_b32 s%d, 0x%x" % (sT0, OOB))
    for i in range(8): p("buffer_store_dword v7, v%d, s[%d:%d], s%d offen" % (vL16, sWS, sWS + 3, sT0)); vm.issue("st")
    vm.wait(("c", 0)); p("s_barrier")
    for ins in xread(0, 0, 0): p(ins)
    p("s_mov_b32 s%d, 0" % sB)
    p("s_mov_b32 s%d, s%d" % (sDCUR, sDB)); p("s_mov_b32 s%d, 0x%x" % (sFCUR, OOB))
    loop = name + "_LOOP"
    if DBGT: p("s_memrealtime s[70:71]"); p("s_memtime s[74:75]")
    p.label(loop)
    lg.clear()
    for T in range(8): lg.issue(("x", 0, T))
    for c in range(10):
        slot = c % NB
        for k2 in range(2):
            ks = 2 * c + k2
            nslot, nk2 = (slot, 1) if k2 == 0 else ((c + 1) % NB, 0)
            rd = xread(1 - k2, nslot, nk2)
            if k2 == 1:
                vm.wait(("c", c + 1)); p("s_barrier")
                if c == 3: flag_store(p, sFCUR)
                pend = dma_list(c + NB - 1)
            else: pend = []
            for T in range(8):
                if T % 4 == 0: lg.wait(("x", k2, T + 3))
                for tt in range(2):
                    a_, x_ = vr(wf(ks, tt), 4), ar(aXF + k2 * 32 + 4 * T, 4)
                    cc = "0" if ks == 0 else vr(acc(tt, T), 4)
                    if kind == "T": p("v_mfma_f32_16x16x32_bf16 %s, %s, %s, %s" % (vr(acc(tt, T), 4), a_, x_, cc))
                    else: p("v_mfma_f32_16x16x32_bf16 %s, %s, %s, %s" % (vr(acc(tt, T), 4), x_, a_, cc))
                p(rd[T]); lg.issue(("x", 1 - k2, T))
                for _ in range(2 if T % 2 else 1):
                    if pend: emit(pend.pop(0), c + NB - 1)
    p.nop(6)
    for sg in range(4):
        p("s_mul_i32 s%d, s%d, %d" % (sT1, sDSEG, sg)); p("s_add_u32 s%d, s%d, s%d" % (sT1, sT1, sDCUR))
        for z in range(2):
            pk = vPK + 4 * ((2 * sg + z) % 4)
            if kind == "T":
                T = 2 * sg + z
                src = [acc(0, T), acc(0, T) + 2, acc(1, T), acc(1, T) + 2]
                p("s_add_u32 s%d, s%d, %d" % (sT0, sT1, z * 4096))
            else:
                src = [acc(z, 2 * sg), acc(z, 2 * sg) + 2, acc(z, 2 * sg + 1), acc(z, 2 * sg + 1) + 2]
                p("s_add_u32 s%d, s%d, %d" % (sT0, sT1, z * 1024))
            for q in range(4): p("v_cvt_pk_bf16_f32 v%d, v%d, v%d" % (pk + q, src[q], src[q] + 1))
            if GV == 1: p("s_mov_b32 s%d, 0x%x" % (sT0, OOB))
            p("buffer_store_dwordx4 %s, v%d, s[%d:%d], s%d offen %s" % (vr(pk, 4), vL16, sWS, sWS + 3, sT0, "" if GV == 2 else "sc1")); vm.issue("st")
    p("s_lshl_b32 s%d, s%d, 1" % (sT0, sB)); p("s_add_u32 s%d, s%d, s%d" % (sT0, sT0, sHALF))
    p("s_lshl_b32 s%d, s%d, 9" % (sT0, sT0)); p("s_add_u32 s%d, s%d, s%d" % (sFCUR, sFLAG, sT0))
    p("s_lshl_b32 s%d, s%d, 3" % (sT0, sDSEG)); p("s_add_u32 s%d, s%d, s%d" % (sDCUR, sDCUR, sT0))
    p("s_add_u32 s%d, s%d, 1" % (sB, sB))
    p("s_add_u32 s%d, s%d, 0x%x" % (sXB, sXB, 256 * 1280))
    assert [t for t in vm.q] == [("c", i) for i in range(11, 14) for _ in range(4)] + ["st"] * 8, vm.q
    if EARLY0:
        l0 = p.uid("GE0")
        p("s_cmp_lg_u32 s%d, 1" % sB); p("s_cbranch_scc1 %s" % l0)
        p("s_waitcnt vmcnt(0)"); p("s_barrier")
        flag_store(p, sFCUR)
        p.label(l0)
    p("s_cmp_lt_u32 s%d, 8" % sB); p("s_cbranch_scc1 %s" % loop)
    p("s_waitcnt vmcnt(0) lgkmcnt(0)"); p("s_barrier")
    flag_store(p, sFCUR)
    if DBGT:
        p("s_memrealtime s[72:73]"); p("s_memtime s[76:77]"); p("s_waitcnt lgkmcnt(0)"); p("s_sub_u32 s74, s76, s74")
        p("s_lshl_b32 s%d, s2, 4" % sT0); p("s_add_u32 s%d, s%d, 0x%x" % (sT0, sT0, DBG))
        p("v_mov_b32 v8, 0"); p("s_mov_b64 exec, 1")
        for i, r_ in enumerate((68, 70, 72, 74)):
            p("v_mov_b32 v7, s%d" % r_); p("buffer_store_dword v7, v8, s[%d:%d], s%d offen offset:%d" % (sWS, sWS + 3, sT0, 4 * i))
        p("s_mov_b64 exec, -1")

def setup_role(p, mat):
    if mat < 2:
        p("s_lshl_b32 s%d, s%d, 14" % (sDB, sH)); p("s_mov_b32 s%d, 0x%x" % (sDSEG, KV_S))
        p("s_lshl_b32 s%d, s%d, %d" % (sT0, sW, 10 if mat == 0 else 11))
        p("s_add_u32 s%d, s%d, 0x%x" % (sDB, sDB, KF if mat == 0 else VF))
    else:
        p("s_lshl_b32 s%d, s%d, 13" % (sDB, sH)); p("s_mov_b32 s%d, 0x%x" % (sDSEG, 32 * 8192))
        p("s_lshl_b32 s%d, s%d, 10" % (sT0, sW))
        p("s_add_u32 s%d, s%d, 0x%x" % (sDB, sDB, QF))
    p("s_add_u32 s%d, s%d, s%d" % (sDB, sDB, sT0))
    p("s_mul_i32 s%d, s%d, s%d" % (sT0, sHALF, sDSEG)); p("s_lshl_b32 s%d, s%d, 2" % (sT0, sT0))
    p("s_add_u32 s%d, s%d, s%d" % (sDB, sDB, sT0))
    p("s_lshl_b32 s%d, s%d, 4" % (sFLAG, sH)); p("s_add_u32 s%d, s%d, 0x%x" % (sFLAG, sFLAG, FLG_KVQ + 4 * mat))

def load_weights(p, started=False):
    p("s_lshl_b32 s%d, s%d, 8" % (sT1, sH)); p("s_lshl_b32 s%d, s%d, 6" % (sT2, sW)); p("s_add_u32 s%d, s%d, s%d" % (sXB, sT1, sT2))
    load_w128(p, sWT, sXB, 8192, started=started)
```

```python
from asm import *
from layout import *
from k0 import wave_sum, round_bf16, measure_cand

sDBG = 60
D_TICK, D_TSTRIDE = 0, 32
D_C1, D_C2, D_C3 = 4, 8, 12
D_SECOND = 16
D_CAND = 132
sINITC = 95
NHELP = 192

def dbg_srd(p):
    p("s_load_dwordx2 s[%d:%d], s[0:1], 104" % (sDBG, sDBG + 1))
    p("s_mov_b32 s%d, 256" % (sDBG + 2)); p("s_mov_b32 s%d, 0x00020000" % (sDBG + 3))

def spin_dbg(p, off_sgpr_or_const, cond, name, vtmp=8, n=1, sSP=65):
    l = p.uid(name); ld = p.uid(name + "D")
    p("s_mov_b32 s%d, 0" % sSP)
    p.label(l)
    so = off_sgpr_or_const if isinstance(off_sgpr_or_const, str) else "0"
    off = "" if isinstance(off_sgpr_or_const, str) else " offset:%d" % off_sgpr_or_const
    op = {1: "dword v%d" % vtmp, 2: "dwordx2 v[%d:%d]" % (vtmp, vtmp + 1)}[n]
    p("buffer_load_%s, off, s[%d:%d], %s%s sc1" % (op, sDBG, sDBG + 3, so, off))
    p("s_add_u32 s%d, s%d, 1" % (sSP, sSP))
    p("s_waitcnt vmcnt(0)")
    cond(p, ld)
    p("s_cmp_gt_u32 s%d, %d" % (sSP, 1 << 16)); p("s_cbranch_scc1 %s" % ld)
    p("s_sleep 4"); p("s_branch %s" % l)
    p.label(ld)

def wait_counter(p, count, off="s%d" % sINITC, name="IW"):
    def cond(q, ld):
        q("v_readfirstlane_b32 s64, v8"); q("s_cmp_ge_u32 s64, %d" % count); q("s_cbranch_scc1 %s" % ld)
    spin_dbg(p, off, cond, name)

def counter_add(p, off="s%d" % sINITC):
    p("v_mov_b32 v8, 1"); p("s_mov_b64 exec, 1")
    p("buffer_atomic_add v8, off, s[%d:%d], %s sc1" % (sDBG, sDBG + 3, off)); p("s_mov_b64 exec, -1")

def read_cand(p, s0, s1):
    def cond(q, ld):
        q("v_readfirstlane_b32 s%d, v8" % s0); q("v_readfirstlane_b32 s%d, v9" % s1)
        q("s_min_u32 s64, s%d, s%d" % (s0, s1)); q("s_cmp_lg_u32 s64, 0"); q("s_cbranch_scc1 %s" % ld)
    spin_dbg(p, D_CAND, cond, "CW", n=2)
    for r in (s0, s1): p("s_sub_u32 s%d, s%d, 1" % (r, r)); p("s_and_b32 s%d, s%d, 3" % (r, r))

def emit_measure(p, sW, sXCC):
    l = p.uid("NOMEAS")
    p("s_cmp_lg_u32 s%d, 0" % sW); p("s_cbranch_scc1 %s" % l)
    p("s_and_b32 s64, s2, 0xfffffffd"); p("s_cmp_lg_u32 s64, 1"); p("s_cbranch_scc1 %s" % l)
    p("s_lshr_b32 s70, s2, 1")
    for i in range(4): p("s_mov_b32 s%d, s%d" % (72 + i, sDBG + i))
    measure_cand(p, 4, 70, sXCC)
    p("s_add_u32 s71, s60, 1")
    for i in range(4): p("s_mov_b32 s%d, s%d" % (sDBG + i, 72 + i))
    p("s_lshl_b32 s70, s70, 2"); p("s_add_u32 s70, s70, %d" % D_CAND)
    p("v_mov_b32 v61, s71"); p("s_mov_b64 exec, 1")
    p("buffer_store_dword v61, off, s[%d:%d], s70 sc1" % (sDBG, sDBG + 3)); p("s_mov_b64 exec, -1")
    p.label(l)

def emit_init(p, sHI, sW, middle=None):
    sXS, sWR, sM0 = 16, 20, 24
    sROW, sT0, sT1, sC0, sC1 = 28, 29, 30, 31, 32
    for dst, off, size in ((sXS, 0, S * D * 2), (sWR, 64, D * 2), (sM0, 8, M * D * 2)):
        p("s_load_dwordx2 s[%d:%d], s[0:1], %d" % (dst, dst + 1, off)); p("s_mov_b32 s%d, %d" % (dst + 2, size)); p("s_mov_b32 s%d, 0x00020000" % (dst + 3))
    p("s_lshl_b32 s%d, s%d, 2" % (sROW, sHI)); p("s_add_u32 s%d, s%d, s%d" % (sROW, sROW, sW)); p("s_mul_i32 s%d, s%d, 3" % (sROW, sROW))
    p("v_lshlrev_b32 v3, 4, v0"); p("v_lshlrev_b32 v4, 2, v0")
    p("s_waitcnt lgkmcnt(0)")
    X = [10, 16, 22]; W = 28
    for r in range(3):
        p("s_add_u32 s%d, s%d, %d" % (sT0, sROW, r)); p("s_mul_i32 s%d, s%d, 1280" % (33 + r, sT0))
        p("buffer_load_dwordx4 v[%d:%d], v3, s[%d:%d], s%d offen" % (X[r], X[r] + 3, sXS, sXS + 3, 33 + r))
        p("buffer_load_dword v%d, v4, s[%d:%d], s%d offen offset:1024" % (X[r] + 4, sXS, sXS + 3, 33 + r))
    p("buffer_load_dwordx4 v[%d:%d], v3, s[%d:%d], 0 offen" % (W, W + 3, sWR, sWR + 3))
    p("buffer_load_dword v%d, v4, s[%d:%d], 0 offen offset:1024" % (W + 4, sWR, sWR + 3))
    lm0 = p.uid("INM0")
    p("s_cmp_ge_u32 s%d, 10" % sHI); p("s_cbranch_scc1 %s" % lm0)
    p("v_and_b32 v5, 7, v0"); p("v_mul_u32_u24 v5, 1280, v5")
    p("v_lshrrev_b32 v6, 4, v0"); p("v_lshl_add_u32 v5, v6, 5, v5")
    p("v_bfe_u32 v6, v0, 3, 1"); p("v_lshl_add_u32 v5, v6, 4, v5")
    p("s_lshl_b32 s%d, s%d, 7" % (sT0, sHI))
    p("buffer_load_dwordx4 v[34:37], v5, s[%d:%d], s%d offen" % (sM0, sM0 + 3, sT0))
    p.label(lm0)
    p("s_waitcnt vmcnt(0)")
    for r in range(3):
        lskip = p.uid("INR")
        p("s_add_u32 s%d, s%d, %d" % (sT0, sROW, r)); p("s_cmp_ge_u32 s%d, %d" % (sT0, S)); p("s_cbranch_scc1 %s" % lskip)
        x = X[r]; lo, hi = 50, 60; acc, t = 70, 71
        for i in range(5):
            p("v_lshlrev_b32 v%d, 16, v%d" % (lo + i, x + i)); p("v_and_b32 v%d, 0xffff0000, v%d" % (hi + i, x + i))
        p("v_add_f32 v%d, v%d, v%d" % (acc, lo, hi))
        for i in range(1, 5): p("v_add_f32 v%d, v%d, v%d" % (acc, acc, lo + i)); p("v_add_f32 v%d, v%d, v%d" % (acc, acc, hi + i))
        wave_sum(p, acc, t)
        p("v_mul_f32 v72, 0x3acccccd, v%d" % acc)
        p("v_mov_b32 v73, 0")
        for i in range(5):
            for b in (lo, hi):
                p("v_sub_f32 v74, v%d, v72" % (b + i)); p("v_fmac_f32 v73, v74, v74")
        wave_sum(p, 73, t)
        p("v_mul_f32 v73, 0x3acccccd, v73")
        round_bf16(p, 72); round_bf16(p, 73)
        p("v_add_f32 v73, 0x3727c5ac, v73"); round_bf16(p, 73)
        p("v_sqrt_f32 v73, v73"); p.nop(1); round_bf16(p, 73)
        p("v_rcp_f32 v75, v73"); p.nop(1)
        p("v_mov_b32 v76, 0")
        for i in range(5):
            for b in (lo, hi):
                p("v_sub_f32 v%d, v%d, v72" % (b + i, b + i)); round_bf16(p, b + i)
                p("v_mul_f32 v74, v%d, v75" % (b + i))
                p("v_fma_f32 v77, -v74, v73, v%d" % (b + i))
                p("v_fma_f32 v%d, v77, v75, v74" % (b + i))
            p("v_cvt_pk_bf16_f32 v%d, v%d, v%d" % (x + i, lo + i, hi + i))
            p("v_lshlrev_b32 v74, 16, v%d" % (x + i)); p("v_lshlrev_b32 v77, 16, v%d" % (W + i)); p("v_fmac_f32 v76, v74, v77")
            p("v_and_b32 v74, 0xffff0000, v%d" % (x + i)); p("v_and_b32 v77, 0xffff0000, v%d" % (W + i)); p("v_fmac_f32 v76, v74, v77")
        p("s_add_u32 s%d, s%d, 0x%x" % (sT1, 33 + r, XN))
        p("buffer_store_dwordx4 v[%d:%d], v3, s[4:7], s%d offen sc1" % (x, x + 3, sT1))
        p("buffer_store_dword v%d, v4, s[4:7], s%d offen offset:1024 sc1" % (x + 4, sT1))
        wave_sum(p, 76, t)
        round_bf16(p, 76)
        p("s_lshl_b32 s%d, s%d, 2" % (sT1, sT0)); p("s_add_u32 s%d, s%d, 0x%x" % (sT1, sT1, RR))
        p("s_mov_b64 exec, 1")
        p("buffer_store_dword v76, off, s[4:7], s%d sc1" % sT1)
        p("s_mov_b64 exec, -1")
        p.label(lskip)
    p("s_lshl_b32 s%d, s%d, 2" % (sT0, sHI)); p("s_add_u32 s%d, s%d, s%d" % (sT0, sT0, sW)); p("s_lshl_b32 s%d, s%d, 6" % (sT0, sT0))
    p("v_add_u32 v5, s%d, v0" % sT0); p("v_lshlrev_b32 v6, 4, v5")
    for i in range(4): p("v_mov_b32 v%d, -1" % (40 + i)); p("v_mov_b32 v%d, 0" % (44 + i))
    def masked(limit, body):
        l = p.uid("INF")
        p("v_cmp_gt_u32 vcc, 0x%x, v5" % limit); p.nop(1)
        p("s_and_saveexec_b64 s[38:39], vcc"); p("s_cbranch_execz %s" % l)
        body()
        p.label(l); p("s_mov_b64 exec, s[38:39]")
    def simple(base, regs):
        p("s_mov_b32 s%d, 0x%x" % (sT1, base)); p("buffer_store_dwordx4 v[%d:%d], v6, s[4:7], s%d offen sc1" % (regs, regs + 3, sT1))
    masked(CTL_SIZE // 16, lambda: simple(CTL, 44))
    p("s_waitcnt vmcnt(0)"); p("s_barrier")
    l1 = p.uid("INA")
    p("s_cmp_lg_u32 s%d, 0" % sW); p("s_cbranch_scc1 %s" % l1)
    counter_add(p)
    p.label(l1)
    masked(2 * P1_X // 16, lambda: simple(P1, 40))
    p("v_lshrrev_b32 v7, 6, v5"); p("v_mul_u32_u24 v7, 52429, v7"); p("v_lshrrev_b32 v7, 18, v7")
    p("v_mul_u32_u24 v8, 320, v7"); p("v_sub_u32 v8, v5, v8"); p("v_lshlrev_b32 v48, 4, v8")
    p("v_lshl_add_u32 v49, v7, 13, v48")
    masked(128 * 320, lambda: (p("s_mov_b32 s%d, 0x%x" % (sT1, ML + ML_S)), p("buffer_store_dwordx4 v[40:43], v49, s[4:7], s%d offen sc1" % sT1)))
    read_cand(p, sC0, sC1)
    p("s_lshl_b32 s%d, s%d, 13" % (sC0, sC0)); p("s_lshl_b32 s%d, s%d, 13" % (sC1, sC1)); p("s_add_u32 s%d, s%d, 0x%x" % (sC1, sC1, MR_X))
    p("v_and_b32 v8, 1, v7"); p("v_cmp_eq_u32 vcc, 1, v8"); p("v_mov_b32 v8, s%d" % sC0); p("v_mov_b32 v9, s%d" % sC1)
    p("v_cndmask_b32 v8, v8, v9, vcc"); p("v_lshrrev_b32 v9, 1, v7"); p("v_lshl_add_u32 v8, v9, 15, v8"); p("v_add_u32 v49, v8, v48")
    p("v_cmp_le_u32 vcc, 640, v5"); p("v_mov_b32 v9, 0x%x" % OOB); p.nop(1); p("v_cndmask_b32 v49, v9, v49, vcc")
    masked(128 * 320, lambda: (p("s_mov_b32 s%d, 0x%x" % (sT1, MR)), p("buffer_store_dwordx4 v[40:43], v49, s[4:7], s%d offen sc1" % sT1)))
    l = p.uid("INM1")
    p("s_cmp_ge_u32 s%d, 10" % sHI); p("s_cbranch_scc1 %s" % l)
    p("s_cmp_ge_u32 s%d, 2" % sW); p("s_cbranch_scc1 %s" % l)
    p("s_cmp_ge_u32 s%d, 5" % sHI); p("s_cselect_b32 s36, 1, 0")
    p("s_mul_i32 s%d, s36, 5" % sT0); p("s_sub_u32 s%d, s%d, s%d" % (sT0, sHI, sT0)); p("s_lshl_b32 s%d, s%d, 10" % (sT0, sT0))
    p("s_lshl_b32 s%d, s36, 13" % sT1); p("s_add_u32 s%d, s%d, 0x%x" % (sT1, sT1, ML))
    p("s_cmp_eq_u32 s36, 0"); p("s_cselect_b32 s37, s%d, s%d" % (sC0, sC1)); p("s_add_u32 s37, s37, 0x%x" % MR)
    p("s_cmp_eq_u32 s%d, 0" % sW); p("s_cselect_b32 s%d, s%d, s37" % (sT1, sT1)); p("s_add_u32 s%d, s%d, s%d" % (sT1, sT1, sT0))
    p("buffer_store_dwordx4 v[34:37], v3, s[4:7], s%d offen sc1" % sT1)
    p.label(l)
    if middle: middle(p)

def finish_init(p, sHI, sW):
    sT1 = 65
    p("s_waitcnt vmcnt(0)"); p("s_barrier")
    l = p.uid("INE")
    p("s_cmp_lg_u32 s%d, 0" % sW); p("s_cbranch_scc1 %s" % l)
    l2 = p.uid("ING")
    p("s_cmp_lg_u32 s%d, %d" % (sHI, (FLG_MEM - CTL) // 4096)); p("s_cbranch_scc1 %s" % l2)
    p("v_mov_b32 v44, 1"); p("v_lshlrev_b32 v6, 7, v0"); p("s_mov_b32 s%d, 0x%x" % (sT1, FLG_MEM)); p("s_mov_b64 exec, 3")
    p("buffer_store_dword v44, v6, s[4:7], s%d offen sc1" % sT1); p("s_mov_b64 exec, -1"); p("s_waitcnt vmcnt(0)")
    p.label(l2)
    p("v_mov_b32 v8, 1"); p("s_mov_b32 s%d, 0x%x" % (sT1, INITB)); p("s_mov_b64 exec, 1")
    p("buffer_atomic_add v8, off, s[4:7], s%d sc1" % sT1); p("s_mov_b64 exec, -1")
    p.label(l)

def wait_second(p, name="RB"):
    l = p.uid(name); ld = p.uid(name + "D")
    p("s_mov_b32 s65, 0"); p("s_mov_b32 s66, 0x%x" % INITB)
    p.label(l)
    p("buffer_load_dword v8, off, s[4:7], s66 sc1"); p("s_add_u32 s65, s65, 1"); p("s_waitcnt vmcnt(0)")
    p("v_readfirstlane_b32 s64, v8"); p("s_cmp_ge_u32 s64, %d" % NHELP); p("s_cbranch_scc1 %s" % ld)
    p("s_cmp_gt_u32 s65, %d" % (1 << 16)); p("s_cbranch_scc1 %s" % ld)
    p("s_sleep 8"); p("s_branch %s" % l)
    p.label(ld)
```

```python
from asm import *
from layout import *
import gemm
from gemm import sWS, sH, sW, wf

sI, sSRC, sDST, sFL, sMF, sSPIN, sSRC1 = 24, 25, 26, 27, 28, 29, 30
sT0, sT1, sT2 = 64, 65, 66
SPIN_MAX = 1 << 18
import os
RECLAST = int(os.environ.get('RECLAST', '1'))
SLEEP = int(os.environ.get('SLEEP', '1'))
vL16, vSRCV, vDSTV = 1, 2, 3
vF = 16
aACC = 0

def spin_flags(p, vdst, n, vaddr, soff, cond_all_lanes, name):
    l = p.uid(name); ld = p.uid(name + "D")
    p.label(l)
    p("buffer_load_dword v%d, v%d, s[%d:%d], s%d offen sc1" % (vdst, vaddr, sWS, sWS + 3, soff))
    p("s_add_u32 s%d, s%d, 1" % (sSPIN, sSPIN))
    p("s_waitcnt vmcnt(0)")
    p("v_cmp_eq_u32 vcc, 0, v%d" % vdst)
    p("s_cbranch_vccz %s" % ld)
    p("s_cmp_gt_u32 s%d, %d" % (sSPIN, SPIN_MAX)); p("s_cbranch_scc1 %s" % ld)
    p("s_sleep %d" % SLEEP)
    p("s_branch %s" % l)
    p.label(ld)

def emit_mkv(p, kind, name, read_cand=None, hook=None, hook_it=10):
    mat = 0 if kind == "T" else 1
    p("s_mov_b32 s%d, 0" % sSPIN)
    p("v_lshlrev_b32 v%d, 4, v0" % vL16)
    if read_cand: read_cand(p, sT2, 67); p("s_mov_b32 s%d, s%d" % (sT0, sT2)); p("s_mov_b32 s%d, s67" % sT1)
    else:
        p("s_mov_b32 s%d, 0x%x" % (sT0, CANDW))
        p("buffer_load_dwordx2 v[4:5], off, s[%d:%d], s%d sc1" % (sWS, sWS + 3, sT0)); p("s_waitcnt vmcnt(0)")
        p("v_readfirstlane_b32 s%d, v4" % sT0); p("v_readfirstlane_b32 s%d, v5" % sT1)
    for r_ in (sT0, sT1): p("s_and_b32 s%d, s%d, 3" % (r_, r_)); p("s_lshl_b32 s%d, s%d, 13" % (r_, r_))
    p("s_add_u32 s%d, s%d, 0x%x" % (sSRC, sT0, MR)); p("s_add_u32 s%d, s%d, 0x%x" % (sSRC1, sT1, MR + MR_X))
    p("v_bfe_u32 v4, v0, 3, 1"); p("v_mul_u32_u24 v%d, 0x%x, v4" % (vSRCV, MR_S))
    p("v_lshrrev_b32 v4, 5, v0"); p("v_lshl_add_u32 v%d, v4, 8, v%d" % (vSRCV, vSRCV))
    p("v_bfe_u32 v4, v0, 4, 1"); p("v_lshl_add_u32 v%d, v4, 7, v%d" % (vSRCV, vSRCV))
    p("v_and_b32 v4, 7, v0"); p("v_lshl_add_u32 v%d, v4, 4, v%d" % (vSRCV, vSRCV))
    if kind == "T":
        p("v_bfe_u32 v4, v0, 3, 1"); p("v_lshlrev_b32 v%d, 16, v4" % vDSTV)
        p("v_lshrrev_b32 v4, 4, v0"); p("v_lshl_add_u32 v%d, v4, 7, v%d" % (vDSTV, vDSTV))
        p("v_and_b32 v4, 7, v0"); p("v_lshl_add_u32 v%d, v4, 4, v%d" % (vDSTV, vDSTV))
        p("s_lshl_b32 s%d, s%d, 11" % (sDST, sH)); p("s_lshl_b32 s%d, s%d, 9" % (sT0, sW))
        p("s_add_u32 s%d, s%d, s%d" % (sDST, sDST, sT0)); p("s_add_u32 s%d, s%d, 0x%x" % (sDST, sDST, KMF))
    else:
        p("v_lshrrev_b32 v4, 5, v0"); p("v_lshlrev_b32 v%d, 16, v4" % vDSTV)
        p("v_bfe_u32 v4, v0, 4, 1"); p("v_lshl_add_u32 v%d, v4, 7, v%d" % (vDSTV, vDSTV))
        p("v_and_b32 v4, 15, v0"); p("v_lshl_add_u32 v%d, v4, 3, v%d" % (vDSTV, vDSTV))
        p("s_lshl_b32 s%d, s%d, 11" % (sDST, sH)); p("s_lshl_b32 s%d, s%d, 9" % (sT0, sW))
        p("s_add_u32 s%d, s%d, s%d" % (sDST, sDST, sT0)); p("s_add_u32 s%d, s%d, 0x%x" % (sDST, sDST, VMF))
    p("s_lshl_b32 s%d, s%d, 3" % (sFL, sH)); p("s_add_u32 s%d, s%d, 0x%x" % (sFL, sFL, FLG_KM + 4 * mat))
    p("s_mov_b32 s%d, 0x%x" % (sMF, FLG_MEM))
    p("s_mov_b32 s%d, 0" % sI)
    p("v_lshlrev_b32 v6, 7, v0")
    loop = name + "_LOOP"
    p.label(loop)
    if hook:
        lh = p.uid("MKH")
        p("s_cmp_lg_u32 s%d, %d" % (sI, hook_it)); p("s_cbranch_scc1 %s" % lh)
        p("v_mov_b32 v10, v%d" % vSRCV); p("v_mov_b32 v11, v%d" % vDSTV)
        hook(p)
        p("v_mov_b32 v%d, v10" % vSRCV); p("v_mov_b32 v%d, v11" % vDSTV)
        p.label(lh)
    if RECLAST:
        ll = p.uid("MKL")
        p("s_cmp_lg_u32 s%d, 31" % sI); p("s_mov_b64 exec, 0xf"); p("s_cbranch_scc1 %s" % ll)
        p("s_mov_b64 exec, -1")
        p("v_bfe_u32 v4, v0, 3, 1"); p("v_mul_u32_u24 v4, 0x%x, v4" % MR_S); p("v_sub_u32 v%d, v%d, v4" % (vSRCV, vSRCV))
        p("s_mov_b64 exec, 3")
        p.label(ll)
    else: p("s_mov_b64 exec, 0xf")
    spin_flags(p, 5, 4, 6, sMF, True, name + "_M")
    p("s_mov_b64 exec, -1")
    lr = p.uid("MKR"); lo = p.uid("MKO")
    p.label(lr)
    for ks in range(20):
        x, k1 = divmod(ks, 10)
        p("s_add_u32 s%d, s%d, 0x%x" % (sT0, (sSRC, sSRC1)[x], (k1 // 2) * 1024 + (k1 % 2) * 512))
        p("buffer_load_dwordx4 %s, v%d, s[%d:%d], s%d offen sc1" % (vr(vF + 4 * ks, 4), vSRCV, sWS, sWS + 3, sT0))
    p("s_add_u32 s%d, s%d, 1" % (sSPIN, sSPIN))
    p("s_waitcnt vmcnt(0)")
    p("v_max3_u32 v4, v%d, v%d, v%d" % (vF + 3, vF + 7, vF + 11))
    for k in range(3, 19, 2): p("v_max3_u32 v4, v4, v%d, v%d" % (vF + 4 * k + 3, vF + 4 * k + 7))
    p("v_max_u32 v4, v4, v%d" % (vF + 4 * 19 + 3))
    p("v_cmp_eq_u32 vcc, -1, v4")
    p("s_cbranch_vccz %s" % lo)
    p("s_cmp_gt_u32 s%d, %d" % (sSPIN, SPIN_MAX)); p("s_cbranch_scc0 %s" % lr)
    p.label(lo)
    A0, A1 = 8, 12
    for ks in range(20):
        for tt, acc in ((0, A0), (1, A1)):
            c = "0" if ks == 0 else vr(acc, 4)
            w_, x_ = vr(wf(ks, tt), 4), vr(vF + 4 * ks, 4)
            if kind == "T": p("v_mfma_f32_16x16x32_bf16 %s, %s, %s, %s" % (vr(acc, 4), w_, x_, c))
            else: p("v_mfma_f32_16x16x32_bf16 %s, %s, %s, %s" % (vr(acc, 4), x_, w_, c))
    p.nop(8)
    p("v_cvt_pk_bf16_f32 v16, v%d, v%d" % (A0, A0 + 1)); p("v_cvt_pk_bf16_f32 v17, v%d, v%d" % (A0 + 2, A0 + 3))
    p("v_cvt_pk_bf16_f32 v18, v%d, v%d" % (A1, A1 + 1)); p("v_cvt_pk_bf16_f32 v19, v%d, v%d" % (A1 + 2, A1 + 3))
    if kind == "T":
        p("buffer_store_dwordx4 v[16:19], v%d, s[%d:%d], s%d offen sc1" % (vDSTV, sWS, sWS + 3, sDST))
    else:
        p("buffer_store_dwordx2 v[16:17], v%d, s[%d:%d], s%d offen sc1" % (vDSTV, sWS, sWS + 3, sDST))
        p("buffer_store_dwordx2 v[18:19], v%d, s[%d:%d], s%d offen offset:256 sc1" % (vDSTV, sWS, sWS + 3, sDST))
    p("s_waitcnt vmcnt(0)"); p("s_barrier")
    gemm.flag_store(p, sFL)
    p("s_add_u32 s%d, s%d, 0x%x" % (sSRC, sSRC, 2 * MR_S)); p("s_add_u32 s%d, s%d, 0x%x" % (sSRC1, sSRC1, 2 * MR_S)); p("s_add_u32 s%d, s%d, 0x%x" % (sDST, sDST, 2 * 65536))
    p("s_add_u32 s%d, s%d, 256" % (sFL, sFL)); p("s_add_u32 s%d, s%d, 512" % (sMF, sMF))
    p("s_add_u32 s%d, s%d, 1" % (sI, sI)); p("s_cmp_lt_u32 s%d, 32" % sI); p("s_cbranch_scc1 %s" % loop)
```

```python
from asm import *
from layout import *

sWS = 4
sX, sH, sW, sSTEP, sTAG = 12, 13, 14, 15, 16
sMLC, sMLST, sMLRS, sMRC, sMRST, sMRRS = 17, 18, 19, 20, 21, 22
sP1W = 23
sP1R = 24
sP1W1, sP1W2, sLINE = 25, 26, 27
sKFN, sVFN, sKM, sVM = 28, 29, 30, 31
sM8 = 32
sLO32 = 34
sOWN4 = 36
sC = 10
sBC, sBN, sBP = 39, 40, 41
sISOWN, sISPUB = 42, 43
sWQ, sWK, sWV, sWO = 44, 48, 52, 56
sCML, sCMLU, sCMRR, sCMRU = 60, 61, 62, 63
sT0, sT1, sT2, sT3 = 64, 65, 66, 67
sSPIN = 68
sFLG = 69
sFKM = 70
sLOC, sREM = 71, 72
sMLC4, sMRC4 = 74, 75
sCA, sCB = 8, 9
sM0K, sWARM = 73, 3
s3F80 = 38
sSEL = 44
sTS = 76
SPIN_MAX = 1 << 18
import os
DELAY1 = int(os.environ.get('DELAY1', '30'))
PACE = int(os.environ.get('PACE', '0'))
DELAY2 = int(os.environ.get('DELAY2', '0'))
PF = int(os.environ.get('PF', '1'))
T4NOP = int(os.environ.get('T4NOP', '1'))
B2BF = int(os.environ.get('B2BF', '0'))
DELAY1B = int(os.environ.get('DELAY1B', '0'))
MRLATE = int(os.environ.get('MRLATE', '3'))
ARLATE = int(os.environ.get('ARLATE', '0'))
TIMED = int(os.environ.get('TIMED', '1'))
TD0 = int(os.environ.get('TD0', '15'))
TD = int(os.environ.get('TD', '8'))
TFILL = int(os.environ.get('TFILL', '0'))
TFIRST = int(os.environ.get('TFIRST', '1'))
MRD = int(os.environ.get('MRD', '45'))
NLDS = int(os.environ.get('NLDS', '2'))
RTPOS = int(os.environ.get('RTPOS', '0'))
TD2 = int(os.environ.get('TD2', '12'))
FOLDX = int(os.environ.get('FOLDX', '0'))
EARLYF = int(os.environ.get('EARLYF', '3'))
ROWP = int(os.environ.get('ROWP', '1'))
RECLAST = int(os.environ.get('RECLAST', '1'))
POLLN = int(os.environ.get('POLLN', '3'))
POLLDELAY = int(os.environ.get('POLLDELAY', '0'))
OWN2 = int(os.environ.get('OWN2', '1'))
OSTAG = int(os.environ.get('OSTAG', '8'))
sCNT2 = 53
sFINW = 55
sKVD, sKVC = 58, 59
sPCH = 52
RTOUCH = int(os.environ.get('RTOUCH', '1'))
MRFIRST = int(os.environ.get('MRFIRST', '0'))
STAMPS = os.environ.get('STAMPS', '').split(',')
FIRST_FLAGS = os.environ.get('FIRST', '')
TOUCH = int(os.environ.get('TOUCH', '1'))
REALTIME = int(os.environ.get('REALTIME', '0'))
PUB = int(os.environ.get('PUB', '0'))
COUNT = 1
NSAMP = int(os.environ.get('NSAMP', '2'))
FORCECAND = int(os.environ.get('FORCECAND', '0'))
TRACE = int(os.environ.get('TRACE', '0'))
TRC = 0x5C00000
sTRP = 54
sCNT = 40
TOUCHR = int(os.environ.get('TOUCHR', '1'))
sTR = 41
sMFL = 22
TRA = int(os.environ.get('TRA', '1'))
B2B = int(os.environ.get('B2B', '1'))
KPOS = int(os.environ.get('KPOS', '1'))
WSTR = int(os.environ.get('WSTR', '64'))
ALS = int(os.environ.get('ALS', '0'))
NOCHECK = bool(int(os.environ.get('NOCHECK', '0')))

vL16, vLW, vTW, vTR, vOW, vIDX, vPS = 1, 2, 3, 4, 5, 6, 7
vOR = 0
vX0 = 8
vA = 12
vQ0, vQ1, vK0, vK1, vV0, vV1 = 32, 36, 40, 44, 48, 52
vSB = 56
vVX = 88
vWQ = 96
aWV, aWO, aWK4 = 0, 160, 240

L_KX = 0
L_QT = 8192
G2OFF = 1152
L_KT = L_QT + 2304
L_O = L_KT + 2304
OSTR = 288
L_JUNK = 16128
L_FLG = 15104
L_IM2 = 15104
L_W = 16384
L_WSTRIDE = 36864

def unit_q(j, tt): return vr(vWQ + (j * 2 + tt) * 8, 8)
def unit_k9(tt): return ar(aWK4 + 8 * tt, 8)
def unit_v(j, tt): return ar(aWV + (j * 2 + tt) * 8, 8)
def unit_wo_pair(P, c): return ar(aWO + P * 32 + c * 8, 8)
def unit_wo4(c): return ar(aWO + 64 + c * 4, 4)
ACCQK = [vQ0, vQ1, vK0, vK1]

def smf(p, acc, a, b): p("v_smfmac_f32_16x16x64_bf16 %s, %s, %s, v%d" % (vr(acc, 4), vr(a, 4), b, vIDX))

def add_const(p, dst, src, const):
    p("s_add_u32 s%d, s%d, 0x%x" % (dst, src, const & 0xFFFFFFFF))

def setup_consts(p):
    p("v_and_b32 v0, 63, v0")
    p("v_lshlrev_b32 v%d, 4, v0" % vL16)
    p("s_mul_i32 s%d, s%d, %d" % (sT0, sW, L_WSTRIDE))
    p("s_add_u32 s%d, s%d, %d" % (sT0, sT0, L_W))
    p("v_add_u32 v%d, s%d, v%d" % (vLW, sT0, vL16))
    p("v_bfe_u32 v8, v0, 4, 1")
    p("v_mul_u32_u24 v8, %d, v8" % G2OFF)
    p("v_lshrrev_b32 v9, 5, v0")
    p("v_lshlrev_b32 v9, 4, v9")
    p("v_and_b32 v10, 15, v0")
    p("v_add_u32 v9, v9, v10")
    p("s_lshl_b32 s%d, s%d, 5" % (sT0, sW))
    p("v_add_u32 v9, s%d, v9" % sT0)
    p("v_lshl_add_u32 v8, v9, 3, v8")
    p("v_add_u32 v%d, %d, v8" % (vTW, L_QT))
    p("v_and_b32 v8, 1, v0")
    p("v_mul_u32_u24 v8, %d, v8" % G2OFF)
    p("v_lshrrev_b32 v9, 4, v0")
    p("v_lshlrev_b32 v9, 2, v9")
    p("v_bfe_u32 v10, v0, 2, 2")
    p("v_add_u32 v9, v9, v10")
    p("v_lshl_add_u32 v8, v9, 3, v8")
    p("v_add_u32 v%d, %d, v8" % (vTR, L_QT))
    p("v_and_b32 v8, 7, v0"); p("v_mul_u32_u24 v8, %d, v8" % OSTR)
    p("v_bfe_u32 v9, v0, 3, 1"); p("v_lshl_add_u32 v8, v9, 5, v8")
    p("v_lshrrev_b32 v9, 4, v0"); p("v_lshl_add_u32 v8, v9, 3, v8")
    p("s_lshl_b32 s%d, s%d, 6" % (sT0, sW)); p("s_add_u32 s%d, s%d, %d" % (sT0, sT0, L_O))
    p("v_add_u32 v%d, s%d, v8" % (vOW, sT0))
    p("s_mov_b32 s%d, 0x00ff00ff" % sM8); p("s_mov_b32 s%d, 0x00ff00ff" % (sM8 + 1))
    p("s_mov_b32 s%d, -1" % sLO32); p("s_mov_b32 s%d, 0" % (sLO32 + 1))
    p("s_mov_b32 s%d, 0x00010001" % sOWN4); p("s_mov_b32 s%d, 0x00010001" % (sOWN4 + 1))
    p("v_mov_b32 v8, 0xeeee")
    p("v_mov_b32 v9, 0x4444")
    p("v_cndmask_b32 v%d, v8, v9, s[%d:%d]" % (vIDX, sM8, sM8 + 1))
    p("v_lshrrev_b32 v8, 5, v0"); p("v_lshlrev_b32 v8, 13, v8")
    p("v_bfe_u32 v9, v0, 3, 1"); p("v_lshl_add_u32 v8, v9, 12, v8")
    p("v_and_b32 v9, 7, v0"); p("v_lshl_add_u32 v8, v9, 4, v8")
    p("v_bfe_u32 v9, v0, 4, 1"); p("v_lshl_add_u32 v%d, v9, 3, v8" % vPS)
    p("s_mov_b32 s%d, 0x3e0293ee" % sC); p("s_mov_b32 s%d, 0x3e0293ee" % (sC + 1))
    p("s_cmp_eq_u32 s%d, 0" % sW); p("s_cselect_b32 s%d, 1, 0" % sISOWN)
    p("s_cmp_ge_u32 s%d, 24" % sH); p("s_cselect_b32 s%d, 1, 0" % sT1)
    p("s_cmp_eq_u32 s%d, 1" % sW); p("s_cselect_b32 s%d, s%d, 0" % (sT1, sT1))
    p("s_or_b32 s%d, s%d, s%d" % (sISOWN, sISOWN, sT1))
    p("s_lshl_b32 s%d, s%d, 3" % (sT1, sT1)); p("s_add_u32 s%d, s%d, s%d" % (sT0, sH, sT1))
    p("s_cmp_eq_u32 s%d, 39" % sT0); p("s_cselect_b32 s%d, s%d, 0" % (sMFL, sISOWN))
    p("s_mul_i32 s%d, s%d, %d" % (sP1R, sX, P1_X))
    p("s_add_u32 s%d, s%d, 0x%x" % (sP1R, sP1R, P1))
    p("s_lshl_b32 s%d, s%d, 7" % (sT3, sH)); p("s_add_u32 s%d, s%d, s%d" % (sP1W2, sP1R, sT3))
    p("s_lshl_b32 s%d, s%d, 14" % (sT3, sW)); p("s_add_u32 s%d, s%d, s%d" % (sP1W, sP1W2, sT3))
    add_const(p, sP1W1, sP1W, 8 * 8192)
    p("s_lshl_b32 s%d, s%d, 13" % (sT3, sW)); p("s_add_u32 s%d, s%d, s%d" % (sP1W2, sP1W2, sT3)); add_const(p, sP1W2, sP1W2, 16 * 8192)
    p("s_lshl_b32 s%d, s%d, 12" % (sT3, sT0)); p("s_add_u32 s%d, s%d, s%d" % (sP1R, sP1R, sT3))
    p("s_lshl_b32 s%d, s%d, 7" % (sT0, sT0))
    p("s_lshl_b32 s%d, s%d, 13" % (sT1, sX))
    add_const(p, sMLC, sT1, ML)
    p("s_add_u32 s%d, s%d, s%d" % (sMLST, sMLC, sT0))
    p("s_lshl_b32 s%d, s%d, 21" % (sT1, sX))
    add_const(p, sT2, sT1, MR)
    p("s_add_u32 s%d, s%d, s%d" % (sMRST, sT2, sT0))
    p("s_xor_b32 s%d, s%d, 0x%x" % (sT1, sT1, MR_X))
    add_const(p, sMRC, sT1, (MR - MR_S) & 0xFFFFFFFF)
    p("s_and_b32 s%d, s%d, 1" % (sT0, sH))
    p("s_cmp_eq_u32 s%d, s%d" % (sT0, sX))
    p("s_cselect_b32 s%d, 1, 0" % sISPUB)
    if not PUB: p("s_mov_b32 s%d, 0" % sISPUB)
    p("s_lshl_b32 s%d, s%d, 4" % (sT0, sH))
    add_const(p, sFLG, sT0, FLG_KVQ)
    p("s_lshl_b32 s%d, s%d, 2" % (sT0, sH))
    add_const(p, sFKM, sT0, FLG_KM)
    p("s_lshl_b32 s%d, s%d, 14" % (sT0, sH))
    p("s_lshl_b32 s%d, s%d, 11" % (sM0K, sW))
    p("s_lshl_b32 s%d, s%d, 12" % (sT1, sW))
    p("s_add_u32 s%d, s%d, s%d" % (sT1, sT1, sT0))
    add_const(p, sWARM, sT1, KF + 2 * KV_S)
    p("s_add_u32 s%d, s%d, s%d" % (sT0, sT0, sM0K))
    add_const(p, sKFN, sT0, KF)
    add_const(p, sVFN, sT0, VF)
    p("s_lshl_b32 s%d, s%d, 11" % (sT0, sH))
    add_const(p, sKM, sT0, KM)
    p("s_lshl_b32 s%d, s%d, 12" % (sT0, sH))
    p("s_lshl_b32 s%d, s%d, 10" % (sT1, sW))
    p("s_add_u32 s%d, s%d, s%d" % (sT0, sT0, sT1))
    add_const(p, sVM, sT0, VM)

def setup_vor(p):
    if TRACE:
        p("s_lshl_b32 s%d, s%d, 5" % (sTRP, sX)); p("s_add_u32 s%d, s%d, s%d" % (sTRP, sTRP, sH)); p("s_lshl_b32 s%d, s%d, 2" % (sTRP, sTRP))
        p("s_add_u32 s%d, s%d, s%d" % (sTRP, sTRP, sW)); p("s_lshl_b32 s%d, s%d, 12" % (sTRP, sTRP)); add_const(p, sTRP, sTRP, TRC)
    p("s_mov_b32 s%d, 0x3f80" % s3F80); p("s_mov_b32 s%d, 0" % sCNT2)
    p("s_cmp_eq_u32 s%d, 2" % sW); p("s_cselect_b32 s%d, 1024, 0" % sPCH)
    p("s_cmp_eq_u32 s%d, 3" % sW); p("s_cselect_b32 s%d, 0, 1" % sKVD); p("s_mov_b32 s%d, 0" % sKVC)
    p("s_or_b32 s%d, s%d, s%d" % (sT0, sW, sX)); p("s_cmp_eq_u32 s%d, 0" % sT0); p("s_cselect_b32 s%d, 2, 0" % sFINW)
    for r_ in range(4):
        m_ = 0x03030303 << (2 * r_)
        p("s_mov_b32 s%d, 0x%x" % (sSEL + 2 * r_, m_)); p("s_mov_b32 s%d, 0x%x" % (sSEL + 2 * r_ + 1, m_))
    p("v_and_b32 v8, 7, v0"); p("v_mul_u32_u24 v8, %d, v8" % OSTR)
    p("v_lshrrev_b32 v9, 4, v0"); p("v_lshl_add_u32 v8, v9, 4, v8")
    p("v_add_u32 v%d, %d, v8" % (vOR, L_O))

def finish_consts(p):
    p("s_add_u32 s%d, s%d, s%d" % (sMRST, sMRST, sT0))
    p("s_add_u32 s%d, s%d, s%d" % (sMRC, sMRC, sT2))
    p("s_cmp_eq_u32 s%d, 0" % sISOWN)
    p("s_cselect_b32 s%d, 0x%x, s%d" % (sMLST, OOB, sMLST))
    p("s_cselect_b32 s%d, 0x%x, s%d" % (sMRST, OOB, sMRST))
    p("s_lshl_b32 s%d, s%d, 7" % (sT1, sX)); add_const(p, sT1, sT1, FLG_MEM)
    p("s_cmp_eq_u32 s%d, 0" % sMFL); p("s_cselect_b32 s%d, 0x%x, s%d" % (sMFL, OOB, sT1))
    p("s_lshl_b32 s%d, s%d, 2" % (sT0, sH)); p("s_add_u32 s%d, s%d, s%d" % (sT0, sT0, sW))
    for _ in range(3):
        p("s_cmp_ge_u32 s%d, 40" % sT0); p("s_cselect_b32 s%d, 40, 0" % sT1); p("s_sub_u32 s%d, s%d, s%d" % (sT0, sT0, sT1))
    p("s_lshl_b32 s%d, s%d, 7" % (sLINE, sT0)); add_const(p, sMLRS, sLINE, ML_S)

def load_weights(p, st=None, after_first=None, looks=None):
    vm = Counter(p, "vmcnt", 63)
    vG, vGP, vGO, vSR0, vSR1, vSRP, vSRO = 88, 89, 90, 91, 92, 93, 94
    t = 95
    sRB = sBN
    p("s_mul_i32 s%d, s%d, %d" % (sRB, sW, L_WSTRIDE)); p("s_add_u32 s%d, s%d, %d" % (sRB, sRB, L_W))
    assert ROWP
    vGR = [76, 77, 78, 79]; vRR = [[72, 73], [74, 75]]
    if ROWP:
        p("v_lshrrev_b32 v%d, 4, v0" % t); p("v_lshlrev_b32 v8, 13, v%d" % t)
        p("v_and_b32 v%d, 1, v%d" % (t, t)); p("v_lshlrev_b32 v%d, 1, v%d" % (t, t))
        p("v_and_b32 v9, 15, v0"); p("v_xor_b32 v9, v9, v%d" % t)
        for a in range(4):
            fa = ((a & 1) << 2) | ((a >> 1) << 3)
            p("v_xor_b32 v%d, %d, v9" % (t, fa)); p("v_lshl_add_u32 v%d, v%d, 4, v8" % (vGR[a], t))
    p("s_lshl_b32 s%d, s%d, 8" % (sT0, sH)); p("s_lshl_b32 s%d, s%d, %d" % (sT1, sW, 17 if ROWP else 6))
    p("s_add_u32 s%d, s%d, s%d" % (sT0, sT0, sT1))
    p("s_mul_i32 s%d, s%d, %d" % (sT1, sX, 5 * 524288))
    p("s_add_u32 s%d, s%d, s%d" % (sLOC, sT0, sT1))
    p("s_sub_u32 s%d, %d, s%d" % (sT1, 5 * 524288, sT1))
    p("s_add_u32 s%d, s%d, s%d" % (sREM, sT0, sT1))
    sWOB, sWOB4 = sBC, sBP
    def late_addresses():
        if ROWP:
            p("v_lshrrev_b32 v%d, 5, v0" % t); p("v_mul_u32_u24 v8, %d, v%d" % (L_WSTRIDE, t))
            p("v_bfe_u32 v%d, v0, 3, 1" % t); p("v_lshl_add_u32 v8, v%d, 11, v8" % t); p("v_lshlrev_b32 v9, 3, v%d" % t)
            p("v_bfe_u32 v%d, v0, 4, 1" % t); p("v_lshl_add_u32 v8, v%d, 10, v8" % t); p("v_lshl_add_u32 v9, v%d, 2, v9" % t)
            p("v_bfe_u32 v%d, v0, 2, 1" % t); p("v_lshl_add_u32 v8, v%d, 8, v8" % t); p("v_lshl_add_u32 v9, v%d, 1, v9" % t)
            p("v_and_b32 v%d, 1, v0" % t); p("v_lshl_add_u32 v8, v%d, 3, v8" % t)
            p("v_add_u32 v8, %d, v8" % L_W)
            p("v_bfe_u32 v%d, v0, 1, 1" % t); p("s_lshl_b32 s%d, s%d, 2" % (sT0, sW)); p("v_add_u32 v10, s%d, v%d" % (sT0, t))
            for tt in range(2):
                p("v_add_u32 v%d, %d, v10" % (t, 2 * tt)); p("v_xor_b32 v%d, v%d, v9" % (t, t))
                p("v_lshl_add_u32 v%d, v%d, 4, v8" % (vRR[tt][0], t))
                p("v_add_u32 v%d, %d, v%d" % (vRR[tt][1], 2 * L_WSTRIDE, vRR[tt][0]))
        p("v_bfe_u32 v%d, v0, 2, 1" % t); p("v_mov_b32 v8, v%d" % t)
        p("v_bfe_u32 v%d, v0, 3, 1" % t); p("v_lshl_add_u32 v8, v%d, 2, v8" % t)
        p("v_bfe_u32 v%d, v0, 4, 1" % t); p("v_lshl_add_u32 v8, v%d, 1, v8" % t)
        p("v_bfe_u32 v%d, v0, 5, 1" % t); p("v_lshl_add_u32 v8, v%d, 3, v8" % t)
        p("v_mul_u32_u24 v8, 1280, v8"); p("v_and_b32 v%d, 3, v0" % t); p("v_lshl_add_u32 v%d, v%d, 4, v8" % (vGP, t))
        p("v_lshrrev_b32 v%d, 1, v0" % t); p("v_mul_u32_u24 v8, 1280, v%d" % t)
        p("v_and_b32 v%d, 1, v0" % t); p("v_lshl_add_u32 v%d, v%d, 4, v8" % (vGO, t))
        p("v_lshrrev_b32 v%d, 5, v0" % t); p("v_lshlrev_b32 v%d, 9, v%d" % (vSRP, t))
        p("v_bfe_u32 v%d, v0, 4, 1" % t); p("v_lshl_add_u32 v%d, v%d, 7, v%d" % (vSRP, t, vSRP))
        p("v_bfe_u32 v%d, v0, 2, 1" % t); p("v_lshl_add_u32 v%d, v%d, 6, v%d" % (vSRP, t, vSRP))
        p("v_bfe_u32 v%d, v0, 3, 1" % t); p("v_lshl_add_u32 v%d, v%d, 5, v%d" % (vSRP, t, vSRP))
        p("v_and_b32 v%d, 3, v0" % t); p("v_lshl_add_u32 v%d, v%d, 3, v%d" % (vSRP, t, vSRP))
        p("v_add_u32 v%d, s%d, v%d" % (vSRP, sRB, vSRP))
        p("v_lshrrev_b32 v%d, 4, v0" % t); p("v_lshlrev_b32 v%d, 8, v%d" % (vSRO, t))
        p("v_bfe_u32 v%d, v0, 2, 2" % t); p("v_lshl_add_u32 v%d, v%d, 5, v%d" % (vSRO, t, vSRO))
        p("v_and_b32 v%d, 3, v0" % t); p("v_lshl_add_u32 v%d, v%d, 3, v%d" % (vSRO, t, vSRO))
        p("v_add_u32 v%d, s%d, v%d" % (vSRO, sRB, vSRO))
        _ = 0
        p("s_mul_i32 s%d, s%d, %d" % (sWOB, sH, 128 * 1280))
        p("s_mul_i32 s%d, s%d, 640" % (sT0, sX)); p("s_add_u32 s%d, s%d, s%d" % (sWOB, sWOB, sT0))
        p("s_lshl_b32 s%d, s%d, 5" % (sT0, sW)); p("s_add_u32 s%d, s%d, s%d" % (sWOB4, sWOB, sT0)); add_const(p, sWOB4, sWOB4, 512)
        p("s_lshl_b32 s%d, s%d, 6" % (sT0, sW)); p("s_add_u32 s%d, s%d, s%d" % (sWOB, sWOB, sT0))

    R = []
    for j in range(10): R.append(dict(mat="q", j=j, acc=False, base=vWQ + j * 16, lds=False))
    R.append(dict(mat="k", j=9, acc=True, base=aWK4, lds=False))
    for j in range(10): R.append(dict(mat="v", j=j, acc=True, base=aWV + j * 16, lds=False))
    for P in range(2):
        for g2 in range(2): R.append(dict(mat="op", j=(P, g2), acc=True, base=aWO + P * 32 + g2 * 16, lds=False))
    R.append(dict(mat="o", j=4, acc=True, base=aWO + 64, lds=False))
    order = list(R)
    for n, g in enumerate(order): g["slot"] = n % 9
    for i in range(9):
        slot = (len(R) + i) % 9
        order.append(dict(mat="k", j=slot, acc=False, base=12, lds=True, slot=slot))
    def rg(g, off, n): return (ar if g["acc"] else vr)(g["base"] + off, n)
    def issue(n):
        g = order[n]
        for a in range(4):
            p("s_add_u32 m0, s%d, %d" % (sRB, g["slot"] * 4096 + a * 1024))
            if g["mat"] == "o":
                add_const(p, sT0, sWOB4, a * 32 * 1280); v, srd = vGO, sWO
            elif g["mat"] == "op":
                P, g2 = g["j"]; add_const(p, sT0, sWOB, P * 256 + (64 * g2 + 16 * a) * 1280); v, srd = vGP, sWO
            else:
                j = g["j"]; add_const(p, sT0, sLOC if j < 5 else sREM, (j % 5) * 524288 + a * (32768 if ROWP else 131072))
                v, srd = (vGR[a] if ROWP else vG), {"q": sWQ, "k": sWK, "v": sWV}[g["mat"]]
            p("buffer_load_dwordx4 v%d, s[%d:%d], s%d offen lds" % (v, srd, srd + 3, sT0)); vm.issue(n)
    INFL = int(os.environ.get('INFL', '9'))
    PD = int(os.environ.get('PD', '0'))
    vPF = 87
    if PD: p("v_lshlrev_b32 v%d, 6, v0" % vPF)
    sPF = sBP + 0
    def touch(n):
        if PD == 0 or n >= len(order): return
        g = order[n]
        if g["mat"] not in ("q", "k", "v"): return
        p("s_mov_b32 m0, %d" % L_JUNK)
        jj = g["j"]
        p("s_add_u32 s%d, s%d, 0x%x" % (sT0, sPFL if jj < 5 else sPFR, (jj % 5) * 524288))
        srd = {"q": sWQ, "k": sWK, "v": sWV}[g["mat"]]
        p("buffer_load_dword v%d, s[%d:%d], s%d offen lds" % (vPF, srd, srd + 3, sT0)); vm.issue(("pf", n))
    sPFL, sPFR = 74, 75
    if PD:
        p("s_lshl_b32 s%d, s%d, 14" % (sT0, sH)); p("s_lshl_b32 s%d, s%d, 12" % (sT1, sW)); p("s_add_u32 s%d, s%d, s%d" % (sT0, sT0, sT1))
        p("s_mul_i32 s%d, s%d, %d" % (sT1, sX, 5 * 524288))
        p("s_add_u32 s%d, s%d, s%d" % (sPFL, sT0, sT1))
        p("s_sub_u32 s%d, %d, s%d" % (sT1, 5 * 524288, sT1))
        p("s_add_u32 s%d, s%d, s%d" % (sPFR, sT0, sT1))
    _issue = issue
    def issue(n):
        touch(n + PD)
        _issue(n)
    LEAD = INFL - 1 if ROWP else INFL
    for n in range(1, PD): touch(n)
    for n in range(LEAD): issue(n)
    late_addresses()
    if after_first: after_first(p)
    for n, g in enumerate(order):
        vm.wait(n)
        if ROWP:
            p("s_barrier")
            if n + LEAD < len(order): issue(n + LEAD)
            if looks and n in looks:
                for _ in range(looks[n](p)): vm.issue(("look", n))
        if st is not None: st.stamp("G%d" % n)
        so = g["slot"] * 4096
        for u in range(2):
            for pp in range(4):
                d = rg(g, u * 8 + 2 * pp, 2)
                if g["mat"] == "o": p("ds_read_b64_tr_b16 %s, v%d offset:%d" % (d, vSRO, so + (2 * u + pp // 2) * 1024 + (pp % 2) * 128))
                elif g["mat"] == "op": p("ds_read_b64_tr_b16 %s, v%d offset:%d" % (d, vSRP, so + (2 * u + pp // 2) * 1024 + (pp % 2) * 256))
                elif ROWP: p("ds_read_b64_tr_b16 %s, v%d offset:%d" % (d, vRR[u][pp // 2], so + (pp % 2) * 512))
                else: p("ds_read_b64_tr_b16 %s, v%d offset:%d" % (d, vSR0 if u == 0 else vSR1, so + (pp // 2) * 2048 + (pp % 2) * 512))
        p("s_waitcnt lgkmcnt(0)")
        if g["lds"]:
            if ROWP: p("s_barrier")
            for q in range(4):
                p("ds_write_b128 v%d, %s offset:%d" % (vLW, rg(g, 4 * q, 4), so + q * 1024))
            p("s_waitcnt lgkmcnt(0)")
        if not ROWP:
            if n + INFL < len(order): issue(n + INFL)
            if looks and n in looks:
                for _ in range(looks[n](p)): vm.issue(("look", n))

FIN = dict(vQ=96, vV=128, vK=160, vKM=192, vVM=208, vS=224, vSUM=244, vONE=252, vP=16, vO=32)

def emit_final(p):
    import att
    p.label("REC_FINAL")
    p("s_cmp_lg_u32 s%d, 0" % sX); p("s_cbranch_scc1 REC_END")
    p("s_waitcnt lgkmcnt(0)")
    for j in range(2, 5): smf(p, vV0, vA + 4 * j, unit_v(5 + j, 0)); smf(p, vV1, vA + 4 * j, unit_v(5 + j, 1))
    for kk in range(4):
        for r in range(2):
            p("ds_read_b64_tr_b16 %s, v%d offset:%d" % (vr(FIN["vKM"] + 4 * kk + 2 * r, 2), vTR, L_KT - L_QT + 256 * kk + 128 * r))
    for f in range(8): p("ds_read_b128 %s, v%d offset:%d" % (vr(FIN["vK"] + 4 * f, 4), vL16, L_KX + f * 1024))
    t = vX0
    p("v_lshrrev_b32 v%d, 1, v%d" % (t, vL16)); p("s_lshl_b32 s%d, s%d, 9" % (sT0, sW)); p("v_add_u32 v%d, s%d, v%d" % (t, sT0, t))
    for i in range(4): p("v_permlane32_swap_b32 v%d, v%d" % (vV0 + i, vV1 + i))
    for i in (0, 2): p("v_pk_add_f32 %s, %s, %s" % (vr(vV0 + i, 2), vr(vV0 + i, 2), vr(vV1 + i, 2)))
    p("v_cvt_pk_bf16_f32 v%d, v%d, v%d" % (vV1, vV0, vV0 + 1)); p("v_cvt_pk_bf16_f32 v%d, v%d, v%d" % (vV1 + 1, vV0 + 2, vV0 + 3))
    p("ds_write_b64 v%d, %s offset:%d" % (t, vr(vV1, 2), L_QT))
    p("s_waitcnt lgkmcnt(0)"); p("s_barrier")
    p("s_cmp_lg_u32 s%d, 0" % sW); p("s_cbranch_scc1 REC_END")
    p("v_mbcnt_lo_u32_b32 v0, -1, 0"); p("v_mbcnt_hi_u32_b32 v0, -1, v0")
    p("v_bfe_u32 v5, v0, 4, 1"); p("v_lshlrev_b32 v6, 7, v5"); p("v_and_b32 v5, 15, v0"); p("v_lshl_add_u32 v6, v5, 3, v6")
    for e in range(8): p("ds_read_b64 %s, v6 offset:%d" % (vr(FIN["vVM"] + 2 * e, 2), L_QT + e * 256))
    att.consts(p, FIN["vONE"])
    p("s_mov_b32 s%d, %d" % (att.sS, NSEG - 1))
    att.result_addrs(p)
    p("s_waitcnt vmcnt(0) lgkmcnt(0)")
    att.core(p, FIN, lambda: None, lambda: None)
    p("s_branch REC_END")

class Step:
    def __init__(self, p, dbg=False, slow=False):
        self.p = p; self.dbg = dbg
        self.slow = slow; self.loc = "sc1" if slow else ""; self.sfx = "_S" if slow else ""
        self.vm = Counter(p, "vmcnt", 63); self.lg = Counter(p, "lgkmcnt", 15)
        self.retries = []; self.tail = []
        self.stamps = []; self.prev = {}
    def stamp(self, name):
        if name not in STAMPS: return
        k = sTS + 2 * STAMPS.index(name); assert k + 1 < 94
        self.stamps = list(STAMPS)
        self.p("%s s[%d:%d]" % ("s_memrealtime" if (REALTIME or name == "RT") else "s_memtime", k, k + 1))
    def sb(self, b): return vSB + 8 * b
    def lds_unit(self, i):
        p = self.p; b = self.sb(i % 4)
        p("ds_read_b128 %s, v%d offset:%d" % (vr(b, 4), vLW, i * 2048)); self.lg.issue(("L", i))
        p("ds_read_b128 %s, v%d offset:%d" % (vr(b + 4, 4), vLW, i * 2048 + 1024)); self.lg.issue(("L", i))
    def img_ins(self, j, soff, flags=FIRST_FLAGS):
        so, off = (soff, j * 1024) if j < 4 else ({sMLC: sMLC4, sMRC: sMRC4}[soff], 0)
        self.p("buffer_load_dwordx4 %s, v%d, s[%d:%d], s%d offen offset:%d %s" % (vr(vA + 4 * j, 4), vL16, sWS, sWS + 3, so, off, flags))
    def img_load(self, j, soff, tag):
        self.img_ins(j, soff); self.vm.issue(tag)
    def check_chunk(self, j, soff, kind):
        if NOCHECK: return
        p = self.p; lr = p.uid("RETRY"); lb = p.uid("BACK")
        p("v_cmp_eq_u32 vcc, -1, v%d" % (vA + 4 * j + 3))
        p("s_cbranch_vccnz %s" % lr); p.label(lb)
        self.retries.append((lr, lb, j, soff))
    def emit_retries(self):
        p = self.p
        for kind, lretry, lpoll, ldone, loads in self.tail:
            p.label(lretry)
            p("s_add_u32 s%d, s%d, 1" % (sSPIN, sSPIN))
            if COUNT: p("s_add_u32 s%d, s%d, 1" % (sCNT, sCNT))
            p("s_cmp_gt_u32 s%d, %d" % (sSPIN, SPIN_MAX)); p("s_cbranch_scc1 %s" % ldone)
            loads(); p("s_branch %s" % lpoll)
        for lr, lb, j, soff, later in self.retries:
            p.label(lr)
            l2 = p.uid("SPIN")
            p.label(l2)
            self.img_ins(j, soff, "sc1")
            for k in later: self.img_ins(k, soff, "sc1")
            p("s_add_u32 s%d, s%d, 1" % (sSPIN, sSPIN))
            if COUNT: p("s_add_u32 s%d, s%d, %d" % (sCNT, sCNT, (1 << 10) if soff == sMLC else (1 << 20)))
            p("s_cmp_gt_u32 s%d, %d" % (sSPIN, SPIN_MAX))
            p("s_waitcnt vmcnt(0)")
            p("s_cbranch_scc1 %s" % lb)
            p("v_cmp_eq_u32 vcc, -1, v%d" % (vA + 4 * j + 3))
            p("s_cbranch_vccnz %s" % l2)
            p("s_branch %s" % lb)

    def top_state(self):
        self.vm.clear(); self.lg.clear()
        for i in range(2): self.lg.issue(("L", i)); self.lg.issue(("L", i))

    def masked_store(self, data, n, voff, soff, mask, flags="", off=0, tag="st"):
        p = self.p
        p("s_mov_b64 exec, s[%d:%d]" % (mask, mask + 1))
        op = {1: "dword", 2: "dwordx2", 4: "dwordx4"}[n]
        p("buffer_store_%s %s, v%d, s[%d:%d], s%d offen offset:%d %s" % (op, vr(data, n), voff, sWS, sWS + 3, soff, off, flags))
        p("s_mov_b64 exec, -1")
        self.vm.issue(tag)

    def housekeeping(self):
        p = self.p
        def clears(a, b):
            for i in range(a, b): p("v_mov_b64 %s, 0" % vr(vQ0 + 2 * i, 2))
        def prefetch(a, b):
            for i in range(a, b): self.lds_unit(i)
        def salu():
            add_const(p, sWARM, sWARM, KV_S); add_const(p, sVFN, sVFN, KV_S)
            add_const(p, sMLST, sMLST, ML_S); add_const(p, sMRST, sMRST, MR_S)
            p("s_add_u32 s%d, s%d, 1" % (sSTEP, sSTEP))
        return clears, prefetch, salu

    def poller(self):
        p, lg = self.p, self.lg
        clears, prefetch, salu = self.housekeeping()
        p.label("REC_POLL" + self.sfx)
        lskip = p.uid("NOFLG"); lnext = p.uid("KVNEXT")
        p("s_cmp_eq_u32 s%d, 0" % sKVC); p("s_cbranch_scc1 %s" % lskip)
        p("s_waitcnt vmcnt(0)")
        p("v_lshrrev_b32 v%d, 2, v%d" % (vA + 17, vL16)); p("ds_read_b32 v%d, v%d offset:%d" % (vA, vA + 17, L_FLG))
        p("s_add_u32 s%d, s%d, 2" % (sT0, sSTEP)); p("s_lshr_b32 s%d, s%d, 1" % (sT1, sT0)); p("s_add_u32 s%d, s%d, 1" % (sT3, sT1))
        p("s_waitcnt lgkmcnt(0)")
        p("v_cmp_ne_u32 vcc, 0, v%d" % vA)
        p("v_readlane_b32 s%d, v%d, s%d" % (sT1, vA, sT1)); p("v_readlane_b32 s%d, v%d, s%d" % (sT3, vA, sT3))
        p("s_cmp_eq_u32 vcc_lo, -1"); p("s_cselect_b32 s%d, 1, 0" % sKVD)
        p("s_and_b32 s%d, s%d, s%d" % (sT1, sT1, sT3)); p("s_cbranch_scc1 %s" % lskip)
        p("s_lshl_b32 s%d, s%d, 7" % (sT0, sT0))
        p("s_add_u32 s%d, s%d, s%d" % (sT0, sT0, sFLG))
        self.flag_spin(sT0)
        p.label(lskip)
        p("s_add_u32 s%d, s%d, 3" % (sT0, sSTEP)); p("s_and_b32 s%d, s%d, 0x43" % (sT0, sT0)); p("s_or_b32 s%d, s%d, s%d" % (sT0, sT0, sKVD))
        p("s_cmp_eq_u32 s%d, 0" % sT0); p("s_cselect_b32 s%d, 1, 0" % sKVC)
        p("s_add_u32 s%d, s%d, s%d" % (sT2, sMLC, sPCH))
        vAD = vX0 + 2
        lg.clear()
        p("v_add_u32 v%d, s%d, v%d" % (vAD, sPCH, vL16))
        p("s_xor_b32 s%d, s%d, 1" % (sTAG, sTAG))
        fill = [lambda: clears(0, 6), lambda: clears(6, 12), lambda: prefetch(0, 1), lambda: prefetch(1, 2)]
        ok = p.uid("IOK")
        def variant(nch, sets, polln, last):
            def pload(k):
                for c in range(nch):
                    p("buffer_load_dwordx4 %s, v%d, s[%d:%d], s%d offen offset:%d sc1" % (vr(sets[k] + 4 * c, 4), vL16, sWS, sWS + 3, sT2, 1024 * c))
            self.stamp("PS0")
            p.nop(TD0)
            for k in range(polln):
                pload(k)
                if k < polln - 1: p.nop(TD if nch == 1 else TD2)
            lp = p.uid("IPOLL")
            p.label(lp)
            for k in range(polln):
                p("s_waitcnt vmcnt(%d)" % (nch * (polln - 1)))
                for c in range(nch):
                    p("ds_write_b128 v%d, %s offset:%d" % (vAD, vr(sets[k] + 4 * c, 4), L_O if c == 0 else L_IM2 - 1024))
                t_ = vX0 + 3
                p("v_max3_u32 v%d, v%d, v%d, v%d" % (t_, sets[k], sets[k] + 1, sets[k] + 2))
                if nch == 1: p("v_max_u32 v%d, v%d, v%d" % (t_, t_, sets[k] + 3))
                else:
                    p("v_max3_u32 v%d, v%d, v%d, v%d" % (t_, t_, sets[k] + 3, sets[k] + 4))
                    p("v_max3_u32 v%d, v%d, v%d, v%d" % (t_, t_, sets[k] + 5, sets[k] + 6))
                    p("v_max_u32 v%d, v%d, v%d" % (t_, t_, sets[k] + 7))
                p("v_cmp_eq_u32 vcc, -1, v%d" % t_)
                if k == polln - 1:
                    p("s_add_u32 s%d, s%d, 1" % (sSPIN, sSPIN))
                    if COUNT: p("s_add_u32 s%d, s%d, 1" % (sCNT2, sCNT2))
                    p("s_cmp_gt_u32 s%d, %d" % (sSPIN, SPIN_MAX)); p("s_cbranch_scc1 %s" % ok)
                p("s_cbranch_vccz %s" % ok)
                self.stamp("PI")
                pload(k)
            p("s_branch %s" % lp)
        for f in fill: f()
        p("s_barrier")
        if not RECLAST: p("s_cmp_lt_u32 s%d, %d" % (sSTEP, NSEG - 1)); p("s_cbranch_scc0 REC_END")
        if NLDS == 3:
            l2 = p.uid("POLL2")
            p("s_cmp_eq_u32 s%d, 2" % sW); p("s_cbranch_scc1 %s" % l2)
            variant(1, [vA + 12, vA + 16, vVX, vVX + 4][:POLLN], POLLN, False)
            p.label(l2)
            variant(2, [vA + 12, vVX], 2, True)
        else:
            variant(1, [vA + 8, vA + 12, vA + 16, vVX, vVX + 4][:POLLN], POLLN, True)
        p.label(ok)
        self.stamp("PW")
        p("s_waitcnt lgkmcnt(0)")

    def body(self):
        p, vm, lg = self.p, self.vm, self.lg
        clears, prefetch, salu = self.housekeeping()
        self.poller()
        self.top_state()
        p.label("REC_LOOP" + self.sfx)
        self.stamp("preB3")
        p("s_barrier")
        self.stamp("B3"); self.stamp("RT")
        if TRACE:
            p("s_waitcnt lgkmcnt(0)")
            for i in range(TRACE): p("v_writelane_b32 v%d, s%d, %d" % (vX0 + 2, sTS + 2 * i, i))
            p("v_lshrrev_b32 v%d, 2, v%d" % (vX0 + 3, vL16))
            p("s_mov_b64 exec, 0xffff")
            p("buffer_store_dword v%d, v%d, s[%d:%d], s%d offen" % (vX0 + 2, vX0 + 3, sWS, sWS + 3, sTRP))
            p("s_mov_b64 exec, -1")
            p("s_add_u32 s%d, s%d, 64" % (sTRP, sTRP))
        self.stamp("TOP")
        for c in range(NLDS):
            p("ds_read_b128 %s, v%d offset:%d" % (vr(vA + 4 * c, 4), vL16, L_O + 1024 * c if c < 2 else L_IM2)); lg.issue(("IM", c))
        self.img_load(NLDS, sMLC, ("AL", NLDS))
        prefetch(2, 4)
        add_const(p, sMLC4, sMLC, 4096)
        if NLDS == 3: self.img_load(4, sMLC, ("AL", 4))
        add_const(p, sMRC, sMRC, MR_S); add_const(p, sMRC4, sMRC, 4096)
        p("s_mov_b32 m0, %d" % L_JUNK)
        p("s_add_u32 s%d, s%d, s%d" % (sT1, sMRC, sLINE))
        def rtouch():
            p("buffer_load_dword off, s[%d:%d], s%d lds" % (sWS, sWS + 3, sT1)); vm.issue("rt")
        if RTOUCH and RTPOS == 1: rtouch()
        li = 0
        def k_pair(j, mid=None):
            nonlocal li
            lg.wait(("L", li + 1))
            for u in range(2):
                smf(p, ACCQK[2 + u], vA + 4 * (j % 5), vr(self.sb(li % 4), 8))
                if u == 0 and mid: mid()
                if li + 4 < 18: self.lds_unit(li + 4)
                else: self.kx_reads(li % 4)
                li += 1
        lg.wait(("IM", 0))
        self.stamp("AL0")
        def mr_store():
            p("buffer_store_dword v%d, v%d, s[%d:%d], s%d offen sc1" % (vX0, vX0 + 1, sWS, sWS + 3, sMRST)); vm.issue("mr")
        for j in range(5):
            smf(p, vQ0, vA + 4 * j, unit_q(j, 0))
            if j == 0 and NLDS == 2: self.img_load(3, sMLC, ("AL", 3))
            smf(p, vQ1, vA + 4 * j, unit_q(j, 1))
            if j == 0 and RTOUCH and RTPOS == 2: rtouch()
            k_pair(j, (lambda: self.img_load(4, sMLC, ("AL", 4))) if (j == 0 and NLDS == 2) else None)
            if j == 0 and RTOUCH and RTPOS == 3: rtouch()
            if j + 1 < NLDS: lg.wait(("IM", j + 1))
            else: vm.wait(("AL", j + 1) if j < 4 else ("AR", 0)); self.cmp_chunk((j + 1) % 5)
            smf(p, vV0, vA + 4 * j, unit_v(j, 0)); smf(p, vV1, vA + 4 * j, unit_v(j, 1))
            if j + 1 >= NLDS: self.branch_chunk((j + 1) % 5, sMLC if j < 4 else sMRC)
            if j == ARLATE:
                for jj in range(j + 1): self.img_load(jj, sMRC, ("AR", jj))
            elif j > ARLATE: self.img_load(j, sMRC, ("AR", j))
            if j == ARLATE and RTOUCH and RTPOS == 0: rtouch()
            self.stamp("L%d" % j)
        def fold_parts(a, b, off, tag):
            sw = ["v_permlane32_swap_b32 v%d, v%d" % (a + i, b + i) for i in range(4)]
            ad = ["v_pk_add_f32 %s, %s, %s" % (vr(a + i, 2), vr(a + i, 2), vr(b + i, 2)) for i in (0, 2)]
            cv = ["v_cvt_pk_bf16_f32 v%d, v%d, v%d" % (b, a, a + 1), "v_cvt_pk_bf16_f32 v%d, v%d, v%d" % (b + 1, a + 2, a + 3)]
            def wr(): p("ds_write_b64 v%d, %s offset:%d" % (vTW, vr(b, 2), off)); lg.issue(tag)
            return sw, ad, cv, wr
        def vx_load(q):
            p("buffer_load_dwordx4 %s, v%d, s[%d:%d], s%d offen offset:%d" % (vr(vVX + 4 * q, 4), vL16, sWS, sWS + 3, sVFN, 1024 * q)); vm.issue("vx")
        wv = vX0
        def warm(part):
            if part == 0:
                p("v_lshlrev_b32 v%d, %d, v%d" % (wv, 3 if WSTR == 128 else 2, vL16))
                p("s_add_u32 s%d, s%d, s%d" % (sT1, sMLC, sMLRS))
                p("buffer_load_dword v%d, s[%d:%d], s%d offen lds" % (wv, sWS, sWS + 3, sWARM)); vm.issue("warm")
            else:
                p("buffer_load_dword off, s[%d:%d], s%d sc1 lds" % (sWS, sWS + 3, sT1)); vm.issue("warm")
                p("buffer_store_dword v%d, off, s[%d:%d], s%d sc1" % (vIDX, sWS, sWS + 3, sMFL)); vm.issue("flag")
                p("s_add_u32 s%d, s%d, 256" % (sMFL, sMFL))
                lk = p.uid("KVLOOK")
                p("s_cmp_eq_u32 s%d, 0" % sKVC); p("s_cbranch_scc1 %s" % lk)
                if RECLAST:
                    lq = p.uid("KVL1")
                    p("s_cmp_eq_u32 s%d, 1" % sKVC); p("s_cbranch_scc1 %s" % lq)
                    p("s_lshl_b32 s%d, s%d, 13" % (sT0, sH)); add_const(p, sT0, sT0, QF + (NSEG - 1) * 32 * 8192)
                    p("s_lshl_b32 s%d, s%d, 14" % (sT2, sH)); add_const(p, sT2, sT2, VF + (NSEG - 1) * KV_S)
                    for base_, reg_ in ((sT0, FIN["vQ"]), (sT2, FIN["vV"])):
                        for f in range(8):
                            if f == 4: add_const(p, base_, base_, 4096)
                            p("buffer_load_dwordx4 %s, v%d, s[%d:%d], s%d offen offset:%d" % (vr(reg_ + 4 * f, 4), vL16, sWS, sWS + 3, base_, (f % 4) * 1024))
                    p("s_branch %s" % lk)
                    p.label(lq)
                p("v_lshrrev_b32 v%d, 5, v%d" % (vX0 + 1, vL16)); p("v_lshlrev_b32 v%d, 9, v%d" % (vX0 + 1, vX0 + 1))
                p("v_bfe_u32 v%d, v%d, 4, 1" % (vX0 + 2, vL16)); p("v_lshl_add_u32 v%d, v%d, 2, v%d" % (vX0 + 1, vX0 + 2, vX0 + 1))
                p("s_mov_b32 m0, %d" % L_FLG); p("s_mov_b64 exec, s[%d:%d]" % (sLO32, sLO32 + 1))
                p("buffer_load_dword v%d, s[%d:%d], s%d offen sc1 lds" % (vX0 + 1, sWS, sWS + 3, sFLG))
                p("s_mov_b64 exec, -1"); p("s_mov_b32 m0, %d" % L_JUNK)
                p.label(lk)
        for j in range(5 if not FOLDX else 3):
            smf(p, vQ0, vA + 4 * j, unit_q(5 + j, 0))
            if j < 4: vm.wait(("AR", j + 1)); self.cmp_chunk(j + 1)
            smf(p, vQ1, vA + 4 * j, unit_q(5 + j, 1))
            if j < 4:
                k_pair(5 + j)
                if j in (0, 2): vx_load(j // 2)
                self.branch_chunk(j + 1, sMRC)
            else: smf(p, vK0, vA + 16, unit_k9(0)); smf(p, vK1, vA + 16, unit_k9(1))
            self.stamp("R%d" % j)
        if FOLDX:
            smf(p, vQ0, vA + 12, unit_q(8, 0))
            vm.wait(("AR", 4)); self.cmp_chunk(4)
            smf(p, vQ1, vA + 12, unit_q(8, 1))
            self.branch_chunk(4, sMRC)
            smf(p, vQ0, vA + 16, unit_q(9, 0)); smf(p, vQ1, vA + 16, unit_q(9, 1))
            self.stamp("R3")
            k_pair(8)
            sw, ad, cv, wr = fold_parts(vQ0, vQ1, 0, "qw")
            p(sw[0]); p(sw[1])
            smf(p, vK0, vA + 16, unit_k9(0))
            p(sw[2]); p(sw[3])
            smf(p, vK1, vA + 16, unit_k9(1))
            self.stamp("R4")
            for ins in ad + cv: p(ins)
            wr()
            warm(0)
            sw, ad, cv, wr = fold_parts(vK0, vK1, L_KT - L_QT, "kw")
            for ins in sw + ad + cv: p(ins)
            wr()
            warm(1)
        else:
            warm(0); warm(1)
            for a_, b_, off_, tag_ in ((vQ0, vQ1, 0, "qw"), (vK0, vK1, L_KT - L_QT, "kw")):
                sw, ad, cv, wr = fold_parts(a_, b_, off_, tag_)
                for ins in sw + ad + cv: p(ins)
                wr()
        self.stamp("FOLD")
        for j in range(2):
            smf(p, vV0, vA + 4 * j, unit_v(5 + j, 0)); smf(p, vV1, vA + 4 * j, unit_v(5 + j, 1))
        lg.wait_all()
        self.stamp("preB1")
        p("s_barrier")
        self.stamp("B1")
        def kx(t, kk): return vSB + 4 * self.kx_reg(t, kk)
        def q_read(kk):
            for r in range(2):
                p("ds_read_b64_tr_b16 %s, v%d offset:%d" % (vr(vQ0 + 4 * kk + 2 * r, 2), vTR, 256 * kk + 128 * r)); lg.issue(("q", kk))
        kmreg = [vA, vA + 4, kx(0, 2), kx(0, 3)]
        def km_read(kk):
            for r in range(2):
                p("ds_read_b64_tr_b16 %s, v%d offset:%d" % (vr(kmreg[kk] + 2 * r, 2), vTR, L_KT - L_QT + 256 * kk + 128 * r)); lg.issue(("km", kk))
        q_read(0); q_read(1)
        if RECLAST: p("s_cmp_eq_u32 s%d, %d" % (sSTEP, NSEG - 1)); p("s_cbranch_scc1 REC_FINAL")
        smf(p, vV0, vA + 8, unit_v(7, 0)); smf(p, vV1, vA + 8, unit_v(7, 1))
        q_read(2); q_read(3)
        smf(p, vV0, vA + 12, unit_v(8, 0)); smf(p, vV1, vA + 12, unit_v(8, 1))
        self.stamp("Sstart")
        vX1, vM = kx(0, 0), kx(0, 1)
        def mf(d, a_, b_, first): p("v_mfma_f32_16x16x32_bf16 %s, %s, %s, %s" % (vr(d, 4), vr(a_, 4), vr(b_, 4), "0" if first else vr(d, 4)))
        lg.wait(("q", 1))
        mf(vX0, kx(0, 0), vQ0, True); km_read(0)
        mf(vX0, kx(0, 1), vQ0 + 4, False); km_read(1)
        lg.wait(("q", 3))
        mf(vX0, kx(0, 2), vQ0 + 8, False); km_read(2)
        mf(vX0, kx(0, 3), vQ0 + 12, False); km_read(3)
        for kk in range(4): mf(vX1, kx(1, kk), vQ0 + 4 * kk, kk == 0)
        lg.wait(("km", 1))
        mf(vM, kmreg[0], vQ0, True); mf(vM, kmreg[1], vQ0 + 4, False)
        lg.wait(("km", 3))
        mf(vM, kmreg[2], vQ0 + 8, False); mf(vM, kmreg[3], vQ0 + 12, False)
        smf(p, vV0, vA + 16, unit_v(9, 0)); smf(p, vV1, vA + 16, unit_v(9, 1))
        self.stamp("Send")
        X0, X1, Mm = vX0, vX1, vM
        t0, t1, t2, t3 = vA + 8, vA + 9, vA + 10, vA + 11
        ones, onesm = vA + 12, vA
        for i in range(4): p("v_mov_b32 v%d, 0x3f803f80" % (ones + i))
        p("v_max3_f32 v%d, v%d, v%d, v%d" % (t0, X0, X0 + 1, X0 + 2))
        p("v_max3_f32 v%d, v%d, v%d, v%d" % (t1, X0 + 3, X1, X1 + 1))
        p("v_max3_f32 v%d, v%d, v%d, v%d" % (t0, t0, t1, X1 + 2))
        p("v_max3_f32 v%d, v%d, v%d, v%d" % (t1, Mm, Mm + 1, Mm + 2))
        p("v_max3_f32 v%d, v%d, v%d, v%d" % (t0, t0, X1 + 3, Mm + 3))
        p("v_max_f32 v%d, v%d, v%d" % (t0, t0, t1))
        p("v_mov_b32 v%d, v%d" % (t1, t0))
        p("v_cvt_pk_bf16_f32 v%d, v%d, v%d" % (vV0, vV0, vV0 + 1))
        p("v_cvt_pk_bf16_f32 v%d, v%d, v%d" % (vV0 + 1, vV0 + 2, vV0 + 3))
        p("v_permlane16_swap_b32 v%d, v%d" % (t0, t1))
        p("v_max_f32 v%d, v%d, v%d" % (t0, t0, t1))
        p("v_mov_b32 v%d, v%d" % (t1, t0))
        p("v_cvt_pk_bf16_f32 v%d, v%d, v%d" % (vV0 + 2, vV1, vV1 + 1))
        p("v_cvt_pk_bf16_f32 v%d, v%d, v%d" % (vV0 + 3, vV1 + 2, vV1 + 3))
        p("v_permlane32_swap_b32 v%d, v%d" % (t0, t1))
        p("v_max_f32 v%d, v%d, v%d" % (t0, t0, t1))
        self.stamp("MAX")
        p("v_mul_f32 v%d, s%d, v%d" % (t2, sC, t0))
        for base in (X0, X1, Mm):
            for i in (0, 2):
                p("v_pk_fma_f32 %s, %s, s[%d:%d], %s op_sel_hi:[1,1,0] neg_lo:[0,0,1] neg_hi:[0,0,1]" % (vr(base + i, 2), vr(base + i, 2), sC, sC + 1, vr(t2, 2)))
        PX, PM = vQ0, vQ0 + 4
        for i in range(4): p("v_exp_f32 v%d, v%d" % (X0 + i, X0 + i))
        if KPOS == 0: p("buffer_load_dwordx4 v%d, s[%d:%d], s%d offen offset:1024 lds" % (vL16, sWS, sWS + 3, sKFN)); vm.issue("kx")
        for i in range(4): p("v_exp_f32 v%d, v%d" % (X1 + i, X1 + i))
        p("v_cvt_pk_bf16_f32 v%d, v%d, v%d" % (PX, X0, X0 + 1))
        p("v_cvt_pk_bf16_f32 v%d, v%d, v%d" % (PX + 1, X0 + 2, X0 + 3))
        for i in range(4): p("v_exp_f32 v%d, v%d" % (Mm + i, Mm + i))
        p("v_cvt_pk_bf16_f32 v%d, v%d, v%d" % (PX + 2, X1, X1 + 1))
        p("v_cvt_pk_bf16_f32 v%d, v%d, v%d" % (PX + 3, X1 + 2, X1 + 3))
        O0, O1, SUM = vK0, vK1, vX0
        p("v_cndmask_b32 v%d, 0, v%d, s[%d:%d]" % (onesm, ones, sLO32, sLO32 + 1))
        p("v_cndmask_b32 v%d, 0, v%d, s[%d:%d]" % (onesm + 1, ones, sLO32, sLO32 + 1))
        self.stamp("P")
        vm.wait("vx")
        self.stamp("VXW")
        GA = vSB + 16
        p("v_mfma_f32_16x16x32_bf16 %s, %s, %s, 0" % (vr(SUM, 4), vr(ones, 4), vr(PX, 4)))
        p("v_cvt_pk_bf16_f32 v%d, v%d, v%d" % (PM, Mm, Mm + 1))
        p("v_mfma_f32_16x16x32_bf16 %s, %s, %s, 0" % (vr(O0, 4), vr(vVX, 4), vr(PX, 4)))
        p("v_cvt_pk_bf16_f32 v%d, v%d, v%d" % (PM + 1, Mm + 2, Mm + 3))
        p("v_mfma_f32_16x16x32_bf16 %s, %s, %s, 0" % (vr(O1, 4), vr(vVX + 4, 4), vr(PX, 4)))
        p("v_mfma_f32_16x16x16_bf16 %s, %s, %s, %s" % (vr(SUM, 4), vr(onesm, 2), vr(PM, 2), vr(SUM, 4)))
        p("v_mov_b64 %s, 0" % vr(GA, 2))
        p("v_mfma_f32_16x16x16_bf16 %s, %s, %s, %s" % (vr(O0, 4), vr(vV0, 2), vr(PM, 2), vr(O0, 4)))
        p("v_mov_b64 %s, 0" % vr(GA + 2, 2))
        p("v_mfma_f32_16x16x16_bf16 %s, %s, %s, %s" % (vr(O1, 4), vr(vV0 + 2, 2), vr(PM, 2), vr(O1, 4)))
        for i in range(2, 6): p("v_mov_b64 %s, 0" % vr(GA + 2 * i, 2))
        self.stamp("PV")
        p("v_rcp_f32 v%d, v%d" % (t2, SUM))
        p.nop(3)
        for i in range(4): p("v_cndmask_b32 v%d, v%d, v%d, s[%d:%d]" % (O0 + i, O1 + i, O0 + i, sM8, sM8 + 1))
        for i in (0, 2): p("v_pk_mul_f32 %s, %s, %s op_sel_hi:[1,0]" % (vr(O0 + i, 2), vr(O0 + i, 2), vr(t2, 2)))
        p("v_cvt_pk_bf16_f32 v%d, v%d, v%d" % (O1, O0, O0 + 1))
        p("v_cvt_pk_bf16_f32 v%d, v%d, v%d" % (O1 + 1, O0 + 2, O0 + 3))
        p("ds_write_b64 v%d, %s" % (vOW, vr(O1, 2))); lg.issue("ow")
        if KPOS == 1:
            p("s_mov_b32 m0, s%d" % sM0K)
            add_const(p, sKFN, sKFN, KV_S)
            p("buffer_load_dwordx4 v%d, s[%d:%d], s%d offen lds" % (vL16, sWS, sWS + 3, sKFN)); vm.issue("kx")
            p("buffer_load_dwordx4 v%d, s[%d:%d], s%d offen offset:1024 lds" % (vL16, sWS, sWS + 3, sKFN)); vm.issue("kx")
        self.stamp("OW")
        vOS, vDAT, tt = vX0 + 1, vX0, vA + 17
        Bsel = vVX
        p("v_and_b32 v%d, 0x70, v%d" % (vOS, vL16))
        p("v_bfe_u32 v%d, v%d, 8, 1" % (tt, vL16)); p("v_lshl_add_u32 v%d, v%d, 3, v%d" % (vOS, tt, vOS))
        p("v_bfe_u32 v%d, v%d, 9, 1" % (tt, vL16)); p("v_lshl_add_u32 v%d, v%d, 2, v%d" % (vOS, tt, vOS))
        p("v_mov_b32 v%d, 0x%x" % (tt, OOB))
        lg.wait_all()
        self.stamp("preB2")
        p("s_barrier")
        self.stamp("B2")
        oD = vA
        def od_read(c):
            p("ds_read_b128 %s, v%d offset:%d" % (vr(oD + 4 * c, 4), vOR, c * 64)); lg.issue(("od", c))
        for c in range(4): od_read(c)
        p("v_cndmask_b32 v%d, v%d, v%d, s[%d:%d]" % (vOS, tt, vOS, sM8, sM8 + 1))
        p("v_and_b32 v%d, 16, v%d" % (tt, vL16)); p("v_lshlrev_b32 v%d, v%d, s%d" % (tt, tt, s3F80))
        for r_ in range(4): p("v_cndmask_b32 v%d, 0, v%d, s[%d:%d]" % (Bsel + r_, tt, sSEL + 2 * r_, sSEL + 2 * r_ + 1))
        T4 = GA + 8
        def pack(acc):
            return ["v_cvt_pk_bf16_f32 v%d, v%d, v%d" % (acc, acc, acc + 1), "v_cvt_pk_bf16_f32 v%d, v%d, v%d" % (acc + 1, acc + 2, acc + 3),
                    "v_and_or_b32 v%d, v%d, -2, s%d" % (acc, acc, sTAG)]
        def pstore(acc, soff):
            p("buffer_store_dwordx2 %s, v%d, s[%d:%d], s%d offen %s" % (vr(acc, 2), vPS, sWS, sWS + 3, soff, self.loc)); vm.issue("p1")
        for c in range(4):
            lg.wait(("od", c)); smf(p, GA, oD + 4 * c, unit_wo_pair(0, c))
        self.stamp("T4")
        smf(p, GA + 4, oD, unit_wo_pair(1, 0))
        smf(p, GA + 4, oD + 4, unit_wo_pair(1, 1))
        pk = pack(GA); p(pk[0])
        smf(p, GA + 4, oD + 8, unit_wo_pair(1, 2)); p(pk[1])
        smf(p, GA + 4, oD + 12, unit_wo_pair(1, 3)); p(pk[2])
        def mf4(c): p("v_mfma_f32_16x16x32_bf16 %s, %s, %s, %s" % (vr(T4, 4), vr(oD + 4 * c, 4), unit_wo4(c), "0" if c == 0 else vr(T4, 4)))
        mf4(0); pstore(GA, sP1W)
        mf4(1)
        pk = pack(GA + 4)
        mf4(2); p(pk[0]); p(pk[1])
        mf4(3); p(pk[2])
        self.stamp("G2")
        pstore(GA + 4, sP1W1)
        add_const(p, sMLC, sMLC, ML_S)
        salu()
        p.nop(T4NOP)
        pk = pack(T4)
        for ins in pk: p(ins)
        p("s_mov_b64 exec, s[%d:%d]" % (sLO32, sLO32 + 1))
        pstore(T4, sP1W2)
        p("s_mov_b64 exec, -1")
        self.stamp("P1")
        lidle = p.uid("IDLE"); lown = p.uid("OWN")
        p("s_cmp_lg_u32 s%d, 0" % sISOWN); p("s_cbranch_scc1 %s" % lown)
        p("s_cmp_lt_u32 s%d, 2" % sW); p("s_cbranch_scc1 %s" % lidle)
        p("s_branch REC_POLL" + self.sfx)
        def leave():
            if RECLAST: p("s_branch REC_LOOP" + self.sfx); return
            p("s_cmp_lt_u32 s%d, %d" % (sSTEP, NSEG - 1))
            p("s_cbranch_scc1 REC_LOOP" + self.sfx)
            p("s_branch REC_END")
        p.label(lown)
        D = vVX + 4
        tg = [vX0 + 2, vX0 + 3, vA + 18, vA + 19]
        sets = [vA, vSB + 16]
        ldone = p.uid("ODONE"); lpoll = p.uid("OPOLL")
        def owner_loads(k):
            for i in range(4):
                p("buffer_load_dwordx4 %s, v%d, s[%d:%d], s%d offen offset:%d sc1" % (vr(sets[k] + 4 * i, 4), vL16, sWS, sWS + 3, sP1R, 1024 * i))
        lg.clear()
        self.stamp("OL")
        p.nop(DELAY1)
        if TIMED: owner_loads(0)
        else:
            if not B2BF: owner_loads(0)
            p("s_barrier")
            if B2BF: p.nop(DELAY1B); owner_loads(0)
        prefetch(0, 2)
        clears(0, OSTAG)
        if OWN2: owner_loads(1)
        clears(OSTAG, 12)
        def omf(k, i): p("v_mfma_f32_16x16x32_bf16 %s, %s, %s, %s" % (vr(D, 4), vr(sets[k] + 4 * i, 4), vr(Bsel, 4), "0" if i == 0 else vr(D, 4)))
        def otag(k, i): p("v_bitop3_b32 v%d, v%d, v%d, s%d bitop3:0x7e" % (tg[i], sets[k] + 4 * i, sets[k] + 4 * i + 2, sTAG))
        p.label(lpoll)
        nset = 2 if OWN2 else 1
        for k in range(nset):
            for i in range(4):
                p("s_waitcnt vmcnt(%d)" % ((4 if OWN2 else 0) + 3 - i)); omf(k, i); otag(k, i)
            p("v_or3_b32 v%d, v%d, v%d, v%d" % (tg[0], tg[0], tg[1], tg[2]))
            p("v_bitop3_b32 v%d, v%d, v%d, 1 bitop3:0xa8" % (tg[0], tg[0], tg[3]))
            p("v_cmp_ne_u32 vcc, 0, v%d" % tg[0])
            if k == nset - 1:
                p("s_add_u32 s%d, s%d, 1" % (sSPIN, sSPIN))
                p("s_cmp_gt_u32 s%d, %d" % (sSPIN, SPIN_MAX)); p("s_cbranch_scc1 %s" % ldone)
                p.nop(1)
            else: p.nop(4)
            p("s_cbranch_vccz %s" % ldone) if not NOCHECK else p("s_branch %s" % ldone)
            if COUNT: p("s_add_u32 s%d, s%d, 1" % (sCNT, sCNT))
            owner_loads(k)
        p("s_branch %s" % lpoll)
        p.label(ldone)
        self.stamp("OLret")
        p("v_permlane32_swap_b32 v%d, v%d" % (D, D + 2))
        p("v_permlane32_swap_b32 v%d, v%d" % (D + 1, D + 3))
        p("v_add_f32 v%d, v%d, v%d" % (D, D, D + 2))
        p("v_add_f32 v%d, v%d, v%d" % (D + 1, D + 1, D + 3))
        p("v_cvt_pk_bf16_f32 v%d, v%d, v%d" % (vDAT, D, D + 1))
        st_l = "buffer_store_dword v%d, v%d, s[%d:%d], s%d offen %s" % (vDAT, vOS, sWS, sWS + 3, sMLST, self.loc)
        st_r = "buffer_store_dword v%d, v%d, s[%d:%d], s%d offen sc1" % (vDAT, vOS, sWS, sWS + 3, sMRST)
        for ins in ([st_l] if MRLATE else [st_r, st_l] if MRFIRST else [st_l, st_r]): p(ins)
        self.stamp("MLst")
        if RECLAST:
            p("s_cmp_eq_u32 s%d, %d" % (sSTEP, NSEG - 1)); p("s_cselect_b32 s%d, s%d, 0" % (sKVC, sFINW))
        if TIMED:
            p("s_barrier")
            if MRLATE == 3:
                p.nop(MRD); p(st_r)
                lf = p.uid("EFLG")
                p("s_cmp_lt_u32 s%d, %d" % (sSTEP, NSEG - EARLYF)); p("s_cbranch_scc1 %s" % lf)
                p("buffer_store_dword v%d, off, s[%d:%d], s%d sc1" % (vIDX, sWS, sWS + 3, sMFL))
                p.label(lf)
        if "ACK1" in STAMPS: p("s_waitcnt vmcnt(1)"); self.stamp("ACK1"); p("s_waitcnt vmcnt(0)"); self.stamp("ACK2")
        p("s_xor_b32 s%d, s%d, 1" % (sTAG, sTAG))
        p("s_waitcnt vmcnt(%d) lgkmcnt(0)" % (1 if MRLATE in (1, 2) else 2))
        leave()
        p.label(lidle)
        lg.clear()
        p("s_barrier")
        clears(0, 12); prefetch(0, 2)
        p("s_xor_b32 s%d, s%d, 1" % (sTAG, sTAG))
        p("s_waitcnt vmcnt(0)")
        leave()
        p.label("REC_TAIL" + self.sfx)
        self.emit_retries()

    def kx_reads(self, b):
        for q in range(2):
            f = b * 2 + q
            self.p("ds_read_b128 %s, v%d offset:%d" % (vr(vSB + 4 * f, 4), vL16, L_KX + self.kx_slot(f) * 1024)); self.lg.issue(("KX", f))

    def emit_slow(self):
        p = self.p
        p.label("REC_SLOW")
        if COUNT: p("s_add_u32 s%d, s%d, 1024" % (sCNT, sCNT))
        p("s_waitcnt vmcnt(0) lgkmcnt(0)")
        for i in range(12): p("v_mov_b64 %s, 0" % vr(vQ0 + 2 * i, 2))
        for ph, soff in ((0, sMLC), (1, sMRC)):
            l = p.uid("SLOWP"); ld = p.uid("SLOWD")
            p.label(l)
            for j in range(5): self.img_ins(j, soff, "sc1")
            p("s_add_u32 s%d, s%d, 1" % (sSPIN, sSPIN))
            p("s_waitcnt vmcnt(0)")
            p("v_max3_u32 v%d, v%d, v%d, v%d" % (vX0, vA + 3, vA + 7, vA + 11))
            p("v_max3_u32 v%d, v%d, v%d, v%d" % (vX0, vX0, vA + 15, vA + 19))
            p("v_cmp_eq_u32 vcc, -1, v%d" % vX0)
            p("s_cbranch_vccz %s" % ld)
            p("s_cmp_gt_u32 s%d, %d" % (sSPIN, SPIN_MAX)); p("s_cbranch_scc0 %s" % l)
            p.label(ld)
            for j in range(5):
                jj = 5 * ph + j
                smf(p, vQ0, vA + 4 * j, unit_q(jj, 0)); smf(p, vQ1, vA + 4 * j, unit_q(jj, 1))
                if jj < 9:
                    for u in range(2):
                        i = 2 * jj + u
                        p("ds_read_b128 %s, v%d offset:%d" % (vr(vSB + 8 * u, 4), vLW, i * 2048))
                        p("ds_read_b128 %s, v%d offset:%d" % (vr(vSB + 8 * u + 4, 4), vLW, i * 2048 + 1024))
                    p("s_waitcnt lgkmcnt(0)")
                    smf(p, vK0, vA + 4 * j, vr(vSB, 8)); smf(p, vK1, vA + 4 * j, vr(vSB + 8, 8))
                else:
                    smf(p, vK0, vA + 16, unit_k9(0)); smf(p, vK1, vA + 16, unit_k9(1))
                if ph == 0: smf(p, vV0, vA + 4 * j, unit_v(j, 0)); smf(p, vV1, vA + 4 * j, unit_v(j, 1))
        for b in range(4):
            for q in range(2):
                f = b * 2 + q
                p("ds_read_b128 %s, v%d offset:%d" % (vr(vSB + 4 * f, 4), vL16, L_KX + self.kx_slot(f) * 1024))
        p("s_waitcnt lgkmcnt(0)")
        p("s_mov_b64 vcc, 0")
        p.nop(8)
        p("s_branch REC_FOLD")

    def cmp_chunk(self, j):
        if not NOCHECK: self.p("v_cmp_eq_u32 vcc, -1, v%d" % (vA + 4 * j + 3))
    def branch_chunk(self, j, soff):
        if NOCHECK: return
        p = self.p; lr = p.uid("RETRY"); lb = p.uid("BACK")
        p("s_cbranch_vccnz %s" % lr); p.label(lb)
        tag = "AL" if soff == sMLC else "AR"
        later = [t[1] for t in self.vm.q if isinstance(t, tuple) and t[0] == tag and t[1] > j]
        self.retries.append((lr, lb, j, soff, later))

    def pub_v(self):
        p = self.p; lp = p.uid("NOPUBV")
        p("s_cmp_eq_u32 s%d, 0" % sISPUB); p("s_cbranch_scc1 %s" % lp)
        p("buffer_store_dwordx4 %s, v%d, s[%d:%d], s%d offen sc1" % (vr(vV0, 4), vL16, sWS, sWS + 3, sVM))
        p.label(lp); p.nop(2)
    def pub_k(self):
        p = self.p; lp = p.uid("NOPUBK"); a = vA + 16; d = vA
        p("s_cmp_eq_u32 s%d, 0" % sISPUB); p("s_cbranch_scc1 %s" % lp)
        p("v_lshrrev_b32 v%d, 1, v%d" % (a, vL16))
        for r in range(2):
            p("ds_read_b64 %s, v%d offset:%d" % (vr(d + 4 * r, 2), a, L_KT + r * 512))
            p("ds_read_b64 %s, v%d offset:%d" % (vr(d + 4 * r + 2, 2), a, L_KT + G2OFF + r * 512))
        p("s_waitcnt lgkmcnt(0)")
        for r in range(2):
            p("buffer_store_dwordx4 %s, v%d, s[%d:%d], s%d offen offset:%d sc1" % (vr(d + 4 * r, 4), vL16, sWS, sWS + 3, sKM, r * 1024))
        p.label(lp); p.nop(2)
    def flag_store(self):
        p = self.p
        p("s_lshl_b32 s%d, s%d, 7" % (sT0, sSTEP)); p("s_add_u32 s%d, s%d, s%d" % (sT0, sT0, sFKM))
        p("v_mov_b32 v%d, 0" % (vA + 17)); p("v_mov_b32 v%d, 1" % (vA + 16))
        p("s_mov_b64 exec, 1")
        p("buffer_store_dword v%d, v%d, s[%d:%d], s%d offen sc1" % (vA + 16, vA + 17, sWS, sWS + 3, sT0))
        p("s_mov_b64 exec, -1")

    def flag_spin(self, soff):
        p = self.p; l = p.uid("FSPIN"); ld = p.uid("FDONE")
        p("v_mov_b32 v%d, 0" % (vA + 17))
        p.label(l)
        p("buffer_load_dwordx2 %s, v%d, s[%d:%d], s%d offen sc1" % (vr(vA, 2), vA + 17, sWS, sWS + 3, soff))
        p("s_add_u32 s%d, s%d, 1" % (sSPIN, sSPIN))
        p("s_waitcnt vmcnt(0)")
        p("v_and_b32 v%d, v%d, v%d" % (vA, vA, vA + 1))
        p("v_cmp_eq_u32 vcc, 0, v%d" % vA)
        p("s_cbranch_vccz %s" % ld)
        p("s_cmp_gt_u32 s%d, %d" % (sSPIN, SPIN_MAX))
        p("s_cbranch_scc0 %s" % l)
        p.label(ld)

    def kx_slot(self, f):
        order = self.kx_order()
        return order[f]
    def kx_order(self):
        rel = [2, 3, 0, 1]
        chunks = [0, 4, 1, 5, 2, 6, 3, 7]
        o = [None] * 8
        for n, b in enumerate(rel):
            o[2 * b] = chunks[2 * n]; o[2 * b + 1] = chunks[2 * n + 1]
        return o
    def kx_reg(self, tile, kk):
        return self.kx_order().index(tile * 4 + kk)

def emit_rec(p, dbg=False, check_mode=None, slow_sgpr=None, tl=None, read_cand=None, dbg_srd=60, nhelp=192):
    st = Step(p, dbg)
    st.stamp("E0")
    st.stamp("E1")
    p("v_and_b32 v0, 63, v0")
    fused = read_cand is not None
    vLK, vLD, vLF = 80, 81, 82
    looks = None
    if fused:
        def look_dbg(p):
            p("v_lshlrev_b32 v%d, 2, v0" % vLK)
            p("buffer_load_dword v%d, v%d, s[%d:%d], 0 offen sc1" % (vLD, vLK, dbg_srd, dbg_srd + 3))
            return 1
        def look_flag(p):
            p("s_mov_b32 s%d, 0x%x" % (sT1, INITB))
            p("buffer_load_dword v%d, off, s[%d:%d], s%d sc1" % (vLF + 2, sWS, sWS + 3, sT1))
            p("buffer_load_dwordx2 %s, off, s[%d:%d], s%d sc1" % (vr(vLF, 2), sWS, sWS + 3, sFLG))
            return 2
        looks = {18: look_dbg, (26 if ROWP else 25): look_flag}
    load_weights(p, st, setup_consts, looks)
    st.stamp("E3")
    if dbg and tl: tl(p, 11)
    lok = p.uid("EARLY")
    if fused:
        lno = p.uid("NOTEARLY")
        p("s_waitcnt vmcnt(0)")
        p("s_cmp_lg_u32 s%d, 0" % slow_sgpr); p("s_cbranch_scc1 %s" % lno)
        p("v_cmp_ne_u32 vcc, 32, v%d" % vLD)
        p("v_readlane_b32 s%d, v%d, 1" % (sT0, vLD)); p("v_readlane_b32 s%d, v%d, 33" % (sT2, vLD)); p("v_readlane_b32 s%d, v%d, 34" % (sT3, vLD))
        p("s_and_b32 s%d, vcc_lo, 0x01010101" % sT1); p("s_cbranch_scc1 %s" % lno)
        p("s_and_b32 s%d, vcc_hi, 0x01010101" % sT1); p("s_cbranch_scc1 %s" % lno)
        p("s_cmp_lt_u32 s%d, %d" % (sT0, nhelp)); p("s_cbranch_scc1 %s" % lno)
        p("v_readfirstlane_b32 s%d, v%d" % (sT0, vLF + 2)); p("s_cmp_lt_u32 s%d, %d" % (sT0, nhelp)); p("s_cbranch_scc1 %s" % lno)
        p("s_min_u32 s%d, s%d, s%d" % (sT1, sT2, sT3)); p("s_cmp_eq_u32 s%d, 0" % sT1); p("s_cbranch_scc1 %s" % lno)
        for r_ in (sT2, sT3): p("s_sub_u32 s%d, s%d, 1" % (r_, r_))
        p("s_branch %s" % lok)
        p.label(lno)
    if check_mode: check_mode(p)
    if read_cand: read_cand(p, sT2, sT3)
    p.label(lok)
    if dbg and tl: tl(p, 12)
    if read_cand: p("s_mov_b32 s56, s%d" % sT2); p("s_mov_b32 s57, s%d" % sT3)
    setup_vor(p)
    p("s_mov_b32 s%d, 0" % sSPIN); p("s_mov_b32 s%d, 0" % sCNT)
    if read_cand: p("s_mov_b32 s%d, s56" % sT0); p("s_mov_b32 s%d, s57" % sT1)
    else:
        p("s_mov_b32 s%d, 0x%x" % (sT1, CANDW))
        p("buffer_load_dwordx2 v[8:9], off, s[%d:%d], s%d sc1" % (sWS, sWS + 3, sT1)); p("s_waitcnt vmcnt(0)")
        p("v_readfirstlane_b32 s%d, v8" % sT0); p("v_readfirstlane_b32 s%d, v9" % sT1)
        if FORCECAND: p("s_mov_b32 s%d, %d" % (sT0, (FORCECAND - 1) & 3)); p("s_mov_b32 s%d, %d" % (sT1, (FORCECAND - 1) >> 2))
        p("s_mov_b32 s60, s%d" % sT0); p("s_mov_b32 s61, s%d" % sT1)
    p("s_cmp_eq_u32 s%d, 0" % sX); p("s_cselect_b32 s%d, s%d, s%d" % (sT2, sT1, sT0)); p("s_cselect_b32 s%d, s%d, s%d" % (sT0, sT0, sT1))
    for r_ in (sT0, sT2): p("s_and_b32 s%d, s%d, 3" % (r_, r_)); p("s_lshl_b32 s%d, s%d, 13" % (r_, r_))
    finish_consts(p)
    st.stamp("E4")
    lfl = p.uid("KVOK")
    if fused:
        p("v_and_b32 v%d, v%d, v%d" % (vLF, vLF, vLF + 1)); p("v_cmp_eq_u32 vcc, 0, v%d" % vLF)
        p("s_cmp_lg_u32 s%d, 0" % slow_sgpr); p("s_cselect_b64 vcc, -1, vcc")
        p("s_cbranch_vccz %s" % lfl)
    st.flag_spin(sFLG)
    p.label(lfl)
    if dbg and tl: tl(p, 13)
    p("s_barrier")
    p("s_mov_b32 m0, s%d" % sM0K); p.nop(1)
    p("buffer_load_dwordx4 v%d, s[%d:%d], s%d offen lds" % (vL16, sWS, sWS + 3, sKFN))
    p("buffer_load_dwordx4 v%d, s[%d:%d], s%d offen offset:1024 lds" % (vL16, sWS, sWS + 3, sKFN))
    p("s_mov_b32 m0, %d" % L_JUNK); p("v_lshlrev_b32 v12, 2, v%d" % vL16)
    add_const(p, sT1, sWARM, (-KV_S) & 0xFFFFFFFF)
    p("buffer_load_dword v12, s[%d:%d], s%d offen lds" % (sWS, sWS + 3, sT1))
    p("s_mov_b32 s%d, 0" % sSTEP); p("s_mov_b32 s%d, 0" % sTAG)
    p("s_add_u32 s%d, s%d, s%d" % (sT2, sMLC, sPCH))
    p("buffer_load_dwordx4 %s, v%d, s[%d:%d], s%d offen sc1" % (vr(vA, 4), vL16, sWS, sWS + 3, sT2))
    p("buffer_load_dwordx4 %s, v%d, s[%d:%d], s%d offen offset:2048 sc1" % (vr(vA + 4, 4), vL16, sWS, sWS + 3, sMLC))
    p("v_add_u32 v%d, s%d, v%d" % (vA + 17, sPCH, vL16))
    p("s_waitcnt vmcnt(0)")
    p("ds_write_b128 v%d, %s offset:%d" % (vA + 17, vr(vA, 4), L_O))
    p("ds_write_b128 v%d, %s offset:%d" % (vL16, vr(vA + 4, 4), L_IM2))
    p("s_waitcnt lgkmcnt(0)")
    for i in range(12): p("v_mov_b64 %s, 0" % vr(vQ0 + 2 * i, 2))
    p("v_mov_b32 v%d, 0x%x" % (vX0 + 1, OOB))
    for i in range(2): st.lds_unit(i)
    st.stamp("E5")
    if tl: tl(p, 2)
    if dbg: p("s_memtime s[100:101]"); p("s_memrealtime s[98:99]"); p("s_waitcnt lgkmcnt(0)")
    if slow_sgpr is not None:
        p("s_cmp_eq_u32 s%d, 0" % slow_sgpr); p("s_cbranch_scc1 REC_LOOP")
        p("s_branch REC_LOOP_S")
        st2 = Step(p, False, slow=True); st2.body()
    else: p("s_branch REC_LOOP")
    st.body()
    if RECLAST: emit_final(p)
    p.label("REC_END")
    if MRLATE in (1, 2): p("buffer_store_dword v%d, v%d, s[%d:%d], s%d offen sc1" % (vX0, vX0 + 1, sWS, sWS + 3, sMRST))
    if dbg:
        p("s_memtime s[8:9]"); p("s_memrealtime s[96:97]"); p("s_waitcnt lgkmcnt(0)"); p("s_sub_u32 s98, s96, s98")
    return st
```

```python
import sys
from asm import *
from layout import *
import rec, k0, gemm, mkv, att, outp, moe, init

HEADER = open("/code/%s.s.ref" % NAME).read()
HEADER = HEADER[:HEADER.index("; Override launch geometry")]

def kernel_begin(p, label):
    p(".text"); p(".globl %s" % label); p(".p2align 8"); p(".type %s,@function" % label); p.label(label)
def descriptor(label, vgpr, sgpr, accum):
    return """.section .rodata,"a"
.p2align 6
.amdhsa_kernel %s
  .amdhsa_next_free_vgpr %d
  .amdhsa_next_free_sgpr %d
  .amdhsa_accum_offset %d
  .amdhsa_group_segment_fixed_size 0
  .amdhsa_kernarg_size 120
  .amdhsa_user_sgpr_count 2
  .amdhsa_user_sgpr_kernarg_segment_ptr 1
  .amdhsa_system_sgpr_workgroup_id_x 1
.end_amdhsa_kernel
""" % (label, vgpr, sgpr, accum)

def srd(p, dst, karg_off, size, tmp=None):
    p("s_load_dwordx2 s[%d:%d], s[0:1], %d" % (dst, dst + 1, karg_off))
    p("s_mov_b32 s%d, 0x%x" % (dst + 2, size)); p("s_mov_b32 s%d, 0x00020000" % (dst + 3))

import os
XPAIR = int(os.environ.get("XPAIR", "2"))
def xcc_to_x(p, dst, src, lelse):
    l = p.uid("XOK")
    p("s_cmp_eq_u32 s%d, 0" % src); p("s_cbranch_scc1 %s" % l)
    p("s_cmp_eq_u32 s%d, %d" % (src, XPAIR)); p("s_cbranch_scc0 %s" % lelse)
    p("s_mov_b32 s%d, 1" % dst)
    p.label(l)

def rec_standalone(dbg):
    p = Prog(); label = "rec_kernel"
    kernel_begin(p, label)
    p("s_cmp_ge_u32 s2, 256"); p("s_cbranch_scc1 REC_EXIT")
    if dbg and not rec.STAMPS[0]: p("s_memrealtime s[94:95]")
    srd(p, rec.sWS, 112, WS_SIZE)
    WB = 640 * 4096 * 2
    srd(p, rec.sWQ, 16, WB); srd(p, rec.sWK, 24, WB); srd(p, rec.sWV, 32, WB); srd(p, rec.sWO, 40, WB)
    p("s_getreg_b32 s%d, hwreg(HW_REG_XCC_ID)" % rec.sX); p("s_and_b32 s%d, s%d, 15" % (rec.sX, rec.sX))
    p("v_lshrrev_b32 v1, 6, v0"); p.nop(1); p("v_readfirstlane_b32 s%d, v1" % rec.sW)
    p("s_waitcnt lgkmcnt(0)")
    xcc_to_x(p, rec.sX, rec.sX, "REC_EXIT")
    p("s_cmp_lg_u32 s%d, 0" % rec.sW); p("s_cbranch_scc1 TICK_WAIT")
    p("s_lshl_b32 s%d, s%d, 7" % (rec.sT0, rec.sX)); rec.add_const(p, rec.sT0, rec.sT0, TICKET)
    p("v_mov_b32 v1, 0"); p("v_mov_b32 v2, 1")
    p("s_mov_b64 exec, 1")
    p("buffer_atomic_add v2, v1, s[%d:%d], s%d offen sc0" % (rec.sWS, rec.sWS + 3, rec.sT0))
    p("s_waitcnt vmcnt(0)")
    p("ds_write_b32 v1, v2"); p("s_waitcnt lgkmcnt(0)")
    p("s_mov_b64 exec, -1")
    p.label("TICK_WAIT")
    p("s_barrier")
    p("v_mov_b32 v1, 0"); p("ds_read_b32 v2, v1"); p("s_waitcnt lgkmcnt(0)")
    p("v_readfirstlane_b32 s%d, v2" % rec.sH)
    p("s_barrier")
    p("s_cmp_ge_u32 s%d, 32" % rec.sH); p("s_cbranch_scc1 REC_EXIT")
    st = rec.emit_rec(p, dbg)
    if dbg:
        p("s_lshl_b32 s%d, s%d, 5" % (rec.sT0, rec.sX)); p("s_add_u32 s%d, s%d, s%d" % (rec.sT0, rec.sT0, rec.sH))
        p("s_lshl_b32 s%d, s%d, 2" % (rec.sT0, rec.sT0)); p("s_add_u32 s%d, s%d, s%d" % (rec.sT0, rec.sT0, rec.sW))
        p("s_lshl_b32 s%d, s%d, 7" % (rec.sT0, rec.sT0)); rec.add_const(p, rec.sT0, rec.sT0, DBG)
        vals = [100, 8, 98 if not rec.STAMPS[0] else rec.sSPIN, rec.sISOWN, rec.sCNT] + [rec.sTS + 2 * i for i in range(len(st.stamps))] + [rec.sCNT2, 60, 61]
        open('stamps.txt', 'w').write(','.join(st.stamps))
        if not rec.STAMPS[0]: p("s_sub_u32 s94, s96, s94"); vals.append(94)
        p("v_mov_b32 v1, 0"); p("s_mov_b64 exec, 1")
        for i, sreg in enumerate(vals):
            p("v_mov_b32 v2, s%d" % sreg)
            p("buffer_store_dword v2, v1, s[%d:%d], s%d offen offset:%d" % (rec.sWS, rec.sWS + 3, rec.sT0, 4 * i))
        p("s_waitcnt vmcnt(0)")
    p.label("REC_EXIT"); p("s_endpgm")
    return p, label

def k0_kernel(devflags, dbg=0):
    p = Prog(); label = "init_kernel"
    kernel_begin(p, label)
    p("s_cmp_ge_u32 s2, 256"); p("s_cbranch_scc1 K0_EXIT")
    if dbg: p("s_memrealtime s[36:37]")
    k0.emit_k0(p, devflags)
    if dbg:
        p("s_mov_b32 s38, s36"); p("s_lshl_b32 s39, s2, 2"); p("s_add_u32 s39, s39, 0x%x" % (DBG + 0x8000))
        p("v_mov_b32 v14, s38"); p("v_mov_b32 v15, 0"); p("s_mov_b64 exec, 1")
        p("buffer_store_dword v14, v15, s[4:7], s39 offen"); p("s_mov_b64 exec, -1")
    p.label("K0_EXIT"); p("s_endpgm")
    return p, label

def gemm_kernel():
    p = Prog(); label = "gemm_kernel"
    kernel_begin(p, label)
    p("s_cmp_ge_u32 s2, 192"); p("s_cbranch_scc1 G_EXIT")
    if gemm.DBGT: p("s_memrealtime s[68:69]")
    srd(p, gemm.sWS, 112, WS_SIZE)
    p("s_load_dwordx4 s[48:51], s[0:1], 16"); p("s_load_dwordx2 s[52:53], s[0:1], 32")
    p("v_lshrrev_b32 v1, 6, v0"); p("v_and_b32 v0, 63, v0"); p.nop(1); p("v_readfirstlane_b32 s%d, v1" % gemm.sW)
    p("s_and_b32 s%d, s2, 1" % gemm.sHALF); p("s_lshr_b32 s3, s2, 1"); p("s_and_b32 s%d, s3, 31" % gemm.sH); p("s_lshr_b32 s3, s3, 5")
    p("s_waitcnt lgkmcnt(0)")
    p("s_mov_b32 s46, %d" % (640 * 4096 * 2)); p("s_mov_b32 s47, 0x00020000")
    roles = [(0, 50, "T", "GK"), (1, 52, "N", "GV"), (2, 48, "T", "GQ")]
    for mat, sp, kind, nm in roles:
        p("s_cmp_eq_u32 s3, %d" % mat); p("s_cbranch_scc1 %s_ENTRY" % nm)
    p("s_branch G_EXIT")
    for mat, sp, kind, nm in roles:
        p.label(nm + "_ENTRY")
        p("s_mov_b32 s44, s%d" % sp); p("s_mov_b32 s45, s%d" % (sp + 1))
        gemm.setup_role(p, mat)
        p("s_branch %s" % ("G_T" if kind == "T" else "G_N"))
    for kind, nm in (("T", "G_T"), ("N", "G_N")):
        p.label(nm)
        gemm.load_weights(p)
        gemm.emit_gemm(p, kind, nm, lambda q: None)
        p("s_branch G_EXIT")
    p.label("G_EXIT"); p("s_endpgm")
    return p, label

def wave_id(p, sreg):
    p("v_lshrrev_b32 v1, 6, v0"); p("v_and_b32 v0, 63, v0"); p.nop(1); p("v_readfirstlane_b32 s%d, v1" % sreg)

def mkv_kernel():
    p = Prog(); label = "mkv_kernel"
    kernel_begin(p, label)
    p("s_cmp_ge_u32 s2, 64"); p("s_cbranch_scc1 MK_EXIT")
    srd(p, gemm.sWS, 112, WS_SIZE)
    p("s_load_dwordx4 s[48:51], s[0:1], 24")
    wave_id(p, gemm.sW)
    p("s_and_b32 s%d, s2, 31" % gemm.sH); p("s_lshr_b32 s3, s2, 5")
    p("s_waitcnt lgkmcnt(0)")
    p("s_mov_b32 s46, %d" % (640 * 4096 * 2)); p("s_mov_b32 s47, 0x00020000")
    p("s_cmp_eq_u32 s3, 0"); p("s_cselect_b32 s44, s48, s50"); p("s_cselect_b32 s45, s49, s51")
    gemm.load_weights(p)
    p("s_cmp_eq_u32 s3, 0"); p("s_cbranch_scc0 MK_V")
    mkv.emit_mkv(p, "T", "MKK"); p("s_branch MK_EXIT")
    p.label("MK_V"); mkv.emit_mkv(p, "N", "MKV")
    p.label("MK_EXIT"); p("s_endpgm")
    return p, label

def att_kernel():
    p = Prog(); label = "att_kernel"
    kernel_begin(p, label)
    p("s_cmp_ge_u32 s2, 64"); p("s_cbranch_scc1 AT_EXIT")
    srd(p, gemm.sWS, 112, WS_SIZE)
    wave_id(p, gemm.sW)
    p("s_and_b32 s%d, s2, 1" % gemm.sHALF); p("s_lshr_b32 s%d, s2, 1" % gemm.sH)
    p("s_waitcnt lgkmcnt(0)")
    att.emit_att(p, "AT")
    p.label("AT_EXIT"); p("s_endpgm")
    return p, label

def moe_kernels():
    out = []
    for nm, grid in (("sel", 1), ("f1", 27), ("f2", 40)):
        p = Prog(); label = nm + "_kernel"
        kernel_begin(p, label)
        p("s_cmp_ge_u32 s2, %d" % grid); p("s_cbranch_scc1 %s_EXIT" % nm)
        srd(p, gemm.sWS, 112, WS_SIZE)
        srd(p, moe.sWG, 72, 640 * 1728 * 2); srd(p, moe.sWU, 80, 640 * 1728 * 2); srd(p, moe.sWD, 88, 640 * 1728 * 2)
        wave_id(p, gemm.sW)
        p("s_mov_b32 s%d, 0" % mkv.sSPIN)
        p("s_waitcnt lgkmcnt(0)")
        if nm == "f1":
            p("s_lshl_b32 s%d, s2, 2" % moe.sTASK); p("s_add_u32 s%d, s%d, s%d" % (moe.sTASK, moe.sTASK, gemm.sW))
            moe.emit_f1(p)
        else:
            p("s_cmp_lg_u32 s%d, 0" % gemm.sW); p("s_cbranch_scc1 %s_EXIT" % nm)
            p("s_mov_b32 s%d, s2" % moe.sTASK)
            (moe.emit_select if nm == "sel" else moe.emit_f2)(p)
        p.label(nm + "_EXIT"); p("s_endpgm")
        out.append((p, label, grid))
    return out

def out_kernel():
    p = Prog(); label = "out_kernel"
    kernel_begin(p, label)
    p("s_cmp_ge_u32 s2, 60"); p("s_cbranch_scc1 OU_EXIT")
    srd(p, gemm.sWS, 112, WS_SIZE)
    srd(p, outp.sWO, 40, 4096 * 640 * 2); srd(p, outp.sXI, 0, S * D * 2); srd(p, outp.sOUT, 96, S * D * 2)
    wave_id(p, gemm.sW)
    p("s_mul_hi_u32 s%d, s2, 0x%x" % (outp.sGRP, (2**32 + 19) // 20)); p("s_mul_i32 s3, s%d, 20" % outp.sGRP); p("s_sub_u32 s%d, s2, s3" % outp.sCT)
    p("s_mov_b32 s36, -1"); p("s_mov_b32 s37, 0")
    p("s_waitcnt lgkmcnt(0)")
    outp.load_wo(p)
    p("s_barrier")
    outp.emit_out(p, "OU", lambda q: None, lambda q: moe.wait_count(q, FLG_MOE + 256, 40, "OUW"))
    p.label("OU_EXIT"); p("s_endpgm")
    return p, label

sSLOWF, sXCC, sTICK, sHI = 97, 98, 99, 96

def tl_stamp(p, slot, dbg, tmp=90, have=False):
    if not dbg: return
    if os.environ.get("DBGMIN") and slot not in (0, 7, 2): return
    l = p.uid("TL")
    if not have: p("s_memrealtime s[%d:%d]" % (tmp, tmp + 1))
    p("s_waitcnt vmcnt(0) lgkmcnt(0)")
    p("s_lshl_b32 s%d, s2, 2" % (tmp + 1)); p("s_add_u32 s%d, s%d, 0x%x" % (tmp + 1, tmp + 1, DBG + 0x8000 + slot * 1024))
    p("v_mov_b32 v14, s%d" % tmp); p("v_mov_b32 v15, 0"); p("s_mov_b64 exec, 1")
    p("buffer_store_dword v14, v15, s[4:7], s%d offen" % (tmp + 1)); p("s_waitcnt vmcnt(0)"); p("s_mov_b64 exec, -1")

def lane_id(p):
    p("v_mbcnt_lo_u32_b32 v0, -1, 0"); p("v_mbcnt_hi_u32_b32 v0, -1, v0")

def fused_kernel(dbg=0, force_slow=False):
    tick_srd, tick_base, tick_stride = init.sDBG, init.D_TICK, init.D_TSTRIDE
    p = Prog(); label = "main_kernel"
    kernel_begin(p, label)
    p("s_cmp_ge_u32 s2, 256"); p("s_cbranch_scc1 M_EXIT")
    if dbg: p("s_memrealtime s[90:91]")
    srd(p, 4, 112, WS_SIZE)
    init.dbg_srd(p)
    WB = 640 * 4096 * 2
    def rec_srds():
        srd(p, rec.sWQ, 16, WB); srd(p, rec.sWK, 24, WB); srd(p, rec.sWV, 32, WB); srd(p, rec.sWO, 40, WB)
    rec_srds()
    wave_id(p, 14)
    p("s_getreg_b32 s%d, hwreg(HW_REG_XCC_ID)" % sXCC); p("s_and_b32 s%d, s%d, 7" % (sXCC, sXCC))
    p("s_mov_b32 s%d, 0" % sSLOWF); p("s_mov_b32 s%d, %d" % (init.sINITC, init.D_C1))
    p("s_waitcnt lgkmcnt(0)")
    tl_stamp(p, 0, dbg, have=True)
    init.emit_measure(p, 14, sXCC)
    p("s_cmp_lg_u32 s14, 0"); p("s_cbranch_scc1 M_TICKW")
    p("s_mul_i32 s64, s%d, %d" % (sXCC, tick_stride)); p("s_add_u32 s64, s64, 0x%x" % tick_base)
    p("v_mov_b32 v1, 0"); p("v_mov_b32 v2, 1"); p("s_mov_b64 exec, 1")
    p("buffer_atomic_add v2, v1, s[%d:%d], s64 offen sc0" % (tick_srd, tick_srd + 3))
    NPF = int(os.environ.get("CODEPF", "1"))
    if NPF:
        p("s_mov_b64 exec, -1")
        p("s_getpc_b64 s[76:77]"); p.label("M_PCREF")
        p("s_cmp_eq_u32 s%d, 0" % sXCC); p("s_cselect_b32 s80, 1, 0"); p("s_cmp_eq_u32 s%d, %d" % (sXCC, XPAIR)); p("s_cselect_b32 s80, 1, s80")
        p("s_cmp_eq_u32 s80, 1")
        p("s_mov_b32 s82, M_REC-M_PCREF"); p("s_mov_b32 s83, M_HELP-M_PCREF"); p("s_cselect_b32 s81, s82, s83")
        p("s_mov_b32 s82, M_HELP-M_REC"); p("s_mov_b32 s83, M_EXIT-M_HELP"); p("s_cselect_b32 s78, s82, s83")
        p("s_add_u32 s76, s76, s81"); p("s_addc_u32 s77, s77, 0"); p("s_and_b32 s77, s77, 0xffff"); p("s_mov_b32 s79, 0x00020000")
        p("s_lshr_b32 s81, s2, 3"); p("s_and_b32 s81, s81, 3"); p("s_lshl_b32 s81, s81, 12")
        p("v_mbcnt_lo_u32_b32 v3, -1, 0"); p("v_mbcnt_hi_u32_b32 v3, -1, v3"); p("v_lshlrev_b32 v3, 6, v3")
        p("s_mov_b32 m0, 1024"); p.nop(1)
        for k_ in range(5):
            p("buffer_load_dword v3, s[76:79], s81 offen lds"); p("s_add_u32 s81, s81, 16384")
        p("s_mov_b64 exec, 1")
        p("s_waitcnt vmcnt(5)")
    else: p("s_waitcnt vmcnt(0)")
    p("ds_write_b32 v1, v2"); p("s_waitcnt lgkmcnt(0)"); p("s_mov_b64 exec, -1")
    p.label("M_TICKW")
    p("s_barrier")
    p("v_mov_b32 v1, 0"); p("ds_read_b32 v2, v1"); p("s_waitcnt lgkmcnt(0)")
    p("v_readfirstlane_b32 s%d, v2" % sTICK)
    p("s_barrier")
    tl_stamp(p, 1, dbg)
    def wait_tickets(q):
        l = q.uid("TK"); ld = q.uid("TKD")
        lane_id(q)
        q("v_mul_u32_u24 v8, %d, v0" % tick_stride); q("s_mov_b32 s64, 0x%x" % tick_base); q("s_mov_b32 s65, 0")
        q("s_mov_b64 exec, 0xff")
        q.label(l)
        q("buffer_load_dword v9, v8, s[%d:%d], s64 offen sc1" % (tick_srd, tick_srd + 3)); q("s_add_u32 s65, s65, 1"); q("s_waitcnt vmcnt(0)")
        q("s_mov_b32 s66, 0")
        for i in range(8): q("v_readlane_b32 s67, v9, %d" % i); q("s_add_u32 s66, s66, s67")
        q("s_cmp_ge_u32 s66, 256"); q("s_cbranch_scc1 %s" % ld)
        q("s_cmp_gt_u32 s65, %d" % (1 << 18)); q("s_cbranch_scc0 %s" % l)
        q.label(ld)
        q("v_cmp_ne_u32 vcc, 32, v9")
        q("s_mov_b64 exec, -1")
    def check_mode(q):
        l = q.uid("CM")
        q("s_cmp_lg_u32 s%d, 0" % sSLOWF); q("s_cbranch_scc1 %s" % l)
        wait_tickets(q)
        q("s_cbranch_vccnz M_SLOW")
        q.label(l)
    if force_slow: p("s_branch M_SLOW0")
    p("s_cmp_ge_u32 s%d, 32" % sTICK); p("s_cbranch_scc1 M_SLOW0")
    p("s_mov_b32 s12, s%d" % sXCC)
    xcc_to_x(p, 12, 12, "M_FH")
    p("s_mov_b32 s13, s%d" % sTICK); p("s_branch M_REC")
    p.label("M_FH")
    p("s_sub_u32 s%d, s%d, 1" % (sHI, sXCC)); p("s_cmp_gt_u32 s%d, %d" % (sXCC, XPAIR)); p("s_cselect_b32 s64, 1, 0"); p("s_sub_u32 s%d, s%d, s64" % (sHI, sHI))
    p("s_lshl_b32 s%d, s%d, 5" % (sHI, sHI)); p("s_add_u32 s%d, s%d, s%d" % (sHI, sHI, sTICK))
    p("s_branch M_HELP")
    p.label("M_SLOW0")
    wait_tickets(p)
    p.label("M_SLOW")
    p("s_waitcnt vmcnt(0) lgkmcnt(0)"); p("s_barrier")
    p("s_cmp_lg_u32 s14, 0"); p("s_cbranch_scc1 M_SLOWB")
    init.counter_add(p, str(init.D_C3))
    p.label("M_SLOWB")
    init.wait_counter(p, 256, str(init.D_C3) if False else "s%d" % init.sINITC, "SB") if False else None
    p("s_mov_b32 s%d, %d" % (init.sINITC, init.D_C3))
    init.wait_counter(p, 256, name="SB")
    p("s_mov_b32 s%d, %d" % (init.sINITC, init.D_C2))
    p("s_mov_b32 s%d, 1" % sSLOWF)
    p("s_cmp_lt_u32 s2, 64"); p("s_cbranch_scc0 M_SH")
    rec_srds(); p("s_waitcnt lgkmcnt(0)")
    p("s_lshr_b32 s12, s2, 5"); p("s_and_b32 s13, s2, 31"); p("s_branch M_REC")
    p.label("M_SH")
    p("s_sub_u32 s%d, s2, 64" % sHI)
    p("s_branch M_HELP")
    p.label("M_REC")
    lane_id(p)
    def rec_ready(q):
        check_mode(q)
        init.wait_counter(q, init.NHELP, name="RI")
        init.wait_second(q)
    st = rec.emit_rec(p, dbg, rec_ready, sSLOWF, lambda q, slot: tl_stamp(q, slot, dbg, 74), init.read_cand)
    if dbg and not os.environ.get("DBGMIN"): rec_dbg_dump(p, st)
    tl_stamp(p, 3, dbg)
    p("s_branch M_EXIT")
    p.label("M_HELP")
    lane_id(p)
    p("s_and_b32 s%d, s%d, 1" % (gemm.sHALF, sHI)); p("s_lshr_b32 s3, s%d, 1" % sHI); p("s_and_b32 s%d, s3, 31" % gemm.sH); p("s_lshr_b32 s3, s3, 5")
    p("s_load_dwordx4 s[48:51], s[0:1], 16"); p("s_load_dwordx2 s[52:53], s[0:1], 32")
    p("s_waitcnt lgkmcnt(0)")
    p("s_mov_b32 s46, %d" % WB); p("s_mov_b32 s47, 0x00020000")
    p("s_cmp_eq_u32 s3, 1"); p("s_cselect_b32 s44, s52, s50"); p("s_cselect_b32 s45, s53, s51")
    p("s_cmp_eq_u32 s3, 2"); p("s_cselect_b32 s44, s48, s44"); p("s_cselect_b32 s45, s49, s45")
    init.emit_init(p, sHI, 14, lambda q: gemm.w128_first(q, 44, 40, 41, 42, 79, 80, 81))
    tl_stamp(p, 10, dbg)
    for _ in range(int(os.environ.get("HDELAY", "0"))): p("s_sleep 127")
    lane_id(p)
    roles = [(0, 50, "G_T"), (1, 52, "G_N"), (2, 48, "G_T")]
    for mat, sp, tgt in roles: p("s_cmp_eq_u32 s3, %d" % mat); p("s_cbranch_scc1 H_E%d" % mat)
    p("s_branch M_EXIT")
    for mat, sp, tgt in roles:
        p.label("H_E%d" % mat)
        gemm.setup_role(p, mat)
        p("s_branch %s" % tgt)
    for kind, nm in (("T", "G_T"), ("N", "G_N")):
        p.label(nm)
        gemm.load_weights(p, started=True)
        check_mode(p)
        init.wait_counter(p, init.NHELP, name="GI")
        lane_id(p)
        init.finish_init(p, sHI, 14)
        if kind == "T":
            l_ = p.uid("NOSEL")
            p("s_cmp_lg_u32 s3, 2"); p("s_cbranch_scc1 %s" % l_)
            p("s_or_b32 s64, s%d, s%d" % (gemm.sH, gemm.sHALF)); p("s_or_b32 s64, s64, s14"); p("s_cmp_lg_u32 s64, 0"); p("s_cbranch_scc1 %s" % l_)
            p("s_mov_b32 s%d, 0" % mkv.sSPIN)
            moe.emit_select(p)
            lane_id(p)
            p.label(l_)
        gemm.emit_gemm(p, kind, nm, lambda q: None)
        tl_stamp(p, 4, dbg)
        if kind == "T":
            p("s_cmp_eq_u32 s3, 2"); p("s_cbranch_scc1 H_Q")
        p("s_cmp_eq_u32 s%d, 1" % gemm.sHALF); p("s_cbranch_scc1 H_OUT")
        p("s_lshl_b32 s88, s3, 5"); p("s_add_u32 s88, s88, s%d" % gemm.sH)
        def wo_hook(p):
            lno = p.uid("NOWO")
            p("s_cmp_ge_u32 s88, 60"); p("s_cbranch_scc1 %s" % lno)
            p("s_mov_b32 s89, s%d" % gemm.sH)
            p("s_mul_hi_u32 s65, s88, 0x%x" % ((2**32 + 19) // 20)); p("s_mul_i32 s65, s65, 20"); p("s_sub_u32 s%d, s88, s65" % outp.sCT)
            srd(p, outp.sWO, 40, 4096 * 640 * 2)
            p("s_waitcnt lgkmcnt(0)")
            outp.load_wo(p)
            p("s_mov_b32 s%d, s89" % gemm.sH)
            p.label(lno)
        mkv.emit_mkv(p, kind, "MK" + kind, init.read_cand, wo_hook)
        tl_stamp(p, 5, dbg)
        p("s_cmp_ge_u32 s88, 60"); p("s_cbranch_scc1 M_EXIT")
        p("s_branch H_EXTRA")
    p.label("H_OUT")
    p("s_lshl_b32 s64, s3, 5"); p("s_add_u32 s64, s64, s%d" % gemm.sH)
    p("s_cmp_ge_u32 s64, 60"); p("s_cbranch_scc1 M_EXIT")
    p("s_mul_hi_u32 s%d, s64, 0x%x" % (outp.sGRP, (2**32 + 19) // 20)); p("s_mul_i32 s65, s%d, 20" % outp.sGRP); p("s_sub_u32 s%d, s64, s65" % outp.sCT)
    srd(p, outp.sWO, 40, 4096 * 640 * 2); srd(p, outp.sXI, 0, S * D * 2); srd(p, outp.sOUT, 96, S * D * 2)
    p("s_mov_b32 s36, -1"); p("s_mov_b32 s37, 0")
    p("s_waitcnt lgkmcnt(0)")
    outp.load_wo(p)
    p("s_barrier")
    if dbg >= 2: outp.STAMP[0] = lambda q, slot: tl_stamp(q, slot, dbg)
    outp.emit_out(p, "OU", lambda q: (moe.wait_count(q, FLG_MOE, 1, "OUS"), tl_stamp(q, 8, dbg)), lambda q: moe.wait_count(q, FLG_MOE + 256, 40, "OUW"))
    tl_stamp(p, 7, dbg)
    p("s_branch M_EXIT")
    p.label("H_EXTRA")
    p("s_mul_hi_u32 s%d, s88, 0x%x" % (outp.sGRP, (2**32 + 19) // 20)); p("s_mul_i32 s65, s%d, 20" % outp.sGRP); p("s_sub_u32 s%d, s88, s65" % outp.sCT)
    p("s_add_u32 s%d, s%d, 3" % (outp.sGRP, outp.sGRP))
    srd(p, outp.sXI, 0, S * D * 2); srd(p, outp.sOUT, 96, S * D * 2)
    p("s_mov_b32 s36, -1"); p("s_mov_b32 s37, 0")
    p("s_waitcnt lgkmcnt(0)")
    lane_id(p)
    outp.emit_extra(p, "OX", lambda q: moe.wait_count(q, FLG_MOE + 256, 40, "OXW"))
    tl_stamp(p, 7, dbg)
    p("s_branch M_EXIT")
    p.label("H_Q")
    tl_stamp(p, 9, dbg)
    def moe_srds():
        p("s_lshl_b32 s70, s%d, 1" % gemm.sH); p("s_add_u32 s70, s70, s%d" % gemm.sHALF)
        srd(p, moe.sWG, 72, 640 * 1728 * 2); srd(p, moe.sWU, 80, 640 * 1728 * 2); srd(p, moe.sWD, 88, 640 * 1728 * 2)
        p("s_mov_b32 s%d, 0" % mkv.sSPIN)
        p("s_waitcnt lgkmcnt(0)")
        lane_id(p)
    att.emit_att(p, "AT0", 0, 1)
    moe_srds()
    p("s_lshl_b32 s%d, s70, 2" % moe.sTASK); p("s_add_u32 s%d, s%d, s14" % (moe.sTASK, moe.sTASK))
    p("s_cmp_ge_u32 s%d, 108" % moe.sTASK); p("s_cbranch_scc1 H_A1")
    tl_stamp(p, 15, dbg)
    moe.emit_f1(p)
    tl_stamp(p, 16, dbg)
    p.label("H_A1")
    lane_id(p)
    att.emit_att(p, "AT1", 1, 2)
    moe_srds()
    p("s_cmp_lg_u32 s14, 0"); p("s_cbranch_scc1 H_ATT")
    p("s_cmp_ge_u32 s70, 40"); p("s_cbranch_scc1 H_ATT")
    p("s_mov_b32 s%d, s70" % moe.sTASK)
    tl_stamp(p, 17, dbg)
    moe.emit_f2(p, lambda q: tl_stamp(q, 18, dbg), lambda q: tl_stamp(q, 19, dbg))
    tl_stamp(p, 14, dbg)
    p.label("H_ATT")
    lane_id(p)
    att.emit_att(p, "AT2", 2, 8)
    tl_stamp(p, 6, dbg)
    p.label("M_EXIT"); p("s_endpgm")
    return p, label

def rec_dbg_dump(p, st):
    p("s_lshl_b32 s%d, s%d, 5" % (rec.sT0, rec.sX)); p("s_add_u32 s%d, s%d, s%d" % (rec.sT0, rec.sT0, rec.sH))
    p("s_lshl_b32 s%d, s%d, 2" % (rec.sT0, rec.sT0)); p("s_add_u32 s%d, s%d, s%d" % (rec.sT0, rec.sT0, rec.sW))
    p("s_lshl_b32 s%d, s%d, 7" % (rec.sT0, rec.sT0)); rec.add_const(p, rec.sT0, rec.sT0, DBG)
    vals = [100, 8, 98 if not rec.STAMPS[0] else rec.sSPIN, rec.sISOWN, rec.sCNT] + [rec.sTS + 2 * i for i in range(len(st.stamps))] + [rec.sCNT2, 60, 61]
    open('stamps.txt', 'w').write(','.join(st.stamps))
    p("v_mov_b32 v1, 0"); p("s_mov_b64 exec, 1")
    for i, sreg in enumerate(vals):
        p("v_mov_b32 v2, s%d" % sreg)
        p("buffer_store_dword v2, v1, s[%d:%d], s%d offen offset:%d" % (rec.sWS, rec.sWS + 3, rec.sT0, 4 * i))
    p("s_waitcnt vmcnt(0)"); p("s_mov_b64 exec, -1")

def write(path, launches, progs):
    txt = HEADER
    for k, g, b, lds in launches: txt += "; @launch kernel=%s grid=(%d,1,1) block=(%d,1,1) lds=%d\n" % (k, g, b, lds)
    txt += '.amdgcn_target "amdgcn-amd-amdhsa--gfx950"\n'
    for p, label, v, s, a in progs: txt += p.text()
    for p, label, v, s, a in progs: txt += descriptor(label, v, s, a)
    open(path, "w").write(txt)

if __name__ == "__main__":
    mode = sys.argv[1]
    if mode == "rec":
        dbg = int(sys.argv[3]) if len(sys.argv) > 3 else 0
        p, label = rec_standalone(dbg)
        probs = check(p.lines, "rec")
        i0 = p.lines.index("REC_LOOP:"); i1 = p.lines.index("REC_TAIL:")
        probs += check(p.lines[i0:i1] + p.lines[i0:i1], "loop-wrap")
        for x in dict.fromkeys(probs): print("HAZARD", x)
        p0, l0 = k0_kernel(True)
        for x in dict.fromkeys(check(p0.lines, "k0")): print("HAZARD", x)
        write(sys.argv[2], [(l0, 256, 256, 64), (label, 256, 256, 163840)], [(p0, l0, 80, 72, 80), (p, label, 512, 102, 256)])
        print("instructions:", sum(1 for l in p.lines if not l.endswith(":") and not l.startswith((";", "."))),
              "loop:", sum(1 for l in p.lines[i0:i1] if not l.endswith(":") and not l.startswith((";", "."))))

    if mode == "gemm":
        p0, l0 = k0_kernel(False)
        p, label = gemm_kernel()
        probs = check(p.lines, "gemm")
        for nm in ("G_T", "G_N"):
            i0 = p.lines.index(nm + "_LOOP:"); i1 = i0 + next(i for i, l in enumerate(p.lines[i0:]) if l.startswith("s_cbranch_scc1 " + nm + "_LOOP"))
            probs += check(p.lines[i0:i1] + p.lines[i0:i1], "wrap")
        for x in dict.fromkeys(probs): print("HAZARD", x)
        write(sys.argv[2], [(l0, 256, 256, 64), (label, 192, 256, 163840)], [(p0, l0, 80, 72, 80), (p, label, 512, 102, 256)])
        print("instructions:", sum(1 for l in p.lines if not l.endswith(":") and not l.startswith((";", "."))))

    if mode == "multi":
        devd = int(sys.argv[3]) if len(sys.argv) > 3 else 0
        p0, l0 = k0_kernel(False)
        pg, lgm = gemm_kernel()
        pr, lr = rec_standalone(devd)
        pm, lm = mkv_kernel(); pa, la = att_kernel(); po, lo = out_kernel()
        mk = moe_kernels()
        progs = [(p0, l0, 80, 72, 80), (pg, lgm, 512, 102, 256), (pr, lr, 512, 102, 256), (pm, lm, 512, 102, 256), (pa, la, 256, 102, 256)]
        progs += [(p, l, 256, 102, 256) for p, l, g in mk] + [(po, lo, 512, 102, 256)]
        launches = [(l0, 256, 256, 64), (lgm, 192, 256, 163840), (lr, 256, 256, 163840), (lm, 64, 256, 163840), (la, 64, 256, 0)]
        launches += [(l, g, 256, 163840) for p, l, g in mk] + [(lo, 60, 256, 163840)]
        for p, l, *_ in progs:
            for x in dict.fromkeys(check(p.lines, l)): print("HAZARD", x)
        write(sys.argv[2], launches, progs)
        print("written")

    if mode == "fused":
        devd = int(sys.argv[3]) if len(sys.argv) > 3 else 0
        import os
        pm, lm = fused_kernel(devd, bool(os.environ.get("FORCE_SLOW")))
        for x in dict.fromkeys(check(pm.lines, lm)): print("HAZARD", x)
        write(sys.argv[2], [(lm, 256, 256, 163840)], [(pm, lm, 512, 102, 256)])
        print("instructions:", sum(1 for l in pm.lines if not l.endswith(":") and not l.startswith((";", "."))))
```

```python
import sys
from asm import *
from layout import *
import rec, k0, gemm, mkv, att, outp, moe, init

HEADER = open("/code/%s.s.ref" % NAME).read()
HEADER = HEADER[:HEADER.index("; Override launch geometry")]

def kernel_begin(p, label):
    p(".text"); p(".globl %s" % label); p(".p2align 8"); p(".type %s,@function" % label); p.label(label)
def descriptor(label, vgpr, sgpr, accum):
    return """.section .rodata,"a"
.p2align 6
.amdhsa_kernel %s
  .amdhsa_next_free_vgpr %d
  .amdhsa_next_free_sgpr %d
  .amdhsa_accum_offset %d
  .amdhsa_group_segment_fixed_size 0
  .amdhsa_kernarg_size 120
  .amdhsa_user_sgpr_count 2
  .amdhsa_user_sgpr_kernarg_segment_ptr 1
  .amdhsa_system_sgpr_workgroup_id_x 1
.end_amdhsa_kernel
""" % (label, vgpr, sgpr, accum)

def srd(p, dst, karg_off, size, tmp=None):
    p("s_load_dwordx2 s[%d:%d], s[0:1], %d" % (dst, dst + 1, karg_off))
    p("s_mov_b32 s%d, 0x%x" % (dst + 2, size)); p("s_mov_b32 s%d, 0x00020000" % (dst + 3))

import os
XPAIR = int(os.environ.get("XPAIR", "2"))
def xcc_to_x(p, dst, src, lelse):
    l = p.uid("XOK")
    p("s_cmp_eq_u32 s%d, 0" % src); p("s_cbranch_scc1 %s" % l)
    p("s_cmp_eq_u32 s%d, %d" % (src, XPAIR)); p("s_cbranch_scc0 %s" % lelse)
    p("s_mov_b32 s%d, 1" % dst)
    p.label(l)

def rec_standalone(dbg):
    p = Prog(); label = "rec_kernel"
    kernel_begin(p, label)
    p("s_cmp_ge_u32 s2, 256"); p("s_cbranch_scc1 REC_EXIT")
    if dbg and not rec.STAMPS[0]: p("s_memrealtime s[94:95]")
    srd(p, rec.sWS, 112, WS_SIZE)
    WB = 640 * 4096 * 2
    srd(p, rec.sWQ, 16, WB); srd(p, rec.sWK, 24, WB); srd(p, rec.sWV, 32, WB); srd(p, rec.sWO, 40, WB)
    p("s_getreg_b32 s%d, hwreg(HW_REG_XCC_ID)" % rec.sX); p("s_and_b32 s%d, s%d, 15" % (rec.sX, rec.sX))
    p("v_lshrrev_b32 v1, 6, v0"); p.nop(1); p("v_readfirstlane_b32 s%d, v1" % rec.sW)
    p("s_waitcnt lgkmcnt(0)")
    xcc_to_x(p, rec.sX, rec.sX, "REC_EXIT")
    p("s_cmp_lg_u32 s%d, 0" % rec.sW); p("s_cbranch_scc1 TICK_WAIT")
    p("s_lshl_b32 s%d, s%d, 7" % (rec.sT0, rec.sX)); rec.add_const(p, rec.sT0, rec.sT0, TICKET)
    p("v_mov_b32 v1, 0"); p("v_mov_b32 v2, 1")
    p("s_mov_b64 exec, 1")
    p("buffer_atomic_add v2, v1, s[%d:%d], s%d offen sc0" % (rec.sWS, rec.sWS + 3, rec.sT0))
    p("s_waitcnt vmcnt(0)")
    p("ds_write_b32 v1, v2"); p("s_waitcnt lgkmcnt(0)")
    p("s_mov_b64 exec, -1")
    p.label("TICK_WAIT")
    p("s_barrier")
    p("v_mov_b32 v1, 0"); p("ds_read_b32 v2, v1"); p("s_waitcnt lgkmcnt(0)")
    p("v_readfirstlane_b32 s%d, v2" % rec.sH)
    p("s_barrier")
    p("s_cmp_ge_u32 s%d, 32" % rec.sH); p("s_cbranch_scc1 REC_EXIT")
    st = rec.emit_rec(p, dbg)
    if dbg:
        p("s_lshl_b32 s%d, s%d, 5" % (rec.sT0, rec.sX)); p("s_add_u32 s%d, s%d, s%d" % (rec.sT0, rec.sT0, rec.sH))
        p("s_lshl_b32 s%d, s%d, 2" % (rec.sT0, rec.sT0)); p("s_add_u32 s%d, s%d, s%d" % (rec.sT0, rec.sT0, rec.sW))
        p("s_lshl_b32 s%d, s%d, 7" % (rec.sT0, rec.sT0)); rec.add_const(p, rec.sT0, rec.sT0, DBG)
        vals = [100, 8, 98 if not rec.STAMPS[0] else rec.sSPIN, rec.sISOWN, rec.sCNT] + [rec.sTS + 2 * i for i in range(len(st.stamps))] + [rec.sCNT2, 60, 61]
        open('stamps.txt', 'w').write(','.join(st.stamps))
        if not rec.STAMPS[0]: p("s_sub_u32 s94, s96, s94"); vals.append(94)
        p("v_mov_b32 v1, 0"); p("s_mov_b64 exec, 1")
        for i, sreg in enumerate(vals):
            p("v_mov_b32 v2, s%d" % sreg)
            p("buffer_store_dword v2, v1, s[%d:%d], s%d offen offset:%d" % (rec.sWS, rec.sWS + 3, rec.sT0, 4 * i))
        p("s_waitcnt vmcnt(0)")
    p.label("REC_EXIT"); p("s_endpgm")
    return p, label

def k0_kernel(devflags, dbg=0):
    p = Prog(); label = "init_kernel"
    kernel_begin(p, label)
    p("s_cmp_ge_u32 s2, 256"); p("s_cbranch_scc1 K0_EXIT")
    if dbg: p("s_memrealtime s[36:37]")
    k0.emit_k0(p, devflags)
    if dbg:
        p("s_mov_b32 s38, s36"); p("s_lshl_b32 s39, s2, 2"); p("s_add_u32 s39, s39, 0x%x" % (DBG + 0x8000))
        p("v_mov_b32 v14, s38"); p("v_mov_b32 v15, 0"); p("s_mov_b64 exec, 1")
        p("buffer_store_dword v14, v15, s[4:7], s39 offen"); p("s_mov_b64 exec, -1")
    p.label("K0_EXIT"); p("s_endpgm")
    return p, label

def gemm_kernel():
    p = Prog(); label = "gemm_kernel"
    kernel_begin(p, label)
    p("s_cmp_ge_u32 s2, 192"); p("s_cbranch_scc1 G_EXIT")
    if gemm.DBGT: p("s_memrealtime s[68:69]")
    srd(p, gemm.sWS, 112, WS_SIZE)
    p("s_load_dwordx4 s[48:51], s[0:1], 16"); p("s_load_dwordx2 s[52:53], s[0:1], 32")
    p("v_lshrrev_b32 v1, 6, v0"); p("v_and_b32 v0, 63, v0"); p.nop(1); p("v_readfirstlane_b32 s%d, v1" % gemm.sW)
    p("s_and_b32 s%d, s2, 1" % gemm.sHALF); p("s_lshr_b32 s3, s2, 1"); p("s_and_b32 s%d, s3, 31" % gemm.sH); p("s_lshr_b32 s3, s3, 5")
    p("s_waitcnt lgkmcnt(0)")
    p("s_mov_b32 s46, %d" % (640 * 4096 * 2)); p("s_mov_b32 s47, 0x00020000")
    roles = [(0, 50, "T", "GK"), (1, 52, "N", "GV"), (2, 48, "T", "GQ")]
    for mat, sp, kind, nm in roles:
        p("s_cmp_eq_u32 s3, %d" % mat); p("s_cbranch_scc1 %s_ENTRY" % nm)
    p("s_branch G_EXIT")
    for mat, sp, kind, nm in roles:
        p.label(nm + "_ENTRY")
        p("s_mov_b32 s44, s%d" % sp); p("s_mov_b32 s45, s%d" % (sp + 1))
        gemm.setup_role(p, mat)
        p("s_branch %s" % ("G_T" if kind == "T" else "G_N"))
    for kind, nm in (("T", "G_T"), ("N", "G_N")):
        p.label(nm)
        gemm.load_weights(p)
        gemm.emit_gemm(p, kind, nm, lambda q: None)
        p("s_branch G_EXIT")
    p.label("G_EXIT"); p("s_endpgm")
    return p, label

def wave_id(p, sreg):
    p("v_lshrrev_b32 v1, 6, v0"); p("v_and_b32 v0, 63, v0"); p.nop(1); p("v_readfirstlane_b32 s%d, v1" % sreg)

def mkv_kernel():
    p = Prog(); label = "mkv_kernel"
    kernel_begin(p, label)
    p("s_cmp_ge_u32 s2, 64"); p("s_cbranch_scc1 MK_EXIT")
    srd(p, gemm.sWS, 112, WS_SIZE)
    p("s_load_dwordx4 s[48:51], s[0:1], 24")
    wave_id(p, gemm.sW)
    p("s_and_b32 s%d, s2, 31" % gemm.sH); p("s_lshr_b32 s3, s2, 5")
    p("s_waitcnt lgkmcnt(0)")
    p("s_mov_b32 s46, %d" % (640 * 4096 * 2)); p("s_mov_b32 s47, 0x00020000")
    p("s_cmp_eq_u32 s3, 0"); p("s_cselect_b32 s44, s48, s50"); p("s_cselect_b32 s45, s49, s51")
    gemm.load_weights(p)
    p("s_cmp_eq_u32 s3, 0"); p("s_cbranch_scc0 MK_V")
    mkv.emit_mkv(p, "T", "MKK"); p("s_branch MK_EXIT")
    p.label("MK_V"); mkv.emit_mkv(p, "N", "MKV")
    p.label("MK_EXIT"); p("s_endpgm")
    return p, label

def att_kernel():
    p = Prog(); label = "att_kernel"
    kernel_begin(p, label)
    p("s_cmp_ge_u32 s2, 64"); p("s_cbranch_scc1 AT_EXIT")
    srd(p, gemm.sWS, 112, WS_SIZE)
    wave_id(p, gemm.sW)
    p("s_and_b32 s%d, s2, 1" % gemm.sHALF); p("s_lshr_b32 s%d, s2, 1" % gemm.sH)
    p("s_waitcnt lgkmcnt(0)")
    att.emit_att(p, "AT")
    p.label("AT_EXIT"); p("s_endpgm")
    return p, label

def moe_kernels():
    out = []
    for nm, grid in (("sel", 1), ("f1", 27), ("f2", 40)):
        p = Prog(); label = nm + "_kernel"
        kernel_begin(p, label)
        p("s_cmp_ge_u32 s2, %d" % grid); p("s_cbranch_scc1 %s_EXIT" % nm)
        srd(p, gemm.sWS, 112, WS_SIZE)
        srd(p, moe.sWG, 72, 640 * 1728 * 2); srd(p, moe.sWU, 80, 640 * 1728 * 2); srd(p, moe.sWD, 88, 640 * 1728 * 2)
        wave_id(p, gemm.sW)
        p("s_mov_b32 s%d, 0" % mkv.sSPIN)
        p("s_waitcnt lgkmcnt(0)")
        if nm == "f1":
            p("s_lshl_b32 s%d, s2, 2" % moe.sTASK); p("s_add_u32 s%d, s%d, s%d" % (moe.sTASK, moe.sTASK, gemm.sW))
            moe.emit_f1(p)
        else:
            p("s_cmp_lg_u32 s%d, 0" % gemm.sW); p("s_cbranch_scc1 %s_EXIT" % nm)
            p("s_mov_b32 s%d, s2" % moe.sTASK)
            (moe.emit_select if nm == "sel" else moe.emit_f2)(p)
        p.label(nm + "_EXIT"); p("s_endpgm")
        out.append((p, label, grid))
    return out

def out_kernel():
    p = Prog(); label = "out_kernel"
    kernel_begin(p, label)
    p("s_cmp_ge_u32 s2, 60"); p("s_cbranch_scc1 OU_EXIT")
    srd(p, gemm.sWS, 112, WS_SIZE)
    srd(p, outp.sWO, 40, 4096 * 640 * 2); srd(p, outp.sXI, 0, S * D * 2); srd(p, outp.sOUT, 96, S * D * 2)
    wave_id(p, gemm.sW)
    p("s_mul_hi_u32 s%d, s2, 0x%x" % (outp.sGRP, (2**32 + 19) // 20)); p("s_mul_i32 s3, s%d, 20" % outp.sGRP); p("s_sub_u32 s%d, s2, s3" % outp.sCT)
    p("s_mov_b32 s36, -1"); p("s_mov_b32 s37, 0")
    p("s_waitcnt lgkmcnt(0)")
    outp.load_wo(p)
    p("s_barrier")
    outp.emit_out(p, "OU", lambda q: None, lambda q: moe.wait_count(q, FLG_MOE + 256, 40, "OUW"))
    p.label("OU_EXIT"); p("s_endpgm")
    return p, label

sSLOWF, sXCC, sTICK, sHI = 97, 98, 99, 96

def dbg_max(p, dword, tmp=90, have=False, invert=False):
    if not os.environ.get("OFFDBG"): return
    l_ = p.uid("DM")
    p("s_cmp_lg_u32 s14, 0"); p("s_cbranch_scc1 %s" % l_)
    if invert: p("s_cmp_ge_u32 s2, 8"); p("s_cbranch_scc1 %s" % l_)
    if not have: p("s_memrealtime s[%d:%d]" % (tmp, tmp + 1))
    p("s_waitcnt lgkmcnt(0)")
    if invert: p("s_not_b32 s%d, s%d" % (tmp + 1, tmp)); p("v_mov_b32 v14, s%d" % (tmp + 1))
    else: p("v_mov_b32 v14, s%d" % tmp)
    p("s_mov_b64 exec, 1")
    p("buffer_atomic_umax v14, off, s[60:63], %d sc1" % (4 * dword)) if 4 * dword <= 64 else None
    p("s_mov_b64 exec, -1")
    p.label(l_)

def tl_stamp(p, slot, dbg, tmp=90, have=False):
    m_ = {0: (4, True), 2: (5, False), 3: (6, False), 7: (7, False), 4: (9, False), 6: (10, False), 14: (11, False), 5: (12, False)}
    if slot in m_ and os.environ.get("OFFDBG"):
        dbg_max(p, m_[slot][0], tmp, have and False, m_[slot][1]); return
    _tl_stamp(p, slot, dbg, tmp, have)

def _tl_stamp(p, slot, dbg, tmp=90, have=False):
    if not dbg: return
    if os.environ.get("DBGMIN") and slot not in (0, 7, 2): return
    l = p.uid("TL")
    if not have: p("s_memrealtime s[%d:%d]" % (tmp, tmp + 1))
    p("s_waitcnt vmcnt(0) lgkmcnt(0)")
    p("s_lshl_b32 s%d, s2, 2" % (tmp + 1)); p("s_add_u32 s%d, s%d, 0x%x" % (tmp + 1, tmp + 1, DBG + 0x8000 + slot * 1024))
    p("v_mov_b32 v14, s%d" % tmp); p("v_mov_b32 v15, 0"); p("s_mov_b64 exec, 1")
    p("buffer_store_dword v14, v15, s[4:7], s%d offen" % (tmp + 1)); p("s_waitcnt vmcnt(0)"); p("s_mov_b64 exec, -1")

def lane_id(p):
    p("v_mbcnt_lo_u32_b32 v0, -1, 0"); p("v_mbcnt_hi_u32_b32 v0, -1, v0")

def fused_kernel(dbg=0, force_slow=False):
    tick_srd, tick_base, tick_stride = init.sDBG, init.D_TICK, init.D_TSTRIDE
    p = Prog(); label = "main_kernel"
    kernel_begin(p, label)
    p("s_cmp_ge_u32 s2, 256"); p("s_cbranch_scc1 M_EXIT")
    if dbg: p("s_memrealtime s[90:91]")
    srd(p, 4, 112, WS_SIZE)
    init.dbg_srd(p)
    WB = 640 * 4096 * 2
    def rec_srds():
        srd(p, rec.sWQ, 16, WB); srd(p, rec.sWK, 24, WB); srd(p, rec.sWV, 32, WB); srd(p, rec.sWO, 40, WB)
    rec_srds()
    wave_id(p, 14)
    p("s_getreg_b32 s%d, hwreg(HW_REG_XCC_ID)" % sXCC); p("s_and_b32 s%d, s%d, 7" % (sXCC, sXCC))
    p("s_mov_b32 s%d, 0" % sSLOWF); p("s_mov_b32 s%d, %d" % (init.sINITC, init.D_C1))
    p("s_waitcnt lgkmcnt(0)")
    tl_stamp(p, 0, dbg, have=True)
    init.emit_measure(p, 14, sXCC)
    p("s_cmp_lg_u32 s14, 0"); p("s_cbranch_scc1 M_TICKW")
    p("s_mul_i32 s64, s%d, %d" % (sXCC, tick_stride)); p("s_add_u32 s64, s64, 0x%x" % tick_base)
    p("v_mov_b32 v1, 0"); p("v_mov_b32 v2, 1"); p("s_mov_b64 exec, 1")
    p("buffer_atomic_add v2, v1, s[%d:%d], s64 offen sc0" % (tick_srd, tick_srd + 3))
    NPF = int(os.environ.get("CODEPF", "1"))
    if NPF:
        p("s_mov_b64 exec, -1")
        p("s_getpc_b64 s[76:77]"); p.label("M_PCREF")
        p("s_cmp_eq_u32 s%d, 0" % sXCC); p("s_cselect_b32 s80, 1, 0"); p("s_cmp_eq_u32 s%d, %d" % (sXCC, XPAIR)); p("s_cselect_b32 s80, 1, s80")
        p("s_cmp_eq_u32 s80, 1")
        p("s_mov_b32 s82, M_REC-M_PCREF"); p("s_mov_b32 s83, M_HELP-M_PCREF"); p("s_cselect_b32 s81, s82, s83")
        p("s_mov_b32 s82, M_HELP-M_REC"); p("s_mov_b32 s83, M_EXIT-M_HELP"); p("s_cselect_b32 s78, s82, s83")
        p("s_add_u32 s76, s76, s81"); p("s_addc_u32 s77, s77, 0"); p("s_and_b32 s77, s77, 0xffff"); p("s_mov_b32 s79, 0x00020000")
        p("s_lshr_b32 s81, s2, 3"); p("s_and_b32 s81, s81, 3"); p("s_lshl_b32 s81, s81, 12")
        p("v_mbcnt_lo_u32_b32 v3, -1, 0"); p("v_mbcnt_hi_u32_b32 v3, -1, v3"); p("v_lshlrev_b32 v3, 6, v3")
        p("s_mov_b32 m0, 1024"); p.nop(1)
        for k_ in range(5):
            p("buffer_load_dword v3, s[76:79], s81 offen lds"); p("s_add_u32 s81, s81, 16384")
        p("s_mov_b64 exec, 1")
        p("s_waitcnt vmcnt(5)")
    else: p("s_waitcnt vmcnt(0)")
    p("ds_write_b32 v1, v2"); p("s_waitcnt lgkmcnt(0)"); p("s_mov_b64 exec, -1")
    p.label("M_TICKW")
    p("s_barrier")
    p("v_mov_b32 v1, 0"); p("ds_read_b32 v2, v1"); p("s_waitcnt lgkmcnt(0)")
    p("v_readfirstlane_b32 s%d, v2" % sTICK)
    p("s_barrier")
    tl_stamp(p, 1, dbg)
    def wait_tickets(q):
        l = q.uid("TK"); ld = q.uid("TKD")
        lane_id(q)
        q("v_mul_u32_u24 v8, %d, v0" % tick_stride); q("s_mov_b32 s64, 0x%x" % tick_base); q("s_mov_b32 s65, 0")
        q("s_mov_b64 exec, 0xff")
        q.label(l)
        q("buffer_load_dword v9, v8, s[%d:%d], s64 offen sc1" % (tick_srd, tick_srd + 3)); q("s_add_u32 s65, s65, 1"); q("s_waitcnt vmcnt(0)")
        q("s_mov_b32 s66, 0")
        for i in range(8): q("v_readlane_b32 s67, v9, %d" % i); q("s_add_u32 s66, s66, s67")
        q("s_cmp_ge_u32 s66, 256"); q("s_cbranch_scc1 %s" % ld)
        q("s_cmp_gt_u32 s65, %d" % (1 << 18)); q("s_cbranch_scc0 %s" % l)
        q.label(ld)
        q("v_cmp_ne_u32 vcc, 32, v9")
        q("s_mov_b64 exec, -1")
    def check_mode(q):
        l = q.uid("CM")
        q("s_cmp_lg_u32 s%d, 0" % sSLOWF); q("s_cbranch_scc1 %s" % l)
        wait_tickets(q)
        q("s_cbranch_vccnz M_SLOW")
        q.label(l)
    if force_slow: p("s_branch M_SLOW0")
    p("s_cmp_ge_u32 s%d, 32" % sTICK); p("s_cbranch_scc1 M_SLOW0")
    p("s_mov_b32 s12, s%d" % sXCC)
    xcc_to_x(p, 12, 12, "M_FH")
    p("s_mov_b32 s13, s%d" % sTICK); p("s_branch M_REC")
    p.label("M_FH")
    p("s_sub_u32 s%d, s%d, 1" % (sHI, sXCC)); p("s_cmp_gt_u32 s%d, %d" % (sXCC, XPAIR)); p("s_cselect_b32 s64, 1, 0"); p("s_sub_u32 s%d, s%d, s64" % (sHI, sHI))
    p("s_lshl_b32 s%d, s%d, 5" % (sHI, sHI)); p("s_add_u32 s%d, s%d, s%d" % (sHI, sHI, sTICK))
    p("s_branch M_HELP")
    p.label("M_SLOW0")
    wait_tickets(p)
    p.label("M_SLOW")
    p("s_waitcnt vmcnt(0) lgkmcnt(0)"); p("s_barrier")
    p("s_cmp_lg_u32 s14, 0"); p("s_cbranch_scc1 M_SLOWB")
    init.counter_add(p, str(init.D_C3))
    p.label("M_SLOWB")
    init.wait_counter(p, 256, str(init.D_C3) if False else "s%d" % init.sINITC, "SB") if False else None
    p("s_mov_b32 s%d, %d" % (init.sINITC, init.D_C3))
    init.wait_counter(p, 256, name="SB")
    p("s_mov_b32 s%d, %d" % (init.sINITC, init.D_C2))
    p("s_mov_b32 s%d, 1" % sSLOWF)
    p("s_cmp_lt_u32 s2, 64"); p("s_cbranch_scc0 M_SH")
    rec_srds(); p("s_waitcnt lgkmcnt(0)")
    p("s_lshr_b32 s12, s2, 5"); p("s_and_b32 s13, s2, 31"); p("s_branch M_REC")
    p.label("M_SH")
    p("s_sub_u32 s%d, s2, 64" % sHI)
    p("s_branch M_HELP")
    p.label("M_REC")
    lane_id(p)
    def rec_ready(q):
        check_mode(q)
        init.wait_counter(q, init.NHELP, name="RI")
        init.wait_second(q)
    st = rec.emit_rec(p, dbg, rec_ready, sSLOWF, lambda q, slot: tl_stamp(q, slot, dbg, 74), init.read_cand)
    if dbg and not os.environ.get("DBGMIN"): rec_dbg_dump(p, st)
    tl_stamp(p, 3, dbg)
    p("s_branch M_EXIT")
    p.label("M_HELP")
    lane_id(p)
    p("s_and_b32 s%d, s%d, 1" % (gemm.sHALF, sHI)); p("s_lshr_b32 s3, s%d, 1" % sHI); p("s_and_b32 s%d, s3, 31" % gemm.sH); p("s_lshr_b32 s3, s3, 5")
    p("s_load_dwordx4 s[48:51], s[0:1], 16"); p("s_load_dwordx2 s[52:53], s[0:1], 32")
    p("s_waitcnt lgkmcnt(0)")
    p("s_mov_b32 s46, %d" % WB); p("s_mov_b32 s47, 0x00020000")
    p("s_cmp_eq_u32 s3, 1"); p("s_cselect_b32 s44, s52, s50"); p("s_cselect_b32 s45, s53, s51")
    p("s_cmp_eq_u32 s3, 2"); p("s_cselect_b32 s44, s48, s44"); p("s_cselect_b32 s45, s49, s45")
    init.emit_init(p, sHI, 14, lambda q: gemm.w128_first(q, 44, 40, 41, 42, 79, 80, 81))
    tl_stamp(p, 10, dbg)
    for _ in range(int(os.environ.get("HDELAY", "0"))): p("s_sleep 127")
    lane_id(p)
    roles = [(0, 50, "G_T"), (1, 52, "G_N"), (2, 48, "G_T")]
    for mat, sp, tgt in roles: p("s_cmp_eq_u32 s3, %d" % mat); p("s_cbranch_scc1 H_E%d" % mat)
    p("s_branch M_EXIT")
    for mat, sp, tgt in roles:
        p.label("H_E%d" % mat)
        gemm.setup_role(p, mat)
        p("s_branch %s" % tgt)
    for kind, nm in (("T", "G_T"), ("N", "G_N")):
        p.label(nm)
        gemm.load_weights(p, started=True)
        check_mode(p)
        init.wait_counter(p, init.NHELP, name="GI")
        lane_id(p)
        init.finish_init(p, sHI, 14)
        if kind == "T":
            l_ = p.uid("NOSEL")
            p("s_cmp_lg_u32 s3, 2"); p("s_cbranch_scc1 %s" % l_)
            p("s_or_b32 s64, s%d, s%d" % (gemm.sH, gemm.sHALF)); p("s_or_b32 s64, s64, s14"); p("s_cmp_lg_u32 s64, 0"); p("s_cbranch_scc1 %s" % l_)
            p("s_mov_b32 s%d, 0" % mkv.sSPIN)
            moe.emit_select(p)
            lane_id(p)
            p.label(l_)
        gemm.emit_gemm(p, kind, nm, lambda q: None)
        tl_stamp(p, 4, dbg)
        if kind == "T":
            p("s_cmp_eq_u32 s3, 2"); p("s_cbranch_scc1 H_Q")
        p("s_cmp_eq_u32 s%d, 1" % gemm.sHALF); p("s_cbranch_scc1 H_OUT")
        p("s_lshl_b32 s88, s3, 5"); p("s_add_u32 s88, s88, s%d" % gemm.sH)
        def wo_hook(p):
            lno = p.uid("NOWO")
            p("s_cmp_ge_u32 s88, 60"); p("s_cbranch_scc1 %s" % lno)
            p("s_mov_b32 s89, s%d" % gemm.sH)
            p("s_mul_hi_u32 s65, s88, 0x%x" % ((2**32 + 19) // 20)); p("s_mul_i32 s65, s65, 20"); p("s_sub_u32 s%d, s88, s65" % outp.sCT)
            srd(p, outp.sWO, 40, 4096 * 640 * 2)
            p("s_waitcnt lgkmcnt(0)")
            outp.load_wo(p)
            p("s_mov_b32 s%d, s89" % gemm.sH)
            p.label(lno)
        mkv.emit_mkv(p, kind, "MK" + kind, init.read_cand, wo_hook)
        tl_stamp(p, 5, dbg)
        p("s_cmp_ge_u32 s88, 60"); p("s_cbranch_scc1 M_EXIT")
        p("s_branch H_EXTRA")
    p.label("H_OUT")
    p("s_lshl_b32 s64, s3, 5"); p("s_add_u32 s64, s64, s%d" % gemm.sH)
    p("s_cmp_ge_u32 s64, 60"); p("s_cbranch_scc1 M_EXIT")
    p("s_mul_hi_u32 s%d, s64, 0x%x" % (outp.sGRP, (2**32 + 19) // 20)); p("s_mul_i32 s65, s%d, 20" % outp.sGRP); p("s_sub_u32 s%d, s64, s65" % outp.sCT)
    srd(p, outp.sWO, 40, 4096 * 640 * 2); srd(p, outp.sXI, 0, S * D * 2); srd(p, outp.sOUT, 96, S * D * 2)
    p("s_mov_b32 s36, -1"); p("s_mov_b32 s37, 0")
    p("s_waitcnt lgkmcnt(0)")
    outp.load_wo(p)
    p("s_barrier")
    if dbg >= 2: outp.STAMP[0] = lambda q, slot: tl_stamp(q, slot, dbg)
    outp.emit_out(p, "OU", lambda q: (moe.wait_count(q, FLG_MOE, 1, "OUS"), tl_stamp(q, 8, dbg)), lambda q: moe.wait_count(q, FLG_MOE + 256, 40, "OUW"))
    tl_stamp(p, 7, dbg)
    p("s_branch M_EXIT")
    p.label("H_EXTRA")
    p("s_mul_hi_u32 s%d, s88, 0x%x" % (outp.sGRP, (2**32 + 19) // 20)); p("s_mul_i32 s65, s%d, 20" % outp.sGRP); p("s_sub_u32 s%d, s88, s65" % outp.sCT)
    p("s_add_u32 s%d, s%d, 3" % (outp.sGRP, outp.sGRP))
    srd(p, outp.sXI, 0, S * D * 2); srd(p, outp.sOUT, 96, S * D * 2)
    p("s_mov_b32 s36, -1"); p("s_mov_b32 s37, 0")
    p("s_waitcnt lgkmcnt(0)")
    lane_id(p)
    outp.emit_extra(p, "OX", lambda q: moe.wait_count(q, FLG_MOE + 256, 40, "OXW"))
    tl_stamp(p, 7, dbg)
    p("s_branch M_EXIT")
    p.label("H_Q")
    tl_stamp(p, 9, dbg)
    def moe_srds():
        p("s_lshl_b32 s70, s%d, 1" % gemm.sH); p("s_add_u32 s70, s70, s%d" % gemm.sHALF)
        srd(p, moe.sWG, 72, 640 * 1728 * 2); srd(p, moe.sWU, 80, 640 * 1728 * 2); srd(p, moe.sWD, 88, 640 * 1728 * 2)
        p("s_mov_b32 s%d, 0" % mkv.sSPIN)
        p("s_waitcnt lgkmcnt(0)")
        lane_id(p)
    att.emit_att(p, "AT0", 0, 1)
    moe_srds()
    p("s_lshl_b32 s%d, s70, 2" % moe.sTASK); p("s_add_u32 s%d, s%d, s14" % (moe.sTASK, moe.sTASK))
    p("s_cmp_ge_u32 s%d, 108" % moe.sTASK); p("s_cbranch_scc1 H_A1")
    tl_stamp(p, 15, dbg)
    moe.emit_f1(p)
    tl_stamp(p, 16, dbg)
    p.label("H_A1")
    lane_id(p)
    att.emit_att(p, "AT1", 1, 2)
    moe_srds()
    p("s_cmp_lg_u32 s14, 0"); p("s_cbranch_scc1 H_ATT")
    p("s_cmp_ge_u32 s70, 40"); p("s_cbranch_scc1 H_ATT")
    p("s_mov_b32 s%d, s70" % moe.sTASK)
    tl_stamp(p, 17, dbg)
    moe.emit_f2(p, lambda q: tl_stamp(q, 18, dbg), lambda q: tl_stamp(q, 19, dbg))
    tl_stamp(p, 14, dbg)
    p.label("H_ATT")
    lane_id(p)
    att.emit_att(p, "AT2", 2, 8)
    tl_stamp(p, 6, dbg)
    p.label("M_EXIT"); p("s_endpgm")
    return p, label

def rec_dbg_dump(p, st):
    p("s_lshl_b32 s%d, s%d, 5" % (rec.sT0, rec.sX)); p("s_add_u32 s%d, s%d, s%d" % (rec.sT0, rec.sT0, rec.sH))
    p("s_lshl_b32 s%d, s%d, 2" % (rec.sT0, rec.sT0)); p("s_add_u32 s%d, s%d, s%d" % (rec.sT0, rec.sT0, rec.sW))
    p("s_lshl_b32 s%d, s%d, 7" % (rec.sT0, rec.sT0)); rec.add_const(p, rec.sT0, rec.sT0, DBG)
    vals = [100, 8, 98 if not rec.STAMPS[0] else rec.sSPIN, rec.sISOWN, rec.sCNT] + [rec.sTS + 2 * i for i in range(len(st.stamps))] + [rec.sCNT2, 60, 61]
    open('stamps.txt', 'w').write(','.join(st.stamps))
    p("v_mov_b32 v1, 0"); p("s_mov_b64 exec, 1")
    for i, sreg in enumerate(vals):
        p("v_mov_b32 v2, s%d" % sreg)
        p("buffer_store_dword v2, v1, s[%d:%d], s%d offen offset:%d" % (rec.sWS, rec.sWS + 3, rec.sT0, 4 * i))
    p("s_waitcnt vmcnt(0)"); p("s_mov_b64 exec, -1")

def write(path, launches, progs):
    txt = HEADER
    for k, g, b, lds in launches: txt += "; @launch kernel=%s grid=(%d,1,1) block=(%d,1,1) lds=%d\n" % (k, g, b, lds)
    txt += '.amdgcn_target "amdgcn-amd-amdhsa--gfx950"\n'
    for p, label, v, s, a in progs: txt += p.text()
    for p, label, v, s, a in progs: txt += descriptor(label, v, s, a)
    open(path, "w").write(txt)

if __name__ == "__main__":
    mode = sys.argv[1]
    if mode == "rec":
        dbg = int(sys.argv[3]) if len(sys.argv) > 3 else 0
        p, label = rec_standalone(dbg)
        probs = check(p.lines, "rec")
        i0 = p.lines.index("REC_LOOP:"); i1 = p.lines.index("REC_TAIL:")
        probs += check(p.lines[i0:i1] + p.lines[i0:i1], "loop-wrap")
        for x in dict.fromkeys(probs): print("HAZARD", x)
        p0, l0 = k0_kernel(True)
        for x in dict.fromkeys(check(p0.lines, "k0")): print("HAZARD", x)
        write(sys.argv[2], [(l0, 256, 256, 64), (label, 256, 256, 163840)], [(p0, l0, 80, 72, 80), (p, label, 512, 102, 256)])
        print("instructions:", sum(1 for l in p.lines if not l.endswith(":") and not l.startswith((";", "."))),
              "loop:", sum(1 for l in p.lines[i0:i1] if not l.endswith(":") and not l.startswith((";", "."))))

    if mode == "gemm":
        p0, l0 = k0_kernel(False)
        p, label = gemm_kernel()
        probs = check(p.lines, "gemm")
        for nm in ("G_T", "G_N"):
            i0 = p.lines.index(nm + "_LOOP:"); i1 = i0 + next(i for i, l in enumerate(p.lines[i0:]) if l.startswith("s_cbranch_scc1 " + nm + "_LOOP"))
            probs += check(p.lines[i0:i1] + p.lines[i0:i1], "wrap")
        for x in dict.fromkeys(probs): print("HAZARD", x)
        write(sys.argv[2], [(l0, 256, 256, 64), (label, 192, 256, 163840)], [(p0, l0, 80, 72, 80), (p, label, 512, 102, 256)])
        print("instructions:", sum(1 for l in p.lines if not l.endswith(":") and not l.startswith((";", "."))))

    if mode == "multi":
        devd = int(sys.argv[3]) if len(sys.argv) > 3 else 0
        p0, l0 = k0_kernel(False)
        pg, lgm = gemm_kernel()
        pr, lr = rec_standalone(devd)
        pm, lm = mkv_kernel(); pa, la = att_kernel(); po, lo = out_kernel()
        mk = moe_kernels()
        progs = [(p0, l0, 80, 72, 80), (pg, lgm, 512, 102, 256), (pr, lr, 512, 102, 256), (pm, lm, 512, 102, 256), (pa, la, 256, 102, 256)]
        progs += [(p, l, 256, 102, 256) for p, l, g in mk] + [(po, lo, 512, 102, 256)]
        launches = [(l0, 256, 256, 64), (lgm, 192, 256, 163840), (lr, 256, 256, 163840), (lm, 64, 256, 163840), (la, 64, 256, 0)]
        launches += [(l, g, 256, 163840) for p, l, g in mk] + [(lo, 60, 256, 163840)]
        for p, l, *_ in progs:
            for x in dict.fromkeys(check(p.lines, l)): print("HAZARD", x)
        write(sys.argv[2], launches, progs)
        print("written")

    if mode == "fused":
        devd = int(sys.argv[3]) if len(sys.argv) > 3 else 0
        import os
        pm, lm = fused_kernel(devd, bool(os.environ.get("FORCE_SLOW")))
        for x in dict.fromkeys(check(pm.lines, lm)): print("HAZARD", x)
        write(sys.argv[2], [(lm, 256, 256, 163840)], [(pm, lm, 512, 102, 256)])
        print("instructions:", sum(1 for l in pm.lines if not l.endswith(":") and not l.startswith((";", "."))))
```

```python
from asm import *
from layout import *
from gemm import sWS, sH, sW, sHALF
from mkv import spin_flags, sSPIN

import os
RECLAST = int(os.environ.get('RECLAST', '1'))
sS, sIT = 24, 25
sQ, sKV, sKM, sVM, sOF, sFO = 26, 27, 30, 31, 32, 33
sC = 34
sLO32 = 36
sMK = 38
sT0, sT1, sT2 = 64, 65, 66
vL16, vKMA, vVMA, vFLA = 1, 2, 3, 4
vQ, vK, vV, vKM, vVM = 16, 48, 80, 112, 128
vS = 144
vP = 164
vO = 176
vSUM, vONE = 240, 248
t0, t1, t2, t3 = 8, 9, 10, 11

RDEF = dict(vQ=vQ, vK=vK, vV=vV, vKM=vKM, vVM=vVM, vS=vS, vP=vP, vO=vO, vSUM=vSUM, vONE=vONE)

def consts(p, vONE_):
    p("s_mov_b32 s%d, 0x3e0293ee" % sC); p("s_mov_b32 s%d, 0x3e0293ee" % (sC + 1))
    p("s_mov_b32 s%d, -1" % sLO32); p("s_mov_b32 s%d, 0" % (sLO32 + 1))
    p("v_lshrrev_b32 v5, 4, v0"); p("v_lshlrev_b32 v5, 2, v5"); p("v_and_b32 v6, 15, v0")
    for i in range(4):
        p("v_add_u32 v7, %d, v5" % i); p("v_cmp_le_u32 s[%d:%d], v7, v6" % (sMK + 2 * i, sMK + 2 * i + 1))
    for i in range(4): p("v_mov_b32 v%d, 0x3f803f80" % (vONE_ + i))

def result_addrs(p):
    p("s_lshl_b32 s%d, s%d, 5" % (sT0, sS)); p("s_add_u32 s%d, s%d, s%d" % (sT0, sT0, sH))
    p("s_lshl_b32 s%d, s%d, 2" % (sFO, sT0)); p("s_add_u32 s%d, s%d, 0x%x" % (sFO, sFO, FLG_O))
    p("s_lshl_b32 s%d, s%d, 18" % (sOF, sS)); p("s_lshl_b32 s%d, s%d, 12" % (sT1, sH))
    p("s_add_u32 s%d, s%d, s%d" % (sOF, sOF, sT1)); p("s_add_u32 s%d, s%d, 0x%x" % (sOF, sOF, OF))

def store_flag(p):
    p("v_mov_b32 v7, 1"); p("v_mov_b32 v8, 0"); p("s_mov_b64 exec, 1")
    p("buffer_store_dword v7, v8, s[%d:%d], s%d offen sc1" % (sWS, sWS + 3, sFO)); p("s_mov_b64 exec, -1")

def core(p, R, wait_km, wait_all, ne=8, flag=True):
    vQ, vK, vV, vKM, vVM, vS, vP, vO, vSUM, vONE = (R[k] for k in ("vQ", "vK", "vV", "vKM", "vVM", "vS", "vP", "vO", "vSUM", "vONE"))
    def mf(d, a, b, first): p("v_mfma_f32_16x16x32_bf16 %s, %s, %s, %s" % (vr(d, 4), vr(a, 4), vr(b, 4), "0" if first else vr(d, 4)))
    M0, A0, M1, B0, B1 = vS, vS + 4, vS + 8, vS + 12, vS + 16
    for kk in range(4):
        mf(A0, vK + 4 * kk, vQ + 4 * kk, kk == 0)
        mf(B0, vK + 4 * kk, vQ + 16 + 4 * kk, kk == 0)
        mf(B1, vK + 16 + 4 * kk, vQ + 16 + 4 * kk, kk == 0)
    wait_km()
    for kk in range(4):
        mf(M0, vKM + 4 * kk, vQ + 4 * kk, kk == 0)
        mf(M1, vKM + 4 * kk, vQ + 16 + 4 * kk, kk == 0)
    p("v_mov_b32 v%d, 0xff800000" % t3)
    p.nop(8)
    for i in range(4):
        for tile in (A0, B1): p("v_cndmask_b32 v%d, v%d, v%d, s[%d:%d]" % (tile + i, t3, tile + i, sMK + 2 * i, sMK + 2 * i + 1))
        for tile in (M0, M1): p("v_cndmask_b32 v%d, v%d, v%d, s[%d:%d]" % (tile + i, t3, tile + i, sLO32, sLO32 + 1))
    for q, tiles in ((0, (M0, A0)), (1, (M1, B0, B1))):
        regs = [t + i for t in tiles for i in range(4)]
        p("v_max3_f32 v%d, v%d, v%d, v%d" % (t0, regs[0], regs[1], regs[2]))
        k = 3
        while k < len(regs):
            if k + 1 < len(regs): p("v_max3_f32 v%d, v%d, v%d, v%d" % (t0, t0, regs[k], regs[k + 1])); k += 2
            else: p("v_max_f32 v%d, v%d, v%d" % (t0, t0, regs[k])); k += 1
        p("v_mov_b32 v%d, v%d" % (t1, t0)); p.nop(2)
        p("v_permlane16_swap_b32 v%d, v%d" % (t0, t1)); p("v_max_f32 v%d, v%d, v%d" % (t0, t0, t1))
        p("v_mov_b32 v%d, v%d" % (t1, t0)); p.nop(2)
        p("v_permlane32_swap_b32 v%d, v%d" % (t0, t1)); p("v_max_f32 v%d, v%d, v%d" % (t0, t0, t1))
        p("v_mul_f32 v%d, s%d, v%d" % (t0, sC, t0))
        for r in regs: p("v_fma_f32 v%d, v%d, s%d, -v%d" % (r, r, sC, t0))
        for r in regs: p("v_exp_f32 v%d, v%d" % (r, r))
        p.nop(1)
        PX, PM = vP + 6 * q, vP + 6 * q + 4
        X0 = tiles[1]
        p("v_cvt_pk_bf16_f32 v%d, v%d, v%d" % (PX, X0, X0 + 1)); p("v_cvt_pk_bf16_f32 v%d, v%d, v%d" % (PX + 1, X0 + 2, X0 + 3))
        if q == 0: p("v_mov_b32 v%d, 0" % (PX + 2)); p("v_mov_b32 v%d, 0" % (PX + 3))
        else: p("v_cvt_pk_bf16_f32 v%d, v%d, v%d" % (PX + 2, B1, B1 + 1)); p("v_cvt_pk_bf16_f32 v%d, v%d, v%d" % (PX + 3, B1 + 2, B1 + 3))
        p("v_cvt_pk_bf16_f32 v%d, v%d, v%d" % (PM, tiles[0], tiles[0] + 1)); p("v_cvt_pk_bf16_f32 v%d, v%d, v%d" % (PM + 1, tiles[0] + 2, tiles[0] + 3))
    wait_all()
    for q in range(2): mf(vSUM + 4 * q, vONE, vP + 6 * q, True)
    for e in range(ne):
        for q in range(2): mf(vO + (2 * e + q) * 4, vV + 4 * e, vP + 6 * q, True)
    for q in range(2):
        p("v_mfma_f32_16x16x16_bf16 %s, %s, %s, %s" % (vr(vSUM + 4 * q, 4), vr(vONE, 2), vr(vP + 6 * q + 4, 2), vr(vSUM + 4 * q, 4)))
    for e in range(ne):
        for q in range(2):
            d = vO + (2 * e + q) * 4
            p("v_mfma_f32_16x16x16_bf16 %s, %s, %s, %s" % (vr(d, 4), vr(vVM + 2 * e, 2), vr(vP + 6 * q + 4, 2), vr(d, 4)))
    p("v_rcp_f32 v%d, v%d" % (t0, vSUM)); p("v_rcp_f32 v%d, v%d" % (t1, vSUM + 4))
    p.nop(8)
    n = 0
    for q in range(2):
        for kk in range(ne // 2):
            pk = vQ + 4 * (n % 8); n += 1
            for z in range(2):
                d = vO + (2 * (2 * kk + z) + q) * 4
                for i in range(4): p("v_mul_f32 v%d, v%d, v%d" % (d + i, d + i, t0 + q))
                p("v_cvt_pk_bf16_f32 v%d, v%d, v%d" % (pk + 2 * z, d, d + 1)); p("v_cvt_pk_bf16_f32 v%d, v%d, v%d" % (pk + 2 * z + 1, d + 2, d + 3))
            p("s_add_u32 s%d, s%d, 0x%x" % (sT0, sOF, q * 131072))
            p("buffer_store_dwordx4 %s, v%d, s[%d:%d], s%d offen offset:%d sc1" % (vr(pk, 4), vL16, sWS, sWS + 3, sT0, kk * 1024))
    p("s_waitcnt vmcnt(0)")
    if flag: store_flag(p)

def emit_att(p, name, it0=0, it1=8):
    p("s_mov_b32 s%d, 0" % sSPIN)
    p("v_lshlrev_b32 v%d, 4, v0" % vL16)
    p("v_lshrrev_b32 v5, 4, v0"); p("v_lshlrev_b32 v%d, 7, v5" % vKMA)
    p("v_and_b32 v5, 7, v0"); p("v_lshl_add_u32 v%d, v5, 4, v%d" % (vKMA, vKMA))
    p("v_bfe_u32 v5, v0, 4, 1"); p("v_lshlrev_b32 v%d, 7, v5" % vVMA)
    p("v_and_b32 v5, 15, v0"); p("v_lshl_add_u32 v%d, v5, 3, v%d" % (vVMA, vVMA))
    consts(p, vONE)
    p("s_lshl_b32 s%d, s%d, 2" % (sS, sHALF)); p("s_add_u32 s%d, s%d, s%d" % (sS, sS, sW))
    if it0: p("s_add_u32 s%d, s%d, %d" % (sS, sS, 8 * it0))
    p("s_mov_b32 s%d, %d" % (sIT, it0))
    loop = name + "_LOOP"; lend = name + "_END"
    p.label(loop)
    if RECLAST: p("s_cmp_eq_u32 s%d, %d" % (sS, NSEG - 1)); p("s_cbranch_scc1 %s" % lend)
    p("s_lshl_b32 s%d, s%d, 5" % (sT0, sS)); p("s_add_u32 s%d, s%d, s%d" % (sT0, sT0, sH))
    p("s_lshl_b32 s%d, s%d, 13" % (sQ, sT0)); p("s_add_u32 s%d, s%d, 0x%x" % (sQ, sQ, QF))
    p("s_lshl_b32 s%d, s%d, 14" % (sKV, sT0)); p("s_add_u32 s%d, s%d, 0x%x" % (sKV, sKV, KF))
    p("s_lshl_b32 s%d, s%d, 11" % (sT1, sT0))
    p("s_add_u32 s%d, s%d, 0x%x" % (sKM, sT1, KMF)); p("s_add_u32 s%d, s%d, 0x%x" % (sVM, sT1, VMF))
    p("s_lshl_b32 s%d, s%d, 2" % (sFO, sT0)); p("s_add_u32 s%d, s%d, 0x%x" % (sFO, sFO, FLG_O))
    p("s_lshl_b32 s%d, s%d, 18" % (sOF, sS)); p("s_lshl_b32 s%d, s%d, 12" % (sT1, sH))
    p("s_add_u32 s%d, s%d, s%d" % (sOF, sOF, sT1)); p("s_add_u32 s%d, s%d, 0x%x" % (sOF, sOF, OF))
    p("s_lshr_b32 s%d, s%d, 2" % (sT1, sS)); p("s_lshl_b32 s%d, s%d, 9" % (sT1, sT1)); p("s_lshl_b32 s%d, s%d, 4" % (sT2, sH))
    p("s_add_u32 s%d, s%d, s%d" % (sT1, sT1, sT2)); p("s_add_u32 s%d, s%d, 0x%x" % (sT1, sT1, FLG_KVQ))
    p("s_lshr_b32 s%d, s%d, 1" % (sT2, sS)); p("s_lshl_b32 s%d, s%d, 8" % (sT2, sT2)); p("s_lshl_b32 s%d, s%d, 3" % (sT0, sH))
    p("s_add_u32 s%d, s%d, s%d" % (sT2, sT2, sT0)); p("s_add_u32 s%d, s%d, 0x%x" % (sT2, sT2, FLG_KM - 12))
    p("v_lshlrev_b32 v5, 2, v0")
    p("v_mov_b32 v6, s%d" % sT1); p("v_mov_b32 v7, s%d" % sT2)
    p("v_cmp_gt_u32 vcc, 3, v0"); p.nop(2)
    p("v_cndmask_b32 v6, v7, v6, vcc"); p("v_add_u32 v%d, v5, v6" % vFLA)
    p("s_mov_b32 s%d, 0" % sT0)
    p("s_mov_b64 exec, 7")
    spin_flags(p, 5, 3, vFLA, sT0, True, name + "_F")
    p("s_mov_b64 exec, -1")
    vm = Counter(p, "vmcnt", 63)
    for f in range(8):
        if f == 4: p("s_add_u32 s%d, s%d, 4096" % (sQ, sQ))
        p("buffer_load_dwordx4 %s, v%d, s[%d:%d], s%d offen offset:%d" % (vr(vQ + 4 * f, 4), vL16, sWS, sWS + 3, sQ, (f % 4) * 1024)); vm.issue("q")
    for f in range(8):
        if f == 4: p("s_add_u32 s%d, s%d, 4096" % (sKV, sKV))
        p("buffer_load_dwordx4 %s, v%d, s[%d:%d], s%d offen offset:%d" % (vr(vK + 4 * f, 4), vL16, sWS, sWS + 3, sKV, (f % 4) * 1024)); vm.issue("k")
    for f in range(8):
        if f % 4 == 0: p("s_add_u32 s%d, s%d, 4096" % (sKV, sKV))
        p("buffer_load_dwordx4 %s, v%d, s[%d:%d], s%d offen offset:%d" % (vr(vV + 4 * f, 4), vL16, sWS, sWS + 3, sKV, (f % 4) * 1024)); vm.issue("v")
    p("s_mov_b64 exec, 0x18")
    spin_flags(p, 5, 2, vFLA, sT0, True, name + "_G")
    p("s_mov_b64 exec, -1")
    vm.clear()
    for kk in range(4):
        p("buffer_load_dwordx4 %s, v%d, s[%d:%d], s%d offen offset:%d" % (vr(vKM + 4 * kk, 4), vKMA, sWS, sWS + 3, sKM, kk * 512)); vm.issue("km")
    for e in range(8):
        p("buffer_load_dwordx2 %s, v%d, s[%d:%d], s%d offen offset:%d" % (vr(vVM + 2 * e, 2), vVMA, sWS, sWS + 3, sVM, e * 256)); vm.issue("vm")
    core(p, RDEF, lambda: vm.wait("km"), vm.wait_all)
    p("s_add_u32 s%d, s%d, 8" % (sS, sS)); p("s_add_u32 s%d, s%d, 1" % (sIT, sIT))
    p("s_cmp_lt_u32 s%d, %d" % (sIT, it1)); p("s_cbranch_scc1 %s" % loop)
    p.label(lend)
```

```python
from asm import *
from layout import *

sWS = 4
sWT = 44
sH, sW, sHALF = 13, 14, 12
sDB = 16
sDSEG = 17
sFLAG = 18
sB = 19
sXB = 20
sRB = 21
sT0, sT1, sT2 = 64, 65, 66
sDCUR, sFCUR = 22, 23
vL16, vX, vR0, vR1, vG = 1, 2, 3, 4, 5
vACC = 16
vWF = 96
aXF = 0
import os
DBGT = int(os.environ.get('DBGT', '0'))
GV = int(os.environ.get('GV', '0'))
EARLY0 = int(os.environ.get('EARLY0', '1'))
NB = 5
vPK = 80

def acc(tt, T): return vACC + (T * 2 + tt) * 4
def wf(ks, tt): return vWF + (ks * 2 + tt) * 4

def w128_first(p, srd, sOff, sBase, sTmp, vG_, t, t2):
    p("s_lshl_b32 s%d, s%d, 8" % (sOff, sH)); p("s_lshl_b32 s%d, s%d, 17" % (sTmp, sW)); p("s_add_u32 s%d, s%d, s%d" % (sOff, sOff, sTmp))
    p("s_mul_i32 s%d, s%d, 40960" % (sBase, sW))
    p("v_lshrrev_b32 v%d, 4, v0" % t); p("v_lshlrev_b32 v%d, 13, v%d" % (vG_, t))
    p("v_lshlrev_b32 v%d, 1, v%d" % (t, t)); p("v_and_b32 v%d, 15, v0" % t2); p("v_xor_b32 v%d, v%d, v%d" % (t, t, t2))
    p("v_xor_b32 v%d, 8, v%d" % (t2, t))
    p("v_lshl_add_u32 v%d, v%d, 4, v%d" % (vG_ + 1, t2, vG_))
    p("v_lshl_add_u32 v%d, v%d, 4, v%d" % (vG_, t, vG_))
    for n in range(10):
        for a in range(4):
            p("s_add_u32 m0, s%d, %d" % (sBase, n * 4096 + a * 1024))
            p("s_add_u32 s%d, s%d, 0x%x" % (sTmp, sOff, (64 * n + 4 * a) * 8192))
            p("buffer_load_dwordx4 v%d, s[%d:%d], s%d offen lds" % (vG_ + (a >> 1), srd, srd + 3, sTmp))

def finish_w128(p):
    t, vR = 6, [[3, 4], [5, 9]]
    p("v_lshrrev_b32 v%d, 5, v0" % t); p("v_mul_u32_u24 v7, 40960, v%d" % t)
    p("v_bfe_u32 v%d, v0, 4, 1" % t); p("v_lshl_add_u32 v7, v%d, 11, v7" % t); p("v_lshlrev_b32 v8, 3, v%d" % t)
    p("v_bfe_u32 v%d, v0, 2, 2" % t); p("v_lshl_add_u32 v7, v%d, 8, v7" % t); p("v_lshl_add_u32 v8, v%d, 1, v8" % t)
    p("v_and_b32 v%d, 1, v0" % t); p("v_lshl_add_u32 v7, v%d, 3, v7" % t)
    p("v_bfe_u32 v%d, v0, 1, 1" % t); p("s_lshl_b32 s%d, s%d, 2" % (sT0, sW)); p("v_add_u32 v10, s%d, v%d" % (sT0, t))
    for tt in range(2):
        p("v_add_u32 v%d, %d, v10" % (t, 2 * tt)); p("v_xor_b32 v%d, v%d, v8" % (t, t))
        p("v_lshl_add_u32 v%d, v%d, 4, v7" % (vR[tt][0], t))
        p("v_add_u32 v%d, %d, v%d" % (vR[tt][1], 2 * 40960, vR[tt][0]))
    p("s_waitcnt vmcnt(0)"); p("s_barrier")
    n_out = 0
    for n in range(10):
        for k2 in range(2):
            for tt in range(2):
                for r in range(2):
                    p("ds_read_b64_tr_b16 %s, v%d offset:%d" % (vr(wf(2 * n + k2, tt) + 2 * r, 2), vR[tt][k2], n * 4096 + r * 1024))
        if n % 2 == 1: p("s_waitcnt lgkmcnt(0)") if n == 9 else p("s_waitcnt lgkmcnt(4)")

def load_w128(p, srd, soff_reg, row_stride, vg_tmp=(5, 3, 4, 6), started=False):
    vG_, vR0_, vR1_, t = vg_tmp
    vm = Counter(p, "vmcnt", 63)
    NS = 10 if started else 9
    p("s_mul_i32 s%d, s%d, %d" % (sRB, sW, 4096 * NS))
    p("v_lshrrev_b32 v%d, 2, v0" % t); p("v_mul_u32_u24 v%d, %d, v%d" % (vG_, row_stride, t))
    p("v_lshrrev_b32 v%d, 5, v0" % t); p("v_lshlrev_b32 v%d, 1, v%d" % (t, t))
    p("v_and_b32 v7, 3, v0"); p("v_xor_b32 v%d, v%d, v7" % (t, t)); p("v_lshl_add_u32 v%d, v%d, 4, v%d" % (vG_, t, vG_))
    p("v_lshrrev_b32 v%d, 5, v0" % t); p("v_lshlrev_b32 v%d, 10, v%d" % (vR0_, t))
    p("v_bfe_u32 v%d, v0, 2, 2" % t); p("v_lshl_add_u32 v%d, v%d, 6, v%d" % (vR0_, t, vR0_))
    p("v_and_b32 v%d, 3, v0" % t); p("v_lshl_add_u32 v%d, v%d, 3, v%d" % (vR0_, t, vR0_))
    p("v_bfe_u32 v%d, v0, 4, 1" % t); p("v_lshl_add_u32 v%d, v%d, 9, v%d" % (vR0_, t, vR0_))
    p("v_add_u32 v%d, s%d, v%d" % (vR0_, sRB, vR0_))
    p("v_lshlrev_b32 v%d, 5, v%d" % (t, t))
    p("v_sub_u32 v%d, 32, v%d" % (vR1_, t)); p("v_add_u32 v%d, v%d, v%d" % (vR1_, vR1_, vR0_))
    p("v_add_u32 v%d, v%d, v%d" % (vR0_, vR0_, t))
    def issue(n):
        for a in range(4):
            p("s_add_u32 m0, s%d, %d" % (sRB, (n % 9) * 4096 + a * 1024))
            p("s_add_u32 s%d, s%d, 0x%x" % (sT0, soff_reg, (64 * n + 16 * a) * row_stride))
            p("buffer_load_dwordx4 v%d, s[%d:%d], s%d offen lds" % (vG_, srd, srd + 3, sT0)); vm.issue(n)
    if started: p("s_waitcnt vmcnt(0)")
    else:
        for n in range(9): issue(n)
    for n in range(10):
        vm.wait(n)
        so = (n % NS) * 4096
        for k2 in range(2):
            for tt in range(2):
                for r in range(2):
                    p("ds_read_b64_tr_b16 %s, v%d offset:%d" % (vr(wf(2 * n + k2, tt) + 2 * r, 2), vR0_ if tt == 0 else vR1_, so + k2 * 2048 + r * 256))
        if not started or n % 2 == 1: p("s_waitcnt lgkmcnt(0)")
        if not started and n + 9 < 10: issue(n + 9)

def flag_store(p, soff):
    lf = p.uid("GF")
    p("s_cmp_lg_u32 s%d, 0" % sW); p("s_cbranch_scc1 %s" % lf)
    p("v_mov_b32 v7, 1"); p("v_mov_b32 v8, 0"); p("s_mov_b64 exec, 1")
    p("buffer_store_dword v7, v8, s[%d:%d], s%d offen sc1" % (sWS, sWS + 3, soff)); p("s_mov_b64 exec, -1")
    p.label(lf)

def emit_gemm(p, kind, name, wait_init, first_done=None):
    vm = Counter(p, "vmcnt", 63); lg = Counter(p, "lgkmcnt", 15)
    p("v_lshlrev_b32 v%d, 4, v0" % vL16)
    p("v_lshrrev_b32 v6, 3, v0"); p("v_mul_u32_u24 v%d, 1280, v6" % vX)
    p("v_and_b32 v7, 7, v0"); p("v_xor_b32 v7, v7, v6"); p("v_lshl_add_u32 v%d, v7, 4, v%d" % (vX, vX))
    p("v_bfe_u32 v6, v0, 3, 1"); p("v_lshlrev_b32 v9, 10, v6")
    p("v_and_b32 v6, 7, v0"); p("v_lshl_add_u32 v9, v6, 7, v9")
    p("v_lshrrev_b32 v7, 4, v0"); p("v_xor_b32 v7, v7, v6")
    p("v_lshl_add_u32 v%d, v7, 4, v9" % vR0)
    p("v_xor_b32 v7, 4, v7"); p("v_lshl_add_u32 v%d, v7, 4, v9" % vR1)
    p("v_add_u32 v6, 0x10000, v%d" % vR0); p("v_add_u32 v9, 0x10000, v%d" % vR1)
    wait_init(p)
    p("s_barrier")
    p("s_mul_i32 s%d, s%d, %d" % (sXB, sHALF, 128 * 1280)); p("s_mul_i32 s%d, s%d, %d" % (sT0, sW, 32 * 1280))
    p("s_add_u32 s%d, s%d, s%d" % (sXB, sXB, sT0)); p("s_add_u32 s%d, s%d, 0x%x" % (sXB, sXB, XN))
    p("s_lshl_b32 s%d, s%d, 12" % (sRB, sW))
    def dma_list(i):
        nxt, c = divmod(i, 10); slot = i % NB; out = []
        for q in range(4):
            out.append("s_add_u32 m0, s%d, %d" % (sRB, slot * 16384 + q * 1024))
            out.append("s_add_u32 s%d, s%d, 0x%x" % (sT0, sXB, nxt * 256 * 1280 + q * 8 * 1280 + 128 * c))
            out.append("buffer_load_dwordx4 v%d, s[%d:%d], s%d offen lds" % (vX, sWS, sWS + 3, sT0))
        return out
    def emit(ins, i):
        if GV == 3 and ins.startswith("buffer") and i >= NB - 1: p("s_mov_b32 s%d, 0x%x" % (sT0, OOB))
        p(ins)
        if ins.startswith("buffer"): vm.issue(("c", i))
    def dma(i):
        for ins in dma_list(i): emit(ins, i)
    def xread(set_, slot, k2):
        areg = [vR0, vR1][k2] if slot < 4 else [6, 9][k2]
        return ["ds_read_b128 %s, v%d offset:%d" % (ar(aXF + set_ * 32 + 4 * T, 4), areg, (slot % 4) * 16384 + T * 2048) for T in range(8)]
    for i in range(NB - 1): dma(i)
    p("s_mov_b32 s%d, 0x%x" % (sT0, OOB))
    for i in range(8): p("buffer_store_dword v7, v%d, s[%d:%d], s%d offen" % (vL16, sWS, sWS + 3, sT0)); vm.issue("st")
    vm.wait(("c", 0)); p("s_barrier")
    for ins in xread(0, 0, 0): p(ins)
    p("s_mov_b32 s%d, 0" % sB)
    p("s_mov_b32 s%d, s%d" % (sDCUR, sDB)); p("s_mov_b32 s%d, 0x%x" % (sFCUR, OOB))
    loop = name + "_LOOP"
    if DBGT: p("s_memrealtime s[70:71]"); p("s_memtime s[74:75]")
    p.label(loop)
    lg.clear()
    for T in range(8): lg.issue(("x", 0, T))
    for c in range(10):
        slot = c % NB
        for k2 in range(2):
            ks = 2 * c + k2
            nslot, nk2 = (slot, 1) if k2 == 0 else ((c + 1) % NB, 0)
            rd = xread(1 - k2, nslot, nk2)
            if k2 == 1:
                vm.wait(("c", c + 1)); p("s_barrier")
                if c == 3: flag_store(p, sFCUR)
                if c == 1 and first_done:
                    lfd = p.uid("GFD")
                    p("s_cmp_lg_u32 s%d, 0" % sB); p("s_cbranch_scc1 %s" % lfd)
                    first_done(p)
                    p.label(lfd)
                pend = dma_list(c + NB - 1)
            else: pend = []
            for T in range(8):
                if T % 4 == 0: lg.wait(("x", k2, T + 3))
                for tt in range(2):
                    a_, x_ = vr(wf(ks, tt), 4), ar(aXF + k2 * 32 + 4 * T, 4)
                    cc = "0" if ks == 0 else vr(acc(tt, T), 4)
                    if kind == "T": p("v_mfma_f32_16x16x32_bf16 %s, %s, %s, %s" % (vr(acc(tt, T), 4), a_, x_, cc))
                    else: p("v_mfma_f32_16x16x32_bf16 %s, %s, %s, %s" % (vr(acc(tt, T), 4), x_, a_, cc))
                p(rd[T]); lg.issue(("x", 1 - k2, T))
                for _ in range(2 if T % 2 else 1):
                    if pend: emit(pend.pop(0), c + NB - 1)
    p.nop(6)
    for sg in range(4):
        p("s_mul_i32 s%d, s%d, %d" % (sT1, sDSEG, sg)); p("s_add_u32 s%d, s%d, s%d" % (sT1, sT1, sDCUR))
        for z in range(2):
            pk = vPK + 4 * ((2 * sg + z) % 4)
            if kind == "T":
                T = 2 * sg + z
                src = [acc(0, T), acc(0, T) + 2, acc(1, T), acc(1, T) + 2]
                p("s_add_u32 s%d, s%d, %d" % (sT0, sT1, z * 4096))
            else:
                src = [acc(z, 2 * sg), acc(z, 2 * sg) + 2, acc(z, 2 * sg + 1), acc(z, 2 * sg + 1) + 2]
                p("s_add_u32 s%d, s%d, %d" % (sT0, sT1, z * 1024))
            for q in range(4): p("v_cvt_pk_bf16_f32 v%d, v%d, v%d" % (pk + q, src[q], src[q] + 1))
            if GV == 1: p("s_mov_b32 s%d, 0x%x" % (sT0, OOB))
            p("buffer_store_dwordx4 %s, v%d, s[%d:%d], s%d offen %s" % (vr(pk, 4), vL16, sWS, sWS + 3, sT0, "" if GV == 2 else "sc1")); vm.issue("st")
    p("s_lshl_b32 s%d, s%d, 1" % (sT0, sB)); p("s_add_u32 s%d, s%d, s%d" % (sT0, sT0, sHALF))
    p("s_lshl_b32 s%d, s%d, 9" % (sT0, sT0)); p("s_add_u32 s%d, s%d, s%d" % (sFCUR, sFLAG, sT0))
    p("s_lshl_b32 s%d, s%d, 3" % (sT0, sDSEG)); p("s_add_u32 s%d, s%d, s%d" % (sDCUR, sDCUR, sT0))
    p("s_add_u32 s%d, s%d, 1" % (sB, sB))
    p("s_add_u32 s%d, s%d, 0x%x" % (sXB, sXB, 256 * 1280))
    assert [t for t in vm.q] == [("c", i) for i in range(11, 14) for _ in range(4)] + ["st"] * 8, vm.q
    if EARLY0:
        l0 = p.uid("GE0")
        p("s_cmp_lg_u32 s%d, 1" % sB); p("s_cbranch_scc1 %s" % l0)
        p("s_waitcnt vmcnt(0)"); p("s_barrier")
        flag_store(p, sFCUR)
        p.label(l0)
    p("s_cmp_lt_u32 s%d, 8" % sB); p("s_cbranch_scc1 %s" % loop)
    p("s_waitcnt vmcnt(0) lgkmcnt(0)"); p("s_barrier")
    flag_store(p, sFCUR)
    if DBGT:
        p("s_memrealtime s[72:73]"); p("s_memtime s[76:77]"); p("s_waitcnt lgkmcnt(0)"); p("s_sub_u32 s74, s76, s74")
        p("s_lshl_b32 s%d, s2, 4" % sT0); p("s_add_u32 s%d, s%d, 0x%x" % (sT0, sT0, DBG))
        p("v_mov_b32 v8, 0"); p("s_mov_b64 exec, 1")
        for i, r_ in enumerate((68, 70, 72, 74)):
            p("v_mov_b32 v7, s%d" % r_); p("buffer_store_dword v7, v8, s[%d:%d], s%d offen offset:%d" % (sWS, sWS + 3, sT0, 4 * i))
        p("s_mov_b64 exec, -1")

def setup_role(p, mat):
    if mat < 2:
        p("s_lshl_b32 s%d, s%d, 14" % (sDB, sH)); p("s_mov_b32 s%d, 0x%x" % (sDSEG, KV_S))
        p("s_lshl_b32 s%d, s%d, %d" % (sT0, sW, 10 if mat == 0 else 11))
        p("s_add_u32 s%d, s%d, 0x%x" % (sDB, sDB, KF if mat == 0 else VF))
    else:
        p("s_lshl_b32 s%d, s%d, 13" % (sDB, sH)); p("s_mov_b32 s%d, 0x%x" % (sDSEG, 32 * 8192))
        p("s_lshl_b32 s%d, s%d, 10" % (sT0, sW))
        p("s_add_u32 s%d, s%d, 0x%x" % (sDB, sDB, QF))
    p("s_add_u32 s%d, s%d, s%d" % (sDB, sDB, sT0))
    p("s_mul_i32 s%d, s%d, s%d" % (sT0, sHALF, sDSEG)); p("s_lshl_b32 s%d, s%d, 2" % (sT0, sT0))
    p("s_add_u32 s%d, s%d, s%d" % (sDB, sDB, sT0))
    p("s_lshl_b32 s%d, s%d, 4" % (sFLAG, sH)); p("s_add_u32 s%d, s%d, 0x%x" % (sFLAG, sFLAG, FLG_KVQ + 4 * mat))

def load_weights(p, started=False):
    if started: return finish_w128(p)
    p("s_lshl_b32 s%d, s%d, 8" % (sT1, sH)); p("s_lshl_b32 s%d, s%d, 6" % (sT2, sW)); p("s_add_u32 s%d, s%d, s%d" % (sXB, sT1, sT2))
    load_w128(p, sWT, sXB, 8192, started=started)
```

```python
from asm import *
from layout import *
from k0 import wave_sum, round_bf16, measure_cand

sDBG = 60
D_TICK, D_TSTRIDE = 0, 32
D_C1, D_C2, D_C3 = 4, 8, 12
D_MASK = 24
D_SECOND = 16
D_CAND = 132
sINITC = 95
NHELP = 192
NHELP_A = 186

def dbg_srd(p):
    p("s_load_dwordx2 s[%d:%d], s[0:1], 104" % (sDBG, sDBG + 1))
    p("s_mov_b32 s%d, 256" % (sDBG + 2)); p("s_mov_b32 s%d, 0x00020000" % (sDBG + 3))

def spin_dbg(p, off_sgpr_or_const, cond, name, vtmp=8, n=1, sSP=65):
    l = p.uid(name); ld = p.uid(name + "D")
    p("s_mov_b32 s%d, 0" % sSP)
    p.label(l)
    so = off_sgpr_or_const if isinstance(off_sgpr_or_const, str) else "0"
    off = "" if isinstance(off_sgpr_or_const, str) else " offset:%d" % off_sgpr_or_const
    op = {1: "dword v%d" % vtmp, 2: "dwordx2 v[%d:%d]" % (vtmp, vtmp + 1)}[n]
    p("buffer_load_%s, off, s[%d:%d], %s%s sc1" % (op, sDBG, sDBG + 3, so, off))
    p("s_add_u32 s%d, s%d, 1" % (sSP, sSP))
    p("s_waitcnt vmcnt(0)")
    cond(p, ld)
    p("s_cmp_gt_u32 s%d, %d" % (sSP, 1 << 16)); p("s_cbranch_scc1 %s" % ld)
    p("s_sleep 4"); p("s_branch %s" % l)
    p.label(ld)

def wait_counter(p, count, off="s%d" % sINITC, name="IW"):
    def cond(q, ld):
        q("v_readfirstlane_b32 s64, v8"); q("s_cmp_ge_u32 s64, %d" % count); q("s_cbranch_scc1 %s" % ld)
    spin_dbg(p, off, cond, name)

def counter_add(p, off="s%d" % sINITC):
    p("v_mov_b32 v8, 1"); p("s_mov_b64 exec, 1")
    p("buffer_atomic_add v8, off, s[%d:%d], %s sc1" % (sDBG, sDBG + 3, off)); p("s_mov_b64 exec, -1")

def read_cand(p, s0, s1):
    def cond(q, ld):
        q("v_readfirstlane_b32 s%d, v8" % s0); q("v_readfirstlane_b32 s%d, v9" % s1)
        q("s_min_u32 s64, s%d, s%d" % (s0, s1)); q("s_cmp_lg_u32 s64, 0"); q("s_cbranch_scc1 %s" % ld)
    spin_dbg(p, D_CAND, cond, "CW", n=2)
    for r in (s0, s1): p("s_sub_u32 s%d, s%d, 1" % (r, r)); p("s_and_b32 s%d, s%d, 3" % (r, r))

def emit_measure(p, sW, sXCC):
    l = p.uid("NOMEAS")
    p("s_cmp_lg_u32 s%d, 0" % sW); p("s_cbranch_scc1 %s" % l)
    p("s_and_b32 s64, s2, 0xfffffffd"); p("s_cmp_lg_u32 s64, 1"); p("s_cbranch_scc1 %s" % l)
    p("s_lshr_b32 s70, s2, 1")
    for i in range(4): p("s_mov_b32 s%d, s%d" % (72 + i, sDBG + i))
    measure_cand(p, 4, 70, sXCC)
    p("s_add_u32 s71, s60, 1")
    for i in range(4): p("s_mov_b32 s%d, s%d" % (sDBG + i, 72 + i))
    p("s_lshl_b32 s70, s70, 2"); p("s_add_u32 s70, s70, %d" % D_CAND)
    p("v_mov_b32 v61, s71"); p("s_mov_b64 exec, 1")
    p("buffer_store_dword v61, off, s[%d:%d], s70 sc1" % (sDBG, sDBG + 3)); p("s_mov_b64 exec, -1")
    p.label(l)

def emit_init(p, sHI, sW, middle=None):
    sXS, sWR, sM0 = 16, 20, 24
    sROW, sT0, sT1, sC0, sC1 = 28, 29, 30, 31, 32
    for dst, off, size in ((sXS, 0, S * D * 2), (sWR, 64, D * 2), (sM0, 8, M * D * 2)):
        p("s_load_dwordx2 s[%d:%d], s[0:1], %d" % (dst, dst + 1, off)); p("s_mov_b32 s%d, %d" % (dst + 2, size)); p("s_mov_b32 s%d, 0x00020000" % (dst + 3))
    p("s_lshr_b32 s%d, s%d, 5" % (sT0, sHI)); p("s_sub_u32 s%d, s%d, s%d" % (sROW, sHI, sT0))
    p("s_lshl_b32 s%d, s%d, 2" % (sROW, sROW)); p("s_add_u32 s%d, s%d, s%d" % (sROW, sROW, sW)); p("s_mul_i32 s%d, s%d, 3" % (sROW, sROW))
    p("v_lshlrev_b32 v3, 4, v0"); p("v_lshlrev_b32 v4, 2, v0")
    p("s_waitcnt lgkmcnt(0)")
    lph2 = p.uid("INP2")
    p("s_and_b32 s%d, s%d, 31" % (sT0, sHI)); p("s_cmp_eq_u32 s%d, 31" % sT0); p("s_cbranch_scc1 %s" % lph2)
    X = [10, 16, 22]; W = 28
    for r in range(3):
        p("s_add_u32 s%d, s%d, %d" % (sT0, sROW, r)); p("s_mul_i32 s%d, s%d, 1280" % (33 + r, sT0))
        p("buffer_load_dwordx4 v[%d:%d], v3, s[%d:%d], s%d offen" % (X[r], X[r] + 3, sXS, sXS + 3, 33 + r))
        p("buffer_load_dword v%d, v4, s[%d:%d], s%d offen offset:1024" % (X[r] + 4, sXS, sXS + 3, 33 + r))
    p("buffer_load_dwordx4 v[%d:%d], v3, s[%d:%d], 0 offen" % (W, W + 3, sWR, sWR + 3))
    p("buffer_load_dword v%d, v4, s[%d:%d], 0 offen offset:1024" % (W + 4, sWR, sWR + 3))
    lm0 = p.uid("INM0")
    p("s_cmp_ge_u32 s%d, 10" % sHI); p("s_cbranch_scc1 %s" % lm0)
    p("v_and_b32 v5, 7, v0"); p("v_mul_u32_u24 v5, 1280, v5")
    p("v_lshrrev_b32 v6, 4, v0"); p("v_lshl_add_u32 v5, v6, 5, v5")
    p("v_bfe_u32 v6, v0, 3, 1"); p("v_lshl_add_u32 v5, v6, 4, v5")
    p("s_lshl_b32 s%d, s%d, 7" % (sT0, sHI))
    p("buffer_load_dwordx4 v[34:37], v5, s[%d:%d], s%d offen" % (sM0, sM0 + 3, sT0))
    p.label(lm0)
    p("s_waitcnt vmcnt(0)")
    for r in range(3):
        lskip = p.uid("INR")
        p("s_add_u32 s%d, s%d, %d" % (sT0, sROW, r)); p("s_cmp_ge_u32 s%d, %d" % (sT0, S)); p("s_cbranch_scc1 %s" % lskip)
        x = X[r]; lo, hi = 50, 60; acc, t = 70, 71
        for i in range(5):
            p("v_lshlrev_b32 v%d, 16, v%d" % (lo + i, x + i)); p("v_and_b32 v%d, 0xffff0000, v%d" % (hi + i, x + i))
        p("v_add_f32 v%d, v%d, v%d" % (acc, lo, hi))
        for i in range(1, 5): p("v_add_f32 v%d, v%d, v%d" % (acc, acc, lo + i)); p("v_add_f32 v%d, v%d, v%d" % (acc, acc, hi + i))
        wave_sum(p, acc, t)
        p("v_mul_f32 v72, 0x3acccccd, v%d" % acc)
        p("v_mov_b32 v73, 0")
        for i in range(5):
            for b in (lo, hi):
                p("v_sub_f32 v74, v%d, v72" % (b + i)); p("v_fmac_f32 v73, v74, v74")
        wave_sum(p, 73, t)
        p("v_mul_f32 v73, 0x3acccccd, v73")
        round_bf16(p, 72); round_bf16(p, 73)
        p("v_add_f32 v73, 0x3727c5ac, v73"); round_bf16(p, 73)
        p("v_sqrt_f32 v73, v73"); p.nop(1); round_bf16(p, 73)
        p("v_rcp_f32 v75, v73"); p.nop(1)
        p("v_mov_b32 v76, 0")
        for i in range(5):
            for b in (lo, hi):
                p("v_sub_f32 v%d, v%d, v72" % (b + i, b + i)); round_bf16(p, b + i)
                p("v_mul_f32 v74, v%d, v75" % (b + i))
                p("v_fma_f32 v77, -v74, v73, v%d" % (b + i))
                p("v_fma_f32 v%d, v77, v75, v74" % (b + i))
            p("v_cvt_pk_bf16_f32 v%d, v%d, v%d" % (x + i, lo + i, hi + i))
            p("v_lshlrev_b32 v74, 16, v%d" % (x + i)); p("v_lshlrev_b32 v77, 16, v%d" % (W + i)); p("v_fmac_f32 v76, v74, v77")
            p("v_and_b32 v74, 0xffff0000, v%d" % (x + i)); p("v_and_b32 v77, 0xffff0000, v%d" % (W + i)); p("v_fmac_f32 v76, v74, v77")
        p("s_add_u32 s%d, s%d, 0x%x" % (sT1, 33 + r, XN))
        p("buffer_store_dwordx4 v[%d:%d], v3, s[4:7], s%d offen sc1" % (x, x + 3, sT1))
        p("buffer_store_dword v%d, v4, s[4:7], s%d offen offset:1024 sc1" % (x + 4, sT1))
        wave_sum(p, 76, t)
        round_bf16(p, 76)
        p("s_lshl_b32 s%d, s%d, 2" % (sT1, sT0)); p("s_add_u32 s%d, s%d, 0x%x" % (sT1, sT1, RR))
        p("s_mov_b64 exec, 1")
        p("buffer_store_dword v76, off, s[4:7], s%d sc1" % sT1)
        p("s_mov_b64 exec, -1")
        p.label(lskip)
    def gidx(t0):
        p("s_lshl_b32 s%d, s%d, 2" % (t0, sHI)); p("s_add_u32 s%d, s%d, s%d" % (t0, t0, sW)); p("s_lshl_b32 s%d, s%d, 6" % (t0, t0))
        p("v_add_u32 v5, s%d, v0" % t0); p("v_lshlrev_b32 v6, 4, v5")
    gidx(sT0)
    for i in range(4): p("v_mov_b32 v%d, 0" % (44 + i))
    def simple(base, regs):
        p("s_mov_b32 s%d, 0x%x" % (sT1, base)); p("buffer_store_dwordx4 v[%d:%d], v6, s[4:7], s%d offen sc1" % (regs, regs + 3, sT1))
    masked(p, CTL_SIZE // 16, lambda: simple(CTL, 44))
    p("s_waitcnt vmcnt(0)"); p("s_barrier")
    l1 = p.uid("INA")
    p("s_cmp_lg_u32 s%d, 0" % sW); p("s_cbranch_scc1 %s" % l1)
    counter_add(p)
    p.label(l1)
    p.label(lph2)
    gidx(sT0)
    for i in range(4): p("v_mov_b32 v%d, -1" % (40 + i))
    masked(p, 2 * P1_X // 16, lambda: simple(P1, 40))
    pieces(p)
    p("v_lshl_add_u32 v49, v7, 13, v48")
    masked(p, 128 * 320, lambda: (p("s_mov_b32 s%d, 0x%x" % (sT1, ML + ML_S)), p("buffer_store_dwordx4 v[40:43], v49, s[4:7], s%d offen sc1" % sT1)))
    l = p.uid("INM1")
    p("s_cmp_ge_u32 s%d, 10" % sHI); p("s_cbranch_scc1 %s" % l)
    p("s_cmp_lg_u32 s%d, 0" % sW); p("s_cbranch_scc1 %s" % l)
    p("s_cmp_ge_u32 s%d, 5" % sHI); p("s_cselect_b32 s36, 1, 0")
    p("s_mul_i32 s%d, s36, 5" % sT0); p("s_sub_u32 s%d, s%d, s%d" % (sT0, sHI, sT0)); p("s_lshl_b32 s%d, s%d, 10" % (sT0, sT0))
    p("s_lshl_b32 s%d, s36, 13" % sT1); p("s_add_u32 s%d, s%d, 0x%x" % (sT1, sT1, ML)); p("s_add_u32 s%d, s%d, s%d" % (sT1, sT1, sT0))
    p("buffer_store_dwordx4 v[34:37], v3, s[4:7], s%d offen sc1" % sT1)
    p.label(l)
    if middle: middle(p)

def masked(p, limit, body):
    l = p.uid("INF")
    p("v_cmp_gt_u32 vcc, 0x%x, v5" % limit); p.nop(1)
    p("s_and_saveexec_b64 s[38:39], vcc"); p("s_cbranch_execz %s" % l)
    body()
    p.label(l); p("s_mov_b64 exec, s[38:39]")

def pieces(p):
    p("v_lshrrev_b32 v7, 6, v5"); p("v_mul_u32_u24 v7, 52429, v7"); p("v_lshrrev_b32 v7, 18, v7")
    p("v_mul_u32_u24 v8, 320, v7"); p("v_sub_u32 v8, v5, v8"); p("v_lshlrev_b32 v48, 4, v8")

def finish_init(p, sHI, sW):
    sT0, sT1, sC0, sC1 = 34, 35, 30, 31
    read_cand(p, sC0, sC1)
    p("s_lshl_b32 s%d, s%d, 2" % (sT0, sHI)); p("s_add_u32 s%d, s%d, s%d" % (sT0, sT0, sW)); p("s_lshl_b32 s%d, s%d, 6" % (sT0, sT0))
    p("v_add_u32 v5, s%d, v0" % sT0); p("v_lshlrev_b32 v3, 4, v0")
    for i in range(4): p("v_mov_b32 v%d, -1" % (40 + i))
    pieces(p)
    p("s_lshl_b32 s%d, s%d, 13" % (sC0, sC0)); p("s_lshl_b32 s%d, s%d, 13" % (sC1, sC1)); p("s_add_u32 s%d, s%d, 0x%x" % (sC1, sC1, MR_X))
    p("v_and_b32 v8, 1, v7"); p("v_cmp_eq_u32 vcc, 1, v8"); p("v_mov_b32 v8, s%d" % sC0); p("v_mov_b32 v9, s%d" % sC1)
    p("v_cndmask_b32 v8, v8, v9, vcc"); p("v_lshrrev_b32 v9, 1, v7"); p("v_lshl_add_u32 v8, v9, 15, v8"); p("v_add_u32 v49, v8, v48")
    p("v_cmp_le_u32 vcc, 640, v5"); p("v_mov_b32 v9, 0x%x" % OOB); p.nop(1); p("v_cndmask_b32 v49, v9, v49, vcc")
    masked(p, 128 * 320, lambda: (p("s_mov_b32 s%d, 0x%x" % (sT1, MR)), p("buffer_store_dwordx4 v[40:43], v49, s[4:7], s%d offen sc1" % sT1)))
    lm = p.uid("INM2")
    p("s_cmp_ge_u32 s%d, 10" % sHI); p("s_cbranch_scc1 %s" % lm)
    p("s_cmp_lg_u32 s%d, 1" % sW); p("s_cbranch_scc1 %s" % lm)
    p("s_cmp_ge_u32 s%d, 5" % sHI); p("s_cselect_b32 s36, 1, 0")
    p("s_mul_i32 s%d, s36, 5" % sT0); p("s_sub_u32 s%d, s%d, s%d" % (sT0, sHI, sT0)); p("s_lshl_b32 s%d, s%d, 10" % (sT0, sT0))
    p("s_cmp_eq_u32 s36, 0"); p("s_cselect_b32 s37, s%d, s%d" % (sC0, sC1)); p("s_add_u32 s37, s37, 0x%x" % MR); p("s_add_u32 s37, s37, s%d" % sT0)
    p("buffer_store_dwordx4 v[34:37], v3, s[4:7], s37 offen sc1")
    p.label(lm)

def announce_init(p, sHI, sW):
    sT1 = 65
    l = p.uid("INE")
    p("s_cmp_lg_u32 s%d, 0" % sW); p("s_cbranch_scc1 %s" % l)
    l2 = p.uid("ING")
    p("s_cmp_lg_u32 s%d, %d" % (sHI, (FLG_MEM - CTL) // 4096)); p("s_cbranch_scc1 %s" % l2)
    p("v_mov_b32 v7, 1"); p("v_lshlrev_b32 v8, 7, v0"); p("s_mov_b32 s%d, 0x%x" % (sT1, FLG_MEM)); p("s_mov_b64 exec, 3")
    p("buffer_store_dword v7, v8, s[4:7], s%d offen sc1" % sT1); p("s_mov_b64 exec, -1"); p("s_waitcnt vmcnt(0)")
    p.label(l2)
    p("v_mov_b32 v8, 1"); p("s_mov_b32 s%d, 0x%x" % (sT1, INITB)); p("s_mov_b64 exec, 1")
    p("buffer_atomic_add v8, off, s[4:7], s%d sc1" % sT1); p("s_mov_b64 exec, -1")
    p.label(l)

def wait_second(p, name="RB"):
    l = p.uid(name); ld = p.uid(name + "D")
    p("s_mov_b32 s65, 0"); p("s_mov_b32 s66, 0x%x" % INITB)
    p.label(l)
    p("buffer_load_dword v8, off, s[4:7], s66 sc1"); p("s_add_u32 s65, s65, 1"); p("s_waitcnt vmcnt(0)")
    p("v_readfirstlane_b32 s64, v8"); p("s_cmp_ge_u32 s64, %d" % NHELP); p("s_cbranch_scc1 %s" % ld)
    p("s_cmp_gt_u32 s65, %d" % (1 << 16)); p("s_cbranch_scc1 %s" % ld)
    p("s_sleep 8"); p("s_branch %s" % l)
    p.label(ld)
```

```python
from asm import *
from layout import *

sWS = 4
sX, sH, sW, sSTEP, sTAG = 12, 13, 14, 15, 16
sMLC, sMLST, sMLRS, sMRC, sMRST, sMRRS = 17, 18, 19, 20, 21, 22
sP1W = 23
sP1R = 24
sP1W1, sP1W2, sLINE = 25, 26, 27
sKFN, sVFN, sKM, sVM = 28, 29, 30, 31
sM8 = 32
sLO32 = 34
sOWN4 = 36
sC = 10
sBC, sBN, sBP = 39, 40, 41
sISOWN, sISPUB = 42, 43
sWQ, sWK, sWV, sWO = 44, 48, 52, 56
sCML, sCMLU, sCMRR, sCMRU = 60, 61, 62, 63
sT0, sT1, sT2, sT3 = 64, 65, 66, 67
sSPIN = 68
sFLG = 69
sFKM = 70
sLOC, sREM = 71, 72
sMLC4, sMRC4 = 74, 75
sCA, sCB = 8, 9
sM0K, sWARM = 73, 3
s3F80 = 38
sSEL = 44
sTS = 76
SPIN_MAX = 1 << 18
import os
DELAY1 = int(os.environ.get('DELAY1', '30'))
PACE = int(os.environ.get('PACE', '0'))
DELAY2 = int(os.environ.get('DELAY2', '0'))
PF = int(os.environ.get('PF', '1'))
T4NOP = int(os.environ.get('T4NOP', '1'))
B2BF = int(os.environ.get('B2BF', '0'))
DELAY1B = int(os.environ.get('DELAY1B', '0'))
MRLATE = int(os.environ.get('MRLATE', '3'))
ARLATE = int(os.environ.get('ARLATE', '0'))
TIMED = int(os.environ.get('TIMED', '1'))
TD0 = int(os.environ.get('TD0', '15'))
TD = int(os.environ.get('TD', '8'))
TFILL = int(os.environ.get('TFILL', '0'))
TFIRST = int(os.environ.get('TFIRST', '1'))
MRD = int(os.environ.get('MRD', '45'))
NLDS = int(os.environ.get('NLDS', '2'))
RTPOS = int(os.environ.get('RTPOS', '0'))
TD2 = int(os.environ.get('TD2', '12'))
FOLDX = int(os.environ.get('FOLDX', '0'))
EARLYF = int(os.environ.get('EARLYF', '3'))
ROWP = int(os.environ.get('ROWP', '1'))
RECLAST = int(os.environ.get('RECLAST', '1'))
OWN3 = int(os.environ.get('OWN3', '0'))
OD2 = int(os.environ.get('OD2', '8'))
OD3 = int(os.environ.get('OD3', '8'))
POLLN = int(os.environ.get('POLLN', '3'))
POLLDELAY = int(os.environ.get('POLLDELAY', '0'))
OWN2 = int(os.environ.get('OWN2', '1'))
OSTAG = int(os.environ.get('OSTAG', '8'))
sCNT2 = 53
sFINW = 55
sKVD, sKVC = 58, 59
sPCH = 52
RTOUCH = int(os.environ.get('RTOUCH', '1'))
MRFIRST = int(os.environ.get('MRFIRST', '0'))
STAMPS = os.environ.get('STAMPS', '').split(',')
FIRST_FLAGS = os.environ.get('FIRST', '')
TOUCH = int(os.environ.get('TOUCH', '1'))
REALTIME = int(os.environ.get('REALTIME', '0'))
PUB = int(os.environ.get('PUB', '0'))
COUNT = 1
NSAMP = int(os.environ.get('NSAMP', '2'))
FORCECAND = int(os.environ.get('FORCECAND', '0'))
TRACE = int(os.environ.get('TRACE', '0'))
TRC = 0x5C00000
sTRP = 54
sCNT = 40
TOUCHR = int(os.environ.get('TOUCHR', '1'))
sTR = 41
sMFL = 22
TRA = int(os.environ.get('TRA', '1'))
B2B = int(os.environ.get('B2B', '1'))
KPOS = int(os.environ.get('KPOS', '1'))
WSTR = int(os.environ.get('WSTR', '64'))
ALS = int(os.environ.get('ALS', '0'))
NOCHECK = bool(int(os.environ.get('NOCHECK', '0')))

vL16, vLW, vTW, vTR, vOW, vIDX, vPS = 1, 2, 3, 4, 5, 6, 7
vOR = 0
vX0 = 8
vA = 12
vQ0, vQ1, vK0, vK1, vV0, vV1 = 32, 36, 40, 44, 48, 52
vSB = 56
vVX = 88
vWQ = 96
aWV, aWO, aWK4 = 0, 160, 240

L_KX = 0
L_QT = 8192
G2OFF = 1152
L_KT = L_QT + 2304
L_O = L_KT + 2304
OSTR = 288
L_JUNK = 16128
L_FLG = 15104
L_IM2 = 15104
L_W = 16384
L_WSTRIDE = 36864

def unit_q(j, tt): return vr(vWQ + (j * 2 + tt) * 8, 8)
def unit_k9(tt): return ar(aWK4 + 8 * tt, 8)
def unit_v(j, tt): return ar(aWV + (j * 2 + tt) * 8, 8)
def unit_wo_pair(P, c): return ar(aWO + P * 32 + c * 8, 8)
def unit_wo4(c): return ar(aWO + 64 + c * 4, 4)
ACCQK = [vQ0, vQ1, vK0, vK1]

def smf(p, acc, a, b): p("v_smfmac_f32_16x16x64_bf16 %s, %s, %s, v%d" % (vr(acc, 4), vr(a, 4), b, vIDX))

def add_const(p, dst, src, const):
    p("s_add_u32 s%d, s%d, 0x%x" % (dst, src, const & 0xFFFFFFFF))

def setup_consts(p):
    p("v_and_b32 v0, 63, v0")
    p("v_lshlrev_b32 v%d, 4, v0" % vL16)
    p("s_mul_i32 s%d, s%d, %d" % (sT0, sW, L_WSTRIDE))
    p("s_add_u32 s%d, s%d, %d" % (sT0, sT0, L_W))
    p("v_add_u32 v%d, s%d, v%d" % (vLW, sT0, vL16))
    p("v_bfe_u32 v8, v0, 4, 1")
    p("v_mul_u32_u24 v8, %d, v8" % G2OFF)
    p("v_lshrrev_b32 v9, 5, v0")
    p("v_lshlrev_b32 v9, 4, v9")
    p("v_and_b32 v10, 15, v0")
    p("v_add_u32 v9, v9, v10")
    p("s_lshl_b32 s%d, s%d, 5" % (sT0, sW))
    p("v_add_u32 v9, s%d, v9" % sT0)
    p("v_lshl_add_u32 v8, v9, 3, v8")
    p("v_add_u32 v%d, %d, v8" % (vTW, L_QT))
    p("v_and_b32 v8, 1, v0")
    p("v_mul_u32_u24 v8, %d, v8" % G2OFF)
    p("v_lshrrev_b32 v9, 4, v0")
    p("v_lshlrev_b32 v9, 2, v9")
    p("v_bfe_u32 v10, v0, 2, 2")
    p("v_add_u32 v9, v9, v10")
    p("v_lshl_add_u32 v8, v9, 3, v8")
    p("v_add_u32 v%d, %d, v8" % (vTR, L_QT))
    p("v_and_b32 v8, 7, v0"); p("v_mul_u32_u24 v8, %d, v8" % OSTR)
    p("v_bfe_u32 v9, v0, 3, 1"); p("v_lshl_add_u32 v8, v9, 5, v8")
    p("v_lshrrev_b32 v9, 4, v0"); p("v_lshl_add_u32 v8, v9, 3, v8")
    p("s_lshl_b32 s%d, s%d, 6" % (sT0, sW)); p("s_add_u32 s%d, s%d, %d" % (sT0, sT0, L_O))
    p("v_add_u32 v%d, s%d, v8" % (vOW, sT0))
    p("s_mov_b32 s%d, 0x00ff00ff" % sM8); p("s_mov_b32 s%d, 0x00ff00ff" % (sM8 + 1))
    p("s_mov_b32 s%d, -1" % sLO32); p("s_mov_b32 s%d, 0" % (sLO32 + 1))
    p("s_mov_b32 s%d, 0x00010001" % sOWN4); p("s_mov_b32 s%d, 0x00010001" % (sOWN4 + 1))
    p("v_mov_b32 v8, 0xeeee")
    p("v_mov_b32 v9, 0x4444")
    p("v_cndmask_b32 v%d, v8, v9, s[%d:%d]" % (vIDX, sM8, sM8 + 1))
    p("v_lshrrev_b32 v8, 5, v0"); p("v_lshlrev_b32 v8, 13, v8")
    p("v_bfe_u32 v9, v0, 3, 1"); p("v_lshl_add_u32 v8, v9, 12, v8")
    p("v_and_b32 v9, 7, v0"); p("v_lshl_add_u32 v8, v9, 4, v8")
    p("v_bfe_u32 v9, v0, 4, 1"); p("v_lshl_add_u32 v%d, v9, 3, v8" % vPS)
    p("s_mov_b32 s%d, 0x3e0293ee" % sC); p("s_mov_b32 s%d, 0x3e0293ee" % (sC + 1))
    p("s_cmp_eq_u32 s%d, 0" % sW); p("s_cselect_b32 s%d, 1, 0" % sISOWN)
    p("s_cmp_ge_u32 s%d, 24" % sH); p("s_cselect_b32 s%d, 1, 0" % sT1)
    p("s_cmp_eq_u32 s%d, 1" % sW); p("s_cselect_b32 s%d, s%d, 0" % (sT1, sT1))
    p("s_or_b32 s%d, s%d, s%d" % (sISOWN, sISOWN, sT1))
    p("s_lshl_b32 s%d, s%d, 3" % (sT1, sT1)); p("s_add_u32 s%d, s%d, s%d" % (sT0, sH, sT1))
    p("s_cmp_eq_u32 s%d, 39" % sT0); p("s_cselect_b32 s%d, s%d, 0" % (sMFL, sISOWN))
    p("s_mul_i32 s%d, s%d, %d" % (sP1R, sX, P1_X))
    p("s_add_u32 s%d, s%d, 0x%x" % (sP1R, sP1R, P1))
    p("s_lshl_b32 s%d, s%d, 7" % (sT3, sH)); p("s_add_u32 s%d, s%d, s%d" % (sP1W2, sP1R, sT3))
    p("s_lshl_b32 s%d, s%d, 14" % (sT3, sW)); p("s_add_u32 s%d, s%d, s%d" % (sP1W, sP1W2, sT3))
    add_const(p, sP1W1, sP1W, 8 * 8192)
    p("s_lshl_b32 s%d, s%d, 13" % (sT3, sW)); p("s_add_u32 s%d, s%d, s%d" % (sP1W2, sP1W2, sT3)); add_const(p, sP1W2, sP1W2, 16 * 8192)
    p("s_lshl_b32 s%d, s%d, 12" % (sT3, sT0)); p("s_add_u32 s%d, s%d, s%d" % (sP1R, sP1R, sT3))
    p("s_lshl_b32 s%d, s%d, 7" % (sT0, sT0))
    p("s_lshl_b32 s%d, s%d, 13" % (sT1, sX))
    add_const(p, sMLC, sT1, ML)
    p("s_add_u32 s%d, s%d, s%d" % (sMLST, sMLC, sT0))
    p("s_lshl_b32 s%d, s%d, 21" % (sT1, sX))
    add_const(p, sT2, sT1, MR)
    p("s_add_u32 s%d, s%d, s%d" % (sMRST, sT2, sT0))
    p("s_xor_b32 s%d, s%d, 0x%x" % (sT1, sT1, MR_X))
    add_const(p, sMRC, sT1, (MR - MR_S) & 0xFFFFFFFF)
    p("s_and_b32 s%d, s%d, 1" % (sT0, sH))
    p("s_cmp_eq_u32 s%d, s%d" % (sT0, sX))
    p("s_cselect_b32 s%d, 1, 0" % sISPUB)
    if not PUB: p("s_mov_b32 s%d, 0" % sISPUB)
    p("s_lshl_b32 s%d, s%d, 4" % (sT0, sH))
    add_const(p, sFLG, sT0, FLG_KVQ)
    p("s_lshl_b32 s%d, s%d, 2" % (sT0, sH))
    add_const(p, sFKM, sT0, FLG_KM)
    p("s_lshl_b32 s%d, s%d, 14" % (sT0, sH))
    p("s_lshl_b32 s%d, s%d, 11" % (sM0K, sW))
    p("s_lshl_b32 s%d, s%d, 12" % (sT1, sW))
    p("s_add_u32 s%d, s%d, s%d" % (sT1, sT1, sT0))
    add_const(p, sWARM, sT1, KF + 2 * KV_S)
    p("s_add_u32 s%d, s%d, s%d" % (sT0, sT0, sM0K))
    add_const(p, sKFN, sT0, KF)
    add_const(p, sVFN, sT0, VF)
    p("s_lshl_b32 s%d, s%d, 11" % (sT0, sH))
    add_const(p, sKM, sT0, KM)
    p("s_lshl_b32 s%d, s%d, 12" % (sT0, sH))
    p("s_lshl_b32 s%d, s%d, 10" % (sT1, sW))
    p("s_add_u32 s%d, s%d, s%d" % (sT0, sT0, sT1))
    add_const(p, sVM, sT0, VM)

def setup_vor(p):
    if TRACE:
        p("s_lshl_b32 s%d, s%d, 5" % (sTRP, sX)); p("s_add_u32 s%d, s%d, s%d" % (sTRP, sTRP, sH)); p("s_lshl_b32 s%d, s%d, 2" % (sTRP, sTRP))
        p("s_add_u32 s%d, s%d, s%d" % (sTRP, sTRP, sW)); p("s_lshl_b32 s%d, s%d, 12" % (sTRP, sTRP)); add_const(p, sTRP, sTRP, TRC)
    p("s_mov_b32 s%d, 0x3f80" % s3F80); p("s_mov_b32 s%d, 0" % sCNT2)
    p("s_cmp_eq_u32 s%d, 2" % sW); p("s_cselect_b32 s%d, 1024, 0" % sPCH)
    p("s_cmp_eq_u32 s%d, 3" % sW); p("s_cselect_b32 s%d, 0, 1" % sKVD); p("s_mov_b32 s%d, 0" % sKVC)
    p("s_cmp_eq_u32 s%d, 0" % sX); p("s_cselect_b32 s%d, 2, 0" % sFINW)
    for r_ in range(4):
        m_ = 0x03030303 << (2 * r_)
        p("s_mov_b32 s%d, 0x%x" % (sSEL + 2 * r_, m_)); p("s_mov_b32 s%d, 0x%x" % (sSEL + 2 * r_ + 1, m_))
    p("v_and_b32 v8, 7, v0"); p("v_mul_u32_u24 v8, %d, v8" % OSTR)
    p("v_lshrrev_b32 v9, 4, v0"); p("v_lshl_add_u32 v8, v9, 4, v8")
    p("v_add_u32 v%d, %d, v8" % (vOR, L_O))

def finish_consts(p):
    p("s_add_u32 s%d, s%d, s%d" % (sMRST, sMRST, sT0))
    p("s_add_u32 s%d, s%d, s%d" % (sMRC, sMRC, sT2))
    p("s_cmp_eq_u32 s%d, 0" % sISOWN)
    p("s_cselect_b32 s%d, 0x%x, s%d" % (sMLST, OOB, sMLST))
    p("s_cselect_b32 s%d, 0x%x, s%d" % (sMRST, OOB, sMRST))
    p("s_lshl_b32 s%d, s%d, 7" % (sT1, sX)); add_const(p, sT1, sT1, FLG_MEM)
    p("s_cmp_eq_u32 s%d, 0" % sMFL); p("s_cselect_b32 s%d, 0x%x, s%d" % (sMFL, OOB, sT1))
    p("s_lshl_b32 s%d, s%d, 2" % (sT0, sH)); p("s_add_u32 s%d, s%d, s%d" % (sT0, sT0, sW))
    for _ in range(3):
        p("s_cmp_ge_u32 s%d, 40" % sT0); p("s_cselect_b32 s%d, 40, 0" % sT1); p("s_sub_u32 s%d, s%d, s%d" % (sT0, sT0, sT1))
    p("s_lshl_b32 s%d, s%d, 7" % (sLINE, sT0)); add_const(p, sMLRS, sLINE, ML_S)

def load_weights(p, st=None, after_first=None, looks=None):
    vm = Counter(p, "vmcnt", 63)
    vG, vGP, vGO, vSR0, vSR1, vSRP, vSRO = 88, 89, 90, 91, 92, 93, 94
    t = 95
    sRB = sBN
    p("s_mul_i32 s%d, s%d, %d" % (sRB, sW, L_WSTRIDE)); p("s_add_u32 s%d, s%d, %d" % (sRB, sRB, L_W))
    assert ROWP
    vGR = [76, 77, 78, 79]; vRR = [[72, 73], [74, 75]]
    if ROWP:
        p("v_lshrrev_b32 v%d, 4, v0" % t); p("v_lshlrev_b32 v8, 13, v%d" % t)
        p("v_and_b32 v%d, 1, v%d" % (t, t)); p("v_lshlrev_b32 v%d, 1, v%d" % (t, t))
        p("v_and_b32 v9, 15, v0"); p("v_xor_b32 v9, v9, v%d" % t)
        for a in range(4):
            fa = ((a & 1) << 2) | ((a >> 1) << 3)
            p("v_xor_b32 v%d, %d, v9" % (t, fa)); p("v_lshl_add_u32 v%d, v%d, 4, v8" % (vGR[a], t))
    p("s_lshl_b32 s%d, s%d, 8" % (sT0, sH)); p("s_lshl_b32 s%d, s%d, %d" % (sT1, sW, 17 if ROWP else 6))
    p("s_add_u32 s%d, s%d, s%d" % (sT0, sT0, sT1))
    p("s_mul_i32 s%d, s%d, %d" % (sT1, sX, 5 * 524288))
    p("s_add_u32 s%d, s%d, s%d" % (sLOC, sT0, sT1))
    p("s_sub_u32 s%d, %d, s%d" % (sT1, 5 * 524288, sT1))
    p("s_add_u32 s%d, s%d, s%d" % (sREM, sT0, sT1))
    sWOB, sWOB4 = sBC, sBP
    def late_addresses():
        if ROWP:
            p("v_lshrrev_b32 v%d, 5, v0" % t); p("v_mul_u32_u24 v8, %d, v%d" % (L_WSTRIDE, t))
            p("v_bfe_u32 v%d, v0, 3, 1" % t); p("v_lshl_add_u32 v8, v%d, 11, v8" % t); p("v_lshlrev_b32 v9, 3, v%d" % t)
            p("v_bfe_u32 v%d, v0, 4, 1" % t); p("v_lshl_add_u32 v8, v%d, 10, v8" % t); p("v_lshl_add_u32 v9, v%d, 2, v9" % t)
            p("v_bfe_u32 v%d, v0, 2, 1" % t); p("v_lshl_add_u32 v8, v%d, 8, v8" % t); p("v_lshl_add_u32 v9, v%d, 1, v9" % t)
            p("v_and_b32 v%d, 1, v0" % t); p("v_lshl_add_u32 v8, v%d, 3, v8" % t)
            p("v_add_u32 v8, %d, v8" % L_W)
            p("v_bfe_u32 v%d, v0, 1, 1" % t); p("s_lshl_b32 s%d, s%d, 2" % (sT0, sW)); p("v_add_u32 v10, s%d, v%d" % (sT0, t))
            for tt in range(2):
                p("v_add_u32 v%d, %d, v10" % (t, 2 * tt)); p("v_xor_b32 v%d, v%d, v9" % (t, t))
                p("v_lshl_add_u32 v%d, v%d, 4, v8" % (vRR[tt][0], t))
                p("v_add_u32 v%d, %d, v%d" % (vRR[tt][1], 2 * L_WSTRIDE, vRR[tt][0]))
        p("v_bfe_u32 v%d, v0, 2, 1" % t); p("v_mov_b32 v8, v%d" % t)
        p("v_bfe_u32 v%d, v0, 3, 1" % t); p("v_lshl_add_u32 v8, v%d, 2, v8" % t)
        p("v_bfe_u32 v%d, v0, 4, 1" % t); p("v_lshl_add_u32 v8, v%d, 1, v8" % t)
        p("v_bfe_u32 v%d, v0, 5, 1" % t); p("v_lshl_add_u32 v8, v%d, 3, v8" % t)
        p("v_mul_u32_u24 v8, 1280, v8"); p("v_and_b32 v%d, 3, v0" % t); p("v_lshl_add_u32 v%d, v%d, 4, v8" % (vGP, t))
        p("v_lshrrev_b32 v%d, 1, v0" % t); p("v_mul_u32_u24 v8, 1280, v%d" % t)
        p("v_and_b32 v%d, 1, v0" % t); p("v_lshl_add_u32 v%d, v%d, 4, v8" % (vGO, t))
        p("v_lshrrev_b32 v%d, 5, v0" % t); p("v_lshlrev_b32 v%d, 9, v%d" % (vSRP, t))
        p("v_bfe_u32 v%d, v0, 4, 1" % t); p("v_lshl_add_u32 v%d, v%d, 7, v%d" % (vSRP, t, vSRP))
        p("v_bfe_u32 v%d, v0, 2, 1" % t); p("v_lshl_add_u32 v%d, v%d, 6, v%d" % (vSRP, t, vSRP))
        p("v_bfe_u32 v%d, v0, 3, 1" % t); p("v_lshl_add_u32 v%d, v%d, 5, v%d" % (vSRP, t, vSRP))
        p("v_and_b32 v%d, 3, v0" % t); p("v_lshl_add_u32 v%d, v%d, 3, v%d" % (vSRP, t, vSRP))
        p("v_add_u32 v%d, s%d, v%d" % (vSRP, sRB, vSRP))
        p("v_lshrrev_b32 v%d, 4, v0" % t); p("v_lshlrev_b32 v%d, 8, v%d" % (vSRO, t))
        p("v_bfe_u32 v%d, v0, 2, 2" % t); p("v_lshl_add_u32 v%d, v%d, 5, v%d" % (vSRO, t, vSRO))
        p("v_and_b32 v%d, 3, v0" % t); p("v_lshl_add_u32 v%d, v%d, 3, v%d" % (vSRO, t, vSRO))
        p("v_add_u32 v%d, s%d, v%d" % (vSRO, sRB, vSRO))
        _ = 0
        p("s_mul_i32 s%d, s%d, %d" % (sWOB, sH, 128 * 1280))
        p("s_mul_i32 s%d, s%d, 640" % (sT0, sX)); p("s_add_u32 s%d, s%d, s%d" % (sWOB, sWOB, sT0))
        p("s_lshl_b32 s%d, s%d, 5" % (sT0, sW)); p("s_add_u32 s%d, s%d, s%d" % (sWOB4, sWOB, sT0)); add_const(p, sWOB4, sWOB4, 512)
        p("s_lshl_b32 s%d, s%d, 6" % (sT0, sW)); p("s_add_u32 s%d, s%d, s%d" % (sWOB, sWOB, sT0))

    R = []
    for j in range(10): R.append(dict(mat="q", j=j, acc=False, base=vWQ + j * 16, lds=False))
    R.append(dict(mat="k", j=9, acc=True, base=aWK4, lds=False))
    for j in range(10): R.append(dict(mat="v", j=j, acc=True, base=aWV + j * 16, lds=False))
    for P in range(2):
        for g2 in range(2): R.append(dict(mat="op", j=(P, g2), acc=True, base=aWO + P * 32 + g2 * 16, lds=False))
    R.append(dict(mat="o", j=4, acc=True, base=aWO + 64, lds=False))
    order = list(R)
    for n, g in enumerate(order): g["slot"] = n % 9
    for i in range(9):
        slot = (len(R) + i) % 9
        order.append(dict(mat="k", j=slot, acc=False, base=12, lds=True, slot=slot))
    def rg(g, off, n): return (ar if g["acc"] else vr)(g["base"] + off, n)
    def issue(n):
        g = order[n]
        for a in range(4):
            p("s_add_u32 m0, s%d, %d" % (sRB, g["slot"] * 4096 + a * 1024))
            if g["mat"] == "o":
                add_const(p, sT0, sWOB4, a * 32 * 1280); v, srd = vGO, sWO
            elif g["mat"] == "op":
                P, g2 = g["j"]; add_const(p, sT0, sWOB, P * 256 + (64 * g2 + 16 * a) * 1280); v, srd = vGP, sWO
            else:
                j = g["j"]; add_const(p, sT0, sLOC if j < 5 else sREM, (j % 5) * 524288 + a * (32768 if ROWP else 131072))
                v, srd = (vGR[a] if ROWP else vG), {"q": sWQ, "k": sWK, "v": sWV}[g["mat"]]
            p("buffer_load_dwordx4 v%d, s[%d:%d], s%d offen lds" % (v, srd, srd + 3, sT0)); vm.issue(n)
    INFL = int(os.environ.get('INFL', '9'))
    PD = int(os.environ.get('PD', '0'))
    vPF = 87
    if PD: p("v_lshlrev_b32 v%d, 6, v0" % vPF)
    sPF = sBP + 0
    def touch(n):
        if PD == 0 or n >= len(order): return
        g = order[n]
        if g["mat"] not in ("q", "k", "v"): return
        p("s_mov_b32 m0, %d" % L_JUNK)
        jj = g["j"]
        p("s_add_u32 s%d, s%d, 0x%x" % (sT0, sPFL if jj < 5 else sPFR, (jj % 5) * 524288))
        srd = {"q": sWQ, "k": sWK, "v": sWV}[g["mat"]]
        p("buffer_load_dword v%d, s[%d:%d], s%d offen lds" % (vPF, srd, srd + 3, sT0)); vm.issue(("pf", n))
    sPFL, sPFR = 74, 75
    if PD:
        p("s_lshl_b32 s%d, s%d, 14" % (sT0, sH)); p("s_lshl_b32 s%d, s%d, 12" % (sT1, sW)); p("s_add_u32 s%d, s%d, s%d" % (sT0, sT0, sT1))
        p("s_mul_i32 s%d, s%d, %d" % (sT1, sX, 5 * 524288))
        p("s_add_u32 s%d, s%d, s%d" % (sPFL, sT0, sT1))
        p("s_sub_u32 s%d, %d, s%d" % (sT1, 5 * 524288, sT1))
        p("s_add_u32 s%d, s%d, s%d" % (sPFR, sT0, sT1))
    _issue = issue
    def issue(n):
        touch(n + PD)
        _issue(n)
    LEAD = INFL - 1 if ROWP else INFL
    for n in range(1, PD): touch(n)
    for n in range(LEAD): issue(n)
    late_addresses()
    if after_first: after_first(p)
    for n, g in enumerate(order):
        vm.wait(n)
        if ROWP:
            p("s_barrier")
            if n + LEAD < len(order): issue(n + LEAD)
            if looks and n in looks:
                for _ in range(looks[n](p)): vm.issue(("look", n))
        if st is not None: st.stamp("G%d" % n)
        so = g["slot"] * 4096
        for u in range(2):
            for pp in range(4):
                d = rg(g, u * 8 + 2 * pp, 2)
                if g["mat"] == "o": p("ds_read_b64_tr_b16 %s, v%d offset:%d" % (d, vSRO, so + (2 * u + pp // 2) * 1024 + (pp % 2) * 128))
                elif g["mat"] == "op": p("ds_read_b64_tr_b16 %s, v%d offset:%d" % (d, vSRP, so + (2 * u + pp // 2) * 1024 + (pp % 2) * 256))
                elif ROWP: p("ds_read_b64_tr_b16 %s, v%d offset:%d" % (d, vRR[u][pp // 2], so + (pp % 2) * 512))
                else: p("ds_read_b64_tr_b16 %s, v%d offset:%d" % (d, vSR0 if u == 0 else vSR1, so + (pp // 2) * 2048 + (pp % 2) * 512))
        p("s_waitcnt lgkmcnt(0)")
        if g["lds"]:
            if ROWP: p("s_barrier")
            for q in range(4):
                p("ds_write_b128 v%d, %s offset:%d" % (vLW, rg(g, 4 * q, 4), so + q * 1024))
            p("s_waitcnt lgkmcnt(0)")
        if not ROWP:
            if n + INFL < len(order): issue(n + INFL)
            if looks and n in looks:
                for _ in range(looks[n](p)): vm.issue(("look", n))

FIN = dict(vQ=96, vV=vVX, vK=160, vKM=192, vVM=208, vS=224, vSUM=244, vONE=252, vP=16, vO=32)

def emit_final(p):
    import att
    p.label("REC_FINAL")
    p("s_cmp_lg_u32 s%d, 0" % sX); p("s_cbranch_scc1 REC_END")
    p("s_waitcnt lgkmcnt(0)")
    for j in range(2, 5): smf(p, vV0, vA + 4 * j, unit_v(5 + j, 0)); smf(p, vV1, vA + 4 * j, unit_v(5 + j, 1))
    for kk in range(4):
        for r in range(2):
            p("ds_read_b64_tr_b16 %s, v%d offset:%d" % (vr(FIN["vKM"] + 4 * kk + 2 * r, 2), vTR, L_KT - L_QT + 256 * kk + 128 * r))
    for f in range(8): p("ds_read_b128 %s, v%d offset:%d" % (vr(FIN["vK"] + 4 * f, 4), vL16, L_KX + f * 1024))
    p("v_mbcnt_lo_u32_b32 v0, -1, 0"); p("v_mbcnt_hi_u32_b32 v0, -1, v0")
    att.consts(p, FIN["vONE"])
    m = FIN["vVM"]
    for i in range(4): p("v_permlane32_swap_b32 v%d, v%d" % (vV0 + i, vV1 + i))
    for i in (0, 2): p("v_pk_add_f32 %s, %s, %s" % (vr(vV0 + i, 2), vr(vV0 + i, 2), vr(vV1 + i, 2)))
    p("v_cvt_pk_bf16_f32 v%d, v%d, v%d" % (m, vV0, vV0 + 1)); p("v_cvt_pk_bf16_f32 v%d, v%d, v%d" % (m + 1, vV0 + 2, vV0 + 3))
    p("v_mov_b32 v%d, v%d" % (m + 2, m)); p("v_mov_b32 v%d, v%d" % (m + 3, m + 1)); p.nop(2)
    p("v_permlane32_swap_b32 v%d, v%d" % (m, m + 2)); p("v_permlane32_swap_b32 v%d, v%d" % (m + 1, m + 3))
    p("s_mov_b32 s%d, %d" % (att.sS, NSEG - 1))
    att.result_addrs(p)
    p("s_lshl_b32 s%d, s%d, 10" % (sT0, sW)); p("s_add_u32 s%d, s%d, s%d" % (att.sOF, att.sOF, sT0))
    p("s_waitcnt vmcnt(0) lgkmcnt(0)")
    att.core(p, FIN, lambda: None, lambda: None, ne=2, flag=False)
    p("s_barrier")
    p("s_cmp_lg_u32 s%d, 0" % sW); p("s_cbranch_scc1 REC_END")
    att.store_flag(p)
    p("s_branch REC_END")

class Step:
    def __init__(self, p, dbg=False, slow=False):
        self.p = p; self.dbg = dbg
        self.slow = slow; self.loc = "sc1" if slow else ""; self.sfx = "_S" if slow else ""
        self.vm = Counter(p, "vmcnt", 63); self.lg = Counter(p, "lgkmcnt", 15)
        self.retries = []; self.tail = []
        self.stamps = []; self.prev = {}
    def stamp(self, name):
        if name not in STAMPS: return
        k = sTS + 2 * STAMPS.index(name); assert k + 1 < 94
        self.stamps = list(STAMPS)
        self.p("%s s[%d:%d]" % ("s_memrealtime" if (REALTIME or name == "RT") else "s_memtime", k, k + 1))
    def sb(self, b): return vSB + 8 * b
    def lds_unit(self, i):
        p = self.p; b = self.sb(i % 4)
        p("ds_read_b128 %s, v%d offset:%d" % (vr(b, 4), vLW, i * 2048)); self.lg.issue(("L", i))
        p("ds_read_b128 %s, v%d offset:%d" % (vr(b + 4, 4), vLW, i * 2048 + 1024)); self.lg.issue(("L", i))
    def img_ins(self, j, soff, flags=FIRST_FLAGS):
        so, off = (soff, j * 1024) if j < 4 else ({sMLC: sMLC4, sMRC: sMRC4}[soff], 0)
        self.p("buffer_load_dwordx4 %s, v%d, s[%d:%d], s%d offen offset:%d %s" % (vr(vA + 4 * j, 4), vL16, sWS, sWS + 3, so, off, flags))
    def img_load(self, j, soff, tag):
        self.img_ins(j, soff); self.vm.issue(tag)
    def check_chunk(self, j, soff, kind):
        if NOCHECK: return
        p = self.p; lr = p.uid("RETRY"); lb = p.uid("BACK")
        p("v_cmp_eq_u32 vcc, -1, v%d" % (vA + 4 * j + 3))
        p("s_cbranch_vccnz %s" % lr); p.label(lb)
        self.retries.append((lr, lb, j, soff))
    def emit_retries(self):
        p = self.p
        for kind, lretry, lpoll, ldone, loads in self.tail:
            p.label(lretry)
            p("s_add_u32 s%d, s%d, 1" % (sSPIN, sSPIN))
            if COUNT: p("s_add_u32 s%d, s%d, 1" % (sCNT, sCNT))
            p("s_cmp_gt_u32 s%d, %d" % (sSPIN, SPIN_MAX)); p("s_cbranch_scc1 %s" % ldone)
            loads(); p("s_branch %s" % lpoll)
        for lr, lb, j, soff, later in self.retries:
            p.label(lr)
            l2 = p.uid("SPIN")
            p.label(l2)
            self.img_ins(j, soff, "sc1")
            for k in later: self.img_ins(k, soff, "sc1")
            p("s_add_u32 s%d, s%d, 1" % (sSPIN, sSPIN))
            if COUNT: p("s_add_u32 s%d, s%d, %d" % (sCNT, sCNT, (1 << 10) if soff == sMLC else (1 << 20)))
            p("s_cmp_gt_u32 s%d, %d" % (sSPIN, SPIN_MAX))
            p("s_waitcnt vmcnt(0)")
            p("s_cbranch_scc1 %s" % lb)
            p("v_cmp_eq_u32 vcc, -1, v%d" % (vA + 4 * j + 3))
            p("s_cbranch_vccnz %s" % l2)
            p("s_branch %s" % lb)

    def top_state(self):
        self.vm.clear(); self.lg.clear()
        for i in range(2): self.lg.issue(("L", i)); self.lg.issue(("L", i))

    def masked_store(self, data, n, voff, soff, mask, flags="", off=0, tag="st"):
        p = self.p
        p("s_mov_b64 exec, s[%d:%d]" % (mask, mask + 1))
        op = {1: "dword", 2: "dwordx2", 4: "dwordx4"}[n]
        p("buffer_store_%s %s, v%d, s[%d:%d], s%d offen offset:%d %s" % (op, vr(data, n), voff, sWS, sWS + 3, soff, off, flags))
        p("s_mov_b64 exec, -1")
        self.vm.issue(tag)

    def housekeeping(self):
        p = self.p
        def clears(a, b):
            for i in range(a, b): p("v_mov_b64 %s, 0" % vr(vQ0 + 2 * i, 2))
        def prefetch(a, b):
            for i in range(a, b): self.lds_unit(i)
        def salu():
            add_const(p, sWARM, sWARM, KV_S); add_const(p, sVFN, sVFN, KV_S)
            add_const(p, sMLST, sMLST, ML_S); add_const(p, sMRST, sMRST, MR_S)
            p("s_add_u32 s%d, s%d, 1" % (sSTEP, sSTEP))
        return clears, prefetch, salu

    def poller(self):
        p, lg = self.p, self.lg
        clears, prefetch, salu = self.housekeeping()
        p.label("REC_POLL" + self.sfx)
        lskip = p.uid("NOFLG"); lnext = p.uid("KVNEXT")
        p("s_cmp_eq_u32 s%d, 0" % sKVC); p("s_cbranch_scc1 %s" % lskip)
        p("s_waitcnt vmcnt(0)")
        p("v_lshrrev_b32 v%d, 2, v%d" % (vA + 17, vL16)); p("ds_read_b32 v%d, v%d offset:%d" % (vA, vA + 17, L_FLG))
        p("s_add_u32 s%d, s%d, 2" % (sT0, sSTEP)); p("s_lshr_b32 s%d, s%d, 1" % (sT1, sT0)); p("s_add_u32 s%d, s%d, 1" % (sT3, sT1))
        p("s_waitcnt lgkmcnt(0)")
        p("v_cmp_ne_u32 vcc, 0, v%d" % vA)
        p("v_readlane_b32 s%d, v%d, s%d" % (sT1, vA, sT1)); p("v_readlane_b32 s%d, v%d, s%d" % (sT3, vA, sT3))
        p("s_cmp_eq_u32 vcc_lo, -1"); p("s_cselect_b32 s%d, 1, 0" % sKVD)
        p("s_and_b32 s%d, s%d, s%d" % (sT1, sT1, sT3)); p("s_cbranch_scc1 %s" % lskip)
        p("s_lshl_b32 s%d, s%d, 7" % (sT0, sT0))
        p("s_add_u32 s%d, s%d, s%d" % (sT0, sT0, sFLG))
        self.flag_spin(sT0)
        p.label(lskip)
        p("s_add_u32 s%d, s%d, 3" % (sT0, sSTEP)); p("s_and_b32 s%d, s%d, 0x43" % (sT0, sT0)); p("s_or_b32 s%d, s%d, s%d" % (sT0, sT0, sKVD))
        p("s_cmp_eq_u32 s%d, 0" % sT0); p("s_cselect_b32 s%d, 1, 0" % sKVC)
        if RECLAST: p("s_cmp_eq_u32 s%d, %d" % (sSTEP, NSEG - 1)); p("s_cselect_b32 s%d, s%d, s%d" % (sKVC, sFINW, sKVC))
        p("s_add_u32 s%d, s%d, s%d" % (sT2, sMLC, sPCH))
        vAD = vX0 + 2
        lg.clear()
        p("v_add_u32 v%d, s%d, v%d" % (vAD, sPCH, vL16))
        p("s_xor_b32 s%d, s%d, 1" % (sTAG, sTAG))
        fill = [lambda: clears(0, 6), lambda: clears(6, 12), lambda: prefetch(0, 1), lambda: prefetch(1, 2)]
        ok = p.uid("IOK")
        def variant(nch, sets, polln, last):
            def pload(k):
                for c in range(nch):
                    p("buffer_load_dwordx4 %s, v%d, s[%d:%d], s%d offen offset:%d sc1" % (vr(sets[k] + 4 * c, 4), vL16, sWS, sWS + 3, sT2, 1024 * c))
            self.stamp("PS0")
            p.nop(TD0)
            for k in range(polln):
                pload(k)
                if k < polln - 1: p.nop(TD if nch == 1 else TD2)
            lp = p.uid("IPOLL")
            p.label(lp)
            for k in range(polln):
                p("s_waitcnt vmcnt(%d)" % (nch * (polln - 1)))
                for c in range(nch):
                    p("ds_write_b128 v%d, %s offset:%d" % (vAD, vr(sets[k] + 4 * c, 4), L_O if c == 0 else L_IM2 - 1024))
                t_ = vX0 + 3
                p("v_max3_u32 v%d, v%d, v%d, v%d" % (t_, sets[k], sets[k] + 1, sets[k] + 2))
                if nch == 1: p("v_max_u32 v%d, v%d, v%d" % (t_, t_, sets[k] + 3))
                else:
                    p("v_max3_u32 v%d, v%d, v%d, v%d" % (t_, t_, sets[k] + 3, sets[k] + 4))
                    p("v_max3_u32 v%d, v%d, v%d, v%d" % (t_, t_, sets[k] + 5, sets[k] + 6))
                    p("v_max_u32 v%d, v%d, v%d" % (t_, t_, sets[k] + 7))
                p("v_cmp_eq_u32 vcc, -1, v%d" % t_)
                if k == polln - 1:
                    p("s_add_u32 s%d, s%d, 1" % (sSPIN, sSPIN))
                    if COUNT: p("s_add_u32 s%d, s%d, 1" % (sCNT2, sCNT2))
                    p("s_cmp_gt_u32 s%d, %d" % (sSPIN, SPIN_MAX)); p("s_cbranch_scc1 %s" % ok)
                p("s_cbranch_vccz %s" % ok)
                self.stamp("PI")
                pload(k)
            p("s_branch %s" % lp)
        for f in fill: f()
        p("s_barrier")
        if not RECLAST: p("s_cmp_lt_u32 s%d, %d" % (sSTEP, NSEG - 1)); p("s_cbranch_scc0 REC_END")
        if NLDS == 3:
            l2 = p.uid("POLL2")
            p("s_cmp_eq_u32 s%d, 2" % sW); p("s_cbranch_scc1 %s" % l2)
            variant(1, [vA + 12, vA + 16, vVX, vVX + 4][:POLLN], POLLN, False)
            p.label(l2)
            variant(2, [vA + 12, vVX], 2, True)
        else:
            variant(1, [vA + 8, vA + 12, vA + 16, vVX, vVX + 4][:POLLN], POLLN, True)
        p.label(ok)
        self.stamp("PW")
        p("s_waitcnt lgkmcnt(0)")

    def body(self):
        p, vm, lg = self.p, self.vm, self.lg
        clears, prefetch, salu = self.housekeeping()
        self.poller()
        self.top_state()
        p.label("REC_LOOP" + self.sfx)
        self.stamp("preB3")
        p("s_barrier")
        self.stamp("B3"); self.stamp("RT")
        if TRACE:
            p("s_waitcnt lgkmcnt(0)")
            for i in range(TRACE): p("v_writelane_b32 v%d, s%d, %d" % (vX0 + 2, sTS + 2 * i, i))
            p("v_lshrrev_b32 v%d, 2, v%d" % (vX0 + 3, vL16))
            p("s_mov_b64 exec, 0xffff")
            p("buffer_store_dword v%d, v%d, s[%d:%d], s%d offen" % (vX0 + 2, vX0 + 3, sWS, sWS + 3, sTRP))
            p("s_mov_b64 exec, -1")
            p("s_add_u32 s%d, s%d, 64" % (sTRP, sTRP))
        self.stamp("TOP")
        for c in range(NLDS):
            p("ds_read_b128 %s, v%d offset:%d" % (vr(vA + 4 * c, 4), vL16, L_O + 1024 * c if c < 2 else L_IM2)); lg.issue(("IM", c))
        self.img_load(NLDS, sMLC, ("AL", NLDS))
        prefetch(2, 4)
        add_const(p, sMLC4, sMLC, 4096)
        if NLDS == 3: self.img_load(4, sMLC, ("AL", 4))
        add_const(p, sMRC, sMRC, MR_S); add_const(p, sMRC4, sMRC, 4096)
        p("s_mov_b32 m0, %d" % L_JUNK)
        p("s_add_u32 s%d, s%d, s%d" % (sT1, sMRC, sLINE))
        def rtouch():
            p("buffer_load_dword off, s[%d:%d], s%d lds" % (sWS, sWS + 3, sT1)); vm.issue("rt")
        if RTOUCH and RTPOS == 1: rtouch()
        li = 0
        def k_pair(j, mid=None):
            nonlocal li
            lg.wait(("L", li + 1))
            for u in range(2):
                smf(p, ACCQK[2 + u], vA + 4 * (j % 5), vr(self.sb(li % 4), 8))
                if u == 0 and mid: mid()
                if li + 4 < 18: self.lds_unit(li + 4)
                else: self.kx_reads(li % 4)
                li += 1
        lg.wait(("IM", 0))
        self.stamp("AL0")
        def mr_store():
            p("buffer_store_dword v%d, v%d, s[%d:%d], s%d offen sc1" % (vX0, vX0 + 1, sWS, sWS + 3, sMRST)); vm.issue("mr")
        for j in range(5):
            smf(p, vQ0, vA + 4 * j, unit_q(j, 0))
            if j == 0 and NLDS == 2: self.img_load(3, sMLC, ("AL", 3))
            smf(p, vQ1, vA + 4 * j, unit_q(j, 1))
            if j == 0 and RTOUCH and RTPOS == 2: rtouch()
            k_pair(j, (lambda: self.img_load(4, sMLC, ("AL", 4))) if (j == 0 and NLDS == 2) else None)
            if j == 0 and RTOUCH and RTPOS == 3: rtouch()
            if j + 1 < NLDS: lg.wait(("IM", j + 1))
            else: vm.wait(("AL", j + 1) if j < 4 else ("AR", 0)); self.cmp_chunk((j + 1) % 5)
            smf(p, vV0, vA + 4 * j, unit_v(j, 0)); smf(p, vV1, vA + 4 * j, unit_v(j, 1))
            if j + 1 >= NLDS: self.branch_chunk((j + 1) % 5, sMLC if j < 4 else sMRC)
            if j == ARLATE:
                for jj in range(j + 1): self.img_load(jj, sMRC, ("AR", jj))
            elif j > ARLATE: self.img_load(j, sMRC, ("AR", j))
            if j == ARLATE and RTOUCH and RTPOS == 0: rtouch()
            self.stamp("L%d" % j)
        def fold_parts(a, b, off, tag):
            sw = ["v_permlane32_swap_b32 v%d, v%d" % (a + i, b + i) for i in range(4)]
            ad = ["v_pk_add_f32 %s, %s, %s" % (vr(a + i, 2), vr(a + i, 2), vr(b + i, 2)) for i in (0, 2)]
            cv = ["v_cvt_pk_bf16_f32 v%d, v%d, v%d" % (b, a, a + 1), "v_cvt_pk_bf16_f32 v%d, v%d, v%d" % (b + 1, a + 2, a + 3)]
            def wr(): p("ds_write_b64 v%d, %s offset:%d" % (vTW, vr(b, 2), off)); lg.issue(tag)
            return sw, ad, cv, wr
        def vx_load(q):
            p("buffer_load_dwordx4 %s, v%d, s[%d:%d], s%d offen offset:%d" % (vr(vVX + 4 * q, 4), vL16, sWS, sWS + 3, sVFN, 1024 * q)); vm.issue("vx")
        wv = vX0
        def warm(part):
            if part == 0:
                p("v_lshlrev_b32 v%d, %d, v%d" % (wv, 3 if WSTR == 128 else 2, vL16))
                p("s_add_u32 s%d, s%d, s%d" % (sT1, sMLC, sMLRS))
                p("buffer_load_dword v%d, s[%d:%d], s%d offen lds" % (wv, sWS, sWS + 3, sWARM)); vm.issue("warm")
            else:
                p("buffer_load_dword off, s[%d:%d], s%d sc1 lds" % (sWS, sWS + 3, sT1)); vm.issue("warm")
                p("buffer_store_dword v%d, off, s[%d:%d], s%d sc1" % (vIDX, sWS, sWS + 3, sMFL)); vm.issue("flag")
                p("s_add_u32 s%d, s%d, 256" % (sMFL, sMFL))
                lk = p.uid("KVLOOK")
                p("s_cmp_eq_u32 s%d, 0" % sKVC); p("s_cbranch_scc1 %s" % lk)
                if RECLAST:
                    lq = p.uid("KVL1")
                    p("s_cmp_eq_u32 s%d, 1" % sKVC); p("s_cbranch_scc1 %s" % lq)
                    p("s_lshl_b32 s%d, s%d, 13" % (sT0, sH)); add_const(p, sT0, sT0, QF + (NSEG - 1) * 32 * 8192)
                    for f in range(8):
                        if f == 4: add_const(p, sT0, sT0, 4096)
                        p("buffer_load_dwordx4 %s, v%d, s[%d:%d], s%d offen offset:%d" % (vr(FIN["vQ"] + 4 * f, 4), vL16, sWS, sWS + 3, sT0, (f % 4) * 1024))
                    p("s_branch %s" % lk)
                    p.label(lq)
                p("v_lshrrev_b32 v%d, 5, v%d" % (vX0 + 1, vL16)); p("v_lshlrev_b32 v%d, 9, v%d" % (vX0 + 1, vX0 + 1))
                p("v_bfe_u32 v%d, v%d, 4, 1" % (vX0 + 2, vL16)); p("v_lshl_add_u32 v%d, v%d, 2, v%d" % (vX0 + 1, vX0 + 2, vX0 + 1))
                p("s_mov_b32 m0, %d" % L_FLG); p("s_mov_b64 exec, s[%d:%d]" % (sLO32, sLO32 + 1))
                p("buffer_load_dword v%d, s[%d:%d], s%d offen sc1 lds" % (vX0 + 1, sWS, sWS + 3, sFLG))
                p("s_mov_b64 exec, -1"); p("s_mov_b32 m0, %d" % L_JUNK)
                p.label(lk)
        for j in range(5 if not FOLDX else 3):
            smf(p, vQ0, vA + 4 * j, unit_q(5 + j, 0))
            if j < 4: vm.wait(("AR", j + 1)); self.cmp_chunk(j + 1)
            smf(p, vQ1, vA + 4 * j, unit_q(5 + j, 1))
            if j < 4:
                k_pair(5 + j)
                if j in (0, 2): vx_load(j // 2)
                self.branch_chunk(j + 1, sMRC)
            else: smf(p, vK0, vA + 16, unit_k9(0)); smf(p, vK1, vA + 16, unit_k9(1))
            self.stamp("R%d" % j)
        if FOLDX:
            smf(p, vQ0, vA + 12, unit_q(8, 0))
            vm.wait(("AR", 4)); self.cmp_chunk(4)
            smf(p, vQ1, vA + 12, unit_q(8, 1))
            self.branch_chunk(4, sMRC)
            smf(p, vQ0, vA + 16, unit_q(9, 0)); smf(p, vQ1, vA + 16, unit_q(9, 1))
            self.stamp("R3")
            k_pair(8)
            sw, ad, cv, wr = fold_parts(vQ0, vQ1, 0, "qw")
            p(sw[0]); p(sw[1])
            smf(p, vK0, vA + 16, unit_k9(0))
            p(sw[2]); p(sw[3])
            smf(p, vK1, vA + 16, unit_k9(1))
            self.stamp("R4")
            for ins in ad + cv: p(ins)
            wr()
            warm(0)
            sw, ad, cv, wr = fold_parts(vK0, vK1, L_KT - L_QT, "kw")
            for ins in sw + ad + cv: p(ins)
            wr()
            warm(1)
        else:
            warm(0); warm(1)
            for a_, b_, off_, tag_ in ((vQ0, vQ1, 0, "qw"), (vK0, vK1, L_KT - L_QT, "kw")):
                sw, ad, cv, wr = fold_parts(a_, b_, off_, tag_)
                for ins in sw + ad + cv: p(ins)
                wr()
        self.stamp("FOLD")
        for j in range(2):
            smf(p, vV0, vA + 4 * j, unit_v(5 + j, 0)); smf(p, vV1, vA + 4 * j, unit_v(5 + j, 1))
        lg.wait_all()
        self.stamp("preB1")
        p("s_barrier")
        self.stamp("B1")
        def kx(t, kk): return vSB + 4 * self.kx_reg(t, kk)
        def q_read(kk):
            for r in range(2):
                p("ds_read_b64_tr_b16 %s, v%d offset:%d" % (vr(vQ0 + 4 * kk + 2 * r, 2), vTR, 256 * kk + 128 * r)); lg.issue(("q", kk))
        kmreg = [vA, vA + 4, kx(0, 2), kx(0, 3)]
        def km_read(kk):
            for r in range(2):
                p("ds_read_b64_tr_b16 %s, v%d offset:%d" % (vr(kmreg[kk] + 2 * r, 2), vTR, L_KT - L_QT + 256 * kk + 128 * r)); lg.issue(("km", kk))
        q_read(0); q_read(1)
        if RECLAST: p("s_cmp_eq_u32 s%d, %d" % (sSTEP, NSEG - 1)); p("s_cbranch_scc1 REC_FINAL")
        smf(p, vV0, vA + 8, unit_v(7, 0)); smf(p, vV1, vA + 8, unit_v(7, 1))
        q_read(2); q_read(3)
        smf(p, vV0, vA + 12, unit_v(8, 0)); smf(p, vV1, vA + 12, unit_v(8, 1))
        self.stamp("Sstart")
        vX1, vM = kx(0, 0), kx(0, 1)
        def mf(d, a_, b_, first): p("v_mfma_f32_16x16x32_bf16 %s, %s, %s, %s" % (vr(d, 4), vr(a_, 4), vr(b_, 4), "0" if first else vr(d, 4)))
        lg.wait(("q", 1))
        mf(vX0, kx(0, 0), vQ0, True); km_read(0)
        mf(vX0, kx(0, 1), vQ0 + 4, False); km_read(1)
        lg.wait(("q", 3))
        mf(vX0, kx(0, 2), vQ0 + 8, False); km_read(2)
        mf(vX0, kx(0, 3), vQ0 + 12, False); km_read(3)
        for kk in range(4): mf(vX1, kx(1, kk), vQ0 + 4 * kk, kk == 0)
        lg.wait(("km", 1))
        mf(vM, kmreg[0], vQ0, True); mf(vM, kmreg[1], vQ0 + 4, False)
        lg.wait(("km", 3))
        mf(vM, kmreg[2], vQ0 + 8, False); mf(vM, kmreg[3], vQ0 + 12, False)
        smf(p, vV0, vA + 16, unit_v(9, 0)); smf(p, vV1, vA + 16, unit_v(9, 1))
        self.stamp("Send")
        X0, X1, Mm = vX0, vX1, vM
        t0, t1, t2, t3 = vA + 8, vA + 9, vA + 10, vA + 11
        ones, onesm = vA + 12, vA
        for i in range(4): p("v_mov_b32 v%d, 0x3f803f80" % (ones + i))
        p("v_max3_f32 v%d, v%d, v%d, v%d" % (t0, X0, X0 + 1, X0 + 2))
        p("v_max3_f32 v%d, v%d, v%d, v%d" % (t1, X0 + 3, X1, X1 + 1))
        p("v_max3_f32 v%d, v%d, v%d, v%d" % (t0, t0, t1, X1 + 2))
        p("v_max3_f32 v%d, v%d, v%d, v%d" % (t1, Mm, Mm + 1, Mm + 2))
        p("v_max3_f32 v%d, v%d, v%d, v%d" % (t0, t0, X1 + 3, Mm + 3))
        p("v_max_f32 v%d, v%d, v%d" % (t0, t0, t1))
        p("v_mov_b32 v%d, v%d" % (t1, t0))
        p("v_cvt_pk_bf16_f32 v%d, v%d, v%d" % (vV0, vV0, vV0 + 1))
        p("v_cvt_pk_bf16_f32 v%d, v%d, v%d" % (vV0 + 1, vV0 + 2, vV0 + 3))
        p("v_permlane16_swap_b32 v%d, v%d" % (t0, t1))
        p("v_max_f32 v%d, v%d, v%d" % (t0, t0, t1))
        p("v_mov_b32 v%d, v%d" % (t1, t0))
        p("v_cvt_pk_bf16_f32 v%d, v%d, v%d" % (vV0 + 2, vV1, vV1 + 1))
        p("v_cvt_pk_bf16_f32 v%d, v%d, v%d" % (vV0 + 3, vV1 + 2, vV1 + 3))
        p("v_permlane32_swap_b32 v%d, v%d" % (t0, t1))
        p("v_max_f32 v%d, v%d, v%d" % (t0, t0, t1))
        self.stamp("MAX")
        p("v_mul_f32 v%d, s%d, v%d" % (t2, sC, t0))
        for base in (X0, X1, Mm):
            for i in (0, 2):
                p("v_pk_fma_f32 %s, %s, s[%d:%d], %s op_sel_hi:[1,1,0] neg_lo:[0,0,1] neg_hi:[0,0,1]" % (vr(base + i, 2), vr(base + i, 2), sC, sC + 1, vr(t2, 2)))
        PX, PM = vQ0, vQ0 + 4
        for i in range(4): p("v_exp_f32 v%d, v%d" % (X0 + i, X0 + i))
        if KPOS == 0: p("buffer_load_dwordx4 v%d, s[%d:%d], s%d offen offset:1024 lds" % (vL16, sWS, sWS + 3, sKFN)); vm.issue("kx")
        for i in range(4): p("v_exp_f32 v%d, v%d" % (X1 + i, X1 + i))
        p("v_cvt_pk_bf16_f32 v%d, v%d, v%d" % (PX, X0, X0 + 1))
        p("v_cvt_pk_bf16_f32 v%d, v%d, v%d" % (PX + 1, X0 + 2, X0 + 3))
        for i in range(4): p("v_exp_f32 v%d, v%d" % (Mm + i, Mm + i))
        p("v_cvt_pk_bf16_f32 v%d, v%d, v%d" % (PX + 2, X1, X1 + 1))
        p("v_cvt_pk_bf16_f32 v%d, v%d, v%d" % (PX + 3, X1 + 2, X1 + 3))
        O0, O1, SUM = vK0, vK1, vX0
        p("v_cndmask_b32 v%d, 0, v%d, s[%d:%d]" % (onesm, ones, sLO32, sLO32 + 1))
        p("v_cndmask_b32 v%d, 0, v%d, s[%d:%d]" % (onesm + 1, ones, sLO32, sLO32 + 1))
        self.stamp("P")
        vm.wait("vx")
        self.stamp("VXW")
        GA = vSB + 16
        p("v_mfma_f32_16x16x32_bf16 %s, %s, %s, 0" % (vr(SUM, 4), vr(ones, 4), vr(PX, 4)))
        p("v_cvt_pk_bf16_f32 v%d, v%d, v%d" % (PM, Mm, Mm + 1))
        p("v_mfma_f32_16x16x32_bf16 %s, %s, %s, 0" % (vr(O0, 4), vr(vVX, 4), vr(PX, 4)))
        p("v_cvt_pk_bf16_f32 v%d, v%d, v%d" % (PM + 1, Mm + 2, Mm + 3))
        p("v_mfma_f32_16x16x32_bf16 %s, %s, %s, 0" % (vr(O1, 4), vr(vVX + 4, 4), vr(PX, 4)))
        p("v_mfma_f32_16x16x16_bf16 %s, %s, %s, %s" % (vr(SUM, 4), vr(onesm, 2), vr(PM, 2), vr(SUM, 4)))
        p("v_mov_b64 %s, 0" % vr(GA, 2))
        p("v_mfma_f32_16x16x16_bf16 %s, %s, %s, %s" % (vr(O0, 4), vr(vV0, 2), vr(PM, 2), vr(O0, 4)))
        p("v_mov_b64 %s, 0" % vr(GA + 2, 2))
        p("v_mfma_f32_16x16x16_bf16 %s, %s, %s, %s" % (vr(O1, 4), vr(vV0 + 2, 2), vr(PM, 2), vr(O1, 4)))
        for i in range(2, 6): p("v_mov_b64 %s, 0" % vr(GA + 2 * i, 2))
        self.stamp("PV")
        p("v_rcp_f32 v%d, v%d" % (t2, SUM))
        p.nop(3)
        for i in range(4): p("v_cndmask_b32 v%d, v%d, v%d, s[%d:%d]" % (O0 + i, O1 + i, O0 + i, sM8, sM8 + 1))
        for i in (0, 2): p("v_pk_mul_f32 %s, %s, %s op_sel_hi:[1,0]" % (vr(O0 + i, 2), vr(O0 + i, 2), vr(t2, 2)))
        p("v_cvt_pk_bf16_f32 v%d, v%d, v%d" % (O1, O0, O0 + 1))
        p("v_cvt_pk_bf16_f32 v%d, v%d, v%d" % (O1 + 1, O0 + 2, O0 + 3))
        p("ds_write_b64 v%d, %s" % (vOW, vr(O1, 2))); lg.issue("ow")
        if KPOS == 1:
            p("s_mov_b32 m0, s%d" % sM0K)
            add_const(p, sKFN, sKFN, KV_S)
            p("buffer_load_dwordx4 v%d, s[%d:%d], s%d offen lds" % (vL16, sWS, sWS + 3, sKFN)); vm.issue("kx")
            p("buffer_load_dwordx4 v%d, s[%d:%d], s%d offen offset:1024 lds" % (vL16, sWS, sWS + 3, sKFN)); vm.issue("kx")
        self.stamp("OW")
        vOS, vDAT, tt = vX0 + 1, vX0, vA + 17
        Bsel = vVX
        p("v_and_b32 v%d, 0x70, v%d" % (vOS, vL16))
        p("v_bfe_u32 v%d, v%d, 8, 1" % (tt, vL16)); p("v_lshl_add_u32 v%d, v%d, 3, v%d" % (vOS, tt, vOS))
        p("v_bfe_u32 v%d, v%d, 9, 1" % (tt, vL16)); p("v_lshl_add_u32 v%d, v%d, 2, v%d" % (vOS, tt, vOS))
        p("v_mov_b32 v%d, 0x%x" % (tt, OOB))
        lg.wait_all()
        self.stamp("preB2")
        p("s_barrier")
        self.stamp("B2")
        oD = vA
        def od_read(c):
            p("ds_read_b128 %s, v%d offset:%d" % (vr(oD + 4 * c, 4), vOR, c * 64)); lg.issue(("od", c))
        for c in range(4): od_read(c)
        p("v_cndmask_b32 v%d, v%d, v%d, s[%d:%d]" % (vOS, tt, vOS, sM8, sM8 + 1))
        p("v_and_b32 v%d, 16, v%d" % (tt, vL16)); p("v_lshlrev_b32 v%d, v%d, s%d" % (tt, tt, s3F80))
        for r_ in range(4): p("v_cndmask_b32 v%d, 0, v%d, s[%d:%d]" % (Bsel + r_, tt, sSEL + 2 * r_, sSEL + 2 * r_ + 1))
        T4 = GA + 8
        def pack(acc):
            return ["v_cvt_pk_bf16_f32 v%d, v%d, v%d" % (acc, acc, acc + 1), "v_cvt_pk_bf16_f32 v%d, v%d, v%d" % (acc + 1, acc + 2, acc + 3),
                    "v_and_or_b32 v%d, v%d, -2, s%d" % (acc, acc, sTAG)]
        def pstore(acc, soff):
            p("buffer_store_dwordx2 %s, v%d, s[%d:%d], s%d offen %s" % (vr(acc, 2), vPS, sWS, sWS + 3, soff, self.loc)); vm.issue("p1")
        for c in range(4):
            lg.wait(("od", c)); smf(p, GA, oD + 4 * c, unit_wo_pair(0, c))
        self.stamp("T4")
        smf(p, GA + 4, oD, unit_wo_pair(1, 0))
        smf(p, GA + 4, oD + 4, unit_wo_pair(1, 1))
        pk = pack(GA); p(pk[0])
        smf(p, GA + 4, oD + 8, unit_wo_pair(1, 2)); p(pk[1])
        smf(p, GA + 4, oD + 12, unit_wo_pair(1, 3)); p(pk[2])
        def mf4(c): p("v_mfma_f32_16x16x32_bf16 %s, %s, %s, %s" % (vr(T4, 4), vr(oD + 4 * c, 4), unit_wo4(c), "0" if c == 0 else vr(T4, 4)))
        mf4(0); pstore(GA, sP1W)
        mf4(1)
        pk = pack(GA + 4)
        mf4(2); p(pk[0]); p(pk[1])
        mf4(3); p(pk[2])
        self.stamp("G2")
        pstore(GA + 4, sP1W1)
        add_const(p, sMLC, sMLC, ML_S)
        salu()
        p.nop(T4NOP)
        pk = pack(T4)
        for ins in pk: p(ins)
        p("s_mov_b64 exec, s[%d:%d]" % (sLO32, sLO32 + 1))
        pstore(T4, sP1W2)
        p("s_mov_b64 exec, -1")
        self.stamp("P1")
        lidle = p.uid("IDLE"); lown = p.uid("OWN")
        p("s_cmp_lg_u32 s%d, 0" % sISOWN); p("s_cbranch_scc1 %s" % lown)
        p("s_cmp_lt_u32 s%d, 2" % sW); p("s_cbranch_scc1 %s" % lidle)
        p("s_branch REC_POLL" + self.sfx)
        def leave():
            if RECLAST: p("s_branch REC_LOOP" + self.sfx); return
            p("s_cmp_lt_u32 s%d, %d" % (sSTEP, NSEG - 1))
            p("s_cbranch_scc1 REC_LOOP" + self.sfx)
            p("s_branch REC_END")
        p.label(lown)
        D = vVX + 4
        tg = [vX0 + 2, vX0 + 3, vA + 18, vA + 19]
        nset = 3 if OWN3 else 2 if OWN2 else 1
        sets = [vA, vSB + 16, vSB][:nset]
        ldone = p.uid("ODONE"); lpoll = p.uid("OPOLL")
        def owner_loads(k):
            for i in range(4):
                p("buffer_load_dwordx4 %s, v%d, s[%d:%d], s%d offen offset:%d sc1" % (vr(sets[k] + 4 * i, 4), vL16, sWS, sWS + 3, sP1R, 1024 * i))
        lg.clear()
        self.stamp("OL")
        p.nop(DELAY1)
        if TIMED: owner_loads(0)
        else:
            if not B2BF: owner_loads(0)
            p("s_barrier")
            if B2BF: p.nop(DELAY1B); owner_loads(0)
        if OWN3:
            clears(0, 6); p.nop(OD2); owner_loads(1)
            clears(6, 12); p.nop(OD3); owner_loads(2)
        else:
            prefetch(0, 2)
            clears(0, OSTAG)
            if OWN2: owner_loads(1)
            clears(OSTAG, 12)
        def omf(k, i): p("v_mfma_f32_16x16x32_bf16 %s, %s, %s, %s" % (vr(D, 4), vr(sets[k] + 4 * i, 4), vr(Bsel, 4), "0" if i == 0 else vr(D, 4)))
        def otag(k, i): p("v_bitop3_b32 v%d, v%d, v%d, s%d bitop3:0x7e" % (tg[i], sets[k] + 4 * i, sets[k] + 4 * i + 2, sTAG))
        p.label(lpoll)
        for k in range(nset):
            for i in range(4):
                p("s_waitcnt vmcnt(%d)" % (4 * (nset - 1) + 3 - i)); omf(k, i); otag(k, i)
            p("v_or3_b32 v%d, v%d, v%d, v%d" % (tg[0], tg[0], tg[1], tg[2]))
            p("v_bitop3_b32 v%d, v%d, v%d, 1 bitop3:0xa8" % (tg[0], tg[0], tg[3]))
            p("v_cmp_ne_u32 vcc, 0, v%d" % tg[0])
            if k == nset - 1:
                p("s_add_u32 s%d, s%d, 1" % (sSPIN, sSPIN))
                p("s_cmp_gt_u32 s%d, %d" % (sSPIN, SPIN_MAX)); p("s_cbranch_scc1 %s" % ldone)
                p.nop(1)
            else: p.nop(4)
            p("s_cbranch_vccz %s" % ldone) if not NOCHECK else p("s_branch %s" % ldone)
            if COUNT: p("s_add_u32 s%d, s%d, 1" % (sCNT, sCNT))
            owner_loads(k)
        p("s_branch %s" % lpoll)
        p.label(ldone)
        self.stamp("OLret")
        p("v_permlane32_swap_b32 v%d, v%d" % (D, D + 2))
        p("v_permlane32_swap_b32 v%d, v%d" % (D + 1, D + 3))
        p("v_add_f32 v%d, v%d, v%d" % (D, D, D + 2))
        p("v_add_f32 v%d, v%d, v%d" % (D + 1, D + 1, D + 3))
        p("v_cvt_pk_bf16_f32 v%d, v%d, v%d" % (vDAT, D, D + 1))
        st_l = "buffer_store_dword v%d, v%d, s[%d:%d], s%d offen %s" % (vDAT, vOS, sWS, sWS + 3, sMLST, self.loc)
        st_r = "buffer_store_dword v%d, v%d, s[%d:%d], s%d offen sc1" % (vDAT, vOS, sWS, sWS + 3, sMRST)
        for ins in ([st_l] if MRLATE else [st_r, st_l] if MRFIRST else [st_l, st_r]): p(ins)
        self.stamp("MLst")
        if RECLAST:
            p("s_cmp_eq_u32 s%d, %d" % (sSTEP, NSEG - 1)); p("s_cselect_b32 s%d, s%d, 0" % (sKVC, sFINW))
        if TIMED:
            p("s_barrier")
            if MRLATE == 3:
                p.nop(MRD); p(st_r)
                lf = p.uid("EFLG")
                p("s_cmp_lt_u32 s%d, %d" % (sSTEP, NSEG - EARLYF)); p("s_cbranch_scc1 %s" % lf)
                p("buffer_store_dword v%d, off, s[%d:%d], s%d sc1" % (vIDX, sWS, sWS + 3, sMFL))
                p.label(lf)
        if "ACK1" in STAMPS: p("s_waitcnt vmcnt(1)"); self.stamp("ACK1"); p("s_waitcnt vmcnt(0)"); self.stamp("ACK2")
        p("s_xor_b32 s%d, s%d, 1" % (sTAG, sTAG))
        p("s_waitcnt vmcnt(%d) lgkmcnt(0)" % (1 if MRLATE in (1, 2) else 2))
        if OWN3: lg.clear(); prefetch(0, 2)
        leave()
        p.label(lidle)
        lg.clear()
        p("s_barrier")
        if RECLAST: p("s_cmp_eq_u32 s%d, %d" % (sSTEP, NSEG - 1)); p("s_cselect_b32 s%d, s%d, 0" % (sKVC, sFINW))
        clears(0, 12); prefetch(0, 2)
        p("s_xor_b32 s%d, s%d, 1" % (sTAG, sTAG))
        p("s_waitcnt vmcnt(0)")
        leave()
        p.label("REC_TAIL" + self.sfx)
        self.emit_retries()

    def kx_reads(self, b):
        for q in range(2):
            f = b * 2 + q
            self.p("ds_read_b128 %s, v%d offset:%d" % (vr(vSB + 4 * f, 4), vL16, L_KX + self.kx_slot(f) * 1024)); self.lg.issue(("KX", f))

    def emit_slow(self):
        p = self.p
        p.label("REC_SLOW")
        if COUNT: p("s_add_u32 s%d, s%d, 1024" % (sCNT, sCNT))
        p("s_waitcnt vmcnt(0) lgkmcnt(0)")
        for i in range(12): p("v_mov_b64 %s, 0" % vr(vQ0 + 2 * i, 2))
        for ph, soff in ((0, sMLC), (1, sMRC)):
            l = p.uid("SLOWP"); ld = p.uid("SLOWD")
            p.label(l)
            for j in range(5): self.img_ins(j, soff, "sc1")
            p("s_add_u32 s%d, s%d, 1" % (sSPIN, sSPIN))
            p("s_waitcnt vmcnt(0)")
            p("v_max3_u32 v%d, v%d, v%d, v%d" % (vX0, vA + 3, vA + 7, vA + 11))
            p("v_max3_u32 v%d, v%d, v%d, v%d" % (vX0, vX0, vA + 15, vA + 19))
            p("v_cmp_eq_u32 vcc, -1, v%d" % vX0)
            p("s_cbranch_vccz %s" % ld)
            p("s_cmp_gt_u32 s%d, %d" % (sSPIN, SPIN_MAX)); p("s_cbranch_scc0 %s" % l)
            p.label(ld)
            for j in range(5):
                jj = 5 * ph + j
                smf(p, vQ0, vA + 4 * j, unit_q(jj, 0)); smf(p, vQ1, vA + 4 * j, unit_q(jj, 1))
                if jj < 9:
                    for u in range(2):
                        i = 2 * jj + u
                        p("ds_read_b128 %s, v%d offset:%d" % (vr(vSB + 8 * u, 4), vLW, i * 2048))
                        p("ds_read_b128 %s, v%d offset:%d" % (vr(vSB + 8 * u + 4, 4), vLW, i * 2048 + 1024))
                    p("s_waitcnt lgkmcnt(0)")
                    smf(p, vK0, vA + 4 * j, vr(vSB, 8)); smf(p, vK1, vA + 4 * j, vr(vSB + 8, 8))
                else:
                    smf(p, vK0, vA + 16, unit_k9(0)); smf(p, vK1, vA + 16, unit_k9(1))
                if ph == 0: smf(p, vV0, vA + 4 * j, unit_v(j, 0)); smf(p, vV1, vA + 4 * j, unit_v(j, 1))
        for b in range(4):
            for q in range(2):
                f = b * 2 + q
                p("ds_read_b128 %s, v%d offset:%d" % (vr(vSB + 4 * f, 4), vL16, L_KX + self.kx_slot(f) * 1024))
        p("s_waitcnt lgkmcnt(0)")
        p("s_mov_b64 vcc, 0")
        p.nop(8)
        p("s_branch REC_FOLD")

    def cmp_chunk(self, j):
        if not NOCHECK: self.p("v_cmp_eq_u32 vcc, -1, v%d" % (vA + 4 * j + 3))
    def branch_chunk(self, j, soff):
        if NOCHECK: return
        p = self.p; lr = p.uid("RETRY"); lb = p.uid("BACK")
        p("s_cbranch_vccnz %s" % lr); p.label(lb)
        tag = "AL" if soff == sMLC else "AR"
        later = [t[1] for t in self.vm.q if isinstance(t, tuple) and t[0] == tag and t[1] > j]
        self.retries.append((lr, lb, j, soff, later))

    def pub_v(self):
        p = self.p; lp = p.uid("NOPUBV")
        p("s_cmp_eq_u32 s%d, 0" % sISPUB); p("s_cbranch_scc1 %s" % lp)
        p("buffer_store_dwordx4 %s, v%d, s[%d:%d], s%d offen sc1" % (vr(vV0, 4), vL16, sWS, sWS + 3, sVM))
        p.label(lp); p.nop(2)
    def pub_k(self):
        p = self.p; lp = p.uid("NOPUBK"); a = vA + 16; d = vA
        p("s_cmp_eq_u32 s%d, 0" % sISPUB); p("s_cbranch_scc1 %s" % lp)
        p("v_lshrrev_b32 v%d, 1, v%d" % (a, vL16))
        for r in range(2):
            p("ds_read_b64 %s, v%d offset:%d" % (vr(d + 4 * r, 2), a, L_KT + r * 512))
            p("ds_read_b64 %s, v%d offset:%d" % (vr(d + 4 * r + 2, 2), a, L_KT + G2OFF + r * 512))
        p("s_waitcnt lgkmcnt(0)")
        for r in range(2):
            p("buffer_store_dwordx4 %s, v%d, s[%d:%d], s%d offen offset:%d sc1" % (vr(d + 4 * r, 4), vL16, sWS, sWS + 3, sKM, r * 1024))
        p.label(lp); p.nop(2)
    def flag_store(self):
        p = self.p
        p("s_lshl_b32 s%d, s%d, 7" % (sT0, sSTEP)); p("s_add_u32 s%d, s%d, s%d" % (sT0, sT0, sFKM))
        p("v_mov_b32 v%d, 0" % (vA + 17)); p("v_mov_b32 v%d, 1" % (vA + 16))
        p("s_mov_b64 exec, 1")
        p("buffer_store_dword v%d, v%d, s[%d:%d], s%d offen sc1" % (vA + 16, vA + 17, sWS, sWS + 3, sT0))
        p("s_mov_b64 exec, -1")

    def flag_spin(self, soff):
        p = self.p; l = p.uid("FSPIN"); ld = p.uid("FDONE")
        p("v_mov_b32 v%d, 0" % (vA + 17))
        p.label(l)
        p("buffer_load_dwordx2 %s, v%d, s[%d:%d], s%d offen sc1" % (vr(vA, 2), vA + 17, sWS, sWS + 3, soff))
        p("s_add_u32 s%d, s%d, 1" % (sSPIN, sSPIN))
        p("s_waitcnt vmcnt(0)")
        p("v_and_b32 v%d, v%d, v%d" % (vA, vA, vA + 1))
        p("v_cmp_eq_u32 vcc, 0, v%d" % vA)
        p("s_cbranch_vccz %s" % ld)
        p("s_cmp_gt_u32 s%d, %d" % (sSPIN, SPIN_MAX))
        p("s_cbranch_scc0 %s" % l)
        p.label(ld)

    def kx_slot(self, f):
        order = self.kx_order()
        return order[f]
    def kx_order(self):
        rel = [2, 3, 0, 1]
        chunks = [0, 4, 1, 5, 2, 6, 3, 7]
        o = [None] * 8
        for n, b in enumerate(rel):
            o[2 * b] = chunks[2 * n]; o[2 * b + 1] = chunks[2 * n + 1]
        return o
    def kx_reg(self, tile, kk):
        return self.kx_order().index(tile * 4 + kk)

def emit_rec(p, dbg=False, check_mode=None, slow_sgpr=None, tl=None, read_cand=None, dbg_srd=60, nhelp=192, nhelp_a=186, guess=None):
    st = Step(p, dbg)
    st.stamp("E0")
    st.stamp("E1")
    p("v_and_b32 v0, 63, v0")
    fused = read_cand is not None
    vLK, vLD, vLF = 80, 81, 82
    looks = None
    if fused:
        def look_dbg(p):
            p("v_lshlrev_b32 v%d, 2, v0" % vLK)
            p("buffer_load_dword v%d, v%d, s[%d:%d], 0 offen sc1" % (vLD, vLK, dbg_srd, dbg_srd + 3))
            return 1
        def look_flag(p):
            p("s_mov_b32 s%d, 0x%x" % (sT1, INITB))
            p("buffer_load_dword v%d, off, s[%d:%d], s%d sc1" % (vLF + 2, sWS, sWS + 3, sT1))
            p("buffer_load_dwordx2 %s, off, s[%d:%d], s%d sc1" % (vr(vLF, 2), sWS, sWS + 3, sFLG))
            return 2
        looks = {18: look_dbg, (26 if ROWP else 25): look_flag}
    load_weights(p, st, setup_consts, looks)
    st.stamp("E3")
    if dbg and tl: tl(p, 11)
    lok = p.uid("EARLY")
    if fused:
        lno = p.uid("NOTEARLY")
        p("s_waitcnt vmcnt(0)")
        p("s_cmp_lg_u32 s%d, 0" % slow_sgpr); p("s_cbranch_scc1 %s" % lno)
        p("v_cmp_ne_u32 vcc, %d, v%d" % (33 if os.environ.get("FAKEIMB") else 32, vLD))
        p("v_readlane_b32 s%d, v%d, 1" % (sT0, vLD)); p("v_readlane_b32 s%d, v%d, 33" % (sT2, vLD)); p("v_readlane_b32 s%d, v%d, 34" % (sT3, vLD))
        p("s_and_b32 s%d, vcc_lo, 0x01010101" % sT1); p("s_cbranch_scc1 %s" % lno)
        p("s_and_b32 s%d, vcc_hi, 0x01010101" % sT1); p("s_cbranch_scc1 %s" % lno)
        p("s_cmp_lt_u32 s%d, %d" % (sT0, nhelp_a)); p("s_cbranch_scc1 %s" % lno)
        p("v_readfirstlane_b32 s%d, v%d" % (sT0, vLF + 2)); p("s_cmp_lt_u32 s%d, %d" % (sT0, nhelp)); p("s_cbranch_scc1 %s" % lno)
        p("s_min_u32 s%d, s%d, s%d" % (sT1, sT2, sT3)); p("s_cmp_eq_u32 s%d, 0" % sT1); p("s_cbranch_scc1 %s" % lno)
        if guess:
            p("v_readlane_b32 s%d, v%d, %d" % (sT0, vLD, guess[1])); p("v_readlane_b32 s%d, v%d, %d" % (sT1, vLD, guess[1] + 1))
            p("s_and_b32 s%d, s%d, s%d" % (sT0, sT0, sT1)); p("s_cmp_eq_u32 s%d, -1" % sT0); p("s_cselect_b32 s%d, 0, s%d" % (sT0, guess[0]))
            p("s_cmp_lg_u32 s%d, 0" % sT0); p("s_cbranch_scc1 %s" % guess[2])
        for r_ in (sT2, sT3): p("s_sub_u32 s%d, s%d, 1" % (r_, r_))
        p("s_branch %s" % lok)
        p.label(lno)
    if check_mode: check_mode(p)
    if guess:
        lg_ = p.uid("GOK")
        p("s_cmp_eq_u32 s%d, 0" % guess[0]); p("s_cbranch_scc1 %s" % lg_)
        p("buffer_load_dwordx2 v[8:9], off, s[%d:%d], 0 offset:%d sc1" % (dbg_srd, dbg_srd + 3, 4 * guess[1])); p("s_waitcnt vmcnt(0)")
        p("v_and_b32 v8, v8, v9"); p.nop(1); p("v_readfirstlane_b32 s%d, v8" % sT0)
        p("s_cmp_lg_u32 s%d, -1" % sT0); p("s_cbranch_scc1 %s" % guess[2])
        p.label(lg_)
    if read_cand: read_cand(p, sT2, sT3)
    p.label(lok)
    if dbg and tl: tl(p, 12)
    if read_cand: p("s_mov_b32 s56, s%d" % sT2); p("s_mov_b32 s57, s%d" % sT3)
    setup_vor(p)
    p("s_mov_b32 s%d, 0" % sSPIN); p("s_mov_b32 s%d, 0" % sCNT)
    if read_cand: p("s_mov_b32 s%d, s56" % sT0); p("s_mov_b32 s%d, s57" % sT1)
    else:
        p("s_mov_b32 s%d, 0x%x" % (sT1, CANDW))
        p("buffer_load_dwordx2 v[8:9], off, s[%d:%d], s%d sc1" % (sWS, sWS + 3, sT1)); p("s_waitcnt vmcnt(0)")
        p("v_readfirstlane_b32 s%d, v8" % sT0); p("v_readfirstlane_b32 s%d, v9" % sT1)
        if FORCECAND: p("s_mov_b32 s%d, %d" % (sT0, (FORCECAND - 1) & 3)); p("s_mov_b32 s%d, %d" % (sT1, (FORCECAND - 1) >> 2))
        p("s_mov_b32 s60, s%d" % sT0); p("s_mov_b32 s61, s%d" % sT1)
    p("s_cmp_eq_u32 s%d, 0" % sX); p("s_cselect_b32 s%d, s%d, s%d" % (sT2, sT1, sT0)); p("s_cselect_b32 s%d, s%d, s%d" % (sT0, sT0, sT1))
    for r_ in (sT0, sT2): p("s_and_b32 s%d, s%d, 3" % (r_, r_)); p("s_lshl_b32 s%d, s%d, 13" % (r_, r_))
    finish_consts(p)
    st.stamp("E4")
    lfl = p.uid("KVOK")
    if fused:
        p("v_and_b32 v%d, v%d, v%d" % (vLF, vLF, vLF + 1)); p("v_cmp_eq_u32 vcc, 0, v%d" % vLF)
        p("s_cmp_lg_u32 s%d, 0" % slow_sgpr); p("s_cselect_b64 vcc, -1, vcc")
        p("s_cbranch_vccz %s" % lfl)
    st.flag_spin(sFLG)
    p.label(lfl)
    if dbg and tl: tl(p, 13)
    p("s_barrier")
    p("s_mov_b32 m0, s%d" % sM0K); p.nop(1)
    p("buffer_load_dwordx4 v%d, s[%d:%d], s%d offen lds" % (vL16, sWS, sWS + 3, sKFN))
    p("buffer_load_dwordx4 v%d, s[%d:%d], s%d offen offset:1024 lds" % (vL16, sWS, sWS + 3, sKFN))
    p("s_mov_b32 m0, %d" % L_JUNK); p("v_lshlrev_b32 v12, 2, v%d" % vL16)
    add_const(p, sT1, sWARM, (-KV_S) & 0xFFFFFFFF)
    p("buffer_load_dword v12, s[%d:%d], s%d offen lds" % (sWS, sWS + 3, sT1))
    p("s_mov_b32 s%d, 0" % sSTEP); p("s_mov_b32 s%d, 0" % sTAG)
    p("s_add_u32 s%d, s%d, s%d" % (sT2, sMLC, sPCH))
    p("buffer_load_dwordx4 %s, v%d, s[%d:%d], s%d offen sc1" % (vr(vA, 4), vL16, sWS, sWS + 3, sT2))
    p("buffer_load_dwordx4 %s, v%d, s[%d:%d], s%d offen offset:2048 sc1" % (vr(vA + 4, 4), vL16, sWS, sWS + 3, sMLC))
    p("v_add_u32 v%d, s%d, v%d" % (vA + 17, sPCH, vL16))
    p("s_waitcnt vmcnt(0)")
    p("ds_write_b128 v%d, %s offset:%d" % (vA + 17, vr(vA, 4), L_O))
    p("ds_write_b128 v%d, %s offset:%d" % (vL16, vr(vA + 4, 4), L_IM2))
    p("s_waitcnt lgkmcnt(0)")
    for i in range(12): p("v_mov_b64 %s, 0" % vr(vQ0 + 2 * i, 2))
    p("v_mov_b32 v%d, 0x%x" % (vX0 + 1, OOB))
    for i in range(2): st.lds_unit(i)
    st.stamp("E5")
    if tl: tl(p, 2)
    if dbg: p("s_memtime s[100:101]"); p("s_memrealtime s[98:99]"); p("s_waitcnt lgkmcnt(0)")
    if slow_sgpr is not None:
        p("s_cmp_eq_u32 s%d, 0" % slow_sgpr); p("s_cbranch_scc1 REC_LOOP")
        p("s_branch REC_LOOP_S")
        st2 = Step(p, False, slow=True); st2.body()
    else: p("s_branch REC_LOOP")
    st.body()
    if RECLAST: emit_final(p)
    p.label("REC_END")
    if MRLATE in (1, 2): p("buffer_store_dword v%d, v%d, s[%d:%d], s%d offen sc1" % (vX0, vX0 + 1, sWS, sWS + 3, sMRST))
    if dbg:
        p("s_memtime s[8:9]"); p("s_memrealtime s[96:97]"); p("s_waitcnt lgkmcnt(0)"); p("s_sub_u32 s98, s96, s98")
    return st
```

```python
import sys
from asm import *
from layout import *
import rec, k0, gemm, mkv, att, outp, moe, init

HEADER = open("/code/%s.s.ref" % NAME).read()
HEADER = HEADER[:HEADER.index("; Override launch geometry")]

def kernel_begin(p, label):
    p(".text"); p(".globl %s" % label); p(".p2align 8"); p(".type %s,@function" % label); p.label(label)
def descriptor(label, vgpr, sgpr, accum):
    return """.section .rodata,"a"
.p2align 6
.amdhsa_kernel %s
  .amdhsa_next_free_vgpr %d
  .amdhsa_next_free_sgpr %d
  .amdhsa_accum_offset %d
  .amdhsa_group_segment_fixed_size 0
  .amdhsa_kernarg_size 120
  .amdhsa_user_sgpr_count 2
  .amdhsa_user_sgpr_kernarg_segment_ptr 1
  .amdhsa_system_sgpr_workgroup_id_x 1
.end_amdhsa_kernel
""" % (label, vgpr, sgpr, accum)

def srd(p, dst, karg_off, size, tmp=None):
    p("s_load_dwordx2 s[%d:%d], s[0:1], %d" % (dst, dst + 1, karg_off))
    p("s_mov_b32 s%d, 0x%x" % (dst + 2, size)); p("s_mov_b32 s%d, 0x00020000" % (dst + 3))

import os
XPAIR = int(os.environ.get("XPAIR", "2"))
def xcc_to_x(p, dst, src, lelse):
    l = p.uid("XOK")
    p("s_cmp_eq_u32 s%d, 0" % src); p("s_cbranch_scc1 %s" % l)
    p("s_cmp_eq_u32 s%d, %d" % (src, XPAIR)); p("s_cbranch_scc0 %s" % lelse)
    p("s_mov_b32 s%d, 1" % dst)
    p.label(l)

def rec_standalone(dbg):
    p = Prog(); label = "rec_kernel"
    kernel_begin(p, label)
    p("s_cmp_ge_u32 s2, 256"); p("s_cbranch_scc1 REC_EXIT")
    if dbg and not rec.STAMPS[0]: p("s_memrealtime s[94:95]")
    srd(p, rec.sWS, 112, WS_SIZE)
    WB = 640 * 4096 * 2
    srd(p, rec.sWQ, 16, WB); srd(p, rec.sWK, 24, WB); srd(p, rec.sWV, 32, WB); srd(p, rec.sWO, 40, WB)
    p("s_getreg_b32 s%d, hwreg(HW_REG_XCC_ID)" % rec.sX); p("s_and_b32 s%d, s%d, 15" % (rec.sX, rec.sX))
    p("v_lshrrev_b32 v1, 6, v0"); p.nop(1); p("v_readfirstlane_b32 s%d, v1" % rec.sW)
    p("s_waitcnt lgkmcnt(0)")
    xcc_to_x(p, rec.sX, rec.sX, "REC_EXIT")
    p("s_cmp_lg_u32 s%d, 0" % rec.sW); p("s_cbranch_scc1 TICK_WAIT")
    p("s_lshl_b32 s%d, s%d, 7" % (rec.sT0, rec.sX)); rec.add_const(p, rec.sT0, rec.sT0, TICKET)
    p("v_mov_b32 v1, 0"); p("v_mov_b32 v2, 1")
    p("s_mov_b64 exec, 1")
    p("buffer_atomic_add v2, v1, s[%d:%d], s%d offen sc0" % (rec.sWS, rec.sWS + 3, rec.sT0))
    p("s_waitcnt vmcnt(0)")
    p("ds_write_b32 v1, v2"); p("s_waitcnt lgkmcnt(0)")
    p("s_mov_b64 exec, -1")
    p.label("TICK_WAIT")
    p("s_barrier")
    p("v_mov_b32 v1, 0"); p("ds_read_b32 v2, v1"); p("s_waitcnt lgkmcnt(0)")
    p("v_readfirstlane_b32 s%d, v2" % rec.sH)
    p("s_barrier")
    p("s_cmp_ge_u32 s%d, 32" % rec.sH); p("s_cbranch_scc1 REC_EXIT")
    st = rec.emit_rec(p, dbg)
    if dbg:
        p("s_lshl_b32 s%d, s%d, 5" % (rec.sT0, rec.sX)); p("s_add_u32 s%d, s%d, s%d" % (rec.sT0, rec.sT0, rec.sH))
        p("s_lshl_b32 s%d, s%d, 2" % (rec.sT0, rec.sT0)); p("s_add_u32 s%d, s%d, s%d" % (rec.sT0, rec.sT0, rec.sW))
        p("s_lshl_b32 s%d, s%d, 7" % (rec.sT0, rec.sT0)); rec.add_const(p, rec.sT0, rec.sT0, DBG)
        vals = [100, 8, 98 if not rec.STAMPS[0] else rec.sSPIN, rec.sISOWN, rec.sCNT] + [rec.sTS + 2 * i for i in range(len(st.stamps))] + [rec.sCNT2, 60, 61]
        open('stamps.txt', 'w').write(','.join(st.stamps))
        if not rec.STAMPS[0]: p("s_sub_u32 s94, s96, s94"); vals.append(94)
        p("v_mov_b32 v1, 0"); p("s_mov_b64 exec, 1")
        for i, sreg in enumerate(vals):
            p("v_mov_b32 v2, s%d" % sreg)
            p("buffer_store_dword v2, v1, s[%d:%d], s%d offen offset:%d" % (rec.sWS, rec.sWS + 3, rec.sT0, 4 * i))
        p("s_waitcnt vmcnt(0)")
    p.label("REC_EXIT"); p("s_endpgm")
    return p, label

def k0_kernel(devflags, dbg=0):
    p = Prog(); label = "init_kernel"
    kernel_begin(p, label)
    p("s_cmp_ge_u32 s2, 256"); p("s_cbranch_scc1 K0_EXIT")
    if dbg: p("s_memrealtime s[36:37]")
    k0.emit_k0(p, devflags)
    if dbg:
        p("s_mov_b32 s38, s36"); p("s_lshl_b32 s39, s2, 2"); p("s_add_u32 s39, s39, 0x%x" % (DBG + 0x8000))
        p("v_mov_b32 v14, s38"); p("v_mov_b32 v15, 0"); p("s_mov_b64 exec, 1")
        p("buffer_store_dword v14, v15, s[4:7], s39 offen"); p("s_mov_b64 exec, -1")
    p.label("K0_EXIT"); p("s_endpgm")
    return p, label

def gemm_kernel():
    p = Prog(); label = "gemm_kernel"
    kernel_begin(p, label)
    p("s_cmp_ge_u32 s2, 192"); p("s_cbranch_scc1 G_EXIT")
    if gemm.DBGT: p("s_memrealtime s[68:69]")
    srd(p, gemm.sWS, 112, WS_SIZE)
    p("s_load_dwordx4 s[48:51], s[0:1], 16"); p("s_load_dwordx2 s[52:53], s[0:1], 32")
    p("v_lshrrev_b32 v1, 6, v0"); p("v_and_b32 v0, 63, v0"); p.nop(1); p("v_readfirstlane_b32 s%d, v1" % gemm.sW)
    p("s_and_b32 s%d, s2, 1" % gemm.sHALF); p("s_lshr_b32 s3, s2, 1"); p("s_and_b32 s%d, s3, 31" % gemm.sH); p("s_lshr_b32 s3, s3, 5")
    p("s_waitcnt lgkmcnt(0)")
    p("s_mov_b32 s46, %d" % (640 * 4096 * 2)); p("s_mov_b32 s47, 0x00020000")
    roles = [(0, 50, "T", "GK"), (1, 52, "N", "GV"), (2, 48, "T", "GQ")]
    for mat, sp, kind, nm in roles:
        p("s_cmp_eq_u32 s3, %d" % mat); p("s_cbranch_scc1 %s_ENTRY" % nm)
    p("s_branch G_EXIT")
    for mat, sp, kind, nm in roles:
        p.label(nm + "_ENTRY")
        p("s_mov_b32 s44, s%d" % sp); p("s_mov_b32 s45, s%d" % (sp + 1))
        gemm.setup_role(p, mat)
        p("s_branch %s" % ("G_T" if kind == "T" else "G_N"))
    for kind, nm in (("T", "G_T"), ("N", "G_N")):
        p.label(nm)
        gemm.load_weights(p)
        gemm.emit_gemm(p, kind, nm, lambda q: None)
        p("s_branch G_EXIT")
    p.label("G_EXIT"); p("s_endpgm")
    return p, label

def wave_id(p, sreg):
    p("v_lshrrev_b32 v1, 6, v0"); p("v_and_b32 v0, 63, v0"); p.nop(1); p("v_readfirstlane_b32 s%d, v1" % sreg)

def mkv_kernel():
    p = Prog(); label = "mkv_kernel"
    kernel_begin(p, label)
    p("s_cmp_ge_u32 s2, 64"); p("s_cbranch_scc1 MK_EXIT")
    srd(p, gemm.sWS, 112, WS_SIZE)
    p("s_load_dwordx4 s[48:51], s[0:1], 24")
    wave_id(p, gemm.sW)
    p("s_and_b32 s%d, s2, 31" % gemm.sH); p("s_lshr_b32 s3, s2, 5")
    p("s_waitcnt lgkmcnt(0)")
    p("s_mov_b32 s46, %d" % (640 * 4096 * 2)); p("s_mov_b32 s47, 0x00020000")
    p("s_cmp_eq_u32 s3, 0"); p("s_cselect_b32 s44, s48, s50"); p("s_cselect_b32 s45, s49, s51")
    gemm.load_weights(p)
    p("s_cmp_eq_u32 s3, 0"); p("s_cbranch_scc0 MK_V")
    mkv.emit_mkv(p, "T", "MKK"); p("s_branch MK_EXIT")
    p.label("MK_V"); mkv.emit_mkv(p, "N", "MKV")
    p.label("MK_EXIT"); p("s_endpgm")
    return p, label

def att_kernel():
    p = Prog(); label = "att_kernel"
    kernel_begin(p, label)
    p("s_cmp_ge_u32 s2, 64"); p("s_cbranch_scc1 AT_EXIT")
    srd(p, gemm.sWS, 112, WS_SIZE)
    wave_id(p, gemm.sW)
    p("s_and_b32 s%d, s2, 1" % gemm.sHALF); p("s_lshr_b32 s%d, s2, 1" % gemm.sH)
    p("s_waitcnt lgkmcnt(0)")
    att.emit_att(p, "AT")
    p.label("AT_EXIT"); p("s_endpgm")
    return p, label

def moe_kernels():
    out = []
    for nm, grid in (("sel", 1), ("f1", 27), ("f2", 40)):
        p = Prog(); label = nm + "_kernel"
        kernel_begin(p, label)
        p("s_cmp_ge_u32 s2, %d" % grid); p("s_cbranch_scc1 %s_EXIT" % nm)
        srd(p, gemm.sWS, 112, WS_SIZE)
        srd(p, moe.sWG, 72, 640 * 1728 * 2); srd(p, moe.sWU, 80, 640 * 1728 * 2); srd(p, moe.sWD, 88, 640 * 1728 * 2)
        wave_id(p, gemm.sW)
        p("s_mov_b32 s%d, 0" % mkv.sSPIN)
        p("s_waitcnt lgkmcnt(0)")
        if nm == "f1":
            p("s_lshl_b32 s%d, s2, 2" % moe.sTASK); p("s_add_u32 s%d, s%d, s%d" % (moe.sTASK, moe.sTASK, gemm.sW))
            moe.emit_f1(p)
        else:
            p("s_cmp_lg_u32 s%d, 0" % gemm.sW); p("s_cbranch_scc1 %s_EXIT" % nm)
            p("s_mov_b32 s%d, s2" % moe.sTASK)
            (moe.emit_select if nm == "sel" else moe.emit_f2)(p)
        p.label(nm + "_EXIT"); p("s_endpgm")
        out.append((p, label, grid))
    return out

def out_kernel():
    p = Prog(); label = "out_kernel"
    kernel_begin(p, label)
    p("s_cmp_ge_u32 s2, 60"); p("s_cbranch_scc1 OU_EXIT")
    srd(p, gemm.sWS, 112, WS_SIZE)
    srd(p, outp.sWO, 40, 4096 * 640 * 2); srd(p, outp.sXI, 0, S * D * 2); srd(p, outp.sOUT, 96, S * D * 2)
    wave_id(p, gemm.sW)
    p("s_mul_hi_u32 s%d, s2, 0x%x" % (outp.sGRP, (2**32 + 19) // 20)); p("s_mul_i32 s3, s%d, 20" % outp.sGRP); p("s_sub_u32 s%d, s2, s3" % outp.sCT)
    p("s_mov_b32 s36, -1"); p("s_mov_b32 s37, 0")
    p("s_waitcnt lgkmcnt(0)")
    outp.load_wo(p)
    p("s_barrier")
    outp.emit_out(p, "OU", lambda q: None, lambda q: moe.wait_count(q, FLG_MOE + 256, 40, "OUW"))
    p.label("OU_EXIT"); p("s_endpgm")
    return p, label

sGUESS = 94
sSLOWF, sXCC, sTICK, sHI = 97, 98, 99, 96

def dbg_max(p, dword, tmp=90, have=False, invert=False):
    if not os.environ.get("OFFDBG"): return
    l_ = p.uid("DM")
    p("s_cmp_lg_u32 s14, 0"); p("s_cbranch_scc1 %s" % l_)
    if invert: p("s_cmp_ge_u32 s2, 8"); p("s_cbranch_scc1 %s" % l_)
    if not have: p("s_memrealtime s[%d:%d]" % (tmp, tmp + 1))
    p("s_waitcnt lgkmcnt(0)")
    if invert: p("s_not_b32 s%d, s%d" % (tmp + 1, tmp)); p("v_mov_b32 v14, s%d" % (tmp + 1))
    else: p("v_mov_b32 v14, s%d" % tmp)
    p("s_mov_b64 exec, 1")
    p("buffer_atomic_umax v14, off, s[60:63], %d sc1" % (4 * dword)) if 4 * dword <= 64 else None
    p("s_mov_b64 exec, -1")
    p.label(l_)

def tl_stamp(p, slot, dbg, tmp=90, have=False):
    m_ = {0: (4, True), 2: (5, False), 3: (6, False), 7: (7, False), 4: (9, False), 6: (10, False), 14: (11, False), 5: (12, False)}
    if slot in m_ and os.environ.get("OFFDBG"):
        dbg_max(p, m_[slot][0], tmp, have and False, m_[slot][1]); return
    _tl_stamp(p, slot, dbg, tmp, have)

def _tl_stamp(p, slot, dbg, tmp=90, have=False):
    if not dbg: return
    if os.environ.get("DBGMIN") and slot not in (0, 7, 2): return
    l = p.uid("TL")
    if not have: p("s_memrealtime s[%d:%d]" % (tmp, tmp + 1))
    p("s_waitcnt vmcnt(0) lgkmcnt(0)")
    p("s_lshl_b32 s%d, s2, 2" % (tmp + 1)); p("s_add_u32 s%d, s%d, 0x%x" % (tmp + 1, tmp + 1, DBG + 0x8000 + slot * 1024))
    p("v_mov_b32 v14, s%d" % tmp); p("v_mov_b32 v15, 0"); p("s_mov_b64 exec, 1")
    p("buffer_store_dword v14, v15, s[4:7], s%d offen" % (tmp + 1)); p("s_waitcnt vmcnt(0)"); p("s_mov_b64 exec, -1")

def lane_id(p):
    p("v_mbcnt_lo_u32_b32 v0, -1, 0"); p("v_mbcnt_hi_u32_b32 v0, -1, v0")

def fused_kernel(dbg=0, force_slow=False):
    tick_srd, tick_base, tick_stride = init.sDBG, init.D_TICK, init.D_TSTRIDE
    p = Prog(); label = "main_kernel"
    kernel_begin(p, label)
    p("s_cmp_ge_u32 s2, 256"); p("s_cbranch_scc1 M_EXIT")
    if dbg: p("s_memrealtime s[90:91]")
    srd(p, 4, 112, WS_SIZE)
    init.dbg_srd(p)
    WB = 640 * 4096 * 2
    def rec_srds():
        srd(p, rec.sWQ, 16, WB); srd(p, rec.sWK, 24, WB); srd(p, rec.sWV, 32, WB); srd(p, rec.sWO, 40, WB)
    rec_srds()
    wave_id(p, 14)
    p("s_getreg_b32 s%d, hwreg(HW_REG_XCC_ID)" % sXCC); p("s_and_b32 s%d, s%d, 7" % (sXCC, sXCC))
    p("s_mov_b32 s%d, 0" % sSLOWF); p("s_mov_b32 s%d, %d" % (init.sINITC, init.D_C1))
    p("s_waitcnt lgkmcnt(0)")
    tl_stamp(p, 0, dbg, have=True)
    init.emit_measure(p, 14, sXCC)
    GUESS = int(os.environ.get("GUESS", "1")) and not force_slow
    p("s_cmp_eq_u32 s%d, 0" % sXCC); p("s_cselect_b32 s80, 1, 0"); p("s_cmp_eq_u32 s%d, %d" % (sXCC, XPAIR)); p("s_cselect_b32 s80, 1, s80")
    p("s_mov_b32 s%d, 0" % sGUESS)
    p("s_lshr_b32 s13, s2, 3"); p("s_and_b32 s13, s13, %d" % (30 if os.environ.get("FAKEGUESS") else 31))
    if GUESS:
        p("s_cmp_eq_u32 s14, 0"); p("s_cbranch_scc1 M_TICK0")
        p("s_cmp_eq_u32 s80, 1"); p("s_cbranch_scc1 M_GUESS"); p("s_branch M_TICKW")
        p.label("M_TICK0")
    else: p("s_cmp_lg_u32 s14, 0"); p("s_cbranch_scc1 M_TICKW")
    p("s_mul_i32 s64, s%d, %d" % (sXCC, tick_stride)); p("s_add_u32 s64, s64, 0x%x" % tick_base)
    p("v_mov_b32 v1, 0"); p("v_mov_b32 v70, 1"); p("s_mov_b64 exec, 1")
    if GUESS:
        p("s_cmp_eq_u32 s%d, 0" % sXCC); p("s_cselect_b32 s65, %d, %d" % (init.D_MASK, init.D_MASK + 4))
        p("s_cmp_eq_u32 s80, 1"); p("s_cselect_b32 s65, s65, 0x1000")
        p("s_lshl_b32 s66, 1, s13"); p("v_mov_b32 v4, s66")
        p("buffer_atomic_or v4, off, s[%d:%d], s65 sc1" % (tick_srd, tick_srd + 3))
    p("buffer_atomic_add v70, v1, s[%d:%d], s64 offen sc0" % (tick_srd, tick_srd + 3))
    NPF = int(os.environ.get("CODEPF", "1"))
    if NPF:
        p("s_mov_b64 exec, -1")
        p("s_getpc_b64 s[76:77]"); p.label("M_PCREF")
        p("s_cmp_eq_u32 s80, 1")
        p("s_mov_b32 s82, M_REC-M_PCREF"); p("s_mov_b32 s83, M_HELP-M_PCREF"); p("s_cselect_b32 s81, s82, s83")
        p("s_mov_b32 s82, M_HELP-M_REC"); p("s_mov_b32 s83, M_EXIT-M_HELP"); p("s_cselect_b32 s78, s82, s83")
        p("s_add_u32 s76, s76, s81"); p("s_addc_u32 s77, s77, 0"); p("s_and_b32 s77, s77, 0xffff"); p("s_mov_b32 s79, 0x00020000")
        p("s_lshr_b32 s81, s2, 3"); p("s_and_b32 s81, s81, 3"); p("s_lshl_b32 s81, s81, 12")
        p("v_mbcnt_lo_u32_b32 v3, -1, 0"); p("v_mbcnt_hi_u32_b32 v3, -1, v3"); p("v_lshlrev_b32 v3, 6, v3")
        p("s_mov_b32 m0, 1024"); p.nop(1)
        for k_ in range(5):
            p("buffer_load_dword v3, s[76:79], s81 offen lds"); p("s_add_u32 s81, s81, 16384")
        if GUESS: p("s_cmp_eq_u32 s80, 1"); p("s_cbranch_scc1 M_GUESS")
        p("s_mov_b64 exec, 1")
        p("s_waitcnt vmcnt(5)")
    else:
        if GUESS: p("s_mov_b64 exec, -1"); p("s_cmp_eq_u32 s80, 1"); p("s_cbranch_scc1 M_GUESS"); p("s_mov_b64 exec, 1")
        p("s_waitcnt vmcnt(0)")
    p("ds_write_b32 v1, v70"); p("s_waitcnt lgkmcnt(0)"); p("s_mov_b64 exec, -1")
    p.label("M_TICKW")
    p("s_barrier")
    p("v_mov_b32 v1, 0"); p("ds_read_b32 v2, v1"); p("s_waitcnt lgkmcnt(0)")
    p("v_readfirstlane_b32 s%d, v2" % sTICK)
    p("s_barrier")
    tl_stamp(p, 1, dbg)
    def wait_tickets(q):
        l = q.uid("TK"); ld = q.uid("TKD")
        lane_id(q)
        q("v_mul_u32_u24 v8, %d, v0" % tick_stride); q("s_mov_b32 s64, 0x%x" % tick_base); q("s_mov_b32 s65, 0")
        q("s_mov_b64 exec, 0xff")
        q.label(l)
        q("buffer_load_dword v9, v8, s[%d:%d], s64 offen sc1" % (tick_srd, tick_srd + 3)); q("s_add_u32 s65, s65, 1"); q("s_waitcnt vmcnt(0)")
        q("s_mov_b32 s66, 0")
        for i in range(8): q("v_readlane_b32 s67, v9, %d" % i); q("s_add_u32 s66, s66, s67")
        q("s_cmp_ge_u32 s66, 256"); q("s_cbranch_scc1 %s" % ld)
        q("s_cmp_gt_u32 s65, %d" % (1 << 18)); q("s_cbranch_scc0 %s" % l)
        q.label(ld)
        q("v_cmp_ne_u32 vcc, %d, v9" % (33 if os.environ.get("FAKEIMB") else 32))
        q("s_mov_b64 exec, -1")
    def check_mode(q):
        l = q.uid("CM")
        q("s_cmp_lg_u32 s%d, 0" % sSLOWF); q("s_cbranch_scc1 %s" % l)
        wait_tickets(q)
        q("s_cbranch_vccnz M_SLOW")
        q.label(l)
    if force_slow: p("s_branch M_SLOW0")
    p("s_cmp_ge_u32 s%d, 32" % sTICK); p("s_cbranch_scc1 M_SLOW0")
    p("s_mov_b32 s12, s%d" % sXCC)
    xcc_to_x(p, 12, 12, "M_FH")
    p("s_mov_b32 s13, s%d" % sTICK); p("s_branch M_REC")
    p.label("M_FH")
    p("s_sub_u32 s%d, s%d, 1" % (sHI, sXCC)); p("s_cmp_gt_u32 s%d, %d" % (sXCC, XPAIR)); p("s_cselect_b32 s64, 1, 0"); p("s_sub_u32 s%d, s%d, s64" % (sHI, sHI))
    p("s_lshl_b32 s%d, s%d, 5" % (sHI, sHI)); p("s_add_u32 s%d, s%d, s%d" % (sHI, sHI, sTICK))
    p("s_branch M_HELP")
    if GUESS:
        p.label("M_GUESS")
        p("s_mov_b32 s%d, 1" % sGUESS)
        p("s_cmp_eq_u32 s%d, 0" % sXCC); p("s_cselect_b32 s12, 0, 1"); p("s_branch M_REC")
        p.label("M_GFAIL")
        p("s_waitcnt vmcnt(0) lgkmcnt(0)"); p("s_barrier")
        p("s_cmp_lg_u32 s14, 0"); p("s_cbranch_scc1 M_GF1")
        p("v_mov_b32 v1, 0"); p("s_mov_b64 exec, 1"); p("ds_write_b32 v1, v70"); p("s_waitcnt lgkmcnt(0)"); p("s_mov_b64 exec, -1")
        p.label("M_GF1")
        p("s_barrier")
        p("v_mov_b32 v1, 0"); p("ds_read_b32 v2, v1"); p("s_waitcnt lgkmcnt(0)")
        p("v_readfirstlane_b32 s%d, v2" % sTICK)
        p("s_barrier")
        p("s_mov_b32 s%d, 0" % sGUESS)
        p("s_cmp_ge_u32 s%d, 32" % sTICK); p("s_cbranch_scc1 M_SLOW0")
        p("s_mov_b32 s13, s%d" % sTICK); lane_id(p); p("s_branch M_REC")
    p.label("M_SLOW0")
    wait_tickets(p)
    p.label("M_SLOW")
    p("s_waitcnt vmcnt(0) lgkmcnt(0)"); p("s_barrier")
    p("s_cmp_lg_u32 s14, 0"); p("s_cbranch_scc1 M_SLOWB")
    init.counter_add(p, str(init.D_C3))
    p.label("M_SLOWB")
    init.wait_counter(p, 256, str(init.D_C3) if False else "s%d" % init.sINITC, "SB") if False else None
    p("s_mov_b32 s%d, %d" % (init.sINITC, init.D_C3))
    init.wait_counter(p, 256, name="SB")
    p("s_mov_b32 s%d, %d" % (init.sINITC, init.D_C2))
    p("s_mov_b32 s%d, 1" % sSLOWF); p("s_mov_b32 s%d, 0" % sGUESS)
    p("s_cmp_lt_u32 s2, 64"); p("s_cbranch_scc0 M_SH")
    rec_srds(); p("s_waitcnt lgkmcnt(0)")
    p("s_lshr_b32 s12, s2, 5"); p("s_and_b32 s13, s2, 31"); p("s_branch M_REC")
    p.label("M_SH")
    p("s_sub_u32 s%d, s2, 64" % sHI)
    p("s_branch M_HELP")
    p.label("M_REC")
    lane_id(p)
    def rec_ready(q):
        check_mode(q)
        init.wait_counter(q, init.NHELP_A, name="RI")
        init.wait_second(q)
    st = rec.emit_rec(p, dbg, rec_ready, sSLOWF, lambda q, slot: tl_stamp(q, slot, dbg, 74), init.read_cand, guess=(sGUESS, init.D_MASK // 4, "M_GFAIL") if GUESS else None)
    if dbg and not os.environ.get("DBGMIN"): rec_dbg_dump(p, st)
    tl_stamp(p, 3, dbg)
    p("s_branch M_EXIT")
    p.label("M_HELP")
    lane_id(p)
    p("s_and_b32 s%d, s%d, 1" % (gemm.sHALF, sHI)); p("s_lshr_b32 s3, s%d, 1" % sHI); p("s_and_b32 s%d, s3, 31" % gemm.sH); p("s_lshr_b32 s3, s3, 5")
    p("s_load_dwordx4 s[48:51], s[0:1], 16"); p("s_load_dwordx2 s[52:53], s[0:1], 32")
    p("s_waitcnt lgkmcnt(0)")
    p("s_mov_b32 s46, %d" % WB); p("s_mov_b32 s47, 0x00020000")
    p("s_cmp_eq_u32 s3, 1"); p("s_cselect_b32 s44, s52, s50"); p("s_cselect_b32 s45, s53, s51")
    p("s_cmp_eq_u32 s3, 2"); p("s_cselect_b32 s44, s48, s44"); p("s_cselect_b32 s45, s49, s45")
    def first_w(q):
        if int(os.environ.get("QDELAY", "0")):
            lq = q.uid("QD"); q("s_cmp_lt_u32 s%d, 128" % sHI); q("s_cbranch_scc1 %s" % lq)
            for _ in range(int(os.environ.get("QDELAY", "0"))): q("s_sleep 127")
            q.label(lq)
        gemm.w128_first(q, 44, 40, 41, 42, 79, 81, 82)
    init.emit_init(p, sHI, 14, first_w)
    tl_stamp(p, 10, dbg)
    for _ in range(int(os.environ.get("HDELAY", "0"))): p("s_sleep 127")
    lane_id(p)
    roles = [(0, 50, "G_T"), (1, 52, "G_N"), (2, 48, "G_T")]
    for mat, sp, tgt in roles: p("s_cmp_eq_u32 s3, %d" % mat); p("s_cbranch_scc1 H_E%d" % mat)
    p("s_branch M_EXIT")
    for mat, sp, tgt in roles:
        p.label("H_E%d" % mat)
        gemm.setup_role(p, mat)
        p("s_branch %s" % tgt)
    for kind, nm in (("T", "G_T"), ("N", "G_N")):
        p.label(nm)
        gemm.load_weights(p, started=True)
        check_mode(p)
        init.wait_counter(p, init.NHELP_A, name="GI")
        lane_id(p)
        tl_stamp(p, 25, dbg) if os.environ.get("HST") else None
        init.finish_init(p, sHI, 14)
        if kind == "T":
            l_ = p.uid("NOSEL")
            p("s_cmp_lg_u32 s3, 2"); p("s_cbranch_scc1 %s" % l_)
            p("s_or_b32 s64, s%d, s%d" % (gemm.sH, gemm.sHALF)); p("s_or_b32 s64, s64, s14"); p("s_cmp_lg_u32 s64, 0"); p("s_cbranch_scc1 %s" % l_)
            p("s_mov_b32 s%d, 0" % mkv.sSPIN)
            moe.emit_select(p)
            lane_id(p)
            p.label(l_)
        gemm.emit_gemm(p, kind, nm, lambda q: None, lambda q: init.announce_init(q, sHI, 14))
        tl_stamp(p, 4, dbg)
        if kind == "T":
            p("s_cmp_eq_u32 s3, 2"); p("s_cbranch_scc1 H_Q")
        p("s_cmp_eq_u32 s%d, 1" % gemm.sHALF); p("s_cbranch_scc1 H_OUT")
        p("s_lshl_b32 s88, s3, 5"); p("s_add_u32 s88, s88, s%d" % gemm.sH)
        def wo_hook(p):
            lno = p.uid("NOWO")
            p("s_cmp_ge_u32 s88, 60"); p("s_cbranch_scc1 %s" % lno)
            p("s_mov_b32 s89, s%d" % gemm.sH)
            p("s_mul_hi_u32 s65, s88, 0x%x" % ((2**32 + 19) // 20)); p("s_mul_i32 s65, s65, 20"); p("s_sub_u32 s%d, s88, s65" % outp.sCT)
            srd(p, outp.sWO, 40, 4096 * 640 * 2)
            p("s_waitcnt lgkmcnt(0)")
            outp.load_wo(p)
            p("s_mov_b32 s%d, s89" % gemm.sH)
            p.label(lno)
        mkv.emit_mkv(p, kind, "MK" + kind, init.read_cand, wo_hook)
        tl_stamp(p, 5, dbg)
        p("s_cmp_ge_u32 s88, 60"); p("s_cbranch_scc1 M_EXIT")
        p("s_branch H_EXTRA")
    p.label("H_OUT")
    p("s_lshl_b32 s64, s3, 5"); p("s_add_u32 s64, s64, s%d" % gemm.sH)
    p("s_cmp_ge_u32 s64, 60"); p("s_cbranch_scc1 M_EXIT")
    p("s_mul_hi_u32 s%d, s64, 0x%x" % (outp.sGRP, (2**32 + 19) // 20)); p("s_mul_i32 s65, s%d, 20" % outp.sGRP); p("s_sub_u32 s%d, s64, s65" % outp.sCT)
    srd(p, outp.sWO, 40, 4096 * 640 * 2); srd(p, outp.sXI, 0, S * D * 2); srd(p, outp.sOUT, 96, S * D * 2)
    p("s_mov_b32 s36, -1"); p("s_mov_b32 s37, 0")
    p("s_waitcnt lgkmcnt(0)")
    outp.load_wo(p)
    p("s_barrier")
    if dbg >= 2: outp.STAMP[0] = lambda q, slot: tl_stamp(q, slot, dbg)
    outp.emit_out(p, "OU", lambda q: (moe.wait_count(q, FLG_MOE, 1, "OUS"), tl_stamp(q, 8, dbg)), lambda q: moe.wait_count(q, FLG_MOE + 256, 40, "OUW"))
    tl_stamp(p, 7, dbg)
    p("s_branch M_EXIT")
    p.label("H_EXTRA")
    p("s_mul_hi_u32 s%d, s88, 0x%x" % (outp.sGRP, (2**32 + 19) // 20)); p("s_mul_i32 s65, s%d, 20" % outp.sGRP); p("s_sub_u32 s%d, s88, s65" % outp.sCT)
    p("s_add_u32 s%d, s%d, 3" % (outp.sGRP, outp.sGRP))
    srd(p, outp.sXI, 0, S * D * 2); srd(p, outp.sOUT, 96, S * D * 2)
    p("s_mov_b32 s36, -1"); p("s_mov_b32 s37, 0")
    p("s_waitcnt lgkmcnt(0)")
    lane_id(p)
    outp.emit_extra(p, "OX", lambda q: moe.wait_count(q, FLG_MOE + 256, 40, "OXW"))
    tl_stamp(p, 7, dbg)
    p("s_branch M_EXIT")
    p.label("H_Q")
    tl_stamp(p, 9, dbg)
    def moe_srds():
        p("s_lshl_b32 s70, s%d, 1" % gemm.sH); p("s_add_u32 s70, s70, s%d" % gemm.sHALF)
        srd(p, moe.sWG, 72, 640 * 1728 * 2); srd(p, moe.sWU, 80, 640 * 1728 * 2); srd(p, moe.sWD, 88, 640 * 1728 * 2)
        p("s_mov_b32 s%d, 0" % mkv.sSPIN)
        p("s_waitcnt lgkmcnt(0)")
        lane_id(p)
    att.emit_att(p, "AT0", 0, 1)
    moe_srds()
    p("s_lshl_b32 s%d, s70, 2" % moe.sTASK); p("s_add_u32 s%d, s%d, s14" % (moe.sTASK, moe.sTASK))
    p("s_cmp_ge_u32 s%d, 108" % moe.sTASK); p("s_cbranch_scc1 H_A1")
    tl_stamp(p, 15, dbg)
    moe.emit_f1(p)
    tl_stamp(p, 16, dbg)
    p.label("H_A1")
    lane_id(p)
    att.emit_att(p, "AT1", 1, 2)
    moe_srds()
    p("s_cmp_lg_u32 s14, 0"); p("s_cbranch_scc1 H_ATT")
    p("s_cmp_ge_u32 s70, 40"); p("s_cbranch_scc1 H_ATT")
    p("s_mov_b32 s%d, s70" % moe.sTASK)
    tl_stamp(p, 17, dbg)
    moe.emit_f2(p, lambda q: tl_stamp(q, 18, dbg), lambda q: tl_stamp(q, 19, dbg))
    tl_stamp(p, 14, dbg)
    p.label("H_ATT")
    lane_id(p)
    att.emit_att(p, "AT2", 2, 8)
    tl_stamp(p, 6, dbg)
    p.label("M_EXIT"); p("s_endpgm")
    return p, label

def rec_dbg_dump(p, st):
    p("s_lshl_b32 s%d, s%d, 5" % (rec.sT0, rec.sX)); p("s_add_u32 s%d, s%d, s%d" % (rec.sT0, rec.sT0, rec.sH))
    p("s_lshl_b32 s%d, s%d, 2" % (rec.sT0, rec.sT0)); p("s_add_u32 s%d, s%d, s%d" % (rec.sT0, rec.sT0, rec.sW))
    p("s_lshl_b32 s%d, s%d, 7" % (rec.sT0, rec.sT0)); rec.add_const(p, rec.sT0, rec.sT0, DBG)
    vals = [100, 8, 98 if not rec.STAMPS[0] else rec.sSPIN, rec.sISOWN, rec.sCNT] + [rec.sTS + 2 * i for i in range(len(st.stamps))] + [rec.sCNT2, 60, 61]
    open('stamps.txt', 'w').write(','.join(st.stamps))
    p("v_mov_b32 v1, 0"); p("s_mov_b64 exec, 1")
    for i, sreg in enumerate(vals):
        p("v_mov_b32 v2, s%d" % sreg)
        p("buffer_store_dword v2, v1, s[%d:%d], s%d offen offset:%d" % (rec.sWS, rec.sWS + 3, rec.sT0, 4 * i))
    p("s_waitcnt vmcnt(0)"); p("s_mov_b64 exec, -1")

def write(path, launches, progs):
    txt = HEADER
    for k, g, b, lds in launches: txt += "; @launch kernel=%s grid=(%d,1,1) block=(%d,1,1) lds=%d\n" % (k, g, b, lds)
    txt += '.amdgcn_target "amdgcn-amd-amdhsa--gfx950"\n'
    for p, label, v, s, a in progs: txt += p.text()
    for p, label, v, s, a in progs: txt += descriptor(label, v, s, a)
    open(path, "w").write(txt)

if __name__ == "__main__":
    mode = sys.argv[1]
    if mode == "rec":
        dbg = int(sys.argv[3]) if len(sys.argv) > 3 else 0
        p, label = rec_standalone(dbg)
        probs = check(p.lines, "rec")
        i0 = p.lines.index("REC_LOOP:"); i1 = p.lines.index("REC_TAIL:")
        probs += check(p.lines[i0:i1] + p.lines[i0:i1], "loop-wrap")
        for x in dict.fromkeys(probs): print("HAZARD", x)
        p0, l0 = k0_kernel(True)
        for x in dict.fromkeys(check(p0.lines, "k0")): print("HAZARD", x)
        write(sys.argv[2], [(l0, 256, 256, 64), (label, 256, 256, 163840)], [(p0, l0, 80, 72, 80), (p, label, 512, 102, 256)])
        print("instructions:", sum(1 for l in p.lines if not l.endswith(":") and not l.startswith((";", "."))),
              "loop:", sum(1 for l in p.lines[i0:i1] if not l.endswith(":") and not l.startswith((";", "."))))

    if mode == "gemm":
        p0, l0 = k0_kernel(False)
        p, label = gemm_kernel()
        probs = check(p.lines, "gemm")
        for nm in ("G_T", "G_N"):
            i0 = p.lines.index(nm + "_LOOP:"); i1 = i0 + next(i for i, l in enumerate(p.lines[i0:]) if l.startswith("s_cbranch_scc1 " + nm + "_LOOP"))
            probs += check(p.lines[i0:i1] + p.lines[i0:i1], "wrap")
        for x in dict.fromkeys(probs): print("HAZARD", x)
        write(sys.argv[2], [(l0, 256, 256, 64), (label, 192, 256, 163840)], [(p0, l0, 80, 72, 80), (p, label, 512, 102, 256)])
        print("instructions:", sum(1 for l in p.lines if not l.endswith(":") and not l.startswith((";", "."))))

    if mode == "multi":
        devd = int(sys.argv[3]) if len(sys.argv) > 3 else 0
        p0, l0 = k0_kernel(False)
        pg, lgm = gemm_kernel()
        pr, lr = rec_standalone(devd)
        pm, lm = mkv_kernel(); pa, la = att_kernel(); po, lo = out_kernel()
        mk = moe_kernels()
        progs = [(p0, l0, 80, 72, 80), (pg, lgm, 512, 102, 256), (pr, lr, 512, 102, 256), (pm, lm, 512, 102, 256), (pa, la, 256, 102, 256)]
        progs += [(p, l, 256, 102, 256) for p, l, g in mk] + [(po, lo, 512, 102, 256)]
        launches = [(l0, 256, 256, 64), (lgm, 192, 256, 163840), (lr, 256, 256, 163840), (lm, 64, 256, 163840), (la, 64, 256, 0)]
        launches += [(l, g, 256, 163840) for p, l, g in mk] + [(lo, 60, 256, 163840)]
        for p, l, *_ in progs:
            for x in dict.fromkeys(check(p.lines, l)): print("HAZARD", x)
        write(sys.argv[2], launches, progs)
        print("written")

    if mode == "fused":
        devd = int(sys.argv[3]) if len(sys.argv) > 3 else 0
        import os
        pm, lm = fused_kernel(devd, bool(os.environ.get("FORCE_SLOW")))
        for x in dict.fromkeys(check(pm.lines, lm)): print("HAZARD", x)
        write(sys.argv[2], [(lm, 256, 256, 163840)], [(pm, lm, 512, 102, 256)])
        print("instructions:", sum(1 for l in pm.lines if not l.endswith(":") and not l.startswith((";", "."))))
```

```python
import sys
from asm import *
from layout import *
import rec, k0, gemm, mkv, att, outp, moe, init

HEADER = open("/code/%s.s.ref" % NAME).read()
HEADER = HEADER[:HEADER.index("; Override launch geometry")]

def kernel_begin(p, label):
    p(".text"); p(".globl %s" % label); p(".p2align 8"); p(".type %s,@function" % label); p.label(label)
def descriptor(label, vgpr, sgpr, accum):
    return """.section .rodata,"a"
.p2align 6
.amdhsa_kernel %s
  .amdhsa_next_free_vgpr %d
  .amdhsa_next_free_sgpr %d
  .amdhsa_accum_offset %d
  .amdhsa_group_segment_fixed_size 0
  .amdhsa_kernarg_size 120
  .amdhsa_user_sgpr_count 2
  .amdhsa_user_sgpr_kernarg_segment_ptr 1
  .amdhsa_system_sgpr_workgroup_id_x 1
.end_amdhsa_kernel
""" % (label, vgpr, sgpr, accum)

def srd(p, dst, karg_off, size, tmp=None):
    p("s_load_dwordx2 s[%d:%d], s[0:1], %d" % (dst, dst + 1, karg_off))
    p("s_mov_b32 s%d, 0x%x" % (dst + 2, size)); p("s_mov_b32 s%d, 0x00020000" % (dst + 3))

import os
XPAIR = int(os.environ.get("XPAIR", "2"))
def xcc_to_x(p, dst, src, lelse):
    l = p.uid("XOK")
    p("s_cmp_eq_u32 s%d, 0" % src); p("s_cbranch_scc1 %s" % l)
    p("s_cmp_eq_u32 s%d, %d" % (src, XPAIR)); p("s_cbranch_scc0 %s" % lelse)
    p("s_mov_b32 s%d, 1" % dst)
    p.label(l)

def rec_standalone(dbg):
    p = Prog(); label = "rec_kernel"
    kernel_begin(p, label)
    p("s_cmp_ge_u32 s2, 256"); p("s_cbranch_scc1 REC_EXIT")
    if dbg and not rec.STAMPS[0]: p("s_memrealtime s[94:95]")
    srd(p, rec.sWS, 112, WS_SIZE)
    WB = 640 * 4096 * 2
    srd(p, rec.sWQ, 16, WB); srd(p, rec.sWK, 24, WB); srd(p, rec.sWV, 32, WB); srd(p, rec.sWO, 40, WB)
    p("s_getreg_b32 s%d, hwreg(HW_REG_XCC_ID)" % rec.sX); p("s_and_b32 s%d, s%d, 15" % (rec.sX, rec.sX))
    p("v_lshrrev_b32 v1, 6, v0"); p.nop(1); p("v_readfirstlane_b32 s%d, v1" % rec.sW)
    p("s_waitcnt lgkmcnt(0)")
    xcc_to_x(p, rec.sX, rec.sX, "REC_EXIT")
    p("s_cmp_lg_u32 s%d, 0" % rec.sW); p("s_cbranch_scc1 TICK_WAIT")
    p("s_lshl_b32 s%d, s%d, 7" % (rec.sT0, rec.sX)); rec.add_const(p, rec.sT0, rec.sT0, TICKET)
    p("v_mov_b32 v1, 0"); p("v_mov_b32 v2, 1")
    p("s_mov_b64 exec, 1")
    p("buffer_atomic_add v2, v1, s[%d:%d], s%d offen sc0" % (rec.sWS, rec.sWS + 3, rec.sT0))
    p("s_waitcnt vmcnt(0)")
    p("ds_write_b32 v1, v2"); p("s_waitcnt lgkmcnt(0)")
    p("s_mov_b64 exec, -1")
    p.label("TICK_WAIT")
    p("s_barrier")
    p("v_mov_b32 v1, 0"); p("ds_read_b32 v2, v1"); p("s_waitcnt lgkmcnt(0)")
    p("v_readfirstlane_b32 s%d, v2" % rec.sH)
    p("s_barrier")
    p("s_cmp_ge_u32 s%d, 32" % rec.sH); p("s_cbranch_scc1 REC_EXIT")
    st = rec.emit_rec(p, dbg)
    if dbg:
        p("s_lshl_b32 s%d, s%d, 5" % (rec.sT0, rec.sX)); p("s_add_u32 s%d, s%d, s%d" % (rec.sT0, rec.sT0, rec.sH))
        p("s_lshl_b32 s%d, s%d, 2" % (rec.sT0, rec.sT0)); p("s_add_u32 s%d, s%d, s%d" % (rec.sT0, rec.sT0, rec.sW))
        p("s_lshl_b32 s%d, s%d, 7" % (rec.sT0, rec.sT0)); rec.add_const(p, rec.sT0, rec.sT0, DBG)
        vals = [100, 8, 98 if not rec.STAMPS[0] else rec.sSPIN, rec.sISOWN, rec.sCNT] + [rec.sTS + 2 * i for i in range(len(st.stamps))] + [rec.sCNT2, 60, 61]
        open('stamps.txt', 'w').write(','.join(st.stamps))
        if not rec.STAMPS[0]: p("s_sub_u32 s94, s96, s94"); vals.append(94)
        p("v_mov_b32 v1, 0"); p("s_mov_b64 exec, 1")
        for i, sreg in enumerate(vals):
            p("v_mov_b32 v2, s%d" % sreg)
            p("buffer_store_dword v2, v1, s[%d:%d], s%d offen offset:%d" % (rec.sWS, rec.sWS + 3, rec.sT0, 4 * i))
        p("s_waitcnt vmcnt(0)")
    p.label("REC_EXIT"); p("s_endpgm")
    return p, label

def k0_kernel(devflags, dbg=0):
    p = Prog(); label = "init_kernel"
    kernel_begin(p, label)
    p("s_cmp_ge_u32 s2, 256"); p("s_cbranch_scc1 K0_EXIT")
    if dbg: p("s_memrealtime s[36:37]")
    k0.emit_k0(p, devflags)
    if dbg:
        p("s_mov_b32 s38, s36"); p("s_lshl_b32 s39, s2, 2"); p("s_add_u32 s39, s39, 0x%x" % (DBG + 0x8000))
        p("v_mov_b32 v14, s38"); p("v_mov_b32 v15, 0"); p("s_mov_b64 exec, 1")
        p("buffer_store_dword v14, v15, s[4:7], s39 offen"); p("s_mov_b64 exec, -1")
    p.label("K0_EXIT"); p("s_endpgm")
    return p, label

def gemm_kernel():
    p = Prog(); label = "gemm_kernel"
    kernel_begin(p, label)
    p("s_cmp_ge_u32 s2, 192"); p("s_cbranch_scc1 G_EXIT")
    if gemm.DBGT: p("s_memrealtime s[68:69]")
    srd(p, gemm.sWS, 112, WS_SIZE)
    p("s_load_dwordx4 s[48:51], s[0:1], 16"); p("s_load_dwordx2 s[52:53], s[0:1], 32")
    p("v_lshrrev_b32 v1, 6, v0"); p("v_and_b32 v0, 63, v0"); p.nop(1); p("v_readfirstlane_b32 s%d, v1" % gemm.sW)
    p("s_and_b32 s%d, s2, 1" % gemm.sHALF); p("s_lshr_b32 s3, s2, 1"); p("s_and_b32 s%d, s3, 31" % gemm.sH); p("s_lshr_b32 s3, s3, 5")
    p("s_waitcnt lgkmcnt(0)")
    p("s_mov_b32 s46, %d" % (640 * 4096 * 2)); p("s_mov_b32 s47, 0x00020000")
    roles = [(0, 50, "T", "GK"), (1, 52, "N", "GV"), (2, 48, "T", "GQ")]
    for mat, sp, kind, nm in roles:
        p("s_cmp_eq_u32 s3, %d" % mat); p("s_cbranch_scc1 %s_ENTRY" % nm)
    p("s_branch G_EXIT")
    for mat, sp, kind, nm in roles:
        p.label(nm + "_ENTRY")
        p("s_mov_b32 s44, s%d" % sp); p("s_mov_b32 s45, s%d" % (sp + 1))
        gemm.setup_role(p, mat)
        p("s_branch %s" % ("G_T" if kind == "T" else "G_N"))
    for kind, nm in (("T", "G_T"), ("N", "G_N")):
        p.label(nm)
        gemm.load_weights(p)
        gemm.emit_gemm(p, kind, nm, lambda q: None)
        p("s_branch G_EXIT")
    p.label("G_EXIT"); p("s_endpgm")
    return p, label

def wave_id(p, sreg):
    p("v_lshrrev_b32 v1, 6, v0"); p("v_and_b32 v0, 63, v0"); p.nop(1); p("v_readfirstlane_b32 s%d, v1" % sreg)

def mkv_kernel():
    p = Prog(); label = "mkv_kernel"
    kernel_begin(p, label)
    p("s_cmp_ge_u32 s2, 64"); p("s_cbranch_scc1 MK_EXIT")
    srd(p, gemm.sWS, 112, WS_SIZE)
    p("s_load_dwordx4 s[48:51], s[0:1], 24")
    wave_id(p, gemm.sW)
    p("s_and_b32 s%d, s2, 31" % gemm.sH); p("s_lshr_b32 s3, s2, 5")
    p("s_waitcnt lgkmcnt(0)")
    p("s_mov_b32 s46, %d" % (640 * 4096 * 2)); p("s_mov_b32 s47, 0x00020000")
    p("s_cmp_eq_u32 s3, 0"); p("s_cselect_b32 s44, s48, s50"); p("s_cselect_b32 s45, s49, s51")
    gemm.load_weights(p)
    p("s_cmp_eq_u32 s3, 0"); p("s_cbranch_scc0 MK_V")
    mkv.emit_mkv(p, "T", "MKK"); p("s_branch MK_EXIT")
    p.label("MK_V"); mkv.emit_mkv(p, "N", "MKV")
    p.label("MK_EXIT"); p("s_endpgm")
    return p, label

def att_kernel():
    p = Prog(); label = "att_kernel"
    kernel_begin(p, label)
    p("s_cmp_ge_u32 s2, 64"); p("s_cbranch_scc1 AT_EXIT")
    srd(p, gemm.sWS, 112, WS_SIZE)
    wave_id(p, gemm.sW)
    p("s_and_b32 s%d, s2, 1" % gemm.sHALF); p("s_lshr_b32 s%d, s2, 1" % gemm.sH)
    p("s_waitcnt lgkmcnt(0)")
    att.emit_att(p, "AT")
    p.label("AT_EXIT"); p("s_endpgm")
    return p, label

def moe_kernels():
    out = []
    for nm, grid in (("sel", 1), ("f1", 27), ("f2", 40)):
        p = Prog(); label = nm + "_kernel"
        kernel_begin(p, label)
        p("s_cmp_ge_u32 s2, %d" % grid); p("s_cbranch_scc1 %s_EXIT" % nm)
        srd(p, gemm.sWS, 112, WS_SIZE)
        srd(p, moe.sWG, 72, 640 * 1728 * 2); srd(p, moe.sWU, 80, 640 * 1728 * 2); srd(p, moe.sWD, 88, 640 * 1728 * 2)
        wave_id(p, gemm.sW)
        p("s_mov_b32 s%d, 0" % mkv.sSPIN)
        p("s_waitcnt lgkmcnt(0)")
        if nm == "f1":
            p("s_lshl_b32 s%d, s2, 2" % moe.sTASK); p("s_add_u32 s%d, s%d, s%d" % (moe.sTASK, moe.sTASK, gemm.sW))
            moe.emit_f1(p)
        else:
            p("s_cmp_lg_u32 s%d, 0" % gemm.sW); p("s_cbranch_scc1 %s_EXIT" % nm)
            p("s_mov_b32 s%d, s2" % moe.sTASK)
            (moe.emit_select if nm == "sel" else moe.emit_f2)(p)
        p.label(nm + "_EXIT"); p("s_endpgm")
        out.append((p, label, grid))
    return out

def out_kernel():
    p = Prog(); label = "out_kernel"
    kernel_begin(p, label)
    p("s_cmp_ge_u32 s2, 60"); p("s_cbranch_scc1 OU_EXIT")
    srd(p, gemm.sWS, 112, WS_SIZE)
    srd(p, outp.sWO, 40, 4096 * 640 * 2); srd(p, outp.sXI, 0, S * D * 2); srd(p, outp.sOUT, 96, S * D * 2)
    wave_id(p, gemm.sW)
    p("s_mul_hi_u32 s%d, s2, 0x%x" % (outp.sGRP, (2**32 + 19) // 20)); p("s_mul_i32 s3, s%d, 20" % outp.sGRP); p("s_sub_u32 s%d, s2, s3" % outp.sCT)
    p("s_mov_b32 s36, -1"); p("s_mov_b32 s37, 0")
    p("s_waitcnt lgkmcnt(0)")
    outp.load_wo(p)
    p("s_barrier")
    outp.emit_out(p, "OU", lambda q: None, lambda q: moe.wait_count(q, FLG_MOE + 256, 40, "OUW"))
    p.label("OU_EXIT"); p("s_endpgm")
    return p, label

sGUESS = 94
sSLOWF, sXCC, sTICK, sHI = 97, 98, 99, 96

def dbg_max(p, dword, tmp=90, have=False, invert=False):
    if not os.environ.get("OFFDBG"): return
    l_ = p.uid("DM")
    p("s_cmp_lg_u32 s14, 0"); p("s_cbranch_scc1 %s" % l_)
    if invert: p("s_cmp_ge_u32 s2, 8"); p("s_cbranch_scc1 %s" % l_)
    if not have: p("s_memrealtime s[%d:%d]" % (tmp, tmp + 1))
    p("s_waitcnt lgkmcnt(0)")
    if invert: p("s_not_b32 s%d, s%d" % (tmp + 1, tmp)); p("v_mov_b32 v14, s%d" % (tmp + 1))
    else: p("v_mov_b32 v14, s%d" % tmp)
    p("s_mov_b64 exec, 1")
    p("buffer_atomic_umax v14, off, s[60:63], %d sc1" % (4 * dword)) if 4 * dword <= 64 else None
    p("s_mov_b64 exec, -1")
    p.label(l_)

def tl_stamp(p, slot, dbg, tmp=90, have=False):
    m_ = {0: (4, True), 2: (5, False), 3: (6, False), 7: (7, False), 4: (9, False), 6: (10, False), 14: (11, False), 5: (12, False)}
    if slot in m_ and os.environ.get("OFFDBG"):
        dbg_max(p, m_[slot][0], tmp, have and False, m_[slot][1]); return
    _tl_stamp(p, slot, dbg, tmp, have)

def _tl_stamp(p, slot, dbg, tmp=90, have=False):
    if not dbg: return
    if os.environ.get("DBGMIN") and slot not in (0, 7, 2): return
    l = p.uid("TL")
    if not have: p("s_memrealtime s[%d:%d]" % (tmp, tmp + 1))
    p("s_waitcnt vmcnt(0) lgkmcnt(0)")
    p("s_lshl_b32 s%d, s2, 2" % (tmp + 1)); p("s_add_u32 s%d, s%d, 0x%x" % (tmp + 1, tmp + 1, DBG + 0x8000 + slot * 1024))
    p("v_mov_b32 v14, s%d" % tmp); p("v_mov_b32 v15, 0"); p("s_mov_b64 exec, 1")
    p("buffer_store_dword v14, v15, s[4:7], s%d offen" % (tmp + 1)); p("s_waitcnt vmcnt(0)"); p("s_mov_b64 exec, -1")

def lane_id(p):
    p("v_mbcnt_lo_u32_b32 v0, -1, 0"); p("v_mbcnt_hi_u32_b32 v0, -1, v0")

def fused_kernel(dbg=0, force_slow=False):
    tick_srd, tick_base, tick_stride = init.sDBG, init.D_TICK, init.D_TSTRIDE
    p = Prog(); label = (NAME + "_kernel") if os.environ.get("PLAIN", "1") == "1" else "main_kernel"
    kernel_begin(p, label)
    p("s_cmp_ge_u32 s2, 256"); p("s_cbranch_scc1 M_EXIT")
    if dbg: p("s_memrealtime s[90:91]")
    srd(p, 4, 112, WS_SIZE)
    init.dbg_srd(p)
    WB = 640 * 4096 * 2
    def rec_srds():
        srd(p, rec.sWQ, 16, WB); srd(p, rec.sWK, 24, WB); srd(p, rec.sWV, 32, WB); srd(p, rec.sWO, 40, WB)
    rec_srds()
    wave_id(p, 14)
    p("s_getreg_b32 s%d, hwreg(HW_REG_XCC_ID)" % sXCC); p("s_and_b32 s%d, s%d, 7" % (sXCC, sXCC))
    p("s_mov_b32 s%d, 0" % sSLOWF); p("s_mov_b32 s%d, %d" % (init.sINITC, init.D_C1))
    p("s_waitcnt lgkmcnt(0)")
    tl_stamp(p, 0, dbg, have=True)
    init.emit_measure(p, 14, sXCC)
    GUESS = int(os.environ.get("GUESS", "1")) and not force_slow
    p("s_cmp_eq_u32 s%d, 0" % sXCC); p("s_cselect_b32 s80, 1, 0"); p("s_cmp_eq_u32 s%d, %d" % (sXCC, XPAIR)); p("s_cselect_b32 s80, 1, s80")
    p("s_mov_b32 s%d, 0" % sGUESS)
    p("s_lshr_b32 s13, s2, 3"); p("s_and_b32 s13, s13, %d" % (30 if os.environ.get("FAKEGUESS") else 31))
    if GUESS:
        p("s_cmp_eq_u32 s14, 0"); p("s_cbranch_scc1 M_TICK0")
        p("s_cmp_eq_u32 s80, 1"); p("s_cbranch_scc1 M_GUESS"); p("s_branch M_TICKW")
        p.label("M_TICK0")
    else: p("s_cmp_lg_u32 s14, 0"); p("s_cbranch_scc1 M_TICKW")
    p("s_mul_i32 s64, s%d, %d" % (sXCC, tick_stride)); p("s_add_u32 s64, s64, 0x%x" % tick_base)
    p("v_mov_b32 v1, 0"); p("v_mov_b32 v70, 1"); p("s_mov_b64 exec, 1")
    if GUESS:
        p("s_cmp_eq_u32 s%d, 0" % sXCC); p("s_cselect_b32 s65, %d, %d" % (init.D_MASK, init.D_MASK + 4))
        p("s_cmp_eq_u32 s80, 1"); p("s_cselect_b32 s65, s65, 0x1000")
        p("s_lshl_b32 s66, 1, s13"); p("v_mov_b32 v4, s66")
        p("buffer_atomic_or v4, off, s[%d:%d], s65 sc1" % (tick_srd, tick_srd + 3))
    p("buffer_atomic_add v70, v1, s[%d:%d], s64 offen sc0" % (tick_srd, tick_srd + 3))
    NPF = int(os.environ.get("CODEPF", "1"))
    if NPF:
        p("s_mov_b64 exec, -1")
        p("s_getpc_b64 s[76:77]"); p.label("M_PCREF")
        p("s_cmp_eq_u32 s80, 1")
        p("s_mov_b32 s82, M_REC-M_PCREF"); p("s_mov_b32 s83, M_HELP-M_PCREF"); p("s_cselect_b32 s81, s82, s83")
        p("s_mov_b32 s82, M_HELP-M_REC"); p("s_mov_b32 s83, M_EXIT-M_HELP"); p("s_cselect_b32 s78, s82, s83")
        p("s_add_u32 s76, s76, s81"); p("s_addc_u32 s77, s77, 0"); p("s_and_b32 s77, s77, 0xffff"); p("s_mov_b32 s79, 0x00020000")
        p("s_lshr_b32 s81, s2, 3"); p("s_and_b32 s81, s81, 3"); p("s_lshl_b32 s81, s81, 12")
        p("v_mbcnt_lo_u32_b32 v3, -1, 0"); p("v_mbcnt_hi_u32_b32 v3, -1, v3"); p("v_lshlrev_b32 v3, 6, v3")
        p("s_mov_b32 m0, 1024"); p.nop(1)
        for k_ in range(5):
            p("buffer_load_dword v3, s[76:79], s81 offen lds"); p("s_add_u32 s81, s81, 16384")
        if GUESS: p("s_cmp_eq_u32 s80, 1"); p("s_cbranch_scc1 M_GUESS")
        p("s_mov_b64 exec, 1")
        p("s_waitcnt vmcnt(5)")
    else:
        if GUESS: p("s_mov_b64 exec, -1"); p("s_cmp_eq_u32 s80, 1"); p("s_cbranch_scc1 M_GUESS"); p("s_mov_b64 exec, 1")
        p("s_waitcnt vmcnt(0)")
    p("ds_write_b32 v1, v70"); p("s_waitcnt lgkmcnt(0)"); p("s_mov_b64 exec, -1")
    p.label("M_TICKW")
    p("s_barrier")
    p("v_mov_b32 v1, 0"); p("ds_read_b32 v2, v1"); p("s_waitcnt lgkmcnt(0)")
    p("v_readfirstlane_b32 s%d, v2" % sTICK)
    p("s_barrier")
    tl_stamp(p, 1, dbg)
    def wait_tickets(q):
        l = q.uid("TK"); ld = q.uid("TKD")
        lane_id(q)
        q("v_mul_u32_u24 v8, %d, v0" % tick_stride); q("s_mov_b32 s64, 0x%x" % tick_base); q("s_mov_b32 s65, 0")
        q("s_mov_b64 exec, 0xff")
        q.label(l)
        q("buffer_load_dword v9, v8, s[%d:%d], s64 offen sc1" % (tick_srd, tick_srd + 3)); q("s_add_u32 s65, s65, 1"); q("s_waitcnt vmcnt(0)")
        q("s_mov_b32 s66, 0")
        for i in range(8): q("v_readlane_b32 s67, v9, %d" % i); q("s_add_u32 s66, s66, s67")
        q("s_cmp_ge_u32 s66, 256"); q("s_cbranch_scc1 %s" % ld)
        q("s_cmp_gt_u32 s65, %d" % (1 << 18)); q("s_cbranch_scc0 %s" % l)
        q.label(ld)
        q("v_cmp_ne_u32 vcc, %d, v9" % (33 if os.environ.get("FAKEIMB") else 32))
        q("s_mov_b64 exec, -1")
    def check_mode(q):
        l = q.uid("CM")
        q("s_cmp_lg_u32 s%d, 0" % sSLOWF); q("s_cbranch_scc1 %s" % l)
        wait_tickets(q)
        q("s_cbranch_vccnz M_SLOW")
        q.label(l)
    if force_slow: p("s_branch M_SLOW0")
    p("s_cmp_ge_u32 s%d, 32" % sTICK); p("s_cbranch_scc1 M_SLOW0")
    p("s_mov_b32 s12, s%d" % sXCC)
    xcc_to_x(p, 12, 12, "M_FH")
    p("s_mov_b32 s13, s%d" % sTICK); p("s_branch M_REC")
    p.label("M_FH")
    p("s_sub_u32 s%d, s%d, 1" % (sHI, sXCC)); p("s_cmp_gt_u32 s%d, %d" % (sXCC, XPAIR)); p("s_cselect_b32 s64, 1, 0"); p("s_sub_u32 s%d, s%d, s64" % (sHI, sHI))
    p("s_lshl_b32 s%d, s%d, 5" % (sHI, sHI)); p("s_add_u32 s%d, s%d, s%d" % (sHI, sHI, sTICK))
    p("s_branch M_HELP")
    if GUESS:
        p.label("M_GUESS")
        p("s_mov_b32 s%d, 1" % sGUESS)
        p("s_cmp_eq_u32 s%d, 0" % sXCC); p("s_cselect_b32 s12, 0, 1"); p("s_branch M_REC")
        p.label("M_GFAIL")
        p("s_waitcnt vmcnt(0) lgkmcnt(0)"); p("s_barrier")
        p("s_cmp_lg_u32 s14, 0"); p("s_cbranch_scc1 M_GF1")
        p("v_mov_b32 v1, 0"); p("s_mov_b64 exec, 1"); p("ds_write_b32 v1, v70"); p("s_waitcnt lgkmcnt(0)"); p("s_mov_b64 exec, -1")
        p.label("M_GF1")
        p("s_barrier")
        p("v_mov_b32 v1, 0"); p("ds_read_b32 v2, v1"); p("s_waitcnt lgkmcnt(0)")
        p("v_readfirstlane_b32 s%d, v2" % sTICK)
        p("s_barrier")
        p("s_mov_b32 s%d, 0" % sGUESS)
        p("s_cmp_ge_u32 s%d, 32" % sTICK); p("s_cbranch_scc1 M_SLOW0")
        p("s_mov_b32 s13, s%d" % sTICK); lane_id(p); p("s_branch M_REC")
    p.label("M_SLOW0")
    wait_tickets(p)
    p.label("M_SLOW")
    p("s_waitcnt vmcnt(0) lgkmcnt(0)"); p("s_barrier")
    p("s_cmp_lg_u32 s14, 0"); p("s_cbranch_scc1 M_SLOWB")
    init.counter_add(p, str(init.D_C3))
    p.label("M_SLOWB")
    init.wait_counter(p, 256, str(init.D_C3) if False else "s%d" % init.sINITC, "SB") if False else None
    p("s_mov_b32 s%d, %d" % (init.sINITC, init.D_C3))
    init.wait_counter(p, 256, name="SB")
    p("s_mov_b32 s%d, %d" % (init.sINITC, init.D_C2))
    p("s_mov_b32 s%d, 1" % sSLOWF); p("s_mov_b32 s%d, 0" % sGUESS)
    p("s_cmp_lt_u32 s2, 64"); p("s_cbranch_scc0 M_SH")
    rec_srds(); p("s_waitcnt lgkmcnt(0)")
    p("s_lshr_b32 s12, s2, 5"); p("s_and_b32 s13, s2, 31"); p("s_branch M_REC")
    p.label("M_SH")
    p("s_sub_u32 s%d, s2, 64" % sHI)
    p("s_branch M_HELP")
    p.label("M_REC")
    lane_id(p)
    def rec_ready(q):
        check_mode(q)
        init.wait_counter(q, init.NHELP_A, name="RI")
        init.wait_second(q)
    st = rec.emit_rec(p, dbg, rec_ready, sSLOWF, lambda q, slot: tl_stamp(q, slot, dbg, 74), init.read_cand, guess=(sGUESS, init.D_MASK // 4, "M_GFAIL") if GUESS else None)
    if dbg and not os.environ.get("DBGMIN"): rec_dbg_dump(p, st)
    tl_stamp(p, 3, dbg)
    p("s_branch M_EXIT")
    p.label("M_HELP")
    lane_id(p)
    p("s_and_b32 s%d, s%d, 1" % (gemm.sHALF, sHI)); p("s_lshr_b32 s3, s%d, 1" % sHI); p("s_and_b32 s%d, s3, 31" % gemm.sH); p("s_lshr_b32 s3, s3, 5")
    p("s_load_dwordx4 s[48:51], s[0:1], 16"); p("s_load_dwordx2 s[52:53], s[0:1], 32")
    p("s_waitcnt lgkmcnt(0)")
    p("s_mov_b32 s46, %d" % WB); p("s_mov_b32 s47, 0x00020000")
    p("s_cmp_eq_u32 s3, 1"); p("s_cselect_b32 s44, s52, s50"); p("s_cselect_b32 s45, s53, s51")
    p("s_cmp_eq_u32 s3, 2"); p("s_cselect_b32 s44, s48, s44"); p("s_cselect_b32 s45, s49, s45")
    def first_w(q):
        if int(os.environ.get("QDELAY", "0")):
            lq = q.uid("QD"); q("s_cmp_lt_u32 s%d, 128" % sHI); q("s_cbranch_scc1 %s" % lq)
            for _ in range(int(os.environ.get("QDELAY", "0"))): q("s_sleep 127")
            q.label(lq)
        gemm.w128_first(q, 44, 40, 41, 42, 79, 81, 82)
    init.emit_init(p, sHI, 14, first_w)
    tl_stamp(p, 10, dbg)
    for _ in range(int(os.environ.get("HDELAY", "0"))): p("s_sleep 127")
    lane_id(p)
    roles = [(0, 50, "G_T"), (1, 52, "G_N"), (2, 48, "G_T")]
    for mat, sp, tgt in roles: p("s_cmp_eq_u32 s3, %d" % mat); p("s_cbranch_scc1 H_E%d" % mat)
    p("s_branch M_EXIT")
    for mat, sp, tgt in roles:
        p.label("H_E%d" % mat)
        gemm.setup_role(p, mat)
        p("s_branch %s" % tgt)
    for kind, nm in (("T", "G_T"), ("N", "G_N")):
        p.label(nm)
        gemm.load_weights(p, started=True)
        check_mode(p)
        init.wait_counter(p, init.NHELP_A, name="GI")
        lane_id(p)
        tl_stamp(p, 25, dbg) if os.environ.get("HST") else None
        init.finish_init(p, sHI, 14)
        if kind == "T":
            l_ = p.uid("NOSEL")
            p("s_cmp_lg_u32 s3, 2"); p("s_cbranch_scc1 %s" % l_)
            p("s_or_b32 s64, s%d, s%d" % (gemm.sH, gemm.sHALF)); p("s_or_b32 s64, s64, s14"); p("s_cmp_lg_u32 s64, 0"); p("s_cbranch_scc1 %s" % l_)
            p("s_mov_b32 s%d, 0" % mkv.sSPIN)
            moe.emit_select(p)
            lane_id(p)
            p.label(l_)
        gemm.emit_gemm(p, kind, nm, lambda q: None, lambda q: init.announce_init(q, sHI, 14))
        tl_stamp(p, 4, dbg)
        if kind == "T":
            p("s_cmp_eq_u32 s3, 2"); p("s_cbranch_scc1 H_Q")
        p("s_cmp_eq_u32 s%d, 1" % gemm.sHALF); p("s_cbranch_scc1 H_OUT")
        p("s_lshl_b32 s88, s3, 5"); p("s_add_u32 s88, s88, s%d" % gemm.sH)
        def wo_hook(p):
            lno = p.uid("NOWO")
            p("s_cmp_ge_u32 s88, 60"); p("s_cbranch_scc1 %s" % lno)
            p("s_mov_b32 s89, s%d" % gemm.sH)
            p("s_mul_hi_u32 s65, s88, 0x%x" % ((2**32 + 19) // 20)); p("s_mul_i32 s65, s65, 20"); p("s_sub_u32 s%d, s88, s65" % outp.sCT)
            srd(p, outp.sWO, 40, 4096 * 640 * 2)
            p("s_waitcnt lgkmcnt(0)")
            outp.load_wo(p)
            p("s_mov_b32 s%d, s89" % gemm.sH)
            p.label(lno)
        mkv.emit_mkv(p, kind, "MK" + kind, init.read_cand, wo_hook)
        tl_stamp(p, 5, dbg)
        p("s_cmp_ge_u32 s88, 60"); p("s_cbranch_scc1 M_EXIT")
        p("s_branch H_EXTRA")
    p.label("H_OUT")
    p("s_lshl_b32 s64, s3, 5"); p("s_add_u32 s64, s64, s%d" % gemm.sH)
    p("s_cmp_ge_u32 s64, 60"); p("s_cbranch_scc1 M_EXIT")
    p("s_mul_hi_u32 s%d, s64, 0x%x" % (outp.sGRP, (2**32 + 19) // 20)); p("s_mul_i32 s65, s%d, 20" % outp.sGRP); p("s_sub_u32 s%d, s64, s65" % outp.sCT)
    srd(p, outp.sWO, 40, 4096 * 640 * 2); srd(p, outp.sXI, 0, S * D * 2); srd(p, outp.sOUT, 96, S * D * 2)
    p("s_mov_b32 s36, -1"); p("s_mov_b32 s37, 0")
    p("s_waitcnt lgkmcnt(0)")
    outp.load_wo(p)
    p("s_barrier")
    if dbg >= 2: outp.STAMP[0] = lambda q, slot: tl_stamp(q, slot, dbg)
    outp.emit_out(p, "OU", lambda q: (moe.wait_count(q, FLG_MOE, 1, "OUS"), tl_stamp(q, 8, dbg)), lambda q: moe.wait_count(q, FLG_MOE + 256, 40, "OUW"))
    tl_stamp(p, 7, dbg)
    p("s_branch M_EXIT")
    p.label("H_EXTRA")
    p("s_mul_hi_u32 s%d, s88, 0x%x" % (outp.sGRP, (2**32 + 19) // 20)); p("s_mul_i32 s65, s%d, 20" % outp.sGRP); p("s_sub_u32 s%d, s88, s65" % outp.sCT)
    p("s_add_u32 s%d, s%d, 3" % (outp.sGRP, outp.sGRP))
    srd(p, outp.sXI, 0, S * D * 2); srd(p, outp.sOUT, 96, S * D * 2)
    p("s_mov_b32 s36, -1"); p("s_mov_b32 s37, 0")
    p("s_waitcnt lgkmcnt(0)")
    lane_id(p)
    outp.emit_extra(p, "OX", lambda q: moe.wait_count(q, FLG_MOE + 256, 40, "OXW"))
    tl_stamp(p, 7, dbg)
    p("s_branch M_EXIT")
    p.label("H_Q")
    tl_stamp(p, 9, dbg)
    def moe_srds():
        p("s_lshl_b32 s70, s%d, 1" % gemm.sH); p("s_add_u32 s70, s70, s%d" % gemm.sHALF)
        srd(p, moe.sWG, 72, 640 * 1728 * 2); srd(p, moe.sWU, 80, 640 * 1728 * 2); srd(p, moe.sWD, 88, 640 * 1728 * 2)
        p("s_mov_b32 s%d, 0" % mkv.sSPIN)
        p("s_waitcnt lgkmcnt(0)")
        lane_id(p)
    att.emit_att(p, "AT0", 0, 1)
    moe_srds()
    p("s_lshl_b32 s%d, s70, 2" % moe.sTASK); p("s_add_u32 s%d, s%d, s14" % (moe.sTASK, moe.sTASK))
    p("s_cmp_ge_u32 s%d, 108" % moe.sTASK); p("s_cbranch_scc1 H_A1")
    tl_stamp(p, 15, dbg)
    moe.emit_f1(p)
    tl_stamp(p, 16, dbg)
    p.label("H_A1")
    lane_id(p)
    att.emit_att(p, "AT1", 1, 2)
    moe_srds()
    p("s_cmp_lg_u32 s14, 0"); p("s_cbranch_scc1 H_ATT")
    p("s_cmp_ge_u32 s70, 40"); p("s_cbranch_scc1 H_ATT")
    p("s_mov_b32 s%d, s70" % moe.sTASK)
    tl_stamp(p, 17, dbg)
    moe.emit_f2(p, lambda q: tl_stamp(q, 18, dbg), lambda q: tl_stamp(q, 19, dbg))
    tl_stamp(p, 14, dbg)
    p.label("H_ATT")
    lane_id(p)
    att.emit_att(p, "AT2", 2, 8)
    tl_stamp(p, 6, dbg)
    p.label("M_EXIT"); p("s_endpgm")
    return p, label

def rec_dbg_dump(p, st):
    p("s_lshl_b32 s%d, s%d, 5" % (rec.sT0, rec.sX)); p("s_add_u32 s%d, s%d, s%d" % (rec.sT0, rec.sT0, rec.sH))
    p("s_lshl_b32 s%d, s%d, 2" % (rec.sT0, rec.sT0)); p("s_add_u32 s%d, s%d, s%d" % (rec.sT0, rec.sT0, rec.sW))
    p("s_lshl_b32 s%d, s%d, 7" % (rec.sT0, rec.sT0)); rec.add_const(p, rec.sT0, rec.sT0, DBG)
    vals = [100, 8, 98 if not rec.STAMPS[0] else rec.sSPIN, rec.sISOWN, rec.sCNT] + [rec.sTS + 2 * i for i in range(len(st.stamps))] + [rec.sCNT2, 60, 61]
    open('stamps.txt', 'w').write(','.join(st.stamps))
    p("v_mov_b32 v1, 0"); p("s_mov_b64 exec, 1")
    for i, sreg in enumerate(vals):
        p("v_mov_b32 v2, s%d" % sreg)
        p("buffer_store_dword v2, v1, s[%d:%d], s%d offen offset:%d" % (rec.sWS, rec.sWS + 3, rec.sT0, 4 * i))
    p("s_waitcnt vmcnt(0)"); p("s_mov_b64 exec, -1")

def write(path, launches, progs):
    txt = HEADER
    if len(launches) == 1 and launches[0][0] == NAME + "_kernel":
        txt += "; @launch grid=(%d,1,1) block=(%d,1,1) lds=%d\n" % launches[0][1:]
    else:
        for k, g, b, lds in launches: txt += "; @launch kernel=%s grid=(%d,1,1) block=(%d,1,1) lds=%d\n" % (k, g, b, lds)
    txt += '.amdgcn_target "amdgcn-amd-amdhsa--gfx950"\n'
    for p, label, v, s, a in progs: txt += p.text()
    for p, label, v, s, a in progs: txt += descriptor(label, v, s, a)
    open(path, "w").write(txt)

if __name__ == "__main__":
    mode = sys.argv[1]
    if mode == "rec":
        dbg = int(sys.argv[3]) if len(sys.argv) > 3 else 0
        p, label = rec_standalone(dbg)
        probs = check(p.lines, "rec")
        i0 = p.lines.index("REC_LOOP:"); i1 = p.lines.index("REC_TAIL:")
        probs += check(p.lines[i0:i1] + p.lines[i0:i1], "loop-wrap")
        for x in dict.fromkeys(probs): print("HAZARD", x)
        p0, l0 = k0_kernel(True)
        for x in dict.fromkeys(check(p0.lines, "k0")): print("HAZARD", x)
        write(sys.argv[2], [(l0, 256, 256, 64), (label, 256, 256, 163840)], [(p0, l0, 80, 72, 80), (p, label, 512, 102, 256)])
        print("instructions:", sum(1 for l in p.lines if not l.endswith(":") and not l.startswith((";", "."))),
              "loop:", sum(1 for l in p.lines[i0:i1] if not l.endswith(":") and not l.startswith((";", "."))))

    if mode == "gemm":
        p0, l0 = k0_kernel(False)
        p, label = gemm_kernel()
        probs = check(p.lines, "gemm")
        for nm in ("G_T", "G_N"):
            i0 = p.lines.index(nm + "_LOOP:"); i1 = i0 + next(i for i, l in enumerate(p.lines[i0:]) if l.startswith("s_cbranch_scc1 " + nm + "_LOOP"))
            probs += check(p.lines[i0:i1] + p.lines[i0:i1], "wrap")
        for x in dict.fromkeys(probs): print("HAZARD", x)
        write(sys.argv[2], [(l0, 256, 256, 64), (label, 192, 256, 163840)], [(p0, l0, 80, 72, 80), (p, label, 512, 102, 256)])
        print("instructions:", sum(1 for l in p.lines if not l.endswith(":") and not l.startswith((";", "."))))

    if mode == "multi":
        devd = int(sys.argv[3]) if len(sys.argv) > 3 else 0
        p0, l0 = k0_kernel(False)
        pg, lgm = gemm_kernel()
        pr, lr = rec_standalone(devd)
        pm, lm = mkv_kernel(); pa, la = att_kernel(); po, lo = out_kernel()
        mk = moe_kernels()
        progs = [(p0, l0, 80, 72, 80), (pg, lgm, 512, 102, 256), (pr, lr, 512, 102, 256), (pm, lm, 512, 102, 256), (pa, la, 256, 102, 256)]
        progs += [(p, l, 256, 102, 256) for p, l, g in mk] + [(po, lo, 512, 102, 256)]
        launches = [(l0, 256, 256, 64), (lgm, 192, 256, 163840), (lr, 256, 256, 163840), (lm, 64, 256, 163840), (la, 64, 256, 0)]
        launches += [(l, g, 256, 163840) for p, l, g in mk] + [(lo, 60, 256, 163840)]
        for p, l, *_ in progs:
            for x in dict.fromkeys(check(p.lines, l)): print("HAZARD", x)
        write(sys.argv[2], launches, progs)
        print("written")

    if mode == "fused":
        devd = int(sys.argv[3]) if len(sys.argv) > 3 else 0
        import os
        pm, lm = fused_kernel(devd, bool(os.environ.get("FORCE_SLOW")))
        for x in dict.fromkeys(check(pm.lines, lm)): print("HAZARD", x)
        write(sys.argv[2], [(lm, 256, 256, 163840)], [(pm, lm, 512, 102, 256)])
        print("instructions:", sum(1 for l in pm.lines if not l.endswith(":") and not l.startswith((";", "."))))
```

```python
import re

class Prog:
    def __init__(self):
        self.lines = []
        self._uid = 0
    def __call__(self, s):
        for l in s.strip("\n").split("\n"):
            l = l.strip()
            if l: self.lines.append(l)
    def label(self, name): self.lines.append(name + ":")
    def c(self, text): self.lines.append("; " + text)
    def uid(self, base):
        self._uid += 1
        return "%s_%d" % (base, self._uid)
    def nop(self, n):
        while n > 0:
            k = min(n, 16)
            self("s_nop %d" % (k - 1)); n -= k
    def text(self):
        out = []
        for l in self.lines:
            if l.endswith(":") or l.startswith(".") : out.append(l)
            else: out.append("    " + l)
        return "\n".join(out) + "\n"

class Counter:
    def __init__(self, prog, name, maxv):
        self.p, self.name, self.maxv = prog, name, maxv
        self.q = []
    def issue(self, tag): self.q.append(tag)
    def n_for(self, tag):
        idx = max(i for i, t in enumerate(self.q) if t == tag)
        return len(self.q) - 1 - idx
    def wait(self, tag):
        if tag not in self.q: return
        n = self.n_for(tag)
        assert n <= self.maxv, (self.name, tag, n)
        self.p("s_waitcnt %s(%d)" % (self.name, n))
        self.q = self.q[len(self.q) - n:] if n else []
    def wait_all(self):
        self.p("s_waitcnt %s(0)" % self.name); self.q = []
    def clear(self): self.q = []

def vr(base, n=1):
    return "v%d" % base if n == 1 else "v[%d:%d]" % (base, base + n - 1)
def ar(base, n=1):
    return "a%d" % base if n == 1 else "a[%d:%d]" % (base, base + n - 1)
def sr(base, n=1):
    return "s%d" % base if n == 1 else "s[%d:%d]" % (base, base + n - 1)

_REG = re.compile(r"^(-|abs\()?\s*([vas])(\d+)\)?$|^(-|abs\()?\s*([vas])\[(\d+):(\d+)\]\)?$")
def regs_of(op):
    op = op.strip()
    m = _REG.match(op)
    if not m:
        if op in ("vcc", "exec", "m0", "scc"): return {op}
        if op in ("vcc_lo", "vcc_hi"): return {"vcc"}
        if op in ("exec_lo", "exec_hi"): return {"exec"}
        return set()
    if m.group(2): return {m.group(2) + m.group(3)}
    return {m.group(5) + str(i) for i in range(int(m.group(6)), int(m.group(7)) + 1)}

TRANS = ("v_exp_f32", "v_log_f32", "v_rcp_f32", "v_rsq_f32", "v_sqrt_f32", "v_sin_f32", "v_cos_f32", "v_rcp_iflag_f32")
RMW = ("v_fmac_f32", "v_dot2c_f32_bf16", "v_pk_fmac_f16", "v_mac_f32")

class Ins:
    def __init__(self, text):
        self.text = text
        t = text.split(";")[0].strip()
        parts = t.split(None, 1)
        self.op = parts[0]
        rest = parts[1] if len(parts) > 1 else ""
        toks = []; depth = 0; cur = ""
        for ch in rest:
            if ch in "[(": depth += 1
            if ch in "])": depth -= 1
            if ch == "," and depth == 0: toks.append(cur.strip()); cur = ""
            else: cur += ch
        if cur.strip(): toks.append(cur.strip())
        self.mods = ""
        if toks:
            last = toks[-1].split(None, 1)
            if len(last) > 1 and not last[0].startswith("hwreg"):
                toks[-1] = last[0]; self.mods = last[1]
        self.ops = toks
        op = self.op
        self.base = re.sub(r"_(e32|e64|dpp|sdwa)$", "", op)
        self.is_smfmac = op.startswith("v_smfmac")
        self.is_mfma = op.startswith("v_mfma") or self.is_smfmac
        self.is_valu = op.startswith("v_") and not self.is_mfma
        self.is_trans = self.base in TRANS
        self.is_dpp = op.endswith("_dpp") or "row_" in self.mods or "quad_perm" in self.mods
        self.is_perml = op.startswith("v_permlane")
        self.is_rdlane = op.startswith("v_readlane") or op.startswith("v_readfirstlane")
        self.is_vmem = op.startswith("buffer_") or op.startswith("global_")
        self.is_ds = op.startswith("ds_")
        self.is_salu = op.startswith("s_")
        self.lds_dma = self.is_vmem and re.search(r"\blds\b", self.mods) is not None
        R = [regs_of(o) for o in toks]
        d, u = set(), set()
        self.srcA = self.srcB = self.srcC = set()
        if self.is_mfma:
            d = R[0]; self.srcA, self.srcB = R[1], R[2]
            if self.is_smfmac: self.srcC = R[0]; self.idx = R[3]; u = R[0] | R[1] | R[2] | R[3]
            else: self.srcC = R[3]; self.idx = set(); u = R[1] | R[2] | R[3]
        elif self.is_valu:
            if self.is_perml and "swap" in op:
                d = R[0] | R[1]; u = R[0] | R[1]
            elif op.startswith("v_cmp"):
                d = R[0]; u = set().union(*R[1:])
            else:
                d = R[0]; u = set().union(*R[1:]) if len(R) > 1 else set()
                if self.base in RMW: u |= R[0]
                if self.base == "v_cndmask_b32" and len(R) == 3: u |= {"vcc"}
                if self.is_dpp: u |= R[0]
                if self.base in ("v_add_co_u32", "v_addc_co_u32", "v_sub_co_u32"):
                    d = R[0] | R[1]; u = set().union(*R[2:])
        elif self.is_vmem:
            if op in ("buffer_inv", "buffer_wbl2"): pass
            elif "load" in op and not self.lds_dma:
                d = R[0]; u = set().union(*R[1:])
            elif self.lds_dma:
                u = set().union(*R) | {"m0"}
            elif "atomic" in op:
                u = set().union(*R)
                if "sc0" in self.mods: d = R[0]
            else:
                u = set().union(*R)
            self.store_data = R[0] if ("store" in op and op.startswith("buffer_")) else (R[1] if "store" in op else set())
        elif self.is_ds:
            if "read" in op or "bpermute" in op or "swizzle" in op: d = R[0]; u = set().union(*R[1:]) if len(R) > 1 else set()
            else: u = set().union(*R)
        elif self.is_salu:
            if op.startswith(("s_cmp", "s_cbranch", "s_branch", "s_waitcnt", "s_nop", "s_barrier", "s_endpgm", "s_sleep", "s_setprio")):
                u = set().union(*R) if R else set()
                if op.startswith("s_cbranch_vcc"): u |= {"vcc"}
            else:
                d = R[0] if R else set(); u = set().union(*R[1:]) if len(R) > 1 else set()
                if "saveexec" in op: d |= {"exec"}; u |= {"exec"}
        self.d, self.u = d, u
        self.states = 1
        if op == "s_nop": self.states = int(toks[0], 0) + 1
        self.passes = 8 if ("32x32" in op) else 4

def isv(r): return r[0] in "va" and r[1:].isdigit()
def iss(r): return (r[0] == "s" and r[1:].isdigit()) or r == "vcc"

PHYS = True
def check(lines, name="", window=24):
    ins = [Ins(l) for l in lines if l and not l.endswith(":") and not l.startswith(";") and not l.startswith(".")]
    probs = []
    for b in ins:
        m = re.search(r'offset:(\d+)', b.mods)
        if m and b.op.startswith('buffer_') and int(m.group(1)) > 4095: probs.append('%s: offset too large: %s' % (name, b.text))
    T = []; t = 0; pipe = 0
    for x in ins:
        if x.is_mfma and PHYS: t = max(t, pipe)
        T.append(t)
        if x.is_mfma: pipe = t + 4 * x.passes
        t += 4 * x.states
    for j, b in enumerate(ins):
        for i in range(j - 1, max(-1, j - window - 1), -1):
            a = ins[i]
            dist = (T[j] - T[i]) // 4 - a.states + (a.states - 1 if False else 0)
            if a.op == "s_nop": continue
            need = 0; why = ""
            def req(n, w):
                nonlocal need, why
                if n > need: need, why = n, w
            vd = {r for r in a.d if isv(r)}
            sd = {r for r in a.d if iss(r)}
            if a.is_valu:
                if b.is_mfma and vd & b.u: req(2, "VALU->MFMA")
                if b.is_valu and b.is_dpp and vd & b.u: req(2, "VALU->DPP")
                if b.is_perml and vd & b.u: req(2, "VALU->permlane")
                if b.is_rdlane and vd & b.u: req(1, "VALU->readlane")
                if a.is_trans and b.is_valu and not b.is_trans and vd & b.u: req(1, "trans->VALU")
                if a.is_trans and (b.is_mfma or b.is_vmem or b.is_ds) and vd & b.u: req(1, "trans->use")
                if sd:
                    if b.is_valu and sd & b.u: req(2, "VALU sgpr->VALU")
                    if b.is_vmem and sd & b.u: req(5, "VALU sgpr->VMEM")
                    if b.is_rdlane and sd & b.u: req(4, "VALU sgpr->lane select")
            if a.is_mfma:
                p = a.passes
                rawAB = {4: 8, 8: 12}[p]; ovl = {4: 6, 8: 10}[p]; war = {4: 3, 8: 7}[p]
                if b.is_mfma:
                    if vd & (b.srcA | b.srcB | getattr(b, "idx", set())): req(rawAB, "MFMA->MFMA A/B")
                    if vd & b.srcC and (b.srcC != a.d or b.op != a.op): req(ovl, "MFMA->MFMA C overlap")
                    if vd & b.d and not (vd & b.srcC): req(ovl, "MFMA->MFMA WAW")
                else:
                    if vd & (b.u | b.d): req(rawAB, "MFMA->%s" % b.op)
                    if b.is_valu and a.srcC & b.d: req(war, "MFMA C WAR")
            if a.is_vmem and "store" in a.op and ("x4" in a.op or "x3" in a.op):
                sdv = {r for r in a.store_data if isv(r)}
                if sdv & b.d: req(2 if b.is_valu else 1, "store data WAR")
            if a.is_salu and "m0" in a.d and b.lds_dma if hasattr(b, "lds_dma") else False: req(1, "m0->lds dma")
            if need > dist:
                probs.append("%s: need %d have %d (%s): [%s] -> [%s]" % (name, need, dist, why, a.text, b.text))
            if dist >= 24: break
    return probs


def code_touch(p, sreg, vtmp, lds_off, target=None, nbytes=4096):
    l = p.uid("PCREF")
    p("s_getpc_b64 s[%d:%d]" % (sreg, sreg + 1)); p.label(l)
    if target:
        p("s_add_u32 s%d, s%d, %s-%s" % (sreg, sreg, target, l)); p("s_addc_u32 s%d, s%d, 0" % (sreg + 1, sreg + 1))
    p("s_and_b32 s%d, s%d, 0xffff" % (sreg + 1, sreg + 1)); p("s_mov_b32 s%d, %d" % (sreg + 2, nbytes)); p("s_mov_b32 s%d, 0x00020000" % (sreg + 3))
    p("v_mbcnt_lo_u32_b32 v%d, -1, 0" % vtmp); p("v_mbcnt_hi_u32_b32 v%d, -1, v%d" % (vtmp, vtmp)); p("v_lshlrev_b32 v%d, 6, v%d" % (vtmp, vtmp))
    p("s_mov_b32 m0, %d" % lds_off); p.nop(1)
    p("buffer_load_dword v%d, s[%d:%d], 0 offen lds" % (vtmp, sreg, sreg + 3))
```

```python
from asm import *
from layout import *
from gemm import sWS, sW
from mkv import spin_flags, sSPIN
from k0 import wave_sum

sWG, sWU, sWD = 44, 48, 52
sTASK = 24
sT0, sT1, sT2 = 64, 65, 66

def rnd(p, r): p("v_cvt_pk_bf16_f32 v%d, v%d, v%d" % (r, r, r)); p("v_lshlrev_b32 v%d, 16, v%d" % (r, r))

def wave_max_u32(p, v, t):
    for ctrl in ("quad_perm:[1,0,3,2]", "quad_perm:[2,3,0,1]", "row_half_mirror", "row_mirror"):
        p.nop(2)
        p("v_max_u32_dpp v%d, v%d, v%d %s row_mask:0xf bank_mask:0xf" % (v, v, v, ctrl))
    p("v_mov_b32 v%d, v%d" % (t, v)); p.nop(2)
    p("v_permlane16_swap_b32 v%d, v%d" % (v, t)); p("v_max_u32 v%d, v%d, v%d" % (v, v, t))
    p("v_mov_b32 v%d, v%d" % (t, v)); p.nop(2)
    p("v_permlane32_swap_b32 v%d, v%d" % (v, t)); p("v_max_u32 v%d, v%d, v%d" % (v, v, t))

def counter_add(p, addr):
    p("s_waitcnt vmcnt(0)")
    p("v_mov_b32 v7, 1"); p("v_mov_b32 v8, 0"); p("s_mov_b32 s%d, 0x%x" % (sT0, addr)); p("s_mov_b64 exec, 1")
    p("buffer_atomic_add v7, v8, s[%d:%d], s%d offen sc1" % (sWS, sWS + 3, sT0)); p("s_mov_b64 exec, -1")

def wait_count(p, addr, count, name):
    l = p.uid(name); ld = p.uid(name + "D")
    p("v_mov_b32 v8, 0"); p("s_mov_b32 s%d, 0x%x" % (sT0, addr))
    p.label(l)
    p("buffer_load_dword v7, v8, s[%d:%d], s%d offen sc1" % (sWS, sWS + 3, sT0))
    p("s_add_u32 s%d, s%d, 1" % (sSPIN, sSPIN))
    p("s_waitcnt vmcnt(0)")
    p("v_cmp_gt_u32 vcc, %d, v7" % count) if count <= 64 else (p("v_mov_b32 v9, %d" % count), p("v_cmp_gt_u32 vcc, v9, v7"))
    p("s_cbranch_vccz %s" % ld)
    p("s_cmp_gt_u32 s%d, %d" % (sSPIN, 1 << 18)); p("s_cbranch_scc1 %s" % ld)
    p("s_sleep 8"); p("s_branch %s" % l)
    p.label(ld)

def emit_select(p):
    K = 16
    p("v_lshlrev_b32 v1, 4, v0"); p("s_mov_b32 s%d, 0x%x" % (sT0, RR))
    for k in range(8):
        p("buffer_load_dwordx4 %s, v1, s[%d:%d], s%d offen offset:%d sc1" % (vr(K + 4 * k, 4), sWS, sWS + 3, sT0, (k % 4) * 1024))
        if k == 3: p("s_add_u32 s%d, s%d, 4096" % (sT0, sT0))
    p("s_waitcnt vmcnt(0)")
    p("v_lshlrev_b32 v2, 2, v0")
    for k in range(8):
        for c in range(4):
            r = K + 4 * k + c
            p("v_ashrrev_i32 v3, 31, v%d" % r); p("v_or_b32 v3, 0x80000000, v3"); p("v_xor_b32 v%d, v%d, v3" % (r, r))
            p("v_and_b32 v%d, 0xffff0000, v%d" % (r, r))
            p("v_sub_u32 v3, %d, v2" % (0xffff - 256 * k - c)); p("v_or_b32 v%d, v%d, v3" % (r, r))
    for it in range(8):
        p("v_max3_u32 v4, v%d, v%d, v%d" % (K, K + 1, K + 2))
        for k in range(3, 31, 2): p("v_max3_u32 v4, v4, v%d, v%d" % (K + k, K + k + 1))
        p("v_max_u32 v4, v4, v%d" % (K + 31))
        wave_max_u32(p, 4, 5)
        p("v_mov_b32 v%d, v4" % (56 + it))
        if it < 7:
            for k in range(32):
                p("v_cmp_eq_u32 vcc, v4, v%d" % (K + k)); p.nop(2); p("v_cndmask_b32 v%d, v%d, 0, vcc" % (K + k, K + k))
    p("v_mov_b32 v4, v56")
    for it in range(1, 8):
        p("v_cmp_eq_u32 vcc, %d, v0" % it); p.nop(2); p("v_cndmask_b32 v4, v4, v%d, vcc" % (56 + it))
    p("v_and_b32 v5, 0xffff, v4"); p("v_sub_u32 v5, 0xffff, v5")
    p("v_and_b32 v4, 0xffff0000, v4")
    p("v_ashrrev_i32 v3, 31, v4"); p("v_not_b32 v3, v3"); p("v_or_b32 v3, 0x80000000, v3"); p("v_xor_b32 v4, v4, v3")
    p("v_and_b32 v4, 0xffff0000, v4")
    p("v_mul_f32 v4, 0xbfb8aa3b, v4"); p("v_exp_f32 v4, v4"); p.nop(1); p("v_add_f32 v4, 1.0, v4"); p("v_rcp_f32 v4, v4"); p.nop(1)
    rnd(p, 4)
    p("v_lshlrev_b32 v6, 2, v0"); p("s_mov_b32 s%d, 0x%x" % (sT0, IDX)); p("s_mov_b64 exec, 0xff")
    p("buffer_store_dword v5, v6, s[%d:%d], s%d offen sc1" % (sWS, sWS + 3, sT0))
    p("buffer_store_dword v4, v6, s[%d:%d], s%d offen offset:32 sc1" % (sWS, sWS + 3, sT0))
    p("s_mov_b64 exec, -1")
    counter_add(p, FLG_MOE)

def load_cols16(p, srd, soff, row_stride, nk, lds_base_sgpr, dest, pi, vG, vRD):
    for ks in range(nk):
        p("s_add_u32 m0, s%d, %d" % (lds_base_sgpr, ks * 1024))
        p("s_add_u32 s%d, s%d, 0x%x" % (sT0, soff, ks * 32 * row_stride))
        p("buffer_load_dwordx4 v%d, s[%d:%d], s%d offen lds" % (vG, srd, srd + 3, sT0))
        if ks % 32 == 31: p("s_waitcnt vmcnt(16)")
    p("s_waitcnt vmcnt(0)")
    n = 0
    for ks in range(nk):
        for r in range(2):
            off = ks * 1024 + (r * 512 if pi else r * 128)
            p("ds_read_b64_tr_b16 %s, v%d offset:%d" % (vr(dest + 4 * ks + 2 * r, 2), vRD, off)); n += 1
            if n % 12 == 0: p("s_waitcnt lgkmcnt(4)")
    p("s_waitcnt lgkmcnt(0)")

def col_addrs(p, row_stride, pi, vG, vRD, sBase):
    p("v_lshrrev_b32 v7, 1, v0"); p("v_mul_u32_u24 v%d, %d, v7" % (vG, row_stride))
    p("v_and_b32 v7, 1, v0"); p("v_lshl_add_u32 v%d, v7, 4, v%d" % (vG, vG))
    p("v_lshrrev_b32 v7, 4, v0"); p("v_lshlrev_b32 v%d, %d, v7" % (vRD, 7 if pi else 8))
    p("v_bfe_u32 v7, v0, 2, 2"); p("v_lshl_add_u32 v%d, v7, 5, v%d" % (vRD, vRD))
    p("v_and_b32 v7, 3, v0"); p("v_lshl_add_u32 v%d, v7, 3, v%d" % (vRD, vRD))
    p("v_add_u32 v%d, s%d, v%d" % (vRD, sBase, vRD))

def emit_f1(p):
    sB, sOff = 25, 26
    wait_count(p, FLG_MOE, 1, "F1W")
    p("s_mul_i32 s%d, s%d, 40960" % (sB, sW))
    col_addrs(p, 3456, False, 2, 3, sB)
    p("v_and_b32 v7, 7, v0"); p("v_lshlrev_b32 v7, 2, v7"); p("s_mov_b32 s%d, 0x%x" % (sT1, IDX))
    p("buffer_load_dword v4, v7, s[%d:%d], s%d offen sc1" % (sWS, sWS + 3, sT1))
    X, G, U = 16, 96, 176
    p("s_lshl_b32 s%d, s%d, 5" % (sOff, sTASK))
    for srd, lo in ((sWG, 0), (sWU, 20480)):
        for ks in range(20):
            p("s_add_u32 m0, s%d, %d" % (sB, lo + ks * 1024))
            p("s_add_u32 s%d, s%d, 0x%x" % (sT0, sOff, ks * 32 * 3456))
            p("buffer_load_dwordx4 v2, s[%d:%d], s%d offen lds" % (srd, srd + 3, sT0))
    p("s_waitcnt vmcnt(40)")
    p("v_mul_u32_u24 v4, 1280, v4"); p("v_lshrrev_b32 v7, 4, v0"); p("v_lshl_add_u32 v4, v7, 4, v4")
    p("s_mov_b32 s%d, 0x%x" % (sT1, XN))
    for ks in range(20): p("buffer_load_dwordx4 %s, v4, s[%d:%d], s%d offen offset:%d sc1" % (vr(X + 4 * ks, 4), sWS, sWS + 3, sT1, ks * 64))
    p("s_waitcnt vmcnt(0)")
    n = 0
    for dest, lo in ((G, 0), (U, 20480)):
        for ks in range(20):
            for r in range(2):
                p("ds_read_b64_tr_b16 %s, v3 offset:%d" % (vr(dest + 4 * ks + 2 * r, 2), lo + ks * 1024 + r * 128)); n += 1
                if n % 12 == 0: p("s_waitcnt lgkmcnt(4)")
    p("s_waitcnt lgkmcnt(0)")
    for ks in range(20):
        p("v_mfma_f32_16x16x32_bf16 v[8:11], %s, %s, %s" % (vr(G + 4 * ks, 4), vr(X + 4 * ks, 4), "0" if ks == 0 else "v[8:11]"))
        p("v_mfma_f32_16x16x32_bf16 v[12:15], %s, %s, %s" % (vr(U + 4 * ks, 4), vr(X + 4 * ks, 4), "0" if ks == 0 else "v[12:15]"))
    p.nop(8)
    for i in range(4):
        g, u, t = 8 + i, 12 + i, 16 + i
        rnd(p, g); rnd(p, u)
        p("v_mul_f32 v%d, 0xbfb8aa3b, v%d" % (t, g)); p("v_exp_f32 v%d, v%d" % (t, t)); p.nop(1)
        p("v_add_f32 v%d, 1.0, v%d" % (t, t)); p("v_rcp_f32 v%d, v%d" % (t, t)); p.nop(1)
        p("v_mul_f32 v%d, v%d, v%d" % (g, g, t)); rnd(p, g)
        p("v_mul_f32 v%d, v%d, v%d" % (g, g, u))
    p("v_cvt_pk_bf16_f32 v16, v8, v9"); p("v_cvt_pk_bf16_f32 v17, v10, v11")
    p("s_lshr_b32 s%d, s%d, 1" % (sT1, sTASK)); p("s_lshl_b32 s%d, s%d, 10" % (sT1, sT1))
    p("s_and_b32 s%d, s%d, 1" % (sT2, sTASK)); p("s_lshl_b32 s%d, s%d, 3" % (sT2, sT2)); p("s_add_u32 s%d, s%d, s%d" % (sT1, sT1, sT2))
    p("s_add_u32 s%d, s%d, 0x%x" % (sT1, sT1, HHF)); p("v_lshlrev_b32 v4, 4, v0")
    p("buffer_store_dwordx2 v[16:17], v4, s[%d:%d], s%d offen sc1" % (sWS, sWS + 3, sT1))
    counter_add(p, FLG_MOE + 128)

def emit_f2(p, st1=lambda q: None, st2=lambda q: None):
    sB, sOff = 25, 26
    p("s_mov_b32 s%d, 0" % sB)
    col_addrs(p, 1280, True, 2, 3, sB)
    H_ = 16
    W_ = 232
    p("s_lshl_b32 s%d, s%d, 5" % (sOff, sTASK))
    def wreq(ks):
        p("s_add_u32 m0, s%d, %d" % (sB, ks * 1024)); p("s_add_u32 s%d, s%d, 0x%x" % (sT0, sOff, ks * 32 * 1280))
        p("buffer_load_dwordx4 v2, s[%d:%d], s%d offen lds" % (sWD, sWD + 3, sT0))
    for ks in range(40): wreq(ks)
    wait_count(p, FLG_MOE + 128, 108, "F2W")
    st1(p)
    for ks in range(40, 54): wreq(ks)
    p("v_lshlrev_b32 v4, 4, v0"); p("s_mov_b32 s%d, 0x%x" % (sT1, HHF))
    for ks in range(54):
        if ks and ks % 4 == 0: p("s_add_u32 s%d, s%d, 4096" % (sT1, sT1))
        p("buffer_load_dwordx4 %s, v4, s[%d:%d], s%d offen offset:%d sc1" % (vr(H_ + 4 * ks, 4), sWS, sWS + 3, sT1, (ks % 4) * 1024))
        if ks == 40: p("s_waitcnt vmcnt(41)")
    p("v_and_b32 v7, 7, v0"); p("v_lshlrev_b32 v7, 2, v7"); p("s_mov_b32 s%d, 0x%x" % (sT0, IDX + 32))
    p("buffer_load_dword v12, v7, s[%d:%d], s%d offen sc1" % (sWS, sWS + 3, sT0))
    p("s_waitcnt vmcnt(0)")
    st2(p)
    def rd(ks):
        w = W_ + 4 * (ks % 4)
        for r in range(2): p("ds_read_b64_tr_b16 %s, v3 offset:%d" % (vr(w + 2 * r, 2), ks * 1024 + r * 512))
    for ks in range(3): rd(ks)
    for ks in range(54):
        w = W_ + 4 * (ks % 4)
        if ks + 3 < 54: rd(ks + 3)
        p("s_waitcnt lgkmcnt(%d)" % (2 * min(3, 53 - ks)))
        p("v_mfma_f32_16x16x32_bf16 v[8:11], %s, %s, %s" % (vr(w, 4), vr(H_ + 4 * ks, 4), "0" if ks == 0 else "v[8:11]"))
    p.nop(8)
    for i in range(4):
        rnd(p, 8 + i); p("v_mul_f32 v%d, v%d, v12" % (8 + i, 8 + i)); rnd(p, 8 + i)
    p("v_and_b32 v7, 7, v0"); p("v_mul_u32_u24 v7, 2560, v7"); p("v_lshrrev_b32 v13, 4, v0"); p("v_lshl_add_u32 v7, v13, 4, v7")
    p("s_lshl_b32 s%d, s%d, 6" % (sT0, sTASK)); p("s_add_u32 s%d, s%d, 0x%x" % (sT0, sT0, UPD))
    p("s_mov_b32 s68, 0x00ff00ff"); p("s_mov_b32 s69, 0x00ff00ff"); p("s_mov_b64 exec, s[68:69]")
    p("buffer_store_dwordx4 v[8:11], v7, s[%d:%d], s%d offen sc1" % (sWS, sWS + 3, sT0))
    p("s_mov_b64 exec, -1")
    counter_add(p, FLG_MOE + 256)
```

```python
import os
from asm import *
from layout import *
from gemm import sWS, sW
from mkv import spin_flags, sSPIN

sGRP, sCT = 12, 13
sWO = 44
sXI, sOUT = 48, 52
sS, sOFS, sRB = 24, 25, 21
sIDX = 72
sT0, sT1, sT2, sT3 = 64, 65, 66, 67
vL16, vRD0, vRD1, vG, vXA, vFL = 1, 2, 3, 4, 5, 6
vB = 16
vACC = 144
vX, vXN, vU = 160, 162, 164
XPOS = int(os.environ.get('XPOS', '8'))
DEFER = 40
NRING = 16

def load_wo(p):
    vm = Counter(p, "vmcnt", 63)
    t = 7
    p("s_mul_i32 s%d, s%d, 36864" % (sRB, sW))
    p("v_lshrrev_b32 v%d, 2, v0" % t); p("v_mul_u32_u24 v%d, 1280, v%d" % (vG, t))
    p("v_bfe_u32 v%d, v0, 4, 1" % t); p("v_lshlrev_b32 v%d, 1, v%d" % (t, t))
    p("v_and_b32 v8, 3, v0"); p("v_xor_b32 v%d, v%d, v8" % (t, t)); p("v_lshl_add_u32 v%d, v%d, 4, v%d" % (vG, t, vG))
    p("v_lshrrev_b32 v%d, 4, v0" % t); p("v_lshlrev_b32 v%d, 8, v%d" % (vRD0, t))
    p("v_bfe_u32 v%d, v0, 2, 2" % t); p("v_lshl_add_u32 v%d, v%d, 6, v%d" % (vRD0, t, vRD0))
    p("v_and_b32 v%d, 3, v0" % t); p("v_lshl_add_u32 v%d, v%d, 3, v%d" % (vRD0, t, vRD0))
    p("v_add_u32 v%d, s%d, v%d" % (vRD0, sRB, vRD0))
    p("v_bfe_u32 v%d, v0, 4, 1" % t); p("v_lshlrev_b32 v%d, 5, v%d" % (t, t))
    p("v_sub_u32 v%d, 32, v%d" % (vRD1, t)); p("v_add_u32 v%d, v%d, v%d" % (vRD1, vRD1, vRD0))
    p("v_add_u32 v%d, v%d, v%d" % (vRD0, vRD0, t))
    p("s_mul_i32 s%d, s%d, %d" % (sT1, sW, 1024 * 1280)); p("s_lshl_b32 s%d, s%d, 6" % (sT2, sCT)); p("s_add_u32 s%d, s%d, s%d" % (sT1, sT1, sT2))
    def issue(n):
        for a in range(4):
            p("s_add_u32 m0, s%d, %d" % (sRB, (n % 9) * 4096 + a * 1024))
            p("s_add_u32 s%d, s%d, 0x%x" % (sT0, sT1, (64 * n + 16 * a) * 1280))
            p("buffer_load_dwordx4 v%d, s[%d:%d], s%d offen lds" % (vG, sWO, sWO + 3, sT0)); vm.issue(n)
    for n in range(9): issue(n)
    for n in range(16):
        vm.wait(n)
        so = (n % 9) * 4096
        for k2 in range(2):
            for c2 in range(2):
                for r in range(2):
                    p("ds_read_b64_tr_b16 %s, v%d offset:%d" % (ar(((2 * n + k2) * 2 + c2) * 4 + 2 * r, 2), vRD0 if c2 == 0 else vRD1, so + (2 * k2 + r) * 1024))
        p("s_waitcnt lgkmcnt(0)")
        if n + 9 < 16: issue(n + 9)

sTODO, sAFF, sAV = 80, 82, 84
sC2, sQT = 86, 87
def emit_out(p, name, wait_sel, wait_moe):
    p("s_mov_b32 s%d, 0" % sSPIN)
    p("v_lshlrev_b32 v%d, 4, v0" % vL16)
    wait_sel(p)
    p("v_lshlrev_b32 v6, 2, v0"); p("s_mov_b32 s%d, 0x%x" % (sT0, IDX))
    p("buffer_load_dword v7, v6, s[%d:%d], s%d offen sc1" % (sWS, sWS + 3, sT0)); p("s_waitcnt vmcnt(0)")
    for i in range(8): p("v_readlane_b32 s%d, v7, %d" % (sIDX + i, i))
    epi_addr(p, False)
    p("v_lshlrev_b32 v%d, 2, v0" % vFL)
    p("s_mov_b32 s%d, 0x49249249" % sTODO); p("s_mov_b32 s%d, 0x92492492" % (sTODO + 1))
    p("s_lshl_b64 s[%d:%d], s[%d:%d], s%d" % (sTODO, sTODO + 1, sTODO, sTODO + 1, sGRP))
    p("s_bitset0_b64 s[%d:%d], %d" % (sTODO, sTODO + 1, NSEG - 1)); p("s_bitset0_b64 s[%d:%d], %d" % (sTODO, sTODO + 1, NSEG - 2))
    p("s_mov_b64 s[%d:%d], 0" % (sAFF, sAFF + 1))
    for i in range(8):
        p("s_lshr_b32 s%d, s%d, 5" % (sT0, sIDX + i)); p("s_bitset1_b64 s[%d:%d], s%d" % (sAFF, sAFF + 1, sT0))
    loop = name + "_LOOP"; lw = name + "_WM"; lgo = name + "_GO"; lend = name + "_END"
    p.label(loop)
    p("s_cmp_eq_u64 s[%d:%d], 0" % (sTODO, sTODO + 1)); p("s_cbranch_scc1 %s" % lend)
    p("s_andn2_b64 s[%d:%d], s[%d:%d], s[%d:%d]" % (sAV, sAV + 1, sTODO, sTODO + 1, sAFF, sAFF + 1))
    p("s_cbranch_scc0 %s" % lw)
    p("s_ff1_i32_b64 s%d, s[%d:%d]" % (sS, sAV, sAV + 1))
    p("s_branch %s" % lgo)
    p.label(lw)
    wait_moe(p)
    p("s_mov_b64 s[%d:%d], 0" % (sAFF, sAFF + 1)); p("s_branch %s" % loop)
    p.label(lgo)
    p("s_bitset0_b64 s[%d:%d], s%d" % (sTODO, sTODO + 1, sS))
    p("s_lshr_b32 s%d, s%d, 1" % (sC2, sW))
    task(p, name, False)
    p("s_branch %s" % loop)
    p.label(lend)
    lx = name + "_X"
    p("s_cmp_lg_u32 s%d, 2" % sGRP); p("s_cbranch_scc1 %s" % lx)
    wait_moe(p)
    p("s_mov_b32 s%d, %d" % (sS, NSEG - 2)); p("s_mov_b32 s%d, 0" % sQT)
    half_task(p, name + "H")
    p.label(lx)

def half_task(p, name):
    if os.environ.get("TAILPF"): code_touch(p, 88, 14, 20480)
    p("s_and_b32 s%d, s%d, 1" % (sC2, sW))
    epi_addr(p, True)
    p("v_lshlrev_b32 v%d, 2, v0" % vFL)
    task(p, name, True)

def emit_extra(p, name, wait_all):
    p("s_mov_b32 s%d, 0" % sSPIN)
    p("v_lshlrev_b32 v%d, 4, v0" % vL16); p("v_lshlrev_b32 v%d, 2, v0" % vFL)
    wait_all(p)
    p("v_lshlrev_b32 v6, 2, v0"); p("s_mov_b32 s%d, 0x%x" % (sT0, IDX))
    p("buffer_load_dword v7, v6, s[%d:%d], s%d offen sc1" % (sWS, sWS + 3, sT0)); p("s_waitcnt vmcnt(0)")
    for i in range(8): p("v_readlane_b32 s%d, v7, %d" % (sIDX + i, i))
    p("s_cmp_eq_u32 s%d, 3" % sGRP); p("s_cselect_b32 s%d, %d, %d" % (sS, NSEG - 2, NSEG - 1))
    p("s_cmp_eq_u32 s%d, 4" % sGRP); p("s_cselect_b32 s%d, 0, 1" % sQT)
    half_task(p, name)

def epi_addr(p, half):
    if half: p("s_lshl_b32 s%d, s%d, 4" % (sT0, sQT))
    else: p("s_and_b32 s%d, s%d, 1" % (sT0, sW)); p("s_lshl_b32 s%d, s%d, 4" % (sT0, sT0))
    p("v_and_b32 v6, 15, v0"); p("v_add_u32 v6, s%d, v6" % sT0)
    p("v_mov_b32 v9, v6")
    p("v_mul_u32_u24 v%d, 1280, v6" % vXA)
    p("v_lshrrev_b32 v6, 4, v0"); p("v_lshl_add_u32 v%d, v6, 3, v%d" % (vXA, vXA))
    if half: p("s_and_b32 s%d, s%d, 1" % (sT0, sW))
    else: p("s_lshr_b32 s%d, s%d, 1" % (sT0, sW))
    p("s_lshl_b32 s%d, s%d, 5" % (sT0, sT0)); p("s_lshl_b32 s%d, s%d, 6" % (sT1, sCT))
    p("s_add_u32 s%d, s%d, s%d" % (sT0, sT0, sT1)); p("v_add_u32 v%d, s%d, v%d" % (vXA, sT0, vXA))

STAMP = [None]
def task(p, name, half):
    st = STAMP[0] or (lambda q, slot: None)
    st(p, 20 if half else 23)
    nq = 1 if half else 2
    p("s_mul_i32 s%d, s%d, %d" % (sT3, sS, 32 * 1280))
    def epi_loads():
        p("buffer_load_dwordx2 %s, v%d, s[%d:%d], s%d offen" % (vr(vX, 2), vXA, sXI, sXI + 3, sT3)); vm.issue("x")
        p("s_add_u32 s%d, s%d, 0x%x" % (sT1, sT3, XN))
        p("buffer_load_dwordx2 %s, v%d, s[%d:%d], s%d offen" % (vr(vXN, 2), vXA, sWS, sWS + 3, sT1)); vm.issue("x")
        if not half:
            p("s_mov_b32 s%d, 0x%x" % (sT1, FLG_MOE + 256))
            p("buffer_load_dword v12, off, s[%d:%d], s%d sc1" % (sWS, sWS + 3, sT1)); vm.issue("x")
    p("s_lshl_b32 s%d, s%d, 7" % (sT0, sS)); p("s_add_u32 s%d, s%d, 0x%x" % (sT0, sT0, FLG_O))
    p("s_mov_b64 exec, s[36:37]")
    spin_flags(p, 7, 32, vFL, sT0, True, name + "_F")
    p("s_mov_b64 exec, -1")
    st(p, 21 if half else 24)
    vm = Counter(p, "vmcnt", 63)
    p("s_lshl_b32 s%d, s%d, 18" % (sOFS, sS)); p("s_lshl_b32 s%d, s%d, 15" % (sT0, sW))
    p("s_add_u32 s%d, s%d, s%d" % (sOFS, sOFS, sT0)); p("s_add_u32 s%d, s%d, 0x%x" % (sOFS, sOFS, OF))
    if half: p("s_lshl_b32 s%d, s%d, 17" % (sT0, sQT)); p("s_add_u32 s%d, s%d, s%d" % (sOFS, sOFS, sT0))
    nring = 32 if half else NRING
    def slot(ks, q): return vB + ((ks % nring) * nq + q) * 4
    def req(ks):
        for q in range(nq):
            p("s_add_u32 s%d, s%d, 0x%x" % (sT0, sOFS, q * 131072 + ks * 1024))
            p("buffer_load_dwordx4 %s, v%d, s[%d:%d], s%d offen" % (vr(slot(ks, q), 4), vL16, sWS, sWS + 3, sT0)); vm.issue(ks)
    for ks in range(nring): req(ks)
    for ks in range(32):
        vm.wait(ks)
        for c2 in range(2):
            for q in range(nq):
                d = vACC + (c2 * nq + q) * 4
                p("v_mfma_f32_16x16x32_bf16 %s, %s, %s, %s" % (vr(d, 4), ar((ks * 2 + c2) * 4, 4), vr(slot(ks, q), 4), "0" if ks == 0 else vr(d, 4)))
        if ks + nring < 32: req(ks + nring)
        if ks == XPOS: epi_loads()
    vm.wait("x")
    st(p, 22 if half else 25)
    p("s_lshl_b32 s%d, s%d, 12" % (sT0, sW)); p("v_add_u32 v7, s%d, v%d" % (sT0, vL16))
    p("s_barrier")
    p.nop(4)
    for t in range(2 * nq): p("ds_write_b128 v7, %s offset:%d" % (vr(vACC + 4 * t, 4), t * 1024))
    if not half:
        l0 = p.uid("OW0")
        p("v_mov_b32 v13, 16384"); p("s_cmp_lg_u32 s%d, 0" % sW); p("s_cbranch_scc1 %s" % l0)
        p("ds_write_b32 v13, v12")
        p.label(l0)
    p("s_waitcnt lgkmcnt(0)"); p("s_barrier")
    if not half:
        p("ds_read_b32 v12, v13"); p("s_waitcnt lgkmcnt(0)")
        p("v_readfirstlane_b32 s%d, v12" % sT0); p("s_cmp_lt_u32 s%d, 40" % sT0)
        p("s_cselect_b64 s[%d:%d], s[%d:%d], 0" % (sAFF, sAFF + 1, sAFF, sAFF + 1))
    ldone = p.uid("OTD")
    if half: p("s_cmp_ge_u32 s%d, 2" % sW); p("s_cbranch_scc1 %s" % ldone)
    p("s_lshl_b32 s%d, s%d, 10" % (sT0, sW)); p("v_add_u32 v7, s%d, v%d" % (sT0, vL16))
    for w in range(4): p("ds_read_b128 %s, v7 offset:%d" % (vr(vB + 4 * w, 4), w * 4096))
    p("s_waitcnt lgkmcnt(0)")
    for i in range(4):
        p("v_add_f32 v%d, v%d, v%d" % (vB + i, vB + i, vB + 4 + i)); p("v_add_f32 v%d, v%d, v%d" % (vB + 8 + i, vB + 8 + i, vB + 12 + i))
        p("v_add_f32 v%d, v%d, v%d" % (vB + i, vB + i, vB + 8 + i))
    sv, z, xx = vB, vB + 4, vB + 8
    def rnd(r): p("v_cvt_pk_bf16_f32 v%d, v%d, v%d" % (r, r, r)); p("v_lshlrev_b32 v%d, 16, v%d" % (r, r))
    for i in range(4): rnd(sv + i)
    for h_ in range(2):
        p("v_lshlrev_b32 v%d, 16, v%d" % (z + 2 * h_, vXN + h_)); p("v_and_b32 v%d, 0xffff0000, v%d" % (z + 2 * h_ + 1, vXN + h_))
        p("v_lshlrev_b32 v%d, 16, v%d" % (xx + 2 * h_, vX + h_)); p("v_and_b32 v%d, 0xffff0000, v%d" % (xx + 2 * h_ + 1, vX + h_))
    lskip = p.uid("NOUPD")
    p("s_lshl_b32 s%d, s%d, 5" % (sT0, sS)); p("v_add_u32 v8, s%d, v9" % sT0)
    p("v_mov_b32 v10, -1")
    for i in range(8):
        p("v_cmp_eq_u32 vcc, s%d, v8" % (sIDX + i)); p.nop(2); p("v_cndmask_b32 v10, v10, %d, vcc" % i)
    p("v_cmp_le_i32 vcc, 0, v10")
    p("s_and_saveexec_b64 s[68:69], vcc"); p("s_cbranch_execz %s" % lskip)
    p("v_mul_u32_u24 v10, 2560, v10")
    p("v_lshrrev_b32 v11, 4, v0"); p("v_lshl_add_u32 v10, v11, 4, v10")
    p("s_lshl_b32 s%d, s%d, 6" % (sT0, sC2)); p("s_lshl_b32 s%d, s%d, 7" % (sT1, sCT))
    p("s_add_u32 s%d, s%d, s%d" % (sT0, sT0, sT1)); p("s_add_u32 s%d, s%d, 0x%x" % (sT0, sT0, UPD))
    p("buffer_load_dwordx4 %s, v10, s[%d:%d], s%d offen sc1" % (vr(vU, 4), sWS, sWS + 3, sT0)); p("s_waitcnt vmcnt(0)")
    for i in range(4): p("v_add_f32 v%d, v%d, v%d" % (z + i, z + i, vU + i)); rnd(z + i)
    p.label(lskip); p("s_mov_b64 exec, s[68:69]") if False else None
    p("s_mov_b64 exec, -1")
    for i in range(4):
        g = vB + 12 + i
        p("v_mul_f32 v%d, 0xbfb8aa3b, v%d" % (g, z + i)); p("v_exp_f32 v%d, v%d" % (g, g)); p.nop(1)
        p("v_add_f32 v%d, 1.0, v%d" % (g, g)); p("v_rcp_f32 v%d, v%d" % (g, g)); p.nop(1)
        p("v_mul_f32 v%d, v%d, v%d" % (g, g, z + i)); rnd(g)
        p("v_mul_f32 v%d, v%d, v%d" % (g, g, sv + i)); rnd(g)
        p("v_add_f32 v%d, v%d, v%d" % (g, g, xx + i))
    p("v_cvt_pk_bf16_f32 v%d, v%d, v%d" % (vU, vB + 12, vB + 13)); p("v_cvt_pk_bf16_f32 v%d, v%d, v%d" % (vU + 1, vB + 14, vB + 15))
    p("buffer_store_dwordx2 %s, v%d, s[%d:%d], s%d offen %s" % (vr(vU, 2), vXA, sOUT, sOUT + 3, sT3, os.environ.get("OUTFL", "")))
    p.label(ldone)
```

```python
from asm import *
from layout import *

sWS = 4
sX, sH, sW, sSTEP, sTAG = 12, 13, 14, 15, 16
sMLC, sMLST, sMLRS, sMRC, sMRST, sMRRS = 17, 18, 19, 20, 21, 22
sP1W = 23
sP1R = 24
sP1W1, sP1W2, sLINE = 25, 26, 27
sKFN, sVFN, sKM, sVM = 28, 29, 30, 31
sM8 = 32
sLO32 = 34
sOWN4 = 36
sC = 10
sBC, sBN, sBP = 39, 40, 41
sISOWN, sISPUB = 42, 43
sWQ, sWK, sWV, sWO = 44, 48, 52, 56
sCML, sCMLU, sCMRR, sCMRU = 60, 61, 62, 63
sT0, sT1, sT2, sT3 = 64, 65, 66, 67
sSPIN = 68
sFLG = 69
sFKM = 70
sLOC, sREM = 71, 72
sMLC4, sMRC4 = 74, 75
sCA, sCB = 8, 9
sM0K, sWARM = 73, 3
s3F80 = 38
sSEL = 44
sTS = 76
SPIN_MAX = 1 << 18
import os
DELAY1 = int(os.environ.get('DELAY1', '30'))
PACE = int(os.environ.get('PACE', '0'))
DELAY2 = int(os.environ.get('DELAY2', '0'))
PF = int(os.environ.get('PF', '1'))
T4NOP = int(os.environ.get('T4NOP', '1'))
B2BF = int(os.environ.get('B2BF', '0'))
DELAY1B = int(os.environ.get('DELAY1B', '0'))
MRLATE = int(os.environ.get('MRLATE', '3'))
ARLATE = int(os.environ.get('ARLATE', '0'))
TIMED = int(os.environ.get('TIMED', '1'))
TD0 = int(os.environ.get('TD0', '15'))
TD = int(os.environ.get('TD', '8'))
TFILL = int(os.environ.get('TFILL', '0'))
TFIRST = int(os.environ.get('TFIRST', '1'))
MRD = int(os.environ.get('MRD', '45'))
NLDS = int(os.environ.get('NLDS', '2'))
RTPOS = int(os.environ.get('RTPOS', '0'))
TD2 = int(os.environ.get('TD2', '12'))
FOLDX = int(os.environ.get('FOLDX', '0'))
EARLYF = int(os.environ.get('EARLYF', '3'))
ROWP = int(os.environ.get('ROWP', '1'))
RECLAST = int(os.environ.get('RECLAST', '1'))
OWN3 = int(os.environ.get('OWN3', '0'))
OD2 = int(os.environ.get('OD2', '8'))
OD3 = int(os.environ.get('OD3', '8'))
WARMIN = int(os.environ.get('WARMIN', '1'))
POLLN = int(os.environ.get('POLLN', '3'))
POLLDELAY = int(os.environ.get('POLLDELAY', '0'))
OWN2 = int(os.environ.get('OWN2', '1'))
OSTAG = int(os.environ.get('OSTAG', '8'))
sCNT2 = 53
sFINW = 55
sKVD, sKVC = 58, 59
sPCH = 52
RTOUCH = int(os.environ.get('RTOUCH', '1'))
MRFIRST = int(os.environ.get('MRFIRST', '0'))
STAMPS = os.environ.get('STAMPS', '').split(',')
FIRST_FLAGS = os.environ.get('FIRST', '')
TOUCH = int(os.environ.get('TOUCH', '1'))
REALTIME = int(os.environ.get('REALTIME', '0'))
PUB = int(os.environ.get('PUB', '0'))
COUNT = 1
NSAMP = int(os.environ.get('NSAMP', '2'))
FORCECAND = int(os.environ.get('FORCECAND', '0'))
TRACE = int(os.environ.get('TRACE', '0'))
TRC = 0x5C00000
sTRP = 54
sCNT = 40
TOUCHR = int(os.environ.get('TOUCHR', '1'))
sTR = 41
sMFL = 22
TRA = int(os.environ.get('TRA', '1'))
B2B = int(os.environ.get('B2B', '1'))
KPOS = int(os.environ.get('KPOS', '1'))
WSTR = int(os.environ.get('WSTR', '64'))
ALS = int(os.environ.get('ALS', '0'))
NOCHECK = bool(int(os.environ.get('NOCHECK', '0')))

vL16, vLW, vTW, vTR, vOW, vIDX, vPS = 1, 2, 3, 4, 5, 6, 7
vOR = 0
vX0 = 8
vA = 12
vQ0, vQ1, vK0, vK1, vV0, vV1 = 32, 36, 40, 44, 48, 52
vSB = 56
vVX = 88
vWQ = 96
aWV, aWO, aWK4 = 0, 160, 240

L_KX = 0
L_QT = 8192
G2OFF = 1152
L_KT = L_QT + 2304
L_O = L_KT + 2304
OSTR = 288
L_JUNK = 16128
L_FLG = 15104
L_IM2 = 15104
L_W = 16384
L_WSTRIDE = 36864

def unit_q(j, tt): return vr(vWQ + (j * 2 + tt) * 8, 8)
def unit_k9(tt): return ar(aWK4 + 8 * tt, 8)
def unit_v(j, tt): return ar(aWV + (j * 2 + tt) * 8, 8)
def unit_wo_pair(P, c): return ar(aWO + P * 32 + c * 8, 8)
def unit_wo4(c): return ar(aWO + 64 + c * 4, 4)
ACCQK = [vQ0, vQ1, vK0, vK1]

def smf(p, acc, a, b): p("v_smfmac_f32_16x16x64_bf16 %s, %s, %s, v%d" % (vr(acc, 4), vr(a, 4), b, vIDX))

def add_const(p, dst, src, const):
    p("s_add_u32 s%d, s%d, 0x%x" % (dst, src, const & 0xFFFFFFFF))

def setup_consts(p):
    p("v_and_b32 v0, 63, v0")
    p("v_lshlrev_b32 v%d, 4, v0" % vL16)
    p("s_mul_i32 s%d, s%d, %d" % (sT0, sW, L_WSTRIDE))
    p("s_add_u32 s%d, s%d, %d" % (sT0, sT0, L_W))
    p("v_add_u32 v%d, s%d, v%d" % (vLW, sT0, vL16))
    p("v_bfe_u32 v8, v0, 4, 1")
    p("v_mul_u32_u24 v8, %d, v8" % G2OFF)
    p("v_lshrrev_b32 v9, 5, v0")
    p("v_lshlrev_b32 v9, 4, v9")
    p("v_and_b32 v10, 15, v0")
    p("v_add_u32 v9, v9, v10")
    p("s_lshl_b32 s%d, s%d, 5" % (sT0, sW))
    p("v_add_u32 v9, s%d, v9" % sT0)
    p("v_lshl_add_u32 v8, v9, 3, v8")
    p("v_add_u32 v%d, %d, v8" % (vTW, L_QT))
    p("v_and_b32 v8, 1, v0")
    p("v_mul_u32_u24 v8, %d, v8" % G2OFF)
    p("v_lshrrev_b32 v9, 4, v0")
    p("v_lshlrev_b32 v9, 2, v9")
    p("v_bfe_u32 v10, v0, 2, 2")
    p("v_add_u32 v9, v9, v10")
    p("v_lshl_add_u32 v8, v9, 3, v8")
    p("v_add_u32 v%d, %d, v8" % (vTR, L_QT))
    p("v_and_b32 v8, 7, v0"); p("v_mul_u32_u24 v8, %d, v8" % OSTR)
    p("v_bfe_u32 v9, v0, 3, 1"); p("v_lshl_add_u32 v8, v9, 5, v8")
    p("v_lshrrev_b32 v9, 4, v0"); p("v_lshl_add_u32 v8, v9, 3, v8")
    p("s_lshl_b32 s%d, s%d, 6" % (sT0, sW)); p("s_add_u32 s%d, s%d, %d" % (sT0, sT0, L_O))
    p("v_add_u32 v%d, s%d, v8" % (vOW, sT0))
    p("s_mov_b32 s%d, 0x00ff00ff" % sM8); p("s_mov_b32 s%d, 0x00ff00ff" % (sM8 + 1))
    p("s_mov_b32 s%d, -1" % sLO32); p("s_mov_b32 s%d, 0" % (sLO32 + 1))
    p("s_mov_b32 s%d, 0x00010001" % sOWN4); p("s_mov_b32 s%d, 0x00010001" % (sOWN4 + 1))
    p("v_mov_b32 v8, 0xeeee")
    p("v_mov_b32 v9, 0x4444")
    p("v_cndmask_b32 v%d, v8, v9, s[%d:%d]" % (vIDX, sM8, sM8 + 1))
    p("v_lshrrev_b32 v8, 5, v0"); p("v_lshlrev_b32 v8, 13, v8")
    p("v_bfe_u32 v9, v0, 3, 1"); p("v_lshl_add_u32 v8, v9, 12, v8")
    p("v_and_b32 v9, 7, v0"); p("v_lshl_add_u32 v8, v9, 4, v8")
    p("v_bfe_u32 v9, v0, 4, 1"); p("v_lshl_add_u32 v%d, v9, 3, v8" % vPS)
    p("s_mov_b32 s%d, 0x3e0293ee" % sC); p("s_mov_b32 s%d, 0x3e0293ee" % (sC + 1))
    p("s_cmp_eq_u32 s%d, 0" % sW); p("s_cselect_b32 s%d, 1, 0" % sISOWN)
    p("s_cmp_ge_u32 s%d, 24" % sH); p("s_cselect_b32 s%d, 1, 0" % sT1)
    p("s_cmp_eq_u32 s%d, 1" % sW); p("s_cselect_b32 s%d, s%d, 0" % (sT1, sT1))
    p("s_or_b32 s%d, s%d, s%d" % (sISOWN, sISOWN, sT1))
    p("s_lshl_b32 s%d, s%d, 3" % (sT1, sT1)); p("s_add_u32 s%d, s%d, s%d" % (sT0, sH, sT1))
    p("s_cmp_eq_u32 s%d, 39" % sT0); p("s_cselect_b32 s%d, s%d, 0" % (sMFL, sISOWN))
    p("s_mul_i32 s%d, s%d, %d" % (sP1R, sX, P1_X))
    p("s_add_u32 s%d, s%d, 0x%x" % (sP1R, sP1R, P1))
    p("s_lshl_b32 s%d, s%d, 7" % (sT3, sH)); p("s_add_u32 s%d, s%d, s%d" % (sP1W2, sP1R, sT3))
    p("s_lshl_b32 s%d, s%d, 14" % (sT3, sW)); p("s_add_u32 s%d, s%d, s%d" % (sP1W, sP1W2, sT3))
    add_const(p, sP1W1, sP1W, 8 * 8192)
    p("s_lshl_b32 s%d, s%d, 13" % (sT3, sW)); p("s_add_u32 s%d, s%d, s%d" % (sP1W2, sP1W2, sT3)); add_const(p, sP1W2, sP1W2, 16 * 8192)
    p("s_lshl_b32 s%d, s%d, 12" % (sT3, sT0)); p("s_add_u32 s%d, s%d, s%d" % (sP1R, sP1R, sT3))
    p("s_lshl_b32 s%d, s%d, 7" % (sT0, sT0))
    p("s_lshl_b32 s%d, s%d, 13" % (sT1, sX))
    add_const(p, sMLC, sT1, ML)
    p("s_add_u32 s%d, s%d, s%d" % (sMLST, sMLC, sT0))
    p("s_lshl_b32 s%d, s%d, 21" % (sT1, sX))
    add_const(p, sT2, sT1, MR)
    p("s_add_u32 s%d, s%d, s%d" % (sMRST, sT2, sT0))
    p("s_xor_b32 s%d, s%d, 0x%x" % (sT1, sT1, MR_X))
    add_const(p, sMRC, sT1, (MR - MR_S) & 0xFFFFFFFF)
    p("s_and_b32 s%d, s%d, 1" % (sT0, sH))
    p("s_cmp_eq_u32 s%d, s%d" % (sT0, sX))
    p("s_cselect_b32 s%d, 1, 0" % sISPUB)
    if not PUB: p("s_mov_b32 s%d, 0" % sISPUB)
    p("s_lshl_b32 s%d, s%d, 4" % (sT0, sH))
    add_const(p, sFLG, sT0, FLG_KVQ)
    p("s_lshl_b32 s%d, s%d, 2" % (sT0, sH))
    add_const(p, sFKM, sT0, FLG_KM)
    p("s_lshl_b32 s%d, s%d, 14" % (sT0, sH))
    p("s_lshl_b32 s%d, s%d, 11" % (sM0K, sW))
    p("s_lshl_b32 s%d, s%d, 12" % (sT1, sW))
    p("s_add_u32 s%d, s%d, s%d" % (sT1, sT1, sT0))
    add_const(p, sWARM, sT1, KF + 2 * KV_S)
    p("s_add_u32 s%d, s%d, s%d" % (sT0, sT0, sM0K))
    add_const(p, sKFN, sT0, KF)
    add_const(p, sVFN, sT0, VF)
    p("s_lshl_b32 s%d, s%d, 11" % (sT0, sH))
    add_const(p, sKM, sT0, KM)
    p("s_lshl_b32 s%d, s%d, 12" % (sT0, sH))
    p("s_lshl_b32 s%d, s%d, 10" % (sT1, sW))
    p("s_add_u32 s%d, s%d, s%d" % (sT0, sT0, sT1))
    add_const(p, sVM, sT0, VM)

def setup_vor(p):
    if TRACE:
        p("s_lshl_b32 s%d, s%d, 5" % (sTRP, sX)); p("s_add_u32 s%d, s%d, s%d" % (sTRP, sTRP, sH)); p("s_lshl_b32 s%d, s%d, 2" % (sTRP, sTRP))
        p("s_add_u32 s%d, s%d, s%d" % (sTRP, sTRP, sW)); p("s_lshl_b32 s%d, s%d, 12" % (sTRP, sTRP)); add_const(p, sTRP, sTRP, TRC)
    p("s_mov_b32 s%d, 0x3f80" % s3F80); p("s_mov_b32 s%d, 0" % sCNT2)
    p("s_cmp_eq_u32 s%d, 2" % sW); p("s_cselect_b32 s%d, 1024, 0" % sPCH)
    p("s_cmp_eq_u32 s%d, 3" % sW); p("s_cselect_b32 s%d, 0, 1" % sKVD); p("s_mov_b32 s%d, 0" % sKVC)
    p("s_cmp_eq_u32 s%d, 0" % sX); p("s_cselect_b32 s%d, 2, 0" % sFINW)
    for r_ in range(4):
        m_ = 0x03030303 << (2 * r_)
        p("s_mov_b32 s%d, 0x%x" % (sSEL + 2 * r_, m_)); p("s_mov_b32 s%d, 0x%x" % (sSEL + 2 * r_ + 1, m_))
    p("v_and_b32 v8, 7, v0"); p("v_mul_u32_u24 v8, %d, v8" % OSTR)
    p("v_lshrrev_b32 v9, 4, v0"); p("v_lshl_add_u32 v8, v9, 4, v8")
    p("v_add_u32 v%d, %d, v8" % (vOR, L_O))

def finish_consts(p):
    p("s_add_u32 s%d, s%d, s%d" % (sMRST, sMRST, sT0))
    p("s_add_u32 s%d, s%d, s%d" % (sMRC, sMRC, sT2))
    p("s_cmp_eq_u32 s%d, 0" % sISOWN)
    p("s_cselect_b32 s%d, 0x%x, s%d" % (sMLST, OOB, sMLST))
    p("s_cselect_b32 s%d, 0x%x, s%d" % (sMRST, OOB, sMRST))
    p("s_lshl_b32 s%d, s%d, 7" % (sT1, sX)); add_const(p, sT1, sT1, FLG_MEM)
    p("s_cmp_eq_u32 s%d, 0" % sMFL); p("s_cselect_b32 s%d, 0x%x, s%d" % (sMFL, OOB, sT1))
    p("s_lshl_b32 s%d, s%d, 2" % (sT0, sH)); p("s_add_u32 s%d, s%d, s%d" % (sT0, sT0, sW))
    for _ in range(3):
        p("s_cmp_ge_u32 s%d, 40" % sT0); p("s_cselect_b32 s%d, 40, 0" % sT1); p("s_sub_u32 s%d, s%d, s%d" % (sT0, sT0, sT1))
    p("s_lshl_b32 s%d, s%d, 7" % (sLINE, sT0)); add_const(p, sMLRS, sLINE, ML_S)

def load_weights(p, st=None, after_first=None, looks=None):
    vm = Counter(p, "vmcnt", 63)
    vG, vGP, vGO, vSR0, vSR1, vSRP, vSRO = 88, 89, 90, 91, 92, 93, 94
    t = 95
    sRB = sBN
    p("s_mul_i32 s%d, s%d, %d" % (sRB, sW, L_WSTRIDE)); p("s_add_u32 s%d, s%d, %d" % (sRB, sRB, L_W))
    assert ROWP
    vGR = [76, 77, 78, 79]; vRR = [[72, 73], [74, 75]]
    if ROWP:
        p("v_lshrrev_b32 v%d, 4, v0" % t); p("v_lshlrev_b32 v8, 13, v%d" % t)
        p("v_and_b32 v%d, 1, v%d" % (t, t)); p("v_lshlrev_b32 v%d, 1, v%d" % (t, t))
        p("v_and_b32 v9, 15, v0"); p("v_xor_b32 v9, v9, v%d" % t)
        for a in range(4):
            fa = ((a & 1) << 2) | ((a >> 1) << 3)
            p("v_xor_b32 v%d, %d, v9" % (t, fa)); p("v_lshl_add_u32 v%d, v%d, 4, v8" % (vGR[a], t))
    p("s_lshl_b32 s%d, s%d, 8" % (sT0, sH)); p("s_lshl_b32 s%d, s%d, %d" % (sT1, sW, 17 if ROWP else 6))
    p("s_add_u32 s%d, s%d, s%d" % (sT0, sT0, sT1))
    p("s_mul_i32 s%d, s%d, %d" % (sT1, sX, 5 * 524288))
    p("s_add_u32 s%d, s%d, s%d" % (sLOC, sT0, sT1))
    p("s_sub_u32 s%d, %d, s%d" % (sT1, 5 * 524288, sT1))
    p("s_add_u32 s%d, s%d, s%d" % (sREM, sT0, sT1))
    sWOB, sWOB4 = sBC, sBP
    def late_addresses():
        if ROWP:
            p("v_lshrrev_b32 v%d, 5, v0" % t); p("v_mul_u32_u24 v8, %d, v%d" % (L_WSTRIDE, t))
            p("v_bfe_u32 v%d, v0, 3, 1" % t); p("v_lshl_add_u32 v8, v%d, 11, v8" % t); p("v_lshlrev_b32 v9, 3, v%d" % t)
            p("v_bfe_u32 v%d, v0, 4, 1" % t); p("v_lshl_add_u32 v8, v%d, 10, v8" % t); p("v_lshl_add_u32 v9, v%d, 2, v9" % t)
            p("v_bfe_u32 v%d, v0, 2, 1" % t); p("v_lshl_add_u32 v8, v%d, 8, v8" % t); p("v_lshl_add_u32 v9, v%d, 1, v9" % t)
            p("v_and_b32 v%d, 1, v0" % t); p("v_lshl_add_u32 v8, v%d, 3, v8" % t)
            p("v_add_u32 v8, %d, v8" % L_W)
            p("v_bfe_u32 v%d, v0, 1, 1" % t); p("s_lshl_b32 s%d, s%d, 2" % (sT0, sW)); p("v_add_u32 v10, s%d, v%d" % (sT0, t))
            for tt in range(2):
                p("v_add_u32 v%d, %d, v10" % (t, 2 * tt)); p("v_xor_b32 v%d, v%d, v9" % (t, t))
                p("v_lshl_add_u32 v%d, v%d, 4, v8" % (vRR[tt][0], t))
                p("v_add_u32 v%d, %d, v%d" % (vRR[tt][1], 2 * L_WSTRIDE, vRR[tt][0]))
        p("v_bfe_u32 v%d, v0, 2, 1" % t); p("v_mov_b32 v8, v%d" % t)
        p("v_bfe_u32 v%d, v0, 3, 1" % t); p("v_lshl_add_u32 v8, v%d, 2, v8" % t)
        p("v_bfe_u32 v%d, v0, 4, 1" % t); p("v_lshl_add_u32 v8, v%d, 1, v8" % t)
        p("v_bfe_u32 v%d, v0, 5, 1" % t); p("v_lshl_add_u32 v8, v%d, 3, v8" % t)
        p("v_mul_u32_u24 v8, 1280, v8"); p("v_and_b32 v%d, 3, v0" % t); p("v_lshl_add_u32 v%d, v%d, 4, v8" % (vGP, t))
        p("v_lshrrev_b32 v%d, 1, v0" % t); p("v_mul_u32_u24 v8, 1280, v%d" % t)
        p("v_and_b32 v%d, 1, v0" % t); p("v_lshl_add_u32 v%d, v%d, 4, v8" % (vGO, t))
        p("v_lshrrev_b32 v%d, 5, v0" % t); p("v_lshlrev_b32 v%d, 9, v%d" % (vSRP, t))
        p("v_bfe_u32 v%d, v0, 4, 1" % t); p("v_lshl_add_u32 v%d, v%d, 7, v%d" % (vSRP, t, vSRP))
        p("v_bfe_u32 v%d, v0, 2, 1" % t); p("v_lshl_add_u32 v%d, v%d, 6, v%d" % (vSRP, t, vSRP))
        p("v_bfe_u32 v%d, v0, 3, 1" % t); p("v_lshl_add_u32 v%d, v%d, 5, v%d" % (vSRP, t, vSRP))
        p("v_and_b32 v%d, 3, v0" % t); p("v_lshl_add_u32 v%d, v%d, 3, v%d" % (vSRP, t, vSRP))
        p("v_add_u32 v%d, s%d, v%d" % (vSRP, sRB, vSRP))
        p("v_lshrrev_b32 v%d, 4, v0" % t); p("v_lshlrev_b32 v%d, 8, v%d" % (vSRO, t))
        p("v_bfe_u32 v%d, v0, 2, 2" % t); p("v_lshl_add_u32 v%d, v%d, 5, v%d" % (vSRO, t, vSRO))
        p("v_and_b32 v%d, 3, v0" % t); p("v_lshl_add_u32 v%d, v%d, 3, v%d" % (vSRO, t, vSRO))
        p("v_add_u32 v%d, s%d, v%d" % (vSRO, sRB, vSRO))
        _ = 0
        p("s_mul_i32 s%d, s%d, %d" % (sWOB, sH, 128 * 1280))
        p("s_mul_i32 s%d, s%d, 640" % (sT0, sX)); p("s_add_u32 s%d, s%d, s%d" % (sWOB, sWOB, sT0))
        p("s_lshl_b32 s%d, s%d, 5" % (sT0, sW)); p("s_add_u32 s%d, s%d, s%d" % (sWOB4, sWOB, sT0)); add_const(p, sWOB4, sWOB4, 512)
        p("s_lshl_b32 s%d, s%d, 6" % (sT0, sW)); p("s_add_u32 s%d, s%d, s%d" % (sWOB, sWOB, sT0))

    R = []
    for j in range(10): R.append(dict(mat="q", j=j, acc=False, base=vWQ + j * 16, lds=False))
    R.append(dict(mat="k", j=9, acc=True, base=aWK4, lds=False))
    for j in range(10): R.append(dict(mat="v", j=j, acc=True, base=aWV + j * 16, lds=False))
    for P in range(2):
        for g2 in range(2): R.append(dict(mat="op", j=(P, g2), acc=True, base=aWO + P * 32 + g2 * 16, lds=False))
    R.append(dict(mat="o", j=4, acc=True, base=aWO + 64, lds=False))
    order = list(R)
    for n, g in enumerate(order): g["slot"] = n % 9
    for i in range(9):
        slot = (len(R) + i) % 9
        order.append(dict(mat="k", j=slot, acc=False, base=12, lds=True, slot=slot))
    def rg(g, off, n): return (ar if g["acc"] else vr)(g["base"] + off, n)
    def issue(n):
        g = order[n]
        for a in range(4):
            p("s_add_u32 m0, s%d, %d" % (sRB, g["slot"] * 4096 + a * 1024))
            if g["mat"] == "o":
                add_const(p, sT0, sWOB4, a * 32 * 1280); v, srd = vGO, sWO
            elif g["mat"] == "op":
                P, g2 = g["j"]; add_const(p, sT0, sWOB, P * 256 + (64 * g2 + 16 * a) * 1280); v, srd = vGP, sWO
            else:
                j = g["j"]; add_const(p, sT0, sLOC if j < 5 else sREM, (j % 5) * 524288 + a * (32768 if ROWP else 131072))
                v, srd = (vGR[a] if ROWP else vG), {"q": sWQ, "k": sWK, "v": sWV}[g["mat"]]
            p("buffer_load_dwordx4 v%d, s[%d:%d], s%d offen lds" % (v, srd, srd + 3, sT0)); vm.issue(n)
    INFL = int(os.environ.get('INFL', '9'))
    PD = int(os.environ.get('PD', '0'))
    vPF = 87
    if PD: p("v_lshlrev_b32 v%d, 6, v0" % vPF)
    sPF = sBP + 0
    def touch(n):
        if PD == 0 or n >= len(order): return
        g = order[n]
        if g["mat"] not in ("q", "k", "v"): return
        p("s_mov_b32 m0, %d" % L_JUNK)
        jj = g["j"]
        p("s_add_u32 s%d, s%d, 0x%x" % (sT0, sPFL if jj < 5 else sPFR, (jj % 5) * 524288))
        srd = {"q": sWQ, "k": sWK, "v": sWV}[g["mat"]]
        p("buffer_load_dword v%d, s[%d:%d], s%d offen lds" % (vPF, srd, srd + 3, sT0)); vm.issue(("pf", n))
    sPFL, sPFR = 74, 75
    if PD:
        p("s_lshl_b32 s%d, s%d, 14" % (sT0, sH)); p("s_lshl_b32 s%d, s%d, 12" % (sT1, sW)); p("s_add_u32 s%d, s%d, s%d" % (sT0, sT0, sT1))
        p("s_mul_i32 s%d, s%d, %d" % (sT1, sX, 5 * 524288))
        p("s_add_u32 s%d, s%d, s%d" % (sPFL, sT0, sT1))
        p("s_sub_u32 s%d, %d, s%d" % (sT1, 5 * 524288, sT1))
        p("s_add_u32 s%d, s%d, s%d" % (sPFR, sT0, sT1))
    _issue = issue
    def issue(n):
        touch(n + PD)
        _issue(n)
    LEAD = INFL - 1 if ROWP else INFL
    for n in range(1, PD): touch(n)
    for n in range(LEAD): issue(n)
    late_addresses()
    if after_first: after_first(p)
    for n, g in enumerate(order):
        vm.wait(n)
        if ROWP:
            p("s_barrier")
            if n + LEAD < len(order): issue(n + LEAD)
            if looks and n in looks:
                for _ in range(looks[n](p)): vm.issue(("look", n))
        if st is not None: st.stamp("G%d" % n)
        so = g["slot"] * 4096
        for u in range(2):
            for pp in range(4):
                d = rg(g, u * 8 + 2 * pp, 2)
                if g["mat"] == "o": p("ds_read_b64_tr_b16 %s, v%d offset:%d" % (d, vSRO, so + (2 * u + pp // 2) * 1024 + (pp % 2) * 128))
                elif g["mat"] == "op": p("ds_read_b64_tr_b16 %s, v%d offset:%d" % (d, vSRP, so + (2 * u + pp // 2) * 1024 + (pp % 2) * 256))
                elif ROWP: p("ds_read_b64_tr_b16 %s, v%d offset:%d" % (d, vRR[u][pp // 2], so + (pp % 2) * 512))
                else: p("ds_read_b64_tr_b16 %s, v%d offset:%d" % (d, vSR0 if u == 0 else vSR1, so + (pp // 2) * 2048 + (pp % 2) * 512))
        p("s_waitcnt lgkmcnt(0)")
        if g["lds"]:
            if ROWP: p("s_barrier")
            for q in range(4):
                p("ds_write_b128 v%d, %s offset:%d" % (vLW, rg(g, 4 * q, 4), so + q * 1024))
            p("s_waitcnt lgkmcnt(0)")
        if not ROWP:
            if n + INFL < len(order): issue(n + INFL)
            if looks and n in looks:
                for _ in range(looks[n](p)): vm.issue(("look", n))

FIN = dict(vQ=96, vV=vVX, vK=160, vKM=192, vVM=208, vS=224, vSUM=244, vONE=252, vP=16, vO=32)

def emit_final(p):
    import att
    p.label("REC_FINAL")
    p("s_cmp_lg_u32 s%d, 0" % sX); p("s_cbranch_scc1 REC_END")
    p("s_waitcnt lgkmcnt(0)")
    for j in range(2, 5): smf(p, vV0, vA + 4 * j, unit_v(5 + j, 0)); smf(p, vV1, vA + 4 * j, unit_v(5 + j, 1))
    for kk in range(4):
        for r in range(2):
            p("ds_read_b64_tr_b16 %s, v%d offset:%d" % (vr(FIN["vKM"] + 4 * kk + 2 * r, 2), vTR, L_KT - L_QT + 256 * kk + 128 * r))
    for f in range(8): p("ds_read_b128 %s, v%d offset:%d" % (vr(FIN["vK"] + 4 * f, 4), vL16, L_KX + f * 1024))
    p("v_mbcnt_lo_u32_b32 v0, -1, 0"); p("v_mbcnt_hi_u32_b32 v0, -1, v0")
    att.consts(p, FIN["vONE"])
    m = FIN["vVM"]
    for i in range(4): p("v_permlane32_swap_b32 v%d, v%d" % (vV0 + i, vV1 + i))
    for i in (0, 2): p("v_pk_add_f32 %s, %s, %s" % (vr(vV0 + i, 2), vr(vV0 + i, 2), vr(vV1 + i, 2)))
    p("v_cvt_pk_bf16_f32 v%d, v%d, v%d" % (m, vV0, vV0 + 1)); p("v_cvt_pk_bf16_f32 v%d, v%d, v%d" % (m + 1, vV0 + 2, vV0 + 3))
    p("v_mov_b32 v%d, v%d" % (m + 2, m)); p("v_mov_b32 v%d, v%d" % (m + 3, m + 1)); p.nop(2)
    p("v_permlane32_swap_b32 v%d, v%d" % (m, m + 2)); p("v_permlane32_swap_b32 v%d, v%d" % (m + 1, m + 3))
    p("s_mov_b32 s%d, %d" % (att.sS, NSEG - 1))
    att.result_addrs(p)
    p("s_lshl_b32 s%d, s%d, 10" % (sT0, sW)); p("s_add_u32 s%d, s%d, s%d" % (att.sOF, att.sOF, sT0))
    p("s_waitcnt vmcnt(0) lgkmcnt(0)")
    att.core(p, FIN, lambda: None, lambda: None, ne=2, flag=False)
    p("s_barrier")
    p("s_cmp_lg_u32 s%d, 0" % sW); p("s_cbranch_scc1 REC_END")
    att.store_flag(p)
    p("s_branch REC_END")

class Step:
    def __init__(self, p, dbg=False, slow=False):
        self.p = p; self.dbg = dbg
        self.slow = slow; self.loc = "sc1" if slow else ""; self.sfx = "_S" if slow else ""
        self.vm = Counter(p, "vmcnt", 63); self.lg = Counter(p, "lgkmcnt", 15)
        self.retries = []; self.tail = []; self.ool = []
        self.stamps = []; self.prev = {}
    def stamp(self, name):
        if name not in STAMPS: return
        k = sTS + 2 * STAMPS.index(name); assert k + 1 < 94
        self.stamps = list(STAMPS)
        self.p("%s s[%d:%d]" % ("s_memrealtime" if (REALTIME or name == "RT") else "s_memtime", k, k + 1))
    def sb(self, b): return vSB + 8 * b
    def lds_unit(self, i):
        p = self.p; b = self.sb(i % 4)
        p("ds_read_b128 %s, v%d offset:%d" % (vr(b, 4), vLW, i * 2048)); self.lg.issue(("L", i))
        p("ds_read_b128 %s, v%d offset:%d" % (vr(b + 4, 4), vLW, i * 2048 + 1024)); self.lg.issue(("L", i))
    def img_ins(self, j, soff, flags=FIRST_FLAGS):
        so, off = (soff, j * 1024) if j < 4 else ({sMLC: sMLC4, sMRC: sMRC4}[soff], 0)
        self.p("buffer_load_dwordx4 %s, v%d, s[%d:%d], s%d offen offset:%d %s" % (vr(vA + 4 * j, 4), vL16, sWS, sWS + 3, so, off, flags))
    def img_load(self, j, soff, tag):
        self.img_ins(j, soff); self.vm.issue(tag)
    def check_chunk(self, j, soff, kind):
        if NOCHECK: return
        p = self.p; lr = p.uid("RETRY"); lb = p.uid("BACK")
        p("v_cmp_eq_u32 vcc, -1, v%d" % (vA + 4 * j + 3))
        p("s_cbranch_vccnz %s" % lr); p.label(lb)
        self.retries.append((lr, lb, j, soff))
    def emit_retries(self):
        p = self.p
        for f in self.ool: f()
        for kind, lretry, lpoll, ldone, loads in self.tail:
            p.label(lretry)
            p("s_add_u32 s%d, s%d, 1" % (sSPIN, sSPIN))
            if COUNT: p("s_add_u32 s%d, s%d, 1" % (sCNT, sCNT))
            p("s_cmp_gt_u32 s%d, %d" % (sSPIN, SPIN_MAX)); p("s_cbranch_scc1 %s" % ldone)
            loads(); p("s_branch %s" % lpoll)
        for lr, lb, j, soff, later in self.retries:
            p.label(lr)
            l2 = p.uid("SPIN")
            p.label(l2)
            self.img_ins(j, soff, "sc1")
            for k in later: self.img_ins(k, soff, "sc1")
            p("s_add_u32 s%d, s%d, 1" % (sSPIN, sSPIN))
            if COUNT: p("s_add_u32 s%d, s%d, %d" % (sCNT, sCNT, (1 << 10) if soff == sMLC else (1 << 20)))
            p("s_cmp_gt_u32 s%d, %d" % (sSPIN, SPIN_MAX))
            p("s_waitcnt vmcnt(0)")
            p("s_cbranch_scc1 %s" % lb)
            p("v_cmp_eq_u32 vcc, -1, v%d" % (vA + 4 * j + 3))
            p("s_cbranch_vccnz %s" % l2)
            p("s_branch %s" % lb)

    def top_state(self):
        self.vm.clear(); self.lg.clear()
        for i in range(2): self.lg.issue(("L", i)); self.lg.issue(("L", i))

    def masked_store(self, data, n, voff, soff, mask, flags="", off=0, tag="st"):
        p = self.p
        p("s_mov_b64 exec, s[%d:%d]" % (mask, mask + 1))
        op = {1: "dword", 2: "dwordx2", 4: "dwordx4"}[n]
        p("buffer_store_%s %s, v%d, s[%d:%d], s%d offen offset:%d %s" % (op, vr(data, n), voff, sWS, sWS + 3, soff, off, flags))
        p("s_mov_b64 exec, -1")
        self.vm.issue(tag)

    def housekeeping(self):
        p = self.p
        def clears(a, b):
            for i in range(a, b): p("v_mov_b64 %s, 0" % vr(vQ0 + 2 * i, 2))
        def prefetch(a, b):
            for i in range(a, b): self.lds_unit(i)
        def salu():
            add_const(p, sWARM, sWARM, KV_S); add_const(p, sVFN, sVFN, KV_S)
            add_const(p, sMLST, sMLST, ML_S); add_const(p, sMRST, sMRST, MR_S)
            p("s_add_u32 s%d, s%d, 1" % (sSTEP, sSTEP))
        return clears, prefetch, salu

    def poller(self):
        p, lg = self.p, self.lg
        clears, prefetch, salu = self.housekeeping()
        p.label("REC_POLL" + self.sfx)
        lskip = p.uid("NOFLG"); lnext = p.uid("KVNEXT")
        p("s_cmp_eq_u32 s%d, 0" % sKVC); p("s_cbranch_scc1 %s" % lskip)
        p("s_waitcnt vmcnt(0)")
        p("v_lshrrev_b32 v%d, 2, v%d" % (vA + 17, vL16)); p("ds_read_b32 v%d, v%d offset:%d" % (vA, vA + 17, L_FLG))
        p("s_add_u32 s%d, s%d, 2" % (sT0, sSTEP)); p("s_lshr_b32 s%d, s%d, 1" % (sT1, sT0)); p("s_add_u32 s%d, s%d, 1" % (sT3, sT1))
        p("s_waitcnt lgkmcnt(0)")
        p("v_cmp_ne_u32 vcc, 0, v%d" % vA)
        p("v_readlane_b32 s%d, v%d, s%d" % (sT1, vA, sT1)); p("v_readlane_b32 s%d, v%d, s%d" % (sT3, vA, sT3))
        p("s_cmp_eq_u32 vcc_lo, -1"); p("s_cselect_b32 s%d, 1, 0" % sKVD)
        p("s_and_b32 s%d, s%d, s%d" % (sT1, sT1, sT3)); p("s_cbranch_scc1 %s" % lskip)
        p("s_lshl_b32 s%d, s%d, 7" % (sT0, sT0))
        p("s_add_u32 s%d, s%d, s%d" % (sT0, sT0, sFLG))
        self.flag_spin(sT0)
        p.label(lskip)
        p("s_add_u32 s%d, s%d, 3" % (sT0, sSTEP)); p("s_and_b32 s%d, s%d, 0x43" % (sT0, sT0)); p("s_or_b32 s%d, s%d, s%d" % (sT0, sT0, sKVD))
        p("s_cmp_eq_u32 s%d, 0" % sT0); p("s_cselect_b32 s%d, 1, 0" % sKVC)
        if RECLAST:
            p("s_cmp_eq_u32 s%d, %d" % (sSTEP, NSEG - 1)); p("s_cselect_b32 s%d, s%d, s%d" % (sKVC, sFINW, sKVC))
            if os.environ.get("TAILPF"): p("s_cmp_eq_u32 s%d, %d" % (sSTEP, NSEG - 2)); p("s_cselect_b32 s%d, 3, s%d" % (sKVC, sKVC))
        p("s_add_u32 s%d, s%d, s%d" % (sT2, sMLC, sPCH))
        vAD = vX0 + 2
        lg.clear()
        p("v_add_u32 v%d, s%d, v%d" % (vAD, sPCH, vL16))
        p("s_xor_b32 s%d, s%d, 1" % (sTAG, sTAG))
        fill = [lambda: clears(0, 6), lambda: clears(6, 12), lambda: prefetch(0, 1), lambda: prefetch(1, 2)]
        ok = p.uid("IOK")
        def variant(nch, sets, polln, last):
            def pload(k):
                for c in range(nch):
                    p("buffer_load_dwordx4 %s, v%d, s[%d:%d], s%d offen offset:%d sc1" % (vr(sets[k] + 4 * c, 4), vL16, sWS, sWS + 3, sT2, 1024 * c))
            self.stamp("PS0")
            p.nop(TD0)
            for k in range(polln):
                pload(k)
                if k < polln - 1: p.nop(TD if nch == 1 else TD2)
            lp = p.uid("IPOLL")
            p.label(lp)
            for k in range(polln):
                p("s_waitcnt vmcnt(%d)" % (nch * (polln - 1)))
                for c in range(nch):
                    p("ds_write_b128 v%d, %s offset:%d" % (vAD, vr(sets[k] + 4 * c, 4), L_O if c == 0 else L_IM2 - 1024))
                t_ = vX0 + 3
                p("v_max3_u32 v%d, v%d, v%d, v%d" % (t_, sets[k], sets[k] + 1, sets[k] + 2))
                if nch == 1: p("v_max_u32 v%d, v%d, v%d" % (t_, t_, sets[k] + 3))
                else:
                    p("v_max3_u32 v%d, v%d, v%d, v%d" % (t_, t_, sets[k] + 3, sets[k] + 4))
                    p("v_max3_u32 v%d, v%d, v%d, v%d" % (t_, t_, sets[k] + 5, sets[k] + 6))
                    p("v_max_u32 v%d, v%d, v%d" % (t_, t_, sets[k] + 7))
                p("v_cmp_eq_u32 vcc, -1, v%d" % t_)
                if k == polln - 1:
                    p("s_add_u32 s%d, s%d, 1" % (sSPIN, sSPIN))
                    if COUNT: p("s_add_u32 s%d, s%d, 1" % (sCNT2, sCNT2))
                    p("s_cmp_gt_u32 s%d, %d" % (sSPIN, SPIN_MAX)); p("s_cbranch_scc1 %s" % ok)
                p("s_cbranch_vccz %s" % ok)
                self.stamp("PI")
                pload(k)
            p("s_branch %s" % lp)
        for f in fill: f()
        p("s_barrier")
        if not RECLAST: p("s_cmp_lt_u32 s%d, %d" % (sSTEP, NSEG - 1)); p("s_cbranch_scc0 REC_END")
        if NLDS == 3:
            l2 = p.uid("POLL2")
            p("s_cmp_eq_u32 s%d, 2" % sW); p("s_cbranch_scc1 %s" % l2)
            variant(1, [vA + 12, vA + 16, vVX, vVX + 4][:POLLN], POLLN, False)
            p.label(l2)
            variant(2, [vA + 12, vVX], 2, True)
        else:
            variant(1, [vA + 8, vA + 12, vA + 16, vVX, vVX + 4][:POLLN], POLLN, True)
        p.label(ok)
        self.stamp("PW")
        p("s_waitcnt lgkmcnt(0)")

    def body(self):
        p, vm, lg = self.p, self.vm, self.lg
        clears, prefetch, salu = self.housekeeping()
        self.poller()
        self.top_state()
        p.label("REC_LOOP" + self.sfx)
        self.stamp("preB3")
        p("s_barrier")
        self.stamp("B3"); self.stamp("RT")
        if TRACE:
            p("s_waitcnt lgkmcnt(0)")
            for i in range(TRACE): p("v_writelane_b32 v%d, s%d, %d" % (vX0 + 2, sTS + 2 * i, i))
            p("v_lshrrev_b32 v%d, 2, v%d" % (vX0 + 3, vL16))
            p("s_mov_b64 exec, 0xffff")
            p("buffer_store_dword v%d, v%d, s[%d:%d], s%d offen" % (vX0 + 2, vX0 + 3, sWS, sWS + 3, sTRP))
            p("s_mov_b64 exec, -1")
            p("s_add_u32 s%d, s%d, 64" % (sTRP, sTRP))
        self.stamp("TOP")
        for c in range(NLDS):
            p("ds_read_b128 %s, v%d offset:%d" % (vr(vA + 4 * c, 4), vL16, L_O + 1024 * c if c < 2 else L_IM2)); lg.issue(("IM", c))
        self.img_load(NLDS, sMLC, ("AL", NLDS))
        prefetch(2, 4)
        add_const(p, sMLC4, sMLC, 4096)
        if NLDS == 3: self.img_load(4, sMLC, ("AL", 4))
        add_const(p, sMRC, sMRC, MR_S); add_const(p, sMRC4, sMRC, 4096)
        p("s_mov_b32 m0, %d" % L_JUNK)
        p("s_add_u32 s%d, s%d, s%d" % (sT1, sMRC, sLINE))
        def rtouch():
            p("buffer_load_dword off, s[%d:%d], s%d lds" % (sWS, sWS + 3, sT1)); vm.issue("rt")
        if RTOUCH and RTPOS == 1: rtouch()
        li = 0
        def k_pair(j, mid=None):
            nonlocal li
            lg.wait(("L", li + 1))
            for u in range(2):
                smf(p, ACCQK[2 + u], vA + 4 * (j % 5), vr(self.sb(li % 4), 8))
                if u == 0 and mid: mid()
                if li + 4 < 18: self.lds_unit(li + 4)
                else: self.kx_reads(li % 4)
                li += 1
        lg.wait(("IM", 0))
        self.stamp("AL0")
        def mr_store():
            p("buffer_store_dword v%d, v%d, s[%d:%d], s%d offen sc1" % (vX0, vX0 + 1, sWS, sWS + 3, sMRST)); vm.issue("mr")
        for j in range(5):
            smf(p, vQ0, vA + 4 * j, unit_q(j, 0))
            if j == 0 and NLDS == 2: self.img_load(3, sMLC, ("AL", 3))
            smf(p, vQ1, vA + 4 * j, unit_q(j, 1))
            if j == 0 and RTOUCH and RTPOS == 2: rtouch()
            k_pair(j, (lambda: self.img_load(4, sMLC, ("AL", 4))) if (j == 0 and NLDS == 2) else None)
            if j == 0 and RTOUCH and RTPOS == 3: rtouch()
            if j + 1 < NLDS: lg.wait(("IM", j + 1))
            else: vm.wait(("AL", j + 1) if j < 4 else ("AR", 0)); self.cmp_chunk((j + 1) % 5)
            smf(p, vV0, vA + 4 * j, unit_v(j, 0)); smf(p, vV1, vA + 4 * j, unit_v(j, 1))
            if j + 1 >= NLDS: self.branch_chunk((j + 1) % 5, sMLC if j < 4 else sMRC)
            if j == ARLATE:
                for jj in range(j + 1): self.img_load(jj, sMRC, ("AR", jj))
            elif j > ARLATE: self.img_load(j, sMRC, ("AR", j))
            if j == ARLATE and RTOUCH and RTPOS == 0: rtouch()
            self.stamp("L%d" % j)
        def fold_parts(a, b, off, tag):
            sw = ["v_permlane32_swap_b32 v%d, v%d" % (a + i, b + i) for i in range(4)]
            ad = ["v_pk_add_f32 %s, %s, %s" % (vr(a + i, 2), vr(a + i, 2), vr(b + i, 2)) for i in (0, 2)]
            cv = ["v_cvt_pk_bf16_f32 v%d, v%d, v%d" % (b, a, a + 1), "v_cvt_pk_bf16_f32 v%d, v%d, v%d" % (b + 1, a + 2, a + 3)]
            def wr(): p("ds_write_b64 v%d, %s offset:%d" % (vTW, vr(b, 2), off)); lg.issue(tag)
            return sw, ad, cv, wr
        def vx_load(q):
            p("buffer_load_dwordx4 %s, v%d, s[%d:%d], s%d offen offset:%d" % (vr(vVX + 4 * q, 4), vL16, sWS, sWS + 3, sVFN, 1024 * q)); vm.issue("vx")
        wv = vX0
        def warm(part):
            if part == 0:
                p("v_lshlrev_b32 v%d, %d, v%d" % (wv, 3 if WSTR == 128 else 2, vL16))
                p("s_add_u32 s%d, s%d, s%d" % (sT1, sMLC, sMLRS))
                p("buffer_load_dword v%d, s[%d:%d], s%d offen lds" % (wv, sWS, sWS + 3, sWARM)); vm.issue("warm")
            else:
                p("buffer_load_dword off, s[%d:%d], s%d sc1 lds" % (sWS, sWS + 3, sT1)); vm.issue("warm")
                p("buffer_store_dword v%d, off, s[%d:%d], s%d sc1" % (vIDX, sWS, sWS + 3, sMFL)); vm.issue("flag")
                p("s_add_u32 s%d, s%d, 256" % (sMFL, sMFL))
                lk = p.uid("KVLOOK"); lo_ = p.uid("KVOUT")
                p("s_cmp_lg_u32 s%d, 0" % sKVC); p("s_cbranch_scc1 %s" % lo_)
                p.label(lk)
                def out_of_line():
                    p.label(lo_)
                    if RECLAST:
                        lq = p.uid("KVL1"); lq3 = p.uid("KVL3")
                        p("s_cmp_eq_u32 s%d, 1" % sKVC); p("s_cbranch_scc1 %s" % lq)
                        if os.environ.get("TAILPF"):
                            p("s_cmp_eq_u32 s%d, 2" % sKVC); p("s_cbranch_scc1 %s" % lq3)
                            code_touch(p, 76, vX0 + 1, L_JUNK, "REC_FINAL")
                            p("s_branch %s" % lk)
                            p.label(lq3)
                        p("s_lshl_b32 s%d, s%d, 13" % (sT0, sH)); add_const(p, sT0, sT0, QF + (NSEG - 1) * 32 * 8192)
                        for f in range(8):
                            if f == 4: add_const(p, sT0, sT0, 4096)
                            p("buffer_load_dwordx4 %s, v%d, s[%d:%d], s%d offen offset:%d" % (vr(FIN["vQ"] + 4 * f, 4), vL16, sWS, sWS + 3, sT0, (f % 4) * 1024))
                        p("s_branch %s" % lk)
                        p.label(lq)
                    p("v_lshrrev_b32 v%d, 5, v%d" % (vX0 + 1, vL16)); p("v_lshlrev_b32 v%d, 9, v%d" % (vX0 + 1, vX0 + 1))
                    p("v_bfe_u32 v%d, v%d, 4, 1" % (vX0 + 2, vL16)); p("v_lshl_add_u32 v%d, v%d, 2, v%d" % (vX0 + 1, vX0 + 2, vX0 + 1))
                    p("s_mov_b32 m0, %d" % L_FLG); p("s_mov_b64 exec, s[%d:%d]" % (sLO32, sLO32 + 1))
                    p("buffer_load_dword v%d, s[%d:%d], s%d offen sc1 lds" % (vX0 + 1, sWS, sWS + 3, sFLG))
                    p("s_mov_b64 exec, -1"); p("s_mov_b32 m0, %d" % L_JUNK)
                    p("s_branch %s" % lk)
                self.ool.append(out_of_line)
        for j in range(5 if not FOLDX else 3):
            smf(p, vQ0, vA + 4 * j, unit_q(5 + j, 0))
            if j < 4: vm.wait(("AR", j + 1)); self.cmp_chunk(j + 1)
            elif WARMIN: p("v_lshlrev_b32 v%d, %d, v%d" % (wv, 3 if WSTR == 128 else 2, vL16))
            smf(p, vQ1, vA + 4 * j, unit_q(5 + j, 1))
            if j < 4:
                k_pair(5 + j)
                if j in (0, 2): vx_load(j // 2)
                self.branch_chunk(j + 1, sMRC)
            elif WARMIN:
                p("s_add_u32 s%d, s%d, s%d" % (sT1, sMLC, sMLRS))
                smf(p, vK0, vA + 16, unit_k9(0))
                p("buffer_load_dword v%d, s[%d:%d], s%d offen lds" % (wv, sWS, sWS + 3, sWARM)); vm.issue("warm")
                smf(p, vK1, vA + 16, unit_k9(1))
            else: smf(p, vK0, vA + 16, unit_k9(0)); smf(p, vK1, vA + 16, unit_k9(1))
            self.stamp("R%d" % j)
        if WARMIN and not FOLDX: pass
        if FOLDX:
            smf(p, vQ0, vA + 12, unit_q(8, 0))
            vm.wait(("AR", 4)); self.cmp_chunk(4)
            smf(p, vQ1, vA + 12, unit_q(8, 1))
            self.branch_chunk(4, sMRC)
            smf(p, vQ0, vA + 16, unit_q(9, 0)); smf(p, vQ1, vA + 16, unit_q(9, 1))
            self.stamp("R3")
            k_pair(8)
            sw, ad, cv, wr = fold_parts(vQ0, vQ1, 0, "qw")
            p(sw[0]); p(sw[1])
            smf(p, vK0, vA + 16, unit_k9(0))
            p(sw[2]); p(sw[3])
            smf(p, vK1, vA + 16, unit_k9(1))
            self.stamp("R4")
            for ins in ad + cv: p(ins)
            wr()
            warm(0)
            sw, ad, cv, wr = fold_parts(vK0, vK1, L_KT - L_QT, "kw")
            for ins in sw + ad + cv: p(ins)
            wr()
            warm(1)
        else:
            if not WARMIN: warm(0)
            warm(1)
            for a_, b_, off_, tag_ in ((vQ0, vQ1, 0, "qw"), (vK0, vK1, L_KT - L_QT, "kw")):
                sw, ad, cv, wr = fold_parts(a_, b_, off_, tag_)
                for ins in sw + ad + cv: p(ins)
                wr()
        self.stamp("FOLD")
        for j in range(2):
            smf(p, vV0, vA + 4 * j, unit_v(5 + j, 0)); smf(p, vV1, vA + 4 * j, unit_v(5 + j, 1))
        lg.wait_all()
        self.stamp("preB1")
        p("s_barrier")
        self.stamp("B1")
        def kx(t, kk): return vSB + 4 * self.kx_reg(t, kk)
        def q_read(kk):
            for r in range(2):
                p("ds_read_b64_tr_b16 %s, v%d offset:%d" % (vr(vQ0 + 4 * kk + 2 * r, 2), vTR, 256 * kk + 128 * r)); lg.issue(("q", kk))
        kmreg = [vA, vA + 4, kx(0, 2), kx(0, 3)]
        def km_read(kk):
            for r in range(2):
                p("ds_read_b64_tr_b16 %s, v%d offset:%d" % (vr(kmreg[kk] + 2 * r, 2), vTR, L_KT - L_QT + 256 * kk + 128 * r)); lg.issue(("km", kk))
        q_read(0); q_read(1)
        if RECLAST: p("s_cmp_eq_u32 s%d, %d" % (sSTEP, NSEG - 1)); p("s_cbranch_scc1 REC_FINAL")
        smf(p, vV0, vA + 8, unit_v(7, 0)); smf(p, vV1, vA + 8, unit_v(7, 1))
        q_read(2); q_read(3)
        smf(p, vV0, vA + 12, unit_v(8, 0)); smf(p, vV1, vA + 12, unit_v(8, 1))
        self.stamp("Sstart")
        vX1, vM = kx(0, 0), kx(0, 1)
        def mf(d, a_, b_, first): p("v_mfma_f32_16x16x32_bf16 %s, %s, %s, %s" % (vr(d, 4), vr(a_, 4), vr(b_, 4), "0" if first else vr(d, 4)))
        lg.wait(("q", 1))
        mf(vX0, kx(0, 0), vQ0, True); km_read(0)
        mf(vX0, kx(0, 1), vQ0 + 4, False); km_read(1)
        lg.wait(("q", 3))
        mf(vX0, kx(0, 2), vQ0 + 8, False); km_read(2)
        mf(vX0, kx(0, 3), vQ0 + 12, False); km_read(3)
        for kk in range(4): mf(vX1, kx(1, kk), vQ0 + 4 * kk, kk == 0)
        ones, onesm = kx(1, 1), kx(1, 2)
        one = lambda i: p("v_mov_b32 v%d, 0x3f803f80" % (ones + i))
        onem = lambda i: p("v_cndmask_b32 v%d, 0, v%d, s[%d:%d]" % (onesm + i, ones, sLO32, sLO32 + 1))
        lg.wait(("km", 1))
        mf(vM, kmreg[0], vQ0, True); one(0); mf(vM, kmreg[1], vQ0 + 4, False); one(1)
        lg.wait(("km", 3))
        mf(vM, kmreg[2], vQ0 + 8, False); one(2); mf(vM, kmreg[3], vQ0 + 12, False); one(3)
        smf(p, vV0, vA + 16, unit_v(9, 0)); onem(0); smf(p, vV1, vA + 16, unit_v(9, 1)); onem(1)
        self.stamp("Send")
        X0, X1, Mm = vX0, vX1, vM
        t0, t1, t2, t3 = vA + 8, vA + 9, vA + 10, vA + 11
        p("v_max3_f32 v%d, v%d, v%d, v%d" % (t0, X0, X0 + 1, X0 + 2))
        p("v_max3_f32 v%d, v%d, v%d, v%d" % (t1, X0 + 3, X1, X1 + 1))
        p("v_max3_f32 v%d, v%d, v%d, v%d" % (t0, t0, t1, X1 + 2))
        p("v_max3_f32 v%d, v%d, v%d, v%d" % (t1, Mm, Mm + 1, Mm + 2))
        p("v_max3_f32 v%d, v%d, v%d, v%d" % (t0, t0, X1 + 3, Mm + 3))
        p("v_max_f32 v%d, v%d, v%d" % (t0, t0, t1))
        p("v_mov_b32 v%d, v%d" % (t1, t0))
        p("v_cvt_pk_bf16_f32 v%d, v%d, v%d" % (vV0, vV0, vV0 + 1))
        p("v_cvt_pk_bf16_f32 v%d, v%d, v%d" % (vV0 + 1, vV0 + 2, vV0 + 3))
        p("v_permlane16_swap_b32 v%d, v%d" % (t0, t1))
        p("v_max_f32 v%d, v%d, v%d" % (t0, t0, t1))
        p("v_mov_b32 v%d, v%d" % (t1, t0))
        p("v_cvt_pk_bf16_f32 v%d, v%d, v%d" % (vV0 + 2, vV1, vV1 + 1))
        p("v_cvt_pk_bf16_f32 v%d, v%d, v%d" % (vV0 + 3, vV1 + 2, vV1 + 3))
        p("v_permlane32_swap_b32 v%d, v%d" % (t0, t1))
        p("v_max_f32 v%d, v%d, v%d" % (t0, t0, t1))
        self.stamp("MAX")
        p("v_mul_f32 v%d, s%d, v%d" % (t2, sC, t0))
        for base in (X0, X1, Mm):
            for i in (0, 2):
                p("v_pk_fma_f32 %s, %s, s[%d:%d], %s op_sel_hi:[1,1,0] neg_lo:[0,0,1] neg_hi:[0,0,1]" % (vr(base + i, 2), vr(base + i, 2), sC, sC + 1, vr(t2, 2)))
        PX, PM = vQ0, vQ0 + 4
        for i in range(4): p("v_exp_f32 v%d, v%d" % (X0 + i, X0 + i))
        if KPOS == 0: p("buffer_load_dwordx4 v%d, s[%d:%d], s%d offen offset:1024 lds" % (vL16, sWS, sWS + 3, sKFN)); vm.issue("kx")
        for i in range(4): p("v_exp_f32 v%d, v%d" % (X1 + i, X1 + i))
        p("v_cvt_pk_bf16_f32 v%d, v%d, v%d" % (PX, X0, X0 + 1))
        p("v_cvt_pk_bf16_f32 v%d, v%d, v%d" % (PX + 1, X0 + 2, X0 + 3))
        for i in range(4): p("v_exp_f32 v%d, v%d" % (Mm + i, Mm + i))
        p("v_cvt_pk_bf16_f32 v%d, v%d, v%d" % (PX + 2, X1, X1 + 1))
        p("v_cvt_pk_bf16_f32 v%d, v%d, v%d" % (PX + 3, X1 + 2, X1 + 3))
        O0, O1, SUM = vK0, vK1, vX0
        self.stamp("P")
        p("v_cvt_pk_bf16_f32 v%d, v%d, v%d" % (PM, Mm, Mm + 1))
        vm.wait("vx")
        self.stamp("VXW")
        GA = vSB + 16
        p("v_mfma_f32_16x16x32_bf16 %s, %s, %s, 0" % (vr(SUM, 4), vr(ones, 4), vr(PX, 4)))
        p("v_mfma_f32_16x16x32_bf16 %s, %s, %s, 0" % (vr(O0, 4), vr(vVX, 4), vr(PX, 4)))
        p("v_cvt_pk_bf16_f32 v%d, v%d, v%d" % (PM + 1, Mm + 2, Mm + 3))
        p("v_mfma_f32_16x16x32_bf16 %s, %s, %s, 0" % (vr(O1, 4), vr(vVX + 4, 4), vr(PX, 4)))
        p("v_mfma_f32_16x16x16_bf16 %s, %s, %s, %s" % (vr(SUM, 4), vr(onesm, 2), vr(PM, 2), vr(SUM, 4)))
        p("v_mov_b64 %s, 0" % vr(GA, 2))
        p("v_mfma_f32_16x16x16_bf16 %s, %s, %s, %s" % (vr(O0, 4), vr(vV0, 2), vr(PM, 2), vr(O0, 4)))
        p("v_mov_b64 %s, 0" % vr(GA + 2, 2))
        p("v_mfma_f32_16x16x16_bf16 %s, %s, %s, %s" % (vr(O1, 4), vr(vV0 + 2, 2), vr(PM, 2), vr(O1, 4)))
        for i in range(2, 6): p("v_mov_b64 %s, 0" % vr(GA + 2 * i, 2))
        self.stamp("PV")
        p("v_rcp_f32 v%d, v%d" % (t2, SUM))
        p.nop(3)
        for i in range(4): p("v_cndmask_b32 v%d, v%d, v%d, s[%d:%d]" % (O0 + i, O1 + i, O0 + i, sM8, sM8 + 1))
        for i in (0, 2): p("v_pk_mul_f32 %s, %s, %s op_sel_hi:[1,0]" % (vr(O0 + i, 2), vr(O0 + i, 2), vr(t2, 2)))
        p("v_cvt_pk_bf16_f32 v%d, v%d, v%d" % (O1, O0, O0 + 1))
        p("v_cvt_pk_bf16_f32 v%d, v%d, v%d" % (O1 + 1, O0 + 2, O0 + 3))
        p("ds_write_b64 v%d, %s" % (vOW, vr(O1, 2))); lg.issue("ow")
        if KPOS == 1:
            p("s_mov_b32 m0, s%d" % sM0K)
            add_const(p, sKFN, sKFN, KV_S)
            p("buffer_load_dwordx4 v%d, s[%d:%d], s%d offen lds" % (vL16, sWS, sWS + 3, sKFN)); vm.issue("kx")
            p("buffer_load_dwordx4 v%d, s[%d:%d], s%d offen offset:1024 lds" % (vL16, sWS, sWS + 3, sKFN)); vm.issue("kx")
        self.stamp("OW")
        vOS, vDAT, tt = vX0 + 1, vX0, vA + 17
        Bsel = vVX
        p("v_and_b32 v%d, 0x70, v%d" % (vOS, vL16))
        p("v_bfe_u32 v%d, v%d, 8, 1" % (tt, vL16)); p("v_lshl_add_u32 v%d, v%d, 3, v%d" % (vOS, tt, vOS))
        p("v_bfe_u32 v%d, v%d, 9, 1" % (tt, vL16)); p("v_lshl_add_u32 v%d, v%d, 2, v%d" % (vOS, tt, vOS))
        p("v_mov_b32 v%d, 0x%x" % (tt, OOB))
        lg.wait_all()
        self.stamp("preB2")
        p("s_barrier")
        self.stamp("B2")
        oD = vA
        def od_read(c):
            p("ds_read_b128 %s, v%d offset:%d" % (vr(oD + 4 * c, 4), vOR, c * 64)); lg.issue(("od", c))
        for c in range(4): od_read(c)
        p("v_cndmask_b32 v%d, v%d, v%d, s[%d:%d]" % (vOS, tt, vOS, sM8, sM8 + 1))
        p("v_and_b32 v%d, 16, v%d" % (tt, vL16)); p("v_lshlrev_b32 v%d, v%d, s%d" % (tt, tt, s3F80))
        for r_ in range(4): p("v_cndmask_b32 v%d, 0, v%d, s[%d:%d]" % (Bsel + r_, tt, sSEL + 2 * r_, sSEL + 2 * r_ + 1))
        T4 = GA + 8
        def pack(acc):
            return ["v_cvt_pk_bf16_f32 v%d, v%d, v%d" % (acc, acc, acc + 1), "v_cvt_pk_bf16_f32 v%d, v%d, v%d" % (acc + 1, acc + 2, acc + 3),
                    "v_and_or_b32 v%d, v%d, -2, s%d" % (acc, acc, sTAG)]
        def pstore(acc, soff):
            p("buffer_store_dwordx2 %s, v%d, s[%d:%d], s%d offen %s" % (vr(acc, 2), vPS, sWS, sWS + 3, soff, self.loc)); vm.issue("p1")
        for c in range(4):
            lg.wait(("od", c)); smf(p, GA, oD + 4 * c, unit_wo_pair(0, c))
        self.stamp("T4")
        smf(p, GA + 4, oD, unit_wo_pair(1, 0))
        smf(p, GA + 4, oD + 4, unit_wo_pair(1, 1))
        pk = pack(GA); p(pk[0])
        smf(p, GA + 4, oD + 8, unit_wo_pair(1, 2)); p(pk[1])
        smf(p, GA + 4, oD + 12, unit_wo_pair(1, 3)); p(pk[2])
        def mf4(c): p("v_mfma_f32_16x16x32_bf16 %s, %s, %s, %s" % (vr(T4, 4), vr(oD + 4 * c, 4), unit_wo4(c), "0" if c == 0 else vr(T4, 4)))
        mf4(0); pstore(GA, sP1W)
        mf4(1)
        pk = pack(GA + 4)
        mf4(2); p(pk[0]); p(pk[1])
        mf4(3); p(pk[2])
        self.stamp("G2")
        pstore(GA + 4, sP1W1)
        add_const(p, sMLC, sMLC, ML_S)
        salu()
        p.nop(T4NOP)
        pk = pack(T4)
        for ins in pk: p(ins)
        p("s_mov_b64 exec, s[%d:%d]" % (sLO32, sLO32 + 1))
        pstore(T4, sP1W2)
        p("s_mov_b64 exec, -1")
        self.stamp("P1")
        lidle = p.uid("IDLE"); lown = p.uid("OWN")
        p("s_cmp_lg_u32 s%d, 0" % sISOWN); p("s_cbranch_scc1 %s" % lown)
        p("s_cmp_lt_u32 s%d, 2" % sW); p("s_cbranch_scc1 %s" % lidle)
        p("s_branch REC_POLL" + self.sfx)
        def leave():
            if RECLAST: p("s_branch REC_LOOP" + self.sfx); return
            p("s_cmp_lt_u32 s%d, %d" % (sSTEP, NSEG - 1))
            p("s_cbranch_scc1 REC_LOOP" + self.sfx)
            p("s_branch REC_END")
        p.label(lown)
        D = vVX + 4
        tg = [vX0 + 2, vX0 + 3, vA + 18, vA + 19]
        nset = 3 if OWN3 else 2 if OWN2 else 1
        sets = [vA, vSB + 16, vSB][:nset]
        ldone = p.uid("ODONE"); lpoll = p.uid("OPOLL")
        def owner_loads(k):
            for i in range(4):
                p("buffer_load_dwordx4 %s, v%d, s[%d:%d], s%d offen offset:%d sc1" % (vr(sets[k] + 4 * i, 4), vL16, sWS, sWS + 3, sP1R, 1024 * i))
        lg.clear()
        self.stamp("OL")
        p.nop(DELAY1)
        if TIMED: owner_loads(0)
        else:
            if not B2BF: owner_loads(0)
            p("s_barrier")
            if B2BF: p.nop(DELAY1B); owner_loads(0)
        if OWN3:
            clears(0, 6); p.nop(OD2); owner_loads(1)
            clears(6, 12); p.nop(OD3); owner_loads(2)
        else:
            prefetch(0, 2)
            clears(0, OSTAG)
            if OWN2: owner_loads(1)
            clears(OSTAG, 12)
        def omf(k, i): p("v_mfma_f32_16x16x32_bf16 %s, %s, %s, %s" % (vr(D, 4), vr(sets[k] + 4 * i, 4), vr(Bsel, 4), "0" if i == 0 else vr(D, 4)))
        def otag(k, i): p("v_bitop3_b32 v%d, v%d, v%d, s%d bitop3:0x7e" % (tg[i], sets[k] + 4 * i, sets[k] + 4 * i + 2, sTAG))
        p.label(lpoll)
        for k in range(nset):
            for i in range(4):
                p("s_waitcnt vmcnt(%d)" % (4 * (nset - 1) + 3 - i)); omf(k, i); otag(k, i)
            p("v_or3_b32 v%d, v%d, v%d, v%d" % (tg[0], tg[0], tg[1], tg[2]))
            p("v_bitop3_b32 v%d, v%d, v%d, 1 bitop3:0xa8" % (tg[0], tg[0], tg[3]))
            p("v_cmp_ne_u32 vcc, 0, v%d" % tg[0])
            if k == nset - 1:
                p("s_add_u32 s%d, s%d, 1" % (sSPIN, sSPIN))
                p("s_cmp_gt_u32 s%d, %d" % (sSPIN, SPIN_MAX)); p("s_cbranch_scc1 %s" % ldone)
                p.nop(1)
            else: p.nop(4)
            p("s_cbranch_vccz %s" % ldone) if not NOCHECK else p("s_branch %s" % ldone)
            if COUNT: p("s_add_u32 s%d, s%d, 1" % (sCNT, sCNT))
            owner_loads(k)
        p("s_branch %s" % lpoll)
        p.label(ldone)
        self.stamp("OLret")
        p("v_permlane32_swap_b32 v%d, v%d" % (D, D + 2))
        p("v_permlane32_swap_b32 v%d, v%d" % (D + 1, D + 3))
        p("v_add_f32 v%d, v%d, v%d" % (D, D, D + 2))
        p("v_add_f32 v%d, v%d, v%d" % (D + 1, D + 1, D + 3))
        p("v_cvt_pk_bf16_f32 v%d, v%d, v%d" % (vDAT, D, D + 1))
        st_l = "buffer_store_dword v%d, v%d, s[%d:%d], s%d offen %s" % (vDAT, vOS, sWS, sWS + 3, sMLST, self.loc)
        st_r = "buffer_store_dword v%d, v%d, s[%d:%d], s%d offen sc1" % (vDAT, vOS, sWS, sWS + 3, sMRST)
        for ins in ([st_l] if MRLATE else [st_r, st_l] if MRFIRST else [st_l, st_r]): p(ins)
        self.stamp("MLst")
        if RECLAST:
            p("s_cmp_eq_u32 s%d, %d" % (sSTEP, NSEG - 1)); p("s_cselect_b32 s%d, s%d, 0" % (sKVC, sFINW))
        if TIMED:
            p("s_barrier")
            if MRLATE == 3:
                p.nop(MRD); p(st_r)
                lf = p.uid("EFLG")
                p("s_cmp_lt_u32 s%d, %d" % (sSTEP, NSEG - EARLYF)); p("s_cbranch_scc1 %s" % lf)
                p("buffer_store_dword v%d, off, s[%d:%d], s%d sc1" % (vIDX, sWS, sWS + 3, sMFL))
                p.label(lf)
        if "ACK1" in STAMPS: p("s_waitcnt vmcnt(1)"); self.stamp("ACK1"); p("s_waitcnt vmcnt(0)"); self.stamp("ACK2")
        p("s_xor_b32 s%d, s%d, 1" % (sTAG, sTAG))
        p("s_waitcnt vmcnt(%d) lgkmcnt(0)" % (1 if MRLATE in (1, 2) else 2))
        if OWN3: lg.clear(); prefetch(0, 2)
        leave()
        p.label(lidle)
        lg.clear()
        p("s_barrier")
        if RECLAST: p("s_cmp_eq_u32 s%d, %d" % (sSTEP, NSEG - 1)); p("s_cselect_b32 s%d, s%d, 0" % (sKVC, sFINW))
        clears(0, 12); prefetch(0, 2)
        p("s_xor_b32 s%d, s%d, 1" % (sTAG, sTAG))
        p("s_waitcnt vmcnt(0)")
        leave()
        p.label("REC_TAIL" + self.sfx)
        self.emit_retries()

    def kx_reads(self, b):
        for q in range(2):
            f = b * 2 + q
            self.p("ds_read_b128 %s, v%d offset:%d" % (vr(vSB + 4 * f, 4), vL16, L_KX + self.kx_slot(f) * 1024)); self.lg.issue(("KX", f))

    def emit_slow(self):
        p = self.p
        p.label("REC_SLOW")
        if COUNT: p("s_add_u32 s%d, s%d, 1024" % (sCNT, sCNT))
        p("s_waitcnt vmcnt(0) lgkmcnt(0)")
        for i in range(12): p("v_mov_b64 %s, 0" % vr(vQ0 + 2 * i, 2))
        for ph, soff in ((0, sMLC), (1, sMRC)):
            l = p.uid("SLOWP"); ld = p.uid("SLOWD")
            p.label(l)
            for j in range(5): self.img_ins(j, soff, "sc1")
            p("s_add_u32 s%d, s%d, 1" % (sSPIN, sSPIN))
            p("s_waitcnt vmcnt(0)")
            p("v_max3_u32 v%d, v%d, v%d, v%d" % (vX0, vA + 3, vA + 7, vA + 11))
            p("v_max3_u32 v%d, v%d, v%d, v%d" % (vX0, vX0, vA + 15, vA + 19))
            p("v_cmp_eq_u32 vcc, -1, v%d" % vX0)
            p("s_cbranch_vccz %s" % ld)
            p("s_cmp_gt_u32 s%d, %d" % (sSPIN, SPIN_MAX)); p("s_cbranch_scc0 %s" % l)
            p.label(ld)
            for j in range(5):
                jj = 5 * ph + j
                smf(p, vQ0, vA + 4 * j, unit_q(jj, 0)); smf(p, vQ1, vA + 4 * j, unit_q(jj, 1))
                if jj < 9:
                    for u in range(2):
                        i = 2 * jj + u
                        p("ds_read_b128 %s, v%d offset:%d" % (vr(vSB + 8 * u, 4), vLW, i * 2048))
                        p("ds_read_b128 %s, v%d offset:%d" % (vr(vSB + 8 * u + 4, 4), vLW, i * 2048 + 1024))
                    p("s_waitcnt lgkmcnt(0)")
                    smf(p, vK0, vA + 4 * j, vr(vSB, 8)); smf(p, vK1, vA + 4 * j, vr(vSB + 8, 8))
                else:
                    smf(p, vK0, vA + 16, unit_k9(0)); smf(p, vK1, vA + 16, unit_k9(1))
                if ph == 0: smf(p, vV0, vA + 4 * j, unit_v(j, 0)); smf(p, vV1, vA + 4 * j, unit_v(j, 1))
        for b in range(4):
            for q in range(2):
                f = b * 2 + q
                p("ds_read_b128 %s, v%d offset:%d" % (vr(vSB + 4 * f, 4), vL16, L_KX + self.kx_slot(f) * 1024))
        p("s_waitcnt lgkmcnt(0)")
        p("s_mov_b64 vcc, 0")
        p.nop(8)
        p("s_branch REC_FOLD")

    def cmp_chunk(self, j):
        if not NOCHECK: self.p("v_cmp_eq_u32 vcc, -1, v%d" % (vA + 4 * j + 3))
    def branch_chunk(self, j, soff):
        if NOCHECK: return
        p = self.p; lr = p.uid("RETRY"); lb = p.uid("BACK")
        p("s_cbranch_vccnz %s" % lr); p.label(lb)
        tag = "AL" if soff == sMLC else "AR"
        later = [t[1] for t in self.vm.q if isinstance(t, tuple) and t[0] == tag and t[1] > j]
        self.retries.append((lr, lb, j, soff, later))

    def pub_v(self):
        p = self.p; lp = p.uid("NOPUBV")
        p("s_cmp_eq_u32 s%d, 0" % sISPUB); p("s_cbranch_scc1 %s" % lp)
        p("buffer_store_dwordx4 %s, v%d, s[%d:%d], s%d offen sc1" % (vr(vV0, 4), vL16, sWS, sWS + 3, sVM))
        p.label(lp); p.nop(2)
    def pub_k(self):
        p = self.p; lp = p.uid("NOPUBK"); a = vA + 16; d = vA
        p("s_cmp_eq_u32 s%d, 0" % sISPUB); p("s_cbranch_scc1 %s" % lp)
        p("v_lshrrev_b32 v%d, 1, v%d" % (a, vL16))
        for r in range(2):
            p("ds_read_b64 %s, v%d offset:%d" % (vr(d + 4 * r, 2), a, L_KT + r * 512))
            p("ds_read_b64 %s, v%d offset:%d" % (vr(d + 4 * r + 2, 2), a, L_KT + G2OFF + r * 512))
        p("s_waitcnt lgkmcnt(0)")
        for r in range(2):
            p("buffer_store_dwordx4 %s, v%d, s[%d:%d], s%d offen offset:%d sc1" % (vr(d + 4 * r, 4), vL16, sWS, sWS + 3, sKM, r * 1024))
        p.label(lp); p.nop(2)
    def flag_store(self):
        p = self.p
        p("s_lshl_b32 s%d, s%d, 7" % (sT0, sSTEP)); p("s_add_u32 s%d, s%d, s%d" % (sT0, sT0, sFKM))
        p("v_mov_b32 v%d, 0" % (vA + 17)); p("v_mov_b32 v%d, 1" % (vA + 16))
        p("s_mov_b64 exec, 1")
        p("buffer_store_dword v%d, v%d, s[%d:%d], s%d offen sc1" % (vA + 16, vA + 17, sWS, sWS + 3, sT0))
        p("s_mov_b64 exec, -1")

    def flag_spin(self, soff):
        p = self.p; l = p.uid("FSPIN"); ld = p.uid("FDONE")
        p("v_mov_b32 v%d, 0" % (vA + 17))
        p.label(l)
        p("buffer_load_dwordx2 %s, v%d, s[%d:%d], s%d offen sc1" % (vr(vA, 2), vA + 17, sWS, sWS + 3, soff))
        p("s_add_u32 s%d, s%d, 1" % (sSPIN, sSPIN))
        p("s_waitcnt vmcnt(0)")
        p("v_and_b32 v%d, v%d, v%d" % (vA, vA, vA + 1))
        p("v_cmp_eq_u32 vcc, 0, v%d" % vA)
        p("s_cbranch_vccz %s" % ld)
        p("s_cmp_gt_u32 s%d, %d" % (sSPIN, SPIN_MAX))
        p("s_cbranch_scc0 %s" % l)
        p.label(ld)

    def kx_slot(self, f):
        order = self.kx_order()
        return order[f]
    def kx_order(self):
        rel = [2, 3, 0, 1]
        chunks = [0, 4, 1, 5, 2, 6, 3, 7]
        o = [None] * 8
        for n, b in enumerate(rel):
            o[2 * b] = chunks[2 * n]; o[2 * b + 1] = chunks[2 * n + 1]
        return o
    def kx_reg(self, tile, kk):
        return self.kx_order().index(tile * 4 + kk)

def emit_rec(p, dbg=False, check_mode=None, slow_sgpr=None, tl=None, read_cand=None, dbg_srd=60, nhelp=192, nhelp_a=186, guess=None):
    st = Step(p, dbg)
    st.stamp("E0")
    st.stamp("E1")
    p("v_and_b32 v0, 63, v0")
    fused = read_cand is not None
    vLK, vLD, vLF = 80, 81, 82
    looks = None
    if fused:
        def look_dbg(p):
            p("v_lshlrev_b32 v%d, 2, v0" % vLK)
            p("buffer_load_dword v%d, v%d, s[%d:%d], 0 offen sc1" % (vLD, vLK, dbg_srd, dbg_srd + 3))
            return 1
        def look_flag(p):
            p("s_mov_b32 s%d, 0x%x" % (sT1, INITB))
            p("buffer_load_dword v%d, off, s[%d:%d], s%d sc1" % (vLF + 2, sWS, sWS + 3, sT1))
            p("buffer_load_dwordx2 %s, off, s[%d:%d], s%d sc1" % (vr(vLF, 2), sWS, sWS + 3, sFLG))
            return 2
        looks = {18: look_dbg, (26 if ROWP else 25): look_flag}
    load_weights(p, st, setup_consts, looks)
    st.stamp("E3")
    if dbg and tl: tl(p, 11)
    lok = p.uid("EARLY")
    if fused:
        lno = p.uid("NOTEARLY")
        p("s_waitcnt vmcnt(0)")
        p("s_cmp_lg_u32 s%d, 0" % slow_sgpr); p("s_cbranch_scc1 %s" % lno)
        p("v_cmp_ne_u32 vcc, %d, v%d" % (33 if os.environ.get("FAKEIMB") else 32, vLD))
        p("v_readlane_b32 s%d, v%d, 1" % (sT0, vLD)); p("v_readlane_b32 s%d, v%d, 33" % (sT2, vLD)); p("v_readlane_b32 s%d, v%d, 34" % (sT3, vLD))
        p("s_and_b32 s%d, vcc_lo, 0x01010101" % sT1); p("s_cbranch_scc1 %s" % lno)
        p("s_and_b32 s%d, vcc_hi, 0x01010101" % sT1); p("s_cbranch_scc1 %s" % lno)
        p("s_cmp_lt_u32 s%d, %d" % (sT0, nhelp_a)); p("s_cbranch_scc1 %s" % lno)
        p("v_readfirstlane_b32 s%d, v%d" % (sT0, vLF + 2)); p("s_cmp_lt_u32 s%d, %d" % (sT0, nhelp)); p("s_cbranch_scc1 %s" % lno)
        p("s_min_u32 s%d, s%d, s%d" % (sT1, sT2, sT3)); p("s_cmp_eq_u32 s%d, 0" % sT1); p("s_cbranch_scc1 %s" % lno)
        if guess:
            p("v_readlane_b32 s%d, v%d, %d" % (sT0, vLD, guess[1])); p("v_readlane_b32 s%d, v%d, %d" % (sT1, vLD, guess[1] + 1))
            p("s_and_b32 s%d, s%d, s%d" % (sT0, sT0, sT1)); p("s_cmp_eq_u32 s%d, -1" % sT0); p("s_cselect_b32 s%d, 0, s%d" % (sT0, guess[0]))
            p("s_cmp_lg_u32 s%d, 0" % sT0); p("s_cbranch_scc1 %s" % guess[2])
        for r_ in (sT2, sT3): p("s_sub_u32 s%d, s%d, 1" % (r_, r_))
        p("s_branch %s" % lok)
        p.label(lno)
    if check_mode: check_mode(p)
    if guess:
        lg_ = p.uid("GOK")
        p("s_cmp_eq_u32 s%d, 0" % guess[0]); p("s_cbranch_scc1 %s" % lg_)
        p("buffer_load_dwordx2 v[8:9], off, s[%d:%d], 0 offset:%d sc1" % (dbg_srd, dbg_srd + 3, 4 * guess[1])); p("s_waitcnt vmcnt(0)")
        p("v_and_b32 v8, v8, v9"); p.nop(1); p("v_readfirstlane_b32 s%d, v8" % sT0)
        p("s_cmp_lg_u32 s%d, -1" % sT0); p("s_cbranch_scc1 %s" % guess[2])
        p.label(lg_)
    if read_cand: read_cand(p, sT2, sT3)
    p.label(lok)
    if dbg and tl: tl(p, 12)
    if read_cand: p("s_mov_b32 s56, s%d" % sT2); p("s_mov_b32 s57, s%d" % sT3)
    setup_vor(p)
    p("s_mov_b32 s%d, 0" % sSPIN); p("s_mov_b32 s%d, 0" % sCNT)
    if read_cand: p("s_mov_b32 s%d, s56" % sT0); p("s_mov_b32 s%d, s57" % sT1)
    else:
        p("s_mov_b32 s%d, 0x%x" % (sT1, CANDW))
        p("buffer_load_dwordx2 v[8:9], off, s[%d:%d], s%d sc1" % (sWS, sWS + 3, sT1)); p("s_waitcnt vmcnt(0)")
        p("v_readfirstlane_b32 s%d, v8" % sT0); p("v_readfirstlane_b32 s%d, v9" % sT1)
        if FORCECAND: p("s_mov_b32 s%d, %d" % (sT0, (FORCECAND - 1) & 3)); p("s_mov_b32 s%d, %d" % (sT1, (FORCECAND - 1) >> 2))
        p("s_mov_b32 s60, s%d" % sT0); p("s_mov_b32 s61, s%d" % sT1)
    p("s_cmp_eq_u32 s%d, 0" % sX); p("s_cselect_b32 s%d, s%d, s%d" % (sT2, sT1, sT0)); p("s_cselect_b32 s%d, s%d, s%d" % (sT0, sT0, sT1))
    for r_ in (sT0, sT2): p("s_and_b32 s%d, s%d, 3" % (r_, r_)); p("s_lshl_b32 s%d, s%d, 13" % (r_, r_))
    finish_consts(p)
    st.stamp("E4")
    lfl = p.uid("KVOK")
    if fused:
        p("v_and_b32 v%d, v%d, v%d" % (vLF, vLF, vLF + 1)); p("v_cmp_eq_u32 vcc, 0, v%d" % vLF)
        p("s_cmp_lg_u32 s%d, 0" % slow_sgpr); p("s_cselect_b64 vcc, -1, vcc")
        p("s_cbranch_vccz %s" % lfl)
    st.flag_spin(sFLG)
    p.label(lfl)
    if dbg and tl: tl(p, 13)
    p("s_barrier")
    p("s_mov_b32 m0, s%d" % sM0K); p.nop(1)
    p("buffer_load_dwordx4 v%d, s[%d:%d], s%d offen lds" % (vL16, sWS, sWS + 3, sKFN))
    p("buffer_load_dwordx4 v%d, s[%d:%d], s%d offen offset:1024 lds" % (vL16, sWS, sWS + 3, sKFN))
    p("s_mov_b32 m0, %d" % L_JUNK); p("v_lshlrev_b32 v12, 2, v%d" % vL16)
    add_const(p, sT1, sWARM, (-KV_S) & 0xFFFFFFFF)
    p("buffer_load_dword v12, s[%d:%d], s%d offen lds" % (sWS, sWS + 3, sT1))
    p("s_mov_b32 s%d, 0" % sSTEP); p("s_mov_b32 s%d, 0" % sTAG)
    p("s_add_u32 s%d, s%d, s%d" % (sT2, sMLC, sPCH))
    p("buffer_load_dwordx4 %s, v%d, s[%d:%d], s%d offen sc1" % (vr(vA, 4), vL16, sWS, sWS + 3, sT2))
    p("buffer_load_dwordx4 %s, v%d, s[%d:%d], s%d offen offset:2048 sc1" % (vr(vA + 4, 4), vL16, sWS, sWS + 3, sMLC))
    p("v_add_u32 v%d, s%d, v%d" % (vA + 17, sPCH, vL16))
    p("s_waitcnt vmcnt(0)")
    p("ds_write_b128 v%d, %s offset:%d" % (vA + 17, vr(vA, 4), L_O))
    p("ds_write_b128 v%d, %s offset:%d" % (vL16, vr(vA + 4, 4), L_IM2))
    p("s_waitcnt lgkmcnt(0)")
    for i in range(12): p("v_mov_b64 %s, 0" % vr(vQ0 + 2 * i, 2))
    p("v_mov_b32 v%d, 0x%x" % (vX0 + 1, OOB))
    for i in range(2): st.lds_unit(i)
    st.stamp("E5")
    if tl: tl(p, 2)
    if dbg: p("s_memtime s[100:101]"); p("s_memrealtime s[98:99]"); p("s_waitcnt lgkmcnt(0)")
    if slow_sgpr is not None:
        p("s_cmp_eq_u32 s%d, 0" % slow_sgpr); p("s_cbranch_scc1 REC_LOOP")
        p("s_branch REC_LOOP_S")
        st2 = Step(p, False, slow=True); st2.body()
    else: p("s_branch REC_LOOP")
    st.body()
    if RECLAST: emit_final(p)
    p.label("REC_END")
    if MRLATE in (1, 2): p("buffer_store_dword v%d, v%d, s[%d:%d], s%d offen sc1" % (vX0, vX0 + 1, sWS, sWS + 3, sMRST))
    if dbg:
        p("s_memtime s[8:9]"); p("s_memrealtime s[96:97]"); p("s_waitcnt lgkmcnt(0)"); p("s_sub_u32 s98, s96, s98")
    return st
```

```python
import sys
from asm import *
from layout import *
import rec, k0, gemm, mkv, att, outp, moe, init

HEADER = open("/code/%s.s.ref" % NAME).read()
HEADER = HEADER[:HEADER.index("; Override launch geometry")]

def kernel_begin(p, label):
    p(".text"); p(".globl %s" % label); p(".p2align 8"); p(".type %s,@function" % label); p.label(label)
def descriptor(label, vgpr, sgpr, accum):
    return """.section .rodata,"a"
.p2align 6
.amdhsa_kernel %s
  .amdhsa_next_free_vgpr %d
  .amdhsa_next_free_sgpr %d
  .amdhsa_accum_offset %d
  .amdhsa_group_segment_fixed_size 0
  .amdhsa_kernarg_size 120
  .amdhsa_user_sgpr_count 2
  .amdhsa_user_sgpr_kernarg_segment_ptr 1
  .amdhsa_system_sgpr_workgroup_id_x 1
.end_amdhsa_kernel
""" % (label, vgpr, sgpr, accum)

def srd(p, dst, karg_off, size, tmp=None):
    p("s_load_dwordx2 s[%d:%d], s[0:1], %d" % (dst, dst + 1, karg_off))
    p("s_mov_b32 s%d, 0x%x" % (dst + 2, size)); p("s_mov_b32 s%d, 0x00020000" % (dst + 3))

import os
XPAIR = int(os.environ.get("XPAIR", "2"))
def xcc_to_x(p, dst, src, lelse):
    l = p.uid("XOK")
    p("s_cmp_eq_u32 s%d, 0" % src); p("s_cbranch_scc1 %s" % l)
    p("s_cmp_eq_u32 s%d, %d" % (src, XPAIR)); p("s_cbranch_scc0 %s" % lelse)
    p("s_mov_b32 s%d, 1" % dst)
    p.label(l)

def rec_standalone(dbg):
    p = Prog(); label = "rec_kernel"
    kernel_begin(p, label)
    p("s_cmp_ge_u32 s2, 256"); p("s_cbranch_scc1 REC_EXIT")
    if dbg and not rec.STAMPS[0]: p("s_memrealtime s[94:95]")
    srd(p, rec.sWS, 112, WS_SIZE)
    WB = 640 * 4096 * 2
    srd(p, rec.sWQ, 16, WB); srd(p, rec.sWK, 24, WB); srd(p, rec.sWV, 32, WB); srd(p, rec.sWO, 40, WB)
    p("s_getreg_b32 s%d, hwreg(HW_REG_XCC_ID)" % rec.sX); p("s_and_b32 s%d, s%d, 15" % (rec.sX, rec.sX))
    p("v_lshrrev_b32 v1, 6, v0"); p.nop(1); p("v_readfirstlane_b32 s%d, v1" % rec.sW)
    p("s_waitcnt lgkmcnt(0)")
    xcc_to_x(p, rec.sX, rec.sX, "REC_EXIT")
    p("s_cmp_lg_u32 s%d, 0" % rec.sW); p("s_cbranch_scc1 TICK_WAIT")
    p("s_lshl_b32 s%d, s%d, 7" % (rec.sT0, rec.sX)); rec.add_const(p, rec.sT0, rec.sT0, TICKET)
    p("v_mov_b32 v1, 0"); p("v_mov_b32 v2, 1")
    p("s_mov_b64 exec, 1")
    p("buffer_atomic_add v2, v1, s[%d:%d], s%d offen sc0" % (rec.sWS, rec.sWS + 3, rec.sT0))
    p("s_waitcnt vmcnt(0)")
    p("ds_write_b32 v1, v2"); p("s_waitcnt lgkmcnt(0)")
    p("s_mov_b64 exec, -1")
    p.label("TICK_WAIT")
    p("s_barrier")
    p("v_mov_b32 v1, 0"); p("ds_read_b32 v2, v1"); p("s_waitcnt lgkmcnt(0)")
    p("v_readfirstlane_b32 s%d, v2" % rec.sH)
    p("s_barrier")
    p("s_cmp_ge_u32 s%d, 32" % rec.sH); p("s_cbranch_scc1 REC_EXIT")
    st = rec.emit_rec(p, dbg)
    if dbg:
        p("s_lshl_b32 s%d, s%d, 5" % (rec.sT0, rec.sX)); p("s_add_u32 s%d, s%d, s%d" % (rec.sT0, rec.sT0, rec.sH))
        p("s_lshl_b32 s%d, s%d, 2" % (rec.sT0, rec.sT0)); p("s_add_u32 s%d, s%d, s%d" % (rec.sT0, rec.sT0, rec.sW))
        p("s_lshl_b32 s%d, s%d, 7" % (rec.sT0, rec.sT0)); rec.add_const(p, rec.sT0, rec.sT0, DBG)
        vals = [100, 8, 98 if not rec.STAMPS[0] else rec.sSPIN, rec.sISOWN, rec.sCNT] + [rec.sTS + 2 * i for i in range(len(st.stamps))] + [rec.sCNT2, 60, 61]
        open('stamps.txt', 'w').write(','.join(st.stamps))
        if not rec.STAMPS[0]: p("s_sub_u32 s94, s96, s94"); vals.append(94)
        p("v_mov_b32 v1, 0"); p("s_mov_b64 exec, 1")
        for i, sreg in enumerate(vals):
            p("v_mov_b32 v2, s%d" % sreg)
            p("buffer_store_dword v2, v1, s[%d:%d], s%d offen offset:%d" % (rec.sWS, rec.sWS + 3, rec.sT0, 4 * i))
        p("s_waitcnt vmcnt(0)")
    p.label("REC_EXIT"); p("s_endpgm")
    return p, label

def k0_kernel(devflags, dbg=0):
    p = Prog(); label = "init_kernel"
    kernel_begin(p, label)
    p("s_cmp_ge_u32 s2, 256"); p("s_cbranch_scc1 K0_EXIT")
    if dbg: p("s_memrealtime s[36:37]")
    k0.emit_k0(p, devflags)
    if dbg:
        p("s_mov_b32 s38, s36"); p("s_lshl_b32 s39, s2, 2"); p("s_add_u32 s39, s39, 0x%x" % (DBG + 0x8000))
        p("v_mov_b32 v14, s38"); p("v_mov_b32 v15, 0"); p("s_mov_b64 exec, 1")
        p("buffer_store_dword v14, v15, s[4:7], s39 offen"); p("s_mov_b64 exec, -1")
    p.label("K0_EXIT"); p("s_endpgm")
    return p, label

def gemm_kernel():
    p = Prog(); label = "gemm_kernel"
    kernel_begin(p, label)
    p("s_cmp_ge_u32 s2, 192"); p("s_cbranch_scc1 G_EXIT")
    if gemm.DBGT: p("s_memrealtime s[68:69]")
    srd(p, gemm.sWS, 112, WS_SIZE)
    p("s_load_dwordx4 s[48:51], s[0:1], 16"); p("s_load_dwordx2 s[52:53], s[0:1], 32")
    p("v_lshrrev_b32 v1, 6, v0"); p("v_and_b32 v0, 63, v0"); p.nop(1); p("v_readfirstlane_b32 s%d, v1" % gemm.sW)
    p("s_and_b32 s%d, s2, 1" % gemm.sHALF); p("s_lshr_b32 s3, s2, 1"); p("s_and_b32 s%d, s3, 31" % gemm.sH); p("s_lshr_b32 s3, s3, 5")
    p("s_waitcnt lgkmcnt(0)")
    p("s_mov_b32 s46, %d" % (640 * 4096 * 2)); p("s_mov_b32 s47, 0x00020000")
    roles = [(0, 50, "T", "GK"), (1, 52, "N", "GV"), (2, 48, "T", "GQ")]
    for mat, sp, kind, nm in roles:
        p("s_cmp_eq_u32 s3, %d" % mat); p("s_cbranch_scc1 %s_ENTRY" % nm)
    p("s_branch G_EXIT")
    for mat, sp, kind, nm in roles:
        p.label(nm + "_ENTRY")
        p("s_mov_b32 s44, s%d" % sp); p("s_mov_b32 s45, s%d" % (sp + 1))
        gemm.setup_role(p, mat)
        p("s_branch %s" % ("G_T" if kind == "T" else "G_N"))
    for kind, nm in (("T", "G_T"), ("N", "G_N")):
        p.label(nm)
        gemm.load_weights(p)
        gemm.emit_gemm(p, kind, nm, lambda q: None)
        p("s_branch G_EXIT")
    p.label("G_EXIT"); p("s_endpgm")
    return p, label

def wave_id(p, sreg):
    p("v_lshrrev_b32 v1, 6, v0"); p("v_and_b32 v0, 63, v0"); p.nop(1); p("v_readfirstlane_b32 s%d, v1" % sreg)

def mkv_kernel():
    p = Prog(); label = "mkv_kernel"
    kernel_begin(p, label)
    p("s_cmp_ge_u32 s2, 64"); p("s_cbranch_scc1 MK_EXIT")
    srd(p, gemm.sWS, 112, WS_SIZE)
    p("s_load_dwordx4 s[48:51], s[0:1], 24")
    wave_id(p, gemm.sW)
    p("s_and_b32 s%d, s2, 31" % gemm.sH); p("s_lshr_b32 s3, s2, 5")
    p("s_waitcnt lgkmcnt(0)")
    p("s_mov_b32 s46, %d" % (640 * 4096 * 2)); p("s_mov_b32 s47, 0x00020000")
    p("s_cmp_eq_u32 s3, 0"); p("s_cselect_b32 s44, s48, s50"); p("s_cselect_b32 s45, s49, s51")
    gemm.load_weights(p)
    p("s_cmp_eq_u32 s3, 0"); p("s_cbranch_scc0 MK_V")
    mkv.emit_mkv(p, "T", "MKK"); p("s_branch MK_EXIT")
    p.label("MK_V"); mkv.emit_mkv(p, "N", "MKV")
    p.label("MK_EXIT"); p("s_endpgm")
    return p, label

def att_kernel():
    p = Prog(); label = "att_kernel"
    kernel_begin(p, label)
    p("s_cmp_ge_u32 s2, 64"); p("s_cbranch_scc1 AT_EXIT")
    srd(p, gemm.sWS, 112, WS_SIZE)
    wave_id(p, gemm.sW)
    p("s_and_b32 s%d, s2, 1" % gemm.sHALF); p("s_lshr_b32 s%d, s2, 1" % gemm.sH)
    p("s_waitcnt lgkmcnt(0)")
    att.emit_att(p, "AT")
    p.label("AT_EXIT"); p("s_endpgm")
    return p, label

def moe_kernels():
    out = []
    for nm, grid in (("sel", 1), ("f1", 27), ("f2", 40)):
        p = Prog(); label = nm + "_kernel"
        kernel_begin(p, label)
        p("s_cmp_ge_u32 s2, %d" % grid); p("s_cbranch_scc1 %s_EXIT" % nm)
        srd(p, gemm.sWS, 112, WS_SIZE)
        srd(p, moe.sWG, 72, 640 * 1728 * 2); srd(p, moe.sWU, 80, 640 * 1728 * 2); srd(p, moe.sWD, 88, 640 * 1728 * 2)
        wave_id(p, gemm.sW)
        p("s_mov_b32 s%d, 0" % mkv.sSPIN)
        p("s_waitcnt lgkmcnt(0)")
        if nm == "f1":
            p("s_lshl_b32 s%d, s2, 2" % moe.sTASK); p("s_add_u32 s%d, s%d, s%d" % (moe.sTASK, moe.sTASK, gemm.sW))
            moe.emit_f1(p)
        else:
            p("s_cmp_lg_u32 s%d, 0" % gemm.sW); p("s_cbranch_scc1 %s_EXIT" % nm)
            p("s_mov_b32 s%d, s2" % moe.sTASK)
            (moe.emit_select if nm == "sel" else moe.emit_f2)(p)
        p.label(nm + "_EXIT"); p("s_endpgm")
        out.append((p, label, grid))
    return out

def out_kernel():
    p = Prog(); label = "out_kernel"
    kernel_begin(p, label)
    p("s_cmp_ge_u32 s2, 60"); p("s_cbranch_scc1 OU_EXIT")
    srd(p, gemm.sWS, 112, WS_SIZE)
    srd(p, outp.sWO, 40, 4096 * 640 * 2); srd(p, outp.sXI, 0, S * D * 2); srd(p, outp.sOUT, 96, S * D * 2)
    wave_id(p, gemm.sW)
    p("s_mul_hi_u32 s%d, s2, 0x%x" % (outp.sGRP, (2**32 + 19) // 20)); p("s_mul_i32 s3, s%d, 20" % outp.sGRP); p("s_sub_u32 s%d, s2, s3" % outp.sCT)
    p("s_mov_b32 s36, -1"); p("s_mov_b32 s37, 0")
    p("s_waitcnt lgkmcnt(0)")
    outp.load_wo(p)
    p("s_barrier")
    outp.emit_out(p, "OU", lambda q: None, lambda q: moe.wait_count(q, FLG_MOE + 256, 40, "OUW"))
    p.label("OU_EXIT"); p("s_endpgm")
    return p, label

sGUESS = 94
sSLOWF, sXCC, sTICK, sHI = 97, 98, 99, 96

def dbg_max(p, dword, tmp=90, have=False, invert=False):
    if not os.environ.get("OFFDBG"): return
    l_ = p.uid("DM")
    p("s_cmp_lg_u32 s14, 0"); p("s_cbranch_scc1 %s" % l_)
    if invert: p("s_cmp_ge_u32 s2, 8"); p("s_cbranch_scc1 %s" % l_)
    if not have: p("s_memrealtime s[%d:%d]" % (tmp, tmp + 1))
    p("s_waitcnt lgkmcnt(0)")
    if invert: p("s_not_b32 s%d, s%d" % (tmp + 1, tmp)); p("v_mov_b32 v14, s%d" % (tmp + 1))
    else: p("v_mov_b32 v14, s%d" % tmp)
    p("s_mov_b64 exec, 1")
    p("buffer_atomic_umax v14, off, s[60:63], %d sc1" % (4 * dword)) if 4 * dword <= 64 else None
    p("s_mov_b64 exec, -1")
    p.label(l_)

def tl_stamp(p, slot, dbg, tmp=90, have=False):
    m_ = {0: (4, True), 2: (5, False), 3: (6, False), 7: (7, False), 4: (9, False), 6: (10, False), 14: (11, False), 5: (12, False)}
    if slot in m_ and os.environ.get("OFFDBG"):
        dbg_max(p, m_[slot][0], tmp, have and False, m_[slot][1]); return
    _tl_stamp(p, slot, dbg, tmp, have)

def _tl_stamp(p, slot, dbg, tmp=90, have=False):
    if not dbg: return
    if os.environ.get("DBGMIN") and slot not in (0, 7, 2, 3, 6, 14, 8): return
    l = p.uid("TL")
    if not have: p("s_memrealtime s[%d:%d]" % (tmp, tmp + 1))
    p("s_waitcnt vmcnt(0) lgkmcnt(0)")
    p("s_lshl_b32 s%d, s2, 2" % (tmp + 1)); p("s_add_u32 s%d, s%d, 0x%x" % (tmp + 1, tmp + 1, DBG + 0x8000 + slot * 1024))
    p("v_mov_b32 v14, s%d" % tmp); p("v_mov_b32 v15, 0"); p("s_mov_b64 exec, 1")
    p("buffer_store_dword v14, v15, s[4:7], s%d offen" % (tmp + 1)); p("s_waitcnt vmcnt(0)"); p("s_mov_b64 exec, -1")

def lane_id(p):
    p("v_mbcnt_lo_u32_b32 v0, -1, 0"); p("v_mbcnt_hi_u32_b32 v0, -1, v0")

def fused_kernel(dbg=0, force_slow=False):
    tick_srd, tick_base, tick_stride = init.sDBG, init.D_TICK, init.D_TSTRIDE
    p = Prog(); label = (NAME + "_kernel") if os.environ.get("PLAIN", "1") == "1" else "main_kernel"
    kernel_begin(p, label)
    p("s_cmp_ge_u32 s2, 256"); p("s_cbranch_scc1 M_EXIT")
    if dbg: p("s_memrealtime s[90:91]")
    srd(p, 4, 112, WS_SIZE)
    init.dbg_srd(p)
    WB = 640 * 4096 * 2
    def rec_srds():
        srd(p, rec.sWQ, 16, WB); srd(p, rec.sWK, 24, WB); srd(p, rec.sWV, 32, WB); srd(p, rec.sWO, 40, WB)
    rec_srds()
    wave_id(p, 14)
    p("s_getreg_b32 s%d, hwreg(HW_REG_XCC_ID)" % sXCC); p("s_and_b32 s%d, s%d, 7" % (sXCC, sXCC))
    p("s_mov_b32 s%d, 0" % sSLOWF); p("s_mov_b32 s%d, %d" % (init.sINITC, init.D_C1))
    p("s_waitcnt lgkmcnt(0)")
    tl_stamp(p, 0, dbg, have=True)
    init.emit_measure(p, 14, sXCC)
    GUESS = int(os.environ.get("GUESS", "1")) and not force_slow
    p("s_cmp_eq_u32 s%d, 0" % sXCC); p("s_cselect_b32 s80, 1, 0"); p("s_cmp_eq_u32 s%d, %d" % (sXCC, XPAIR)); p("s_cselect_b32 s80, 1, s80")
    p("s_mov_b32 s%d, 0" % sGUESS)
    p("s_lshr_b32 s13, s2, 3"); p("s_and_b32 s13, s13, %d" % (30 if os.environ.get("FAKEGUESS") else 31))
    if GUESS:
        p("s_cmp_eq_u32 s14, 0"); p("s_cbranch_scc1 M_TICK0")
        p("s_cmp_eq_u32 s80, 1"); p("s_cbranch_scc1 M_GUESS"); p("s_branch M_TICKW")
        p.label("M_TICK0")
    else: p("s_cmp_lg_u32 s14, 0"); p("s_cbranch_scc1 M_TICKW")
    p("s_mul_i32 s64, s%d, %d" % (sXCC, tick_stride)); p("s_add_u32 s64, s64, 0x%x" % tick_base)
    p("v_mov_b32 v1, 0"); p("v_mov_b32 v70, 1"); p("s_mov_b64 exec, 1")
    if GUESS:
        p("s_cmp_eq_u32 s%d, 0" % sXCC); p("s_cselect_b32 s65, %d, %d" % (init.D_MASK, init.D_MASK + 4))
        p("s_cmp_eq_u32 s80, 1"); p("s_cselect_b32 s65, s65, 0x1000")
        p("s_lshl_b32 s66, 1, s13"); p("v_mov_b32 v4, s66")
        p("buffer_atomic_or v4, off, s[%d:%d], s65 sc1" % (tick_srd, tick_srd + 3))
    p("buffer_atomic_add v70, v1, s[%d:%d], s64 offen sc0" % (tick_srd, tick_srd + 3))
    NPF = int(os.environ.get("CODEPF", "1"))
    if NPF:
        p("s_mov_b64 exec, -1")
        p("s_getpc_b64 s[76:77]"); p.label("M_PCREF")
        p("s_cmp_eq_u32 s80, 1")
        p("s_mov_b32 s82, M_REC-M_PCREF"); p("s_mov_b32 s83, M_HELP-M_PCREF"); p("s_cselect_b32 s81, s82, s83")
        p("s_mov_b32 s82, M_HELP-M_REC"); p("s_mov_b32 s83, M_EXIT-M_HELP"); p("s_cselect_b32 s78, s82, s83")
        p("s_add_u32 s76, s76, s81"); p("s_addc_u32 s77, s77, 0"); p("s_and_b32 s77, s77, 0xffff"); p("s_mov_b32 s79, 0x00020000")
        p("s_lshr_b32 s81, s2, 3"); p("s_and_b32 s81, s81, 3"); p("s_lshl_b32 s81, s81, 12")
        p("v_mbcnt_lo_u32_b32 v3, -1, 0"); p("v_mbcnt_hi_u32_b32 v3, -1, v3"); p("v_lshlrev_b32 v3, 6, v3")
        p("s_mov_b32 m0, 1024"); p.nop(1)
        for k_ in range(5):
            p("buffer_load_dword v3, s[76:79], s81 offen lds"); p("s_add_u32 s81, s81, 16384")
        if GUESS: p("s_cmp_eq_u32 s80, 1"); p("s_cbranch_scc1 M_GUESS")
        p("s_mov_b64 exec, 1")
        p("s_waitcnt vmcnt(5)")
    else:
        if GUESS: p("s_mov_b64 exec, -1"); p("s_cmp_eq_u32 s80, 1"); p("s_cbranch_scc1 M_GUESS"); p("s_mov_b64 exec, 1")
        p("s_waitcnt vmcnt(0)")
    p("ds_write_b32 v1, v70"); p("s_waitcnt lgkmcnt(0)"); p("s_mov_b64 exec, -1")
    p.label("M_TICKW")
    p("s_barrier")
    p("v_mov_b32 v1, 0"); p("ds_read_b32 v2, v1"); p("s_waitcnt lgkmcnt(0)")
    p("v_readfirstlane_b32 s%d, v2" % sTICK)
    p("s_barrier")
    tl_stamp(p, 1, dbg)
    def wait_tickets(q):
        l = q.uid("TK"); ld = q.uid("TKD")
        lane_id(q)
        q("v_mul_u32_u24 v8, %d, v0" % tick_stride); q("s_mov_b32 s64, 0x%x" % tick_base); q("s_mov_b32 s65, 0")
        q("s_mov_b64 exec, 0xff")
        q.label(l)
        q("buffer_load_dword v9, v8, s[%d:%d], s64 offen sc1" % (tick_srd, tick_srd + 3)); q("s_add_u32 s65, s65, 1"); q("s_waitcnt vmcnt(0)")
        q("s_mov_b32 s66, 0")
        for i in range(8): q("v_readlane_b32 s67, v9, %d" % i); q("s_add_u32 s66, s66, s67")
        q("s_cmp_ge_u32 s66, 256"); q("s_cbranch_scc1 %s" % ld)
        q("s_cmp_gt_u32 s65, %d" % (1 << 18)); q("s_cbranch_scc0 %s" % l)
        q.label(ld)
        q("v_cmp_ne_u32 vcc, %d, v9" % (33 if os.environ.get("FAKEIMB") else 32))
        q("s_mov_b64 exec, -1")
    def check_mode(q):
        l = q.uid("CM")
        q("s_cmp_lg_u32 s%d, 0" % sSLOWF); q("s_cbranch_scc1 %s" % l)
        wait_tickets(q)
        q("s_cbranch_vccnz M_SLOW")
        q.label(l)
    if force_slow: p("s_branch M_SLOW0")
    p("s_cmp_ge_u32 s%d, 32" % sTICK); p("s_cbranch_scc1 M_SLOW0")
    p("s_mov_b32 s12, s%d" % sXCC)
    xcc_to_x(p, 12, 12, "M_FH")
    p("s_mov_b32 s13, s%d" % sTICK); p("s_branch M_REC")
    p.label("M_FH")
    p("s_sub_u32 s%d, s%d, 1" % (sHI, sXCC)); p("s_cmp_gt_u32 s%d, %d" % (sXCC, XPAIR)); p("s_cselect_b32 s64, 1, 0"); p("s_sub_u32 s%d, s%d, s64" % (sHI, sHI))
    p("s_lshl_b32 s%d, s%d, 5" % (sHI, sHI)); p("s_add_u32 s%d, s%d, s%d" % (sHI, sHI, sTICK))
    p("s_branch M_HELP")
    if GUESS:
        p.label("M_GUESS")
        p("s_mov_b32 s%d, 1" % sGUESS)
        p("s_cmp_eq_u32 s%d, 0" % sXCC); p("s_cselect_b32 s12, 0, 1"); p("s_branch M_REC")
        p.label("M_GFAIL")
        p("s_waitcnt vmcnt(0) lgkmcnt(0)"); p("s_barrier")
        p("s_cmp_lg_u32 s14, 0"); p("s_cbranch_scc1 M_GF1")
        p("v_mov_b32 v1, 0"); p("s_mov_b64 exec, 1"); p("ds_write_b32 v1, v70"); p("s_waitcnt lgkmcnt(0)"); p("s_mov_b64 exec, -1")
        p.label("M_GF1")
        p("s_barrier")
        p("v_mov_b32 v1, 0"); p("ds_read_b32 v2, v1"); p("s_waitcnt lgkmcnt(0)")
        p("v_readfirstlane_b32 s%d, v2" % sTICK)
        p("s_barrier")
        p("s_mov_b32 s%d, 0" % sGUESS)
        p("s_cmp_ge_u32 s%d, 32" % sTICK); p("s_cbranch_scc1 M_SLOW0")
        p("s_mov_b32 s13, s%d" % sTICK); lane_id(p); p("s_branch M_REC")
    p.label("M_SLOW0")
    wait_tickets(p)
    p.label("M_SLOW")
    p("s_waitcnt vmcnt(0) lgkmcnt(0)"); p("s_barrier")
    p("s_cmp_lg_u32 s14, 0"); p("s_cbranch_scc1 M_SLOWB")
    init.counter_add(p, str(init.D_C3))
    p.label("M_SLOWB")
    init.wait_counter(p, 256, str(init.D_C3) if False else "s%d" % init.sINITC, "SB") if False else None
    p("s_mov_b32 s%d, %d" % (init.sINITC, init.D_C3))
    init.wait_counter(p, 256, name="SB")
    p("s_mov_b32 s%d, %d" % (init.sINITC, init.D_C2))
    p("s_mov_b32 s%d, 1" % sSLOWF); p("s_mov_b32 s%d, 0" % sGUESS)
    p("s_cmp_lt_u32 s2, 64"); p("s_cbranch_scc0 M_SH")
    rec_srds(); p("s_waitcnt lgkmcnt(0)")
    p("s_lshr_b32 s12, s2, 5"); p("s_and_b32 s13, s2, 31"); p("s_branch M_REC")
    p.label("M_SH")
    p("s_sub_u32 s%d, s2, 64" % sHI)
    p("s_branch M_HELP")
    p.label("M_REC")
    lane_id(p)
    def rec_ready(q):
        check_mode(q)
        init.wait_counter(q, init.NHELP_A, name="RI")
        init.wait_second(q)
    st = rec.emit_rec(p, dbg, rec_ready, sSLOWF, lambda q, slot: tl_stamp(q, slot, dbg, 74), init.read_cand, guess=(sGUESS, init.D_MASK // 4, "M_GFAIL") if GUESS else None)
    if dbg and not os.environ.get("DBGMIN"): rec_dbg_dump(p, st)
    tl_stamp(p, 3, dbg)
    p("s_branch M_EXIT")
    p.label("M_HELP")
    lane_id(p)
    p("s_and_b32 s%d, s%d, 1" % (gemm.sHALF, sHI)); p("s_lshr_b32 s3, s%d, 1" % sHI); p("s_and_b32 s%d, s3, 31" % gemm.sH); p("s_lshr_b32 s3, s3, 5")
    p("s_load_dwordx4 s[48:51], s[0:1], 16"); p("s_load_dwordx2 s[52:53], s[0:1], 32")
    p("s_waitcnt lgkmcnt(0)")
    p("s_mov_b32 s46, %d" % WB); p("s_mov_b32 s47, 0x00020000")
    p("s_cmp_eq_u32 s3, 1"); p("s_cselect_b32 s44, s52, s50"); p("s_cselect_b32 s45, s53, s51")
    p("s_cmp_eq_u32 s3, 2"); p("s_cselect_b32 s44, s48, s44"); p("s_cselect_b32 s45, s49, s45")
    def first_w(q):
        if int(os.environ.get("QDELAY", "0")):
            lq = q.uid("QD"); q("s_cmp_lt_u32 s%d, 128" % sHI); q("s_cbranch_scc1 %s" % lq)
            for _ in range(int(os.environ.get("QDELAY", "0"))): q("s_sleep 127")
            q.label(lq)
        gemm.w128_first(q, 44, 40, 41, 42, 79, 81, 82)
    init.emit_init(p, sHI, 14, first_w)
    tl_stamp(p, 10, dbg)
    for _ in range(int(os.environ.get("HDELAY", "0"))): p("s_sleep 127")
    lane_id(p)
    roles = [(0, 50, "G_T"), (1, 52, "G_N"), (2, 48, "G_T")]
    for mat, sp, tgt in roles: p("s_cmp_eq_u32 s3, %d" % mat); p("s_cbranch_scc1 H_E%d" % mat)
    p("s_branch M_EXIT")
    for mat, sp, tgt in roles:
        p.label("H_E%d" % mat)
        gemm.setup_role(p, mat)
        p("s_branch %s" % tgt)
    for kind, nm in (("T", "G_T"), ("N", "G_N")):
        p.label(nm)
        gemm.load_weights(p, started=True)
        check_mode(p)
        init.wait_counter(p, init.NHELP_A, name="GI")
        lane_id(p)
        tl_stamp(p, 25, dbg) if os.environ.get("HST") else None
        init.finish_init(p, sHI, 14)
        if kind == "T":
            l_ = p.uid("NOSEL")
            p("s_cmp_lg_u32 s3, 2"); p("s_cbranch_scc1 %s" % l_)
            p("s_or_b32 s64, s%d, s%d" % (gemm.sH, gemm.sHALF)); p("s_or_b32 s64, s64, s14"); p("s_cmp_lg_u32 s64, 0"); p("s_cbranch_scc1 %s" % l_)
            p("s_mov_b32 s%d, 0" % mkv.sSPIN)
            moe.emit_select(p)
            lane_id(p)
            p.label(l_)
        gemm.emit_gemm(p, kind, nm, lambda q: None, lambda q: init.announce_init(q, sHI, 14))
        tl_stamp(p, 4, dbg)
        if kind == "T":
            p("s_cmp_eq_u32 s3, 2"); p("s_cbranch_scc1 H_Q")
        p("s_cmp_eq_u32 s%d, 1" % gemm.sHALF); p("s_cbranch_scc1 H_OUT")
        p("s_lshl_b32 s88, s3, 5"); p("s_add_u32 s88, s88, s%d" % gemm.sH)
        def wo_hook(p):
            lno = p.uid("NOWO")
            p("s_cmp_ge_u32 s88, 60"); p("s_cbranch_scc1 %s" % lno)
            p("s_mov_b32 s89, s%d" % gemm.sH)
            p("s_mul_hi_u32 s65, s88, 0x%x" % ((2**32 + 19) // 20)); p("s_mul_i32 s65, s65, 20"); p("s_sub_u32 s%d, s88, s65" % outp.sCT)
            srd(p, outp.sWO, 40, 4096 * 640 * 2)
            p("s_waitcnt lgkmcnt(0)")
            outp.load_wo(p)
            p("s_mov_b32 s%d, s89" % gemm.sH)
            p.label(lno)
        mkv.emit_mkv(p, kind, "MK" + kind, init.read_cand, wo_hook)
        tl_stamp(p, 5, dbg)
        p("s_cmp_ge_u32 s88, 60"); p("s_cbranch_scc1 M_EXIT")
        p("s_branch H_EXTRA")
    p.label("H_OUT")
    p("s_lshl_b32 s64, s3, 5"); p("s_add_u32 s64, s64, s%d" % gemm.sH)
    p("s_cmp_ge_u32 s64, 60"); p("s_cbranch_scc1 M_EXIT")
    p("s_mul_hi_u32 s%d, s64, 0x%x" % (outp.sGRP, (2**32 + 19) // 20)); p("s_mul_i32 s65, s%d, 20" % outp.sGRP); p("s_sub_u32 s%d, s64, s65" % outp.sCT)
    srd(p, outp.sWO, 40, 4096 * 640 * 2); srd(p, outp.sXI, 0, S * D * 2); srd(p, outp.sOUT, 96, S * D * 2)
    p("s_mov_b32 s36, -1"); p("s_mov_b32 s37, 0")
    p("s_waitcnt lgkmcnt(0)")
    outp.load_wo(p)
    p("s_barrier")
    if dbg >= 2: outp.STAMP[0] = lambda q, slot: tl_stamp(q, slot, dbg)
    outp.emit_out(p, "OU", lambda q: (moe.wait_count(q, FLG_MOE, 1, "OUS"), tl_stamp(q, 8, dbg)), lambda q: moe.wait_count(q, FLG_MOE + 256, 40, "OUW"))
    tl_stamp(p, 7, dbg)
    p("s_branch M_EXIT")
    p.label("H_EXTRA")
    p("s_mul_hi_u32 s%d, s88, 0x%x" % (outp.sGRP, (2**32 + 19) // 20)); p("s_mul_i32 s65, s%d, 20" % outp.sGRP); p("s_sub_u32 s%d, s88, s65" % outp.sCT)
    p("s_add_u32 s%d, s%d, 3" % (outp.sGRP, outp.sGRP))
    srd(p, outp.sXI, 0, S * D * 2); srd(p, outp.sOUT, 96, S * D * 2)
    p("s_mov_b32 s36, -1"); p("s_mov_b32 s37, 0")
    p("s_waitcnt lgkmcnt(0)")
    lane_id(p)
    outp.emit_extra(p, "OX", lambda q: moe.wait_count(q, FLG_MOE + 256, 40, "OXW"))
    tl_stamp(p, 7, dbg)
    p("s_branch M_EXIT")
    p.label("H_Q")
    tl_stamp(p, 9, dbg)
    def moe_srds():
        p("s_lshl_b32 s70, s%d, 1" % gemm.sH); p("s_add_u32 s70, s70, s%d" % gemm.sHALF)
        srd(p, moe.sWG, 72, 640 * 1728 * 2); srd(p, moe.sWU, 80, 640 * 1728 * 2); srd(p, moe.sWD, 88, 640 * 1728 * 2)
        p("s_mov_b32 s%d, 0" % mkv.sSPIN)
        p("s_waitcnt lgkmcnt(0)")
        lane_id(p)
    moe_srds()
    p("s_lshl_b32 s%d, s70, 2" % moe.sTASK); p("s_add_u32 s%d, s%d, s14" % (moe.sTASK, moe.sTASK))
    p("s_cmp_ge_u32 s%d, 108" % moe.sTASK); p("s_cbranch_scc1 H_A0")
    tl_stamp(p, 15, dbg)
    moe.emit_f1(p)
    tl_stamp(p, 16, dbg)
    p.label("H_A0")
    lane_id(p)
    att.emit_att(p, "AT0", 0, 1)
    moe_srds()
    p("s_cmp_lg_u32 s14, 0"); p("s_cbranch_scc1 H_ATT")
    p("s_cmp_ge_u32 s70, 40"); p("s_cbranch_scc1 H_ATT")
    p("s_mov_b32 s%d, s70" % moe.sTASK)
    tl_stamp(p, 17, dbg)
    moe.emit_f2(p, lambda q: tl_stamp(q, 18, dbg), lambda q: tl_stamp(q, 19, dbg))
    tl_stamp(p, 14, dbg)
    p.label("H_ATT")
    lane_id(p)
    att.emit_att(p, "AT2", 1, 8)
    tl_stamp(p, 6, dbg)
    p.label("M_EXIT"); p("s_endpgm")
    return p, label

def rec_dbg_dump(p, st):
    p("s_lshl_b32 s%d, s%d, 5" % (rec.sT0, rec.sX)); p("s_add_u32 s%d, s%d, s%d" % (rec.sT0, rec.sT0, rec.sH))
    p("s_lshl_b32 s%d, s%d, 2" % (rec.sT0, rec.sT0)); p("s_add_u32 s%d, s%d, s%d" % (rec.sT0, rec.sT0, rec.sW))
    p("s_lshl_b32 s%d, s%d, 7" % (rec.sT0, rec.sT0)); rec.add_const(p, rec.sT0, rec.sT0, DBG)
    vals = [100, 8, 98 if not rec.STAMPS[0] else rec.sSPIN, rec.sISOWN, rec.sCNT] + [rec.sTS + 2 * i for i in range(len(st.stamps))] + [rec.sCNT2, 60, 61]
    open('stamps.txt', 'w').write(','.join(st.stamps))
    p("v_mov_b32 v1, 0"); p("s_mov_b64 exec, 1")
    for i, sreg in enumerate(vals):
        p("v_mov_b32 v2, s%d" % sreg)
        p("buffer_store_dword v2, v1, s[%d:%d], s%d offen offset:%d" % (rec.sWS, rec.sWS + 3, rec.sT0, 4 * i))
    p("s_waitcnt vmcnt(0)"); p("s_mov_b64 exec, -1")

def write(path, launches, progs):
    txt = HEADER
    if len(launches) == 1 and launches[0][0] == NAME + "_kernel":
        txt += "; @launch grid=(%d,1,1) block=(%d,1,1) lds=%d\n" % launches[0][1:]
    else:
        for k, g, b, lds in launches: txt += "; @launch kernel=%s grid=(%d,1,1) block=(%d,1,1) lds=%d\n" % (k, g, b, lds)
    txt += '.amdgcn_target "amdgcn-amd-amdhsa--gfx950"\n'
    for p, label, v, s, a in progs: txt += p.text()
    for p, label, v, s, a in progs: txt += descriptor(label, v, s, a)
    open(path, "w").write(txt)

if __name__ == "__main__":
    mode = sys.argv[1]
    if mode == "rec":
        dbg = int(sys.argv[3]) if len(sys.argv) > 3 else 0
        p, label = rec_standalone(dbg)
        probs = check(p.lines, "rec")
        i0 = p.lines.index("REC_LOOP:"); i1 = p.lines.index("REC_TAIL:")
        probs += check(p.lines[i0:i1] + p.lines[i0:i1], "loop-wrap")
        for x in dict.fromkeys(probs): print("HAZARD", x)
        p0, l0 = k0_kernel(True)
        for x in dict.fromkeys(check(p0.lines, "k0")): print("HAZARD", x)
        write(sys.argv[2], [(l0, 256, 256, 64), (label, 256, 256, 163840)], [(p0, l0, 80, 72, 80), (p, label, 512, 102, 256)])
        print("instructions:", sum(1 for l in p.lines if not l.endswith(":") and not l.startswith((";", "."))),
              "loop:", sum(1 for l in p.lines[i0:i1] if not l.endswith(":") and not l.startswith((";", "."))))

    if mode == "gemm":
        p0, l0 = k0_kernel(False)
        p, label = gemm_kernel()
        probs = check(p.lines, "gemm")
        for nm in ("G_T", "G_N"):
            i0 = p.lines.index(nm + "_LOOP:"); i1 = i0 + next(i for i, l in enumerate(p.lines[i0:]) if l.startswith("s_cbranch_scc1 " + nm + "_LOOP"))
            probs += check(p.lines[i0:i1] + p.lines[i0:i1], "wrap")
        for x in dict.fromkeys(probs): print("HAZARD", x)
        write(sys.argv[2], [(l0, 256, 256, 64), (label, 192, 256, 163840)], [(p0, l0, 80, 72, 80), (p, label, 512, 102, 256)])
        print("instructions:", sum(1 for l in p.lines if not l.endswith(":") and not l.startswith((";", "."))))

    if mode == "multi":
        devd = int(sys.argv[3]) if len(sys.argv) > 3 else 0
        p0, l0 = k0_kernel(False)
        pg, lgm = gemm_kernel()
        pr, lr = rec_standalone(devd)
        pm, lm = mkv_kernel(); pa, la = att_kernel(); po, lo = out_kernel()
        mk = moe_kernels()
        progs = [(p0, l0, 80, 72, 80), (pg, lgm, 512, 102, 256), (pr, lr, 512, 102, 256), (pm, lm, 512, 102, 256), (pa, la, 256, 102, 256)]
        progs += [(p, l, 256, 102, 256) for p, l, g in mk] + [(po, lo, 512, 102, 256)]
        launches = [(l0, 256, 256, 64), (lgm, 192, 256, 163840), (lr, 256, 256, 163840), (lm, 64, 256, 163840), (la, 64, 256, 0)]
        launches += [(l, g, 256, 163840) for p, l, g in mk] + [(lo, 60, 256, 163840)]
        for p, l, *_ in progs:
            for x in dict.fromkeys(check(p.lines, l)): print("HAZARD", x)
        write(sys.argv[2], launches, progs)
        print("written")

    if mode == "fused":
        devd = int(sys.argv[3]) if len(sys.argv) > 3 else 0
        import os
        pm, lm = fused_kernel(devd, bool(os.environ.get("FORCE_SLOW")))
        for x in dict.fromkeys(check(pm.lines, lm)): print("HAZARD", x)
        write(sys.argv[2], [(lm, 256, 256, 163840)], [(pm, lm, 512, 102, 256)])
        print("instructions:", sum(1 for l in pm.lines if not l.endswith(":") and not l.startswith((";", "."))))
```
